```python
import torch

def _softmax(x, axis=-1):
    return torch.softmax(x, dim=axis)
def _gelu(x):
    return torch.nn.functional.gelu(x, approximate="tanh")
def _silu(x):
    return torch.nn.functional.silu(x)
def _sigmoid(x):
    return torch.sigmoid(x)
def _layernorm(x, axis=-1, eps=1e-5):
    m = x.mean(dim=axis, keepdim=True)
    v = x.var(dim=axis, keepdim=True, unbiased=False)
    return (x - m) / torch.sqrt(v + eps)
def _scatter_add(tgt, idx, src, axis=0):
    return tgt.clone().index_add_(axis, idx, src)
def _segment_sum(src, seg, n):
    out = torch.zeros((n,) + src.shape[1:], dtype=src.dtype)
    return out.index_add_(0, seg, src)
def _pad(x, pw):
    flat = tuple(v for pair in reversed(pw) for v in pair)
    return torch.nn.functional.pad(x, flat)

kernel_name = 'parallel_sum__grouped_kv_mqa__glu_gated_reglu__prompt'

def setup_inputs():

    _w = (lambda a: (lambda t: t.to(torch.bfloat16) if t.is_floating_point() else t)(torch.as_tensor(a)))
    def _A_setup():
        B, S, D, H = 1, 2048, 1024, 32
        Dh = D // H
        return {
            "x": _w((lambda *s: torch.randn(*s, dtype=torch.bfloat16) * 0.05)(B, S, D)),
            "wq": _w((lambda *s: torch.randn(*s, dtype=torch.bfloat16) * 0.05)(D, H * Dh)),
            "wk": _w((lambda *s: torch.randn(*s, dtype=torch.bfloat16) * 0.05)(D, Dh)),
            "wv": _w((lambda *s: torch.randn(*s, dtype=torch.bfloat16) * 0.05)(D, Dh)),
            "wo": _w((lambda *s: torch.randn(*s, dtype=torch.bfloat16) * 0.05)(H * Dh, D)),
        }
    _A_in = _A_setup()

    def _B_setup():
        B, S, D, F = 1, 2048, 1024, 3584
        return {
            "x": _w((lambda *s: torch.randn(*s, dtype=torch.bfloat16) * 0.05)(B, S, D)),
            "W_gate": _w((lambda *s: torch.randn(*s, dtype=torch.bfloat16) * 0.8)(D, F) * (2.0 / D) ** 0.5),
            "W_up": _w((lambda *s: torch.randn(*s, dtype=torch.bfloat16) * 0.8)(D, F) * (2.0 / D) ** 0.5),
            "W_down": _w((lambda *s: torch.randn(*s, dtype=torch.bfloat16) * 0.8)(F, D) * (1.0 / F) ** 0.5),
        }
    _B_in = _B_setup()

    return {
        "A_x": _A_in["x"],
        "A_wq": _A_in["wq"],
        "A_wk": _A_in["wk"],
        "A_wv": _A_in["wv"],
        "A_wo": _A_in["wo"],
        "B_x": _B_in["x"],
        "B_W_gate": _B_in["W_gate"],
        "B_W_up": _B_in["W_up"],
        "B_W_down": _B_in["W_down"],
    }

def reference(A_x, A_wq, A_wk, A_wv, A_wo, B_x, B_W_gate, B_W_up, B_W_down):
    def _A_ref(x, wq, wk, wv, wo):
        B, S, D = x.shape
        H = 32
        Dh = D // H
        q = (lambda x, *d: x.permute(*d))((x @ wq).reshape(B, S, H, Dh), 0, 2, 1, 3)
        k = x @ wk
        v = x @ wv
        scores = torch.einsum("bhqd,bkd->bhqk", q, k) * (Dh ** -0.5)
        p = _softmax(scores, axis=-1)
        o = torch.einsum("bhqk,bkd->bhqd", p, v)
        return (lambda x, *d: x.permute(*d))(o, 0, 2, 1, 3).reshape(B, S, H * Dh) @ wo

    def _B_ref(x, W_gate, W_up, W_down):
        gate = torch.einsum("bsd,df->bsf", x, W_gate)
        up = torch.einsum("bsd,df->bsf", x, W_up)
        gate = gate * (lambda x, dt: x.to(dt))(gate > 0, gate.dtype)
        h = gate * up
        return torch.einsum("bsf,fd->bsd", h, W_down)

    x = A_x
    xn = _layernorm(x, axis=-1)
    return x + _A_ref(xn, A_wq, A_wk, A_wv, A_wo) + _B_ref(xn, B_W_gate, B_W_up, B_W_down)
```

```python
class A:
    def __init__(self):
        self.l = []
    def __call__(self, s):
        for x in s.strip("\n").split("\n"):
            self.l.append("    " + x.strip() if not x.strip().endswith(":") else x.strip())
    def label(self, n): self.l.append(n + ":")
    def c(self, s): self.l.append("    ; " + s)
    def raw(self, s): self.l.append(s)
    def text(self): return "\n".join(self.l) + "\n"

def v(i, n=1): return f"v{i}" if n == 1 else f"v[{i}:{i+n-1}]"
def s(i, n=1): return f"s{i}" if n == 1 else f"s[{i}:{i+n-1}]"

def srd(a, d, base_lo, base_hi, nbytes, add_lo=None):
    if add_lo is None:
        a(f"s_mov_b32 s{d}, s{base_lo}")
        a(f"s_mov_b32 s{d+1}, s{base_hi}")
    else:
        a(f"s_add_u32 s{d}, s{base_lo}, {add_lo}")
        a(f"s_addc_u32 s{d+1}, s{base_hi}, 0")
    a(f"s_mov_b32 s{d+2}, {nbytes}")
    a(f"s_mov_b32 s{d+3}, 0x20000")

def kernel_head(a, name):
    a.raw(f".globl {name}")
    a.raw(".p2align 8")
    a.raw(f".type {name},@function")
    a.raw(f"{name}:")

def kernel_desc(name, vgpr, sgpr=102, agpr=0):
    acc = (vgpr + 3) // 4 * 4
    return f""".p2align 6
.amdhsa_kernel {name}
  .amdhsa_next_free_vgpr {acc + agpr if agpr else vgpr}
  .amdhsa_next_free_sgpr {sgpr}
  .amdhsa_accum_offset {acc}
  .amdhsa_group_segment_fixed_size 0
  .amdhsa_kernarg_size 96
  .amdhsa_user_sgpr_count 2
  .amdhsa_user_sgpr_kernarg_segment_ptr 1
  .amdhsa_system_sgpr_workgroup_id_x 1
.end_amdhsa_kernel
"""

K_X, K_WQ, K_WK, K_WV, K_WO, K_BX, K_WG, K_WU, K_WD, K_OUT, K_DBG, K_WS = [8 * i for i in range(12)]
WS_XN = 0
WS_Q = 4 << 20
WS_KV = 8 << 20
WS_FLAG = (8 << 20) + (512 << 10)
WS_ACT = 9 << 20
ACT_NU = 144
WS_PART = 32 << 20

import os
STAMPS = os.environ.get("STAMPS", "0") == "1"
WS_STAMP = 128 << 20
def stamp(a, i):
    if not STAMPS: return
    a(f"s_memtime s[{60+4*i}:{61+4*i}]")
    a(f"s_memrealtime s[{62+4*i}:{63+4*i}]")
def stamp_flush(a, kidx, n, wsreg, wave_sgpr, vt=1):
    if not STAMPS: return
    a("s_waitcnt lgkmcnt(0)")
    a(f"s_add_u32 s100, s{wsreg}, {WS_STAMP + kidx * (1 << 20)}")
    a(f"s_addc_u32 s101, s{wsreg+1}, 0")
    a("s_lshl_b32 s32, s2, 3")
    a(f"s_add_u32 s32, s32, s{wave_sgpr}")
    a("s_lshl_b32 s32, s32, 6")
    a(f"v_mov_b32 v{vt}, s32")
    for i in range(n):
        a(f"v_mov_b32 v{vt+1}, s{60+4*i}")
        a(f"v_mov_b32 v{vt+2}, s{62+4*i}")
        a(f"global_store_dword v{vt}, v{vt+1}, s[100:101] offset:{8*i}")
        a(f"global_store_dword v{vt}, v{vt+2}, s[100:101] offset:{8*i+4}")
```

```python
from asmlib import *
NAME = "ln_kv_kernel"
def gen(a):
    kernel_head(a, NAME)
    a("s_cmp_ge_u32 s2, 128")
    a("s_cbranch_scc1 K0_END")
    stamp(a, 0)
    a(f"s_load_dwordx2 s[4:5], s[0:1], {K_X}")
    a(f"s_load_dwordx4 s[8:11], s[0:1], {K_WK}")
    a(f"s_load_dwordx2 s[6:7], s[0:1], {K_WS}")
    a("v_and_b32 v1, 63, v0")
    a("v_lshrrev_b32 v2, 6, v0")
    a("v_and_b32 v3, 15, v1")
    a("v_lshrrev_b32 v4, 4, v1")
    a("v_readfirstlane_b32 s3, v2")
    a("v_lshlrev_b32 v5, 11, v3")
    a("v_lshl_add_u32 v5, v4, 4, v5")
    a("v_lshlrev_b32 v6, 4, v1")
    a("s_lshl_b32 s12, s2, 15")
    a("s_lshl_b32 s13, s3, 8")
    a("s_add_u32 s12, s12, s13")
    a("s_waitcnt lgkmcnt(0)")
    srd(a, 16, 4, 5, 2048 * 1024 * 2)
    srd(a, 20, 8, 9, 1024 * 32 * 2)
    srd(a, 24, 10, 11, 1024 * 32 * 2)
    for j in range(4):
        a(f"buffer_load_dwordx4 {v(10+4*j,4)}, v5, s[16:19], s12 offen offset:{j*64}")
    a("s_lshl_b32 s14, s3, 13")
    a("s_lshl_b32 s15, s3, 14")
    for m in range(2):
        for h in range(2):
            a(f"s_add_u32 m0, s15, {m*8192 + h*4096}")
            a(f"s_add_u32 s28, s14, {h*4096}")
            for i in range(4):
                a(f"buffer_load_dwordx4 v6, s[{20+4*m}:{23+4*m}], s28 offen offset:{i*1024} lds")
    srd(a, 32, 6, 7, 4 << 20, add_lo=WS_XN)
    srd(a, 36, 6, 7, 256 << 10, add_lo=WS_KV)
    srd(a, 40, 6, 7, 64 << 10, add_lo=WS_FLAG)
    a("v_mov_b32 v7, 0")
    a("v_lshlrev_b32 v8, 2, v0")
    a("s_lshl_b32 s29, s2, 9")
    a("v_cmp_gt_u32 vcc, 128, v0")
    a("s_and_saveexec_b64 s[30:31], vcc")
    a("s_cbranch_execz K0_NOFLAG")
    a("buffer_store_dword v7, v8, s[40:43], s29 offen")
    a.label("K0_NOFLAG")
    a("s_mov_b64 exec, s[30:31]")
    a("v_lshlrev_b32 v8, 5, v3")
    a("v_add_u32 v8, 0x20000, v8")
    a("v_lshl_add_u32 v9, v2, 2, v8")
    a("s_mov_b32 s44, 0xffff0000")
    a("s_waitcnt vmcnt(16)")
    stamp(a, 1)
    for j in range(4):
        for r in range(4):
            src = 10 + 4 * j + r
            a(f"v_lshlrev_b32 v{32+8*j+2*r}, 16, v{src}")
            a(f"v_and_b32 v{33+8*j+2*r}, s44, v{src}")
    def tree(dst, regs_pairs):
        pass
    a("v_pk_add_f32 v[64:65], v[32:33], v[34:35]")
    a("v_pk_add_f32 v[66:67], v[36:37], v[38:39]")
    for k in range(4, 16, 2):
        a(f"v_pk_add_f32 v[64:65], v[64:65], v[{32+2*k}:{33+2*k}]")
        a(f"v_pk_add_f32 v[66:67], v[66:67], v[{34+2*k}:{35+2*k}]")
    a("v_pk_add_f32 v[64:65], v[64:65], v[66:67]")
    a("v_add_f32 v64, v64, v65")
    def xreduce(off):
        a("v_mov_b32 v65, v64")
        a("s_nop 1")
        a("v_permlane32_swap_b32 v64, v65")
        a("s_nop 0")
        a("v_add_f32 v64, v64, v65")
        a("v_mov_b32 v65, v64")
        a("s_nop 1")
        a("v_permlane16_swap_b32 v64, v65")
        a("s_nop 0")
        a("v_add_f32 v64, v64, v65")
        a(f"ds_write_b32 v9, v64 offset:{off}")
        a("s_waitcnt lgkmcnt(0)")
        a("s_barrier")
        a(f"ds_read_b128 v[68:71], v8 offset:{off}")
        a(f"ds_read_b128 v[72:75], v8 offset:{off+16}")
        a("s_waitcnt lgkmcnt(0)")
        a("v_pk_add_f32 v[68:69], v[68:69], v[70:71]")
        a("v_pk_add_f32 v[72:73], v[72:73], v[74:75]")
        a("v_pk_add_f32 v[68:69], v[68:69], v[72:73]")
        a("v_add_f32 v64, v68, v69")
    xreduce(0)
    a("v_mul_f32 v76, 0x3a800000, v64")
    a("v_mov_b32 v77, v76")
    a("v_mov_b32 v64, 0")
    a("v_mov_b32 v65, 0")
    a("v_mov_b32 v66, 0")
    a("v_mov_b32 v67, 0")
    for k in range(16):
        t = 80 + 2 * (k % 4)
        a(f"v_pk_add_f32 v[{t}:{t+1}], v[{32+2*k}:{33+2*k}], v[76:77] neg_lo:[0,1] neg_hi:[0,1]")
        acc = 64 + 2 * (k % 2)
        a(f"v_pk_fma_f32 v[{acc}:{acc+1}], v[{t}:{t+1}], v[{t}:{t+1}], v[{acc}:{acc+1}]")
    a("v_pk_add_f32 v[64:65], v[64:65], v[66:67]")
    a("v_add_f32 v64, v64, v65")
    xreduce(512)
    def rbf(r):
        a(f"v_cvt_pk_bf16_f32 v{r}, v{r}, v{r}")
        a(f"v_and_b32 v{r}, s44, v{r}")
    a("v_mul_f32 v64, 0x3a800000, v64")
    rbf(64)
    a("v_add_f32 v64, 0x3727c5ac, v64")
    rbf(64)
    a("v_sqrt_f32 v64, v64")
    a("s_nop 0")
    rbf(64)
    a("v_rcp_f32 v78, v64")
    rbf(76)
    a("v_mov_b32 v77, v76")
    a("v_mov_b32 v79, v78")
    for k in range(16):
        t = 80 + 2 * (k % 4)
        a(f"v_pk_add_f32 v[{t}:{t+1}], v[{32+2*k}:{33+2*k}], v[76:77] neg_lo:[0,1] neg_hi:[0,1]")
        a(f"v_cvt_pk_bf16_f32 v{t+1}, v{t}, v{t+1}")
        a(f"v_lshlrev_b32 v{t}, 16, v{t+1}")
        a(f"v_and_b32 v{t+1}, s44, v{t+1}")
        a(f"v_pk_mul_f32 v[{t}:{t+1}], v[{t}:{t+1}], v[78:79]")
        a(f"v_cvt_pk_bf16_f32 v{10+k}, v{t}, v{t+1}")
    a("s_lshr_b32 s45, s2, 4")
    a("s_lshl_b32 s45, s45, 19")
    a("s_and_b32 s46, s2, 15")
    a("s_lshl_b32 s46, s46, 10")
    a("s_add_u32 s45, s45, s46")
    a("s_lshl_b32 s46, s3, 16")
    a("s_add_u32 s45, s45, s46")
    a("v_lshrrev_b32 v26, 2, v3")
    a("v_lshl_add_u32 v26, v4, 3, v26")
    a("v_lshlrev_b32 v26, 6, v26")
    a("v_and_b32 v27, 3, v1")
    a("v_lshl_add_u32 v26, v27, 3, v26")
    a("v_add_u32 v26, s15, v26")
    stamp(a, 2)
    a("s_waitcnt vmcnt(0)")
    stamp(a, 3)
    for j in range(4):
        a(f"s_add_u32 s46, s45, {j*16384}")
        a(f"buffer_store_dwordx4 {v(10+4*j,4)}, v6, s[32:35], s46 offen")
    for m in range(2):
        for dt in range(2):
            for j in range(4):
                for h in range(2):
                    r = 32 + ((m * 2 + dt) * 4 + j) * 4 + 2 * h
                    a(f"ds_read_b64_tr_b16 {v(r,2)}, v26 offset:{m*8192 + j*2048 + h*256 + dt*32}")
    a("s_waitcnt lgkmcnt(0)")
    for j in range(4):
        for m in range(2):
            for dt in range(2):
                w = 32 + ((m * 2 + dt) * 4 + j) * 4
                x = 10 + 4 * j
                d = 96 + (m * 2 + dt) * 4
                c = "0" if j == 0 else v(d, 4)
                if m == 0:
                    a(f"v_mfma_f32_16x16x32_bf16 {v(d,4)}, {v(w,4)}, {v(x,4)}, {c}")
                else:
                    a(f"v_mfma_f32_16x16x32_bf16 {v(d,4)}, {v(x,4)}, {v(w,4)}, {c}")
    a("v_add_u32 v27, s15, v6")
    a("s_nop 7")
    for tl in range(4):
        a(f"ds_write_b128 v27, {v(96+4*tl,4)} offset:{tl*1024}")
    a("s_waitcnt lgkmcnt(0)")
    a("s_barrier")
    a("s_cmp_ge_u32 s3, 4")
    a("s_cbranch_scc1 K0_FIN")
    a("s_lshl_b32 s46, s3, 10")
    a("v_add_u32 v27, s46, v6")
    a("v_add_u32 v28, 0x10000, v27")
    for w in range(8):
        a(f"ds_read_b128 {v(32+4*w,4)}, v{27 + w//4} offset:{(w%4)*16384}")
    a("s_waitcnt lgkmcnt(0)")
    for st in (1, 2, 4):
        for w in range(0, 8, 2 * st):
            for h in range(2):
                d = 32 + 4 * w + 2 * h; e = 32 + 4 * (w + st) + 2 * h
                a(f"v_pk_add_f32 {v(d,2)}, {v(d,2)}, {v(e,2)}")
    a("v_cvt_pk_bf16_f32 v32, v32, v33")
    a("v_cvt_pk_bf16_f32 v33, v34, v35")
    a("s_lshr_b32 s45, s2, 1")
    a("s_lshl_b32 s45, s45, 11")
    a("s_and_b32 s46, s2, 1")
    a("s_and_b32 s47, s3, 1")
    a("s_cmp_ge_u32 s3, 2")
    a("s_cbranch_scc1 K0_V")
    a("v_lshlrev_b32 v29, 9, v4")
    a("v_lshl_add_u32 v29, v3, 4, v29")
    a("s_lshl_b32 s46, s46, 8")
    a("s_lshl_b32 s47, s47, 3")
    a("s_branch K0_ST")
    a.label("K0_V")
    a("v_and_b32 v29, 1, v4")
    a("v_lshlrev_b32 v29, 9, v29")
    a("v_lshl_add_u32 v29, v3, 4, v29")
    a("v_lshrrev_b32 v30, 1, v4")
    a("v_lshl_add_u32 v29, v30, 3, v29")
    a("s_lshl_b32 s46, s46, 10")
    a("s_add_u32 s46, s46, 0x20000")
    a("s_lshl_b32 s47, s47, 8")
    a.label("K0_ST")
    a("s_add_u32 s45, s45, s46")
    a("s_add_u32 s45, s45, s47")
    a("buffer_store_dwordx2 v[32:33], v29, s[36:39], s45 offen")
    a.label("K0_FIN")
    stamp(a, 4)
    if STAMPS: a("s_waitcnt vmcnt(0)")
    stamp(a, 5)
    stamp_flush(a, 0, 6, 6, 3)
    a.label("K0_END")
    a("s_endpgm")
    return dict(name=NAME, grid=128, block=512, lds=131072 + 1024, vgpr=112, sgpr=102)
```

```python
from asmlib import *
import struct, math, os
NAME = "main_kernel"
QSCALE = struct.unpack("<I", struct.pack("<f", math.log2(math.e) / math.sqrt(32.0)))[0]
STOP = os.environ.get("STOP", "")
KVL = 131072
QLDS = 0
F_H, F_O, F_P = 0, 4096, 32768
SPIN_MAX = 1 << 22

S_WAVE = 3
P_WQ, P_WS, P_WG, P_WU = 4, 6, 8, 10
SX = 12
S_XO, S_MX, S_MW, S_CNT = 20, 23, 24, 25
S_CT, S_RP, S_WM, S_P, S_BB, S_WN = 26, 27, 28, 29, 30, 31
T0, T1, T2, T3 = 32, 33, 34, 35
SACT = 36
SKV = 40
P_X, P_WO, P_WD, P_OUT = 44, 46, 48, 50
S_G, S_C2, S_KH = 52, 53, 54
S_KVO, S_MKV = 55, 56
SFLAG = 58
SWD = 16
SWO = 92
SPART = 96
S_AO, S_WDO, S_RING = 21, 22, 57
VL, VXD, VWA, VWB, VWS, VXR, VW0R, VW1R, VQQ, VT = 1, 2, 4, 6, 8, 10, 12, 14, 16, 17
VKVR, VKVD, VPA, VPW, VZ = 18, 19, 20, 21, 3
ACC, XF, WF = 128, 64, 32
def acc(st, t, j): return ACC + ((st * 2 + t) * 8 + j) * 4
def xf(p, j): return XF + (p * 8 + j) * 4
def wf(p, st, t): return WF + (p * 4 + st * 2 + t) * 4

def p1_dma(slot):
    return [
        [f"s_add_u32 m0, s{S_MX}, {slot*32768}", "s_nop 0",
         f"buffer_load_dwordx4 v{VXD}, s[{SX}:{SX+3}], s{S_XO} offen lds"],
        [f"buffer_load_dwordx4 v{VXD}, s[{SX}:{SX+3}], s{S_XO} offen offset:1024 lds",
         f"s_add_u32 m0, s{S_MW}, {slot*32768}", f"s_add_u32 s{S_XO}, s{S_XO}, 16384"],
        [f"global_load_lds_dwordx4 {v(VWA,2)}, off",
         f"s_add_u32 m0, s{S_MW}, {slot*32768+2048}",
         f"v_lshl_add_u64 {v(VWA,2)}, {v(VWS,2)}, 0, {v(VWA,2)}"],
        [f"global_load_lds_dwordx4 {v(VWB,2)}, off",
         f"v_lshl_add_u64 {v(VWB,2)}, {v(VWS,2)}, 0, {v(VWB,2)}"]]

def p1_reads(slot, p):
    h = slot >> 1; o = (slot & 1) * 32768
    r = []
    for st in range(2):
        for t in range(2):
            for half in range(2):
                base = (VW0R if t == 0 else VW1R) + h
                r.append(f"ds_read_b64_tr_b16 {v(wf(p,st,t)+2*half,2)}, v{base} offset:{o + st*8192 + half*4096}")
    for j in range(8):
        r.append(f"ds_read_b128 {v(xf(p,j),4)}, v{VXR+h} offset:{o + j*1024}")
    return r

def p1_mfma(p):
    m = []
    for j in range(8):
        order = [(0,0),(0,1),(1,0),(1,1)]
        if j & 1: order = order[::-1]
        for st, t in order:
            d = acc(st, t, j)
            m.append(f"v_mfma_f32_16x16x32_bf16 {v(d,4)}, {v(wf(p,st,t),4)}, {v(xf(p,j),4)}, {v(d,4)}")
    return m

def weave(a, m, fill):
    for i, ins in enumerate(m):
        a(ins)
        if i < len(fill):
            for x in fill[i]: a(x)
    for g in fill[len(m):]:
        for x in g: a(x)

def p1_step(a, t, dma, reads, endwait, barrier, extra=()):
    p = t & 1
    fill = list(extra)
    if dma: fill += p1_dma(t % 4)
    if reads: fill += [[x] for x in p1_reads((t + 1) % 4, p ^ 1)]
    weave(a, p1_mfma(p), fill)
    if endwait: a(endwait)
    if barrier: a("s_barrier")

def kv_dma():
    return [[f"s_mov_b32 m0, s{S_MKV}", f"s_xor_b32 s{S_MKV}, s{S_MKV}, 0x4000",
             f"buffer_load_dwordx4 v{VKVD}, s[{SKV}:{SKV+3}], s{S_KVO} offen lds"],
            [f"buffer_load_dwordx4 v{VKVD}, s[{SKV}:{SKV+3}], s{S_KVO} offen offset:1024 lds",
             f"s_add_u32 s{S_KVO}, s{S_KVO}, 8192"]]

def signal(a, off_sgpr):
    a(f"v_mov_b32 v22, s{off_sgpr}")
    a("v_mov_b32 v23, 1")
    a("s_mov_b64 exec, 1")
    a(f"global_atomic_add v22, v23, s[{SFLAG}:{SFLAG+1}] sc1")
    a("s_mov_b64 exec, -1")

def poll_issue(a, off_sgpr, vdst, vaddr):
    a(f"v_mov_b32 v{vaddr}, s{off_sgpr}")
    a(f"global_load_dword v{vdst}, v{vaddr}, s[{SFLAG}:{SFLAG+1}] sc1")

_lab = [0]
def poll_check(a, target, vdst, vaddr):
    _lab[0] += 1
    n = _lab[0]
    a(f"s_mov_b32 s{T1}, {SPIN_MAX}")
    a.label(f"PL{n}")
    a(f"v_readfirstlane_b32 s{T0}, v{vdst}")
    a("s_nop 0")
    a(f"s_cmp_ge_u32 s{T0}, {target}")
    a(f"s_cbranch_scc1 PD{n}")
    a(f"s_sub_u32 s{T1}, s{T1}, 1")
    a(f"s_cbranch_scc1 PD{n}")
    a("s_sleep 2")
    a(f"global_load_dword v{vdst}, v{vaddr}, s[{SFLAG}:{SFLAG+1}] sc1")
    a("s_waitcnt vmcnt(0)")
    a(f"s_branch PL{n}")
    a.label(f"PD{n}")
    a("buffer_inv sc1")

QF, KB, VB, PB, SEL, RS, SB, OA, NM = 32, 40, 56, 72, 88, 92, 96, 128, 144
def mf32(d, x, y, c): return f"v_mfma_f32_32x32x16_bf16 {v(d,16)}, {v(x,4)}, {v(y,4)}, {c}"
def att_slot(a, n, qk=True, pv=True, rd=True, pre=()):
    b = n & 1
    S = SB + 16 * b; S1 = SB + 16 * (b ^ 1)
    P = PB + 8 * b; P1 = PB + 8 * (b ^ 1)
    K1 = KB + 8 * (b ^ 1); V1 = VB + 8 * (b ^ 1)
    m = []
    if qk:
        m.append(mf32(S1, K1, QF, v(NM, 16)))
        m.append(mf32(S1, K1 + 4, QF + 4, v(S1, 16)))
    if pv:
        m.append(mf32(OA, V1, P1, v(OA, 16)))
        m.append(f"v_mfma_f32_16x16x32_bf16 {v(RS,4)}, {v(SEL,4)}, {v(P1,4)}, {v(RS,4)}")
        m.append(mf32(OA, V1 + 4, P1 + 4, v(OA, 16)))
        m.append(f"v_mfma_f32_16x16x32_bf16 {v(RS,4)}, {v(SEL,4)}, {v(P1+4,4)}, {v(RS,4)}")
    val = []
    for i in range(16):
        val.append(f"v_exp_f32 v{S+i}, v{S+i}")
        if i >= 2 and i % 2 == 0:
            val.append(f"v_cvt_pk_bf16_f32 v{P+i//2-1}, v{S+i-2}, v{S+i-1}")
    val.append("s_nop 0")
    val.append(f"v_cvt_pk_bf16_f32 v{P+7}, v{S+14}, v{S+15}")
    rds = []
    if rd:
        pos = (n & 3) * 2048
        rds = [f"ds_read_b128 {v(KB+8*b,4)}, v{VKVR} offset:{pos}",
               f"ds_read_b128 {v(KB+8*b+4,4)}, v{VKVR} offset:{pos+1024}",
               f"ds_read_b128 {v(VB+8*b,4)}, v{VKVR} offset:{8192+pos}",
               f"ds_read_b128 {v(VB+8*b+4,4)}, v{VKVR} offset:{8192+pos+1024}"]
    other = [list(g) for g in pre] + [[x] for x in rds]
    cuts = [0, 4, 9, 13, 16, 21] if len(m) == 6 else [0, 4, 9, 13, 16, 21][:len(m)]
    k = 0; oi = 0
    for i, x in enumerate(val):
        if k < len(m) and i == cuts[k]:
            a(m[k]); k += 1
            if oi < len(other):
                for y in other[oi]: a(y)
                oi += 1
        a(x)
        if i in (2, 6, 11) and oi < len(other) and len(other) > len(m):
            for y in other[oi]: a(y)
            oi += 1
    while oi < len(other):
        for y in other[oi]: a(y)
        oi += 1

def prefill_dma():
    return [[f"s_add_u32 m0, s{S_RING}, s{T3}", "s_nop 0",
             f"buffer_load_dwordx4 v{VPA}, s[{SACT}:{SACT+3}], s{S_AO} offen lds",
             f"s_add_u32 s{S_AO}, s{S_AO}, 8192"],
            [f"s_add_u32 m0, m0, 8192", f"s_add_u32 s{S_RING}, s{S_RING}, 16384",
             f"buffer_load_dwordx4 v{VPW}, s[{SWD}:{SWD+3}], s{S_WDO} offen lds",
             f"s_add_u32 s{S_WDO}, s{S_WDO}, 65536"]]

def att_epoch(a, E, first=False, last=False, prefill=False, wait="vmcnt(0)", post=None):
    a(f"s_waitcnt {wait} lgkmcnt(0)")
    a("s_barrier")
    if not first: a(f"v_xor_b32 v{VKVR}, 0x4000, v{VKVR}")
    if post: post(a)
    for i in range(4):
        n = 4 * E + i
        pre = []
        if i == 0 and not last: pre += kv_dma()
        if i == 1 and prefill: pre += prefill_dma()
        if i: a("s_waitcnt lgkmcnt(0)")
        att_slot(a, n, qk=not (last and i == 3), pv=not (first and i == 0), pre=pre)

def gen(a):
    kernel_head(a, NAME)
    a("s_cmp_ge_u32 s2, 256")
    a("s_cbranch_scc1 KM_END")
    stamp(a, 0)
    a(f"s_load_dwordx2 s[{P_WQ}:{P_WQ+1}], s[0:1], {K_WQ}")
    a(f"s_load_dwordx4 s[{P_WG}:{P_WG+3}], s[0:1], {K_WG}")
    a(f"s_load_dwordx2 s[{P_WS}:{P_WS+1}], s[0:1], {K_WS}")
    a(f"s_load_dwordx2 s[{P_X}:{P_X+1}], s[0:1], {K_X}")
    a(f"s_load_dwordx2 s[{P_WO}:{P_WO+1}], s[0:1], {K_WO}")
    a(f"s_load_dwordx4 s[{P_WD}:{P_WD+3}], s[0:1], {K_WD}")
    a(f"v_and_b32 v{VL}, 63, v0")
    a("v_lshrrev_b32 v22, 6, v0")
    a(f"v_lshrrev_b32 v{VQQ}, 4, v{VL}")
    a(f"v_and_b32 v{VT}, 15, v{VL}")
    a(f"v_readfirstlane_b32 s{S_WAVE}, v22")
    a(f"s_lshr_b32 s{T0}, s2, 3")
    a(f"s_and_b32 s{S_RP}, s2, 1")
    a(f"s_lshl_b32 s{S_RP}, s{S_RP}, 2")
    a(f"s_and_b32 s{T1}, s{T0}, 3")
    a(f"s_add_u32 s{S_RP}, s{S_RP}, s{T1}")
    a(f"s_bfe_u32 s{S_CT}, s2, 0x20001")
    a(f"s_lshl_b32 s{S_CT}, s{S_CT}, 3")
    a(f"s_lshr_b32 s{T2}, s{T0}, 2")
    a(f"s_add_u32 s{S_CT}, s{S_CT}, s{T2}")
    a(f"s_and_b32 s{S_G}, s2, 3")
    a(f"s_lshl_b32 s{S_G}, s{S_G}, 2")
    a(f"s_add_u32 s{S_G}, s{S_G}, s{T1}")
    a(f"s_bfe_u32 s{S_C2}, s2, 0x10002")
    a(f"s_lshl_b32 s{S_C2}, s{S_C2}, 2")
    a(f"s_and_b32 s{T2}, s{T2}, 3")
    a(f"s_add_u32 s{S_C2}, s{S_C2}, s{T2}")
    a(f"s_lshr_b32 s{S_KH}, s{T0}, 4")
    a(f"s_lshr_b32 s{S_WM}, s{S_WAVE}, 2")
    a(f"s_and_b32 s{S_P}, s{S_WAVE}, 1")
    a(f"s_bfe_u32 s{S_BB}, s{S_WAVE}, 0x10001")
    a(f"s_and_b32 s{S_WN}, s{S_WAVE}, 3")
    a(f"v_lshlrev_b32 v{VXD}, 4, v{VL}")
    a(f"v_lshl_add_u32 v{VXD}, v22, 11, v{VXD}")
    a(f"s_lshl_b32 s{S_MX}, s{S_WAVE}, 11")
    a(f"s_lshl_b32 s{S_MW}, s{S_BB}, 2")
    a(f"s_add_u32 s{S_MW}, s{S_MW}, s{S_P}")
    a(f"s_lshl_b32 s{S_MW}, s{S_MW}, 10")
    a(f"s_lshl_b32 s{T0}, s{S_WM}, 13")
    a(f"s_add_u32 s{S_MW}, s{S_MW}, s{T0}")
    a(f"s_add_u32 s{S_MW}, s{S_MW}, 16384")
    a(f"s_lshl_b32 s{T0}, s{S_P}, 3")
    a(f"s_lshl_b32 s{T1}, s{S_BB}, 2")
    a(f"s_add_u32 s{T0}, s{T0}, s{T1}")
    a(f"v_add_u32 v22, s{T0}, v{VQQ}")
    a(f"s_lshl_b32 s{T0}, s{S_P}, 2")
    a(f"v_add_u32 v23, s{T0}, v{VQQ}")
    a("v_lshlrev_b32 v23, 1, v23")
    a(f"v_xor_b32 v23, v23, v{VT}")
    a("v_lshlrev_b32 v24, 4, v23")
    a("v_subrev_u32 v25, 192, v24")
    a("v_add_u32 v26, 32, v24")
    a("v_cmp_le_u32 vcc, 12, v23")
    a(f"s_and_b32 s{T0}, s{S_CT}, 1")
    a("s_nop 0")
    a("v_cndmask_b32 v25, v26, v25, vcc")
    a(f"s_cmp_eq_u32 s{T0}, 1")
    a(f"s_cselect_b64 s[{T2}:{T3}], -1, 0")
    a(f"v_cndmask_b32 v25, v24, v25, s[{T2}:{T3}]")
    a(f"s_mul_i32 s{T0}, s{S_CT}, 224")
    a(f"v_add_u32 v25, s{T0}, v25")
    a(f"s_lshl_b32 s{T0}, s{S_CT}, 6")
    a(f"s_lshl_b32 s{T1}, s{S_WM}, 5")
    a(f"s_add_u32 s{T0}, s{T0}, s{T1}")
    a("v_and_b32 v26, 16, v24")
    a(f"v_add_u32 v26, s{T0}, v26")
    a("v_cmp_le_u32 vcc, 14, v23")
    a("v_mov_b32 v27, 7168")
    a("v_mov_b32 v28, 2048")
    a("v_cndmask_b32 v25, v25, v26, vcc")
    a("v_cndmask_b32 v27, v27, v28, vcc")
    a("v_mad_u32_u24 v25, v22, v27, v25")
    a(f"v_lshlrev_b32 v{VWS}, 5, v27")
    a(f"v_mov_b32 v{VWS+1}, 0")
    a("s_waitcnt lgkmcnt(0)")
    a(f"s_cmp_eq_u32 s{S_WM}, 0")
    a(f"s_cselect_b32 s{T0}, s{P_WG}, s{P_WU}")
    a(f"s_cselect_b32 s{T1}, s{P_WG+1}, s{P_WU+1}")
    a(f"v_mov_b32 v28, s{T0}")
    a(f"v_mov_b32 v29, s{T1}")
    a(f"v_mov_b32 v30, s{P_WQ}")
    a(f"v_mov_b32 v31, s{P_WQ+1}")
    a("v_cndmask_b32 v28, v28, v30, vcc")
    a("v_cndmask_b32 v29, v29, v31, vcc")
    a("v_mov_b32 v26, 0")
    a(f"v_add_co_u32 v{VWA}, vcc, v25, v28")
    a("s_nop 1")
    a(f"v_addc_co_u32 v{VWA+1}, vcc, 0, v29, vcc")
    a("v_lshlrev_b32 v24, 4, v27")
    a("v_mov_b32 v25, 0")
    a(f"v_lshl_add_u64 {v(VWB,2)}, v[24:25], 0, {v(VWA,2)}")
    a(f"s_lshl_b32 s{T0}, s{S_RP}, 19")
    a(f"s_add_u32 s{T0}, s{T0}, {WS_XN}")
    srd(a, SX, P_WS, P_WS + 1, 512 << 10, add_lo=f"s{T0}")
    a(f"s_mov_b32 s{S_XO}, 0")
    for st_ in range(4):
        for g in p1_dma(st_):
            for x in g: a(x)
    a(f"v_lshlrev_b32 v{VXR}, 4, v{VL}")
    a(f"s_lshl_b32 s{T0}, s{S_WM}, 13")
    a(f"v_add_u32 v{VXR}, s{T0}, v{VXR}")
    a(f"v_add_u32 v{VXR+1}, 0x10000, v{VXR}")
    a(f"v_lshrrev_b32 v22, 2, v{VT}")
    a(f"v_lshl_add_u32 v22, v{VQQ}, 2, v22")
    a("v_and_b32 v23, 7, v22")
    a(f"s_lshl_b32 s{T0}, s{S_WN}, 1")
    a(f"v_xor_b32 v23, s{T0}, v23")
    a("v_lshlrev_b32 v23, 5, v23")
    a("v_lshl_add_u32 v23, v22, 8, v23")
    a(f"v_and_b32 v24, 3, v{VL}")
    a("v_lshl_add_u32 v23, v24, 3, v23")
    a(f"v_add_u32 v{VW0R}, 0x4000, v23")
    a(f"v_add_u32 v{VW0R+1}, 0x14000, v23")
    a(f"v_xor_b32 v{VW1R}, 32, v{VW0R}")
    a(f"v_xor_b32 v{VW1R+1}, 32, v{VW0R+1}")
    srd(a, SACT, P_WS, P_WS + 1, 16 * ACT_NU * 8192, add_lo=WS_ACT)
    srd(a, SKV, P_WS, P_WS + 1, (256 << 10) + 32768, add_lo=WS_KV - 8192)
    srd(a, SWD, P_WD, P_WD + 1, 3584 * 2048)
    srd(a, SWO, P_WO, P_WO + 1, 1024 * 2048)
    srd(a, SPART, P_WS, P_WS + 1, 8 << 20, add_lo=WS_PART)
    a(f"s_add_u32 s{SFLAG}, s{P_WS}, {WS_FLAG}")
    a(f"s_addc_u32 s{SFLAG+1}, s{P_WS+1}, 0")
    a(f"v_lshlrev_b32 v{VKVD}, 4, v{VL}")
    a(f"s_lshl_b32 s{S_KVO}, s{S_WN}, 11")
    a(f"s_cmp_eq_u32 s{S_WM}, 0")
    a(f"s_movk_i32 s{T0}, 4096")
    a(f"s_cselect_b32 s{T0}, s{T0}, 0x20000")
    a(f"s_add_u32 s{S_KVO}, s{S_KVO}, s{T0}")
    a(f"s_add_u32 s{S_MKV}, s{S_MX}, {KVL + 0x4000}")
    a(f"v_add_u32 v{VKVR}, {KVL}, v{VKVD}")
    for i in range(128):
        a(f"v_mov_b32 v{ACC+i}, 0")
    a("s_waitcnt vmcnt(12)")
    a("s_barrier")
    stamp(a, 1)
    for x in p1_reads(0, 0): a(x)
    a("s_waitcnt vmcnt(8) lgkmcnt(0)")
    a("s_barrier")
    a(f"s_mov_b32 s{S_CNT}, 7")
    a.raw(".p2align 6")
    a.label("P1_LOOP")
    for t in range(4):
        p1_step(a, t, True, True, "s_waitcnt vmcnt(8) lgkmcnt(0)", True)
    a(f"s_sub_u32 s{S_CNT}, s{S_CNT}, 1")
    a(f"s_cmp_lg_u32 s{S_CNT}, 0")
    a("s_cbranch_scc1 P1_LOOP")
    p1_step(a, 28, False, True, "s_waitcnt vmcnt(4) lgkmcnt(0)", True)
    p1_step(a, 29, False, True, "s_waitcnt vmcnt(0) lgkmcnt(0)", True)
    p1_step(a, 30, False, True, "s_waitcnt lgkmcnt(0)", False, extra=kv_dma() + kv_dma())
    p1_step(a, 31, False, False, None, False)
    stamp(a, 2)
    a(f"v_lshlrev_b32 v22, 9, v{VQQ}")
    a(f"v_lshl_add_u32 v22, v{VT}, 4, v22")
    a("v_add_u32 v23, 0x1000, v22")
    a(f"s_lshr_b32 s{T0}, s{S_CT}, 1")
    a(f"s_mul_i32 s{T0}, s{T0}, 7")
    a(f"s_and_b32 s{T1}, s{S_CT}, 1")
    a(f"s_lshl_b32 s{T2}, s{T1}, 2")
    a(f"s_add_u32 s{T2}, s{T2}, s{S_WN}")
    a(f"s_cmp_eq_u32 s{S_WN}, 3")
    a(f"s_cselect_b32 s{T2}, 3, s{T2}")
    a(f"s_add_u32 s{T0}, s{T0}, s{T2}")
    a(f"s_lshl_b32 s{T2}, s{S_RP}, 1")
    a(f"s_add_u32 s{T2}, s{T2}, s{S_WM}")
    a(f"s_mul_i32 s{T3}, s{T2}, {ACT_NU}")
    a(f"s_add_u32 s{T0}, s{T0}, s{T3}")
    a(f"s_lshl_b32 s{T0}, s{T0}, 13")
    a(f"s_lshl_b32 s{T2}, s{T2}, 1")
    a(f"s_lshr_b32 s{T3}, s{S_CT}, 4")
    a(f"s_add_u32 s{T2}, s{T2}, s{T3}")
    a(f"s_lshl_b32 s{S_XO}, s{T2}, 7")
    a(f"s_cmp_eq_u32 s{S_WN}, 3")
    a("s_cbranch_scc1 P1_EP3")
    def hpair(t, j, dst):
        g = acc(0, t, j); u = acc(1, t, j)
        for i in range(4): a(f"v_max_f32 v{g+i}, 0, v{g+i}")
        for i in (0, 2): a(f"v_pk_mul_f32 {v(g+i,2)}, {v(g+i,2)}, {v(u+i,2)}")
        for i in (0, 2): a(f"v_cvt_pk_bf16_f32 v{dst+i//2}, v{g+i}, v{g+i+1}")
    for j in range(8):
        for t in range(2): hpair(t, j, XF + 4 * j + 2 * t)
        off = (j >> 1) * 2048 + (j & 1) * 256
        a(f"buffer_store_dwordx4 {v(XF+4*j,4)}, v{22 + (off>>12)}, s[{SACT}:{SACT+3}], s{T0} offen offset:{off & 4095} sc1")
    a("s_branch P1_EPD")
    a.label("P1_EP3")
    a(f"s_mov_b32 s{T2}, {QSCALE}")
    a(f"s_mov_b32 s{T3}, {QSCALE}")
    a(f"s_lshl_b32 s{S_CNT}, s{S_WM}, 13")
    a(f"v_add_u32 v24, s{S_CNT}, v22")
    for j in range(8):
        tmp = XF + 32 + 4 * j
        for st in range(2):
            g = acc(st, 1, j)
            for i in (0, 2): a(f"v_pk_mul_f32 {v(g+i,2)}, {v(g+i,2)}, s[{T2}:{T3}]")
            for i in (0, 2): a(f"v_cvt_pk_bf16_f32 v{tmp+2*st+i//2}, v{g+i}, v{g+i+1}")
        a(f"ds_write_b128 v24, {v(tmp,4)} offset:{QLDS + (j>>1)*2048 + (j&1)*256}")
    a(f"s_lshl_b32 s{T1}, s{T1}, 3")
    a(f"s_add_u32 s{T0}, s{T0}, s{T1}")
    for j in range(8):
        hpair(0, j, XF + 2 * j)
        off = (j >> 1) * 2048 + (j & 1) * 256
        a(f"buffer_store_dwordx2 {v(XF+2*j,2)}, v{22 + (off>>12)}, s[{SACT}:{SACT+3}], s{T0} offen offset:{off & 4095} sc1")
    a.label("P1_EPD")
    a(f"s_lshl_b32 s{T3}, s{S_WAVE}, 10")
    a(f"v_add_u32 v{VPA}, s{T3}, v{VKVD}")
    a(f"v_lshlrev_b32 v24, 2, v{VQQ}")
    a(f"v_xor_b32 v24, v24, v{VT}")
    a("v_lshlrev_b32 v24, 4, v24")
    a(f"v_lshl_add_u32 v24, v{VQQ}, 11, v24")
    a(f"s_lshl_b32 s{T0}, s{S_WAVE}, 13")
    a(f"s_lshl_b32 s{T1}, s{S_C2}, 8")
    a(f"s_add_u32 s{T0}, s{T0}, s{T1}")
    a(f"v_add_u32 v{VPW}, s{T0}, v24")
    a(f"s_mul_i32 s{T0}, s{S_G}, {ACT_NU}")
    a(f"s_mul_i32 s{T1}, s{S_KH}, 56")
    a(f"s_add_u32 s{T0}, s{T0}, s{T1}")
    a(f"s_lshl_b32 s{S_AO}, s{T0}, 13")
    a(f"s_lshl_b32 s{S_WDO}, s{T1}, 16")
    a(f"s_mov_b32 s{S_RING}, 0")
    a(f"v_lshrrev_b32 v25, 2, v{VL}")
    a(f"v_xor_b32 v25, v25, v{VQQ}")
    a("v_and_b32 v25, 1, v25")
    a(f"v_and_b32 v26, 3, v{VL}")
    a("v_or_b32 v25, v25, v26")
    a("v_cmp_eq_u32 vcc, 0, v25")
    a("v_mov_b32 v26, 0x3f803f80")
    a("v_mov_b32 v27, 0")
    a(f"s_lshl_b32 s{T0}, s{S_WAVE}, 11")
    a(f"v_add_u32 v25, s{T0}, v{VKVD}")
    a("s_waitcnt vmcnt(8) lgkmcnt(0)")
    a("s_barrier")
    a(f"ds_read_b128 {v(QF,4)}, v25 offset:{QLDS}")
    a(f"ds_read_b128 {v(QF+4,4)}, v25 offset:{QLDS+1024}")
    for b in range(2):
        for s_ in range(2):
            a(f"ds_read_b128 {v(KB+8*b+4*s_,4)}, v{VKVR} offset:{0x4000 + (2+b)*2048 + s_*1024}")
    for i in range(4): a(f"v_cndmask_b32 v{SEL+i}, v27, v26, vcc")
    for i in range(4): a(f"v_mov_b32 v{RS+i}, 0")
    for i in range(16): a(f"v_mov_b32 v{OA+i}, 0")
    a("s_waitcnt lgkmcnt(0)")
    a(mf32(SB, KB, QF, "0"))
    a(mf32(SB, KB + 4, QF + 4, v(SB, 16)))
    a("s_nop 11")
    a(f"v_max3_f32 v26, v{SB}, v{SB+1}, v{SB+2}")
    for i in range(3, 15, 2): a(f"v_max3_f32 v26, v26, v{SB+i}, v{SB+i+1}")
    a(f"v_max_f32 v26, v26, v{SB+15}")
    a("v_mov_b32 v27, v26")
    a("s_nop 1")
    a("v_permlane32_swap_b32 v26, v27")
    a("s_nop 0")
    a("v_max_f32 v26, v26, v27")
    for i in range(16): a(f"v_sub_f32 v{NM+i}, 0, v26")
    for i in range(16): a(f"v_sub_f32 v{SB+i}, v{SB+i}, v26")
    stamp(a, 3)
    def post1(a): signal(a, S_XO)
    def post4(a):
        a(f"s_lshl_b32 s{T0}, s{S_G}, 1")
        a(f"s_add_u32 s{T0}, s{T0}, s{S_KH}")
        a(f"s_lshl_b32 s{T0}, s{T0}, 7")
        poll_issue(a, T0, 28, 29)
    def post5(a): poll_check(a, 64, 28, 29)
    att_epoch(a, 0, first=True, wait="vmcnt(8)")
    att_epoch(a, 1, post=post1)
    a(f"s_mov_b32 s{S_CNT}, 2")
    a.label("P2_L1")
    att_epoch(a, 2)
    a(f"s_sub_u32 s{S_CNT}, s{S_CNT}, 1")
    a(f"s_cmp_lg_u32 s{S_CNT}, 0")
    a("s_cbranch_scc1 P2_L1")
    att_epoch(a, 4, post=post4)
    att_epoch(a, 5, post=post5)
    att_epoch(a, 6, prefill=True)
    a(f"s_mov_b32 s{S_CNT}, 6")
    a.label("P2_L2")
    att_epoch(a, 7, prefill=True, wait="vmcnt(2)")
    a(f"s_sub_u32 s{S_CNT}, s{S_CNT}, 1")
    a(f"s_cmp_lg_u32 s{S_CNT}, 0")
    a("s_cbranch_scc1 P2_L2")
    att_epoch(a, 13, wait="vmcnt(2)")
    att_epoch(a, 14)
    att_epoch(a, 15, last=True)
    a("s_waitcnt lgkmcnt(0)")
    a(mf32(OA, VB + 8, PB + 8, v(OA, 16)))
    a(f"v_mfma_f32_16x16x32_bf16 {v(RS,4)}, {v(SEL,4)}, {v(PB+8,4)}, {v(RS,4)}")
    a(mf32(OA, VB + 12, PB + 12, v(OA, 16)))
    a(f"v_mfma_f32_16x16x32_bf16 {v(RS,4)}, {v(SEL,4)}, {v(PB+12,4)}, {v(RS,4)}")
    a(f"s_lshl_b32 s{T0}, s{S_RP}, 1")
    a(f"s_add_u32 s{T0}, s{T0}, s{S_WM}")
    a(f"s_lshl_b32 s{S_XO}, s{T0}, 7")
    a(f"s_add_u32 s{S_XO}, s{S_XO}, {F_O}")
    a(f"s_mul_i32 s{T0}, s{T0}, {ACT_NU}")
    a(f"s_add_u32 s{T0}, s{T0}, s{S_CT}")
    a(f"s_add_u32 s{T0}, s{T0}, 112")
    a(f"s_lshl_b32 s{T0}, s{T0}, 13")
    a(f"s_lshl_b32 s{T1}, s{S_WN}, 11")
    a(f"s_add_u32 s{S_CNT}, s{T0}, s{T1}")
    a("s_nop 3")
    a(f"v_mul_f32 v26, 0, v{RS}")
    for i in range(16): a(f"v_fma_f32 v26, v{OA+i}, 0, v26")
    a("v_cmp_u_f32 vcc, v26, v26")
    a("s_cmp_lg_u64 vcc, 0")
    a("s_cbranch_scc1 P2_SLOW")
    a.label("P2_FIN")
    a(f"v_rcp_f32 v26, v{RS}")
    a("s_nop 0")
    for i in range(16): a(f"v_mul_f32 v{OA+i}, v{OA+i}, v26")
    for k, base in enumerate((0, 8, 4, 12)):
        a(f"v_cvt_pk_bf16_f32 v{PB+2*k}, v{OA+base}, v{OA+base+1}")
        a(f"v_cvt_pk_bf16_f32 v{PB+2*k+1}, v{OA+base+2}, v{OA+base+3}")
    a(f"buffer_store_dwordx4 {v(PB,4)}, v{VKVD}, s[{SACT}:{SACT+3}], s{S_CNT} offen sc1")
    a(f"buffer_store_dwordx4 {v(PB+4,4)}, v{VKVD}, s[{SACT}:{SACT+3}], s{S_CNT} offen offset:1024 sc1")
    stamp(a, 4)
    if STOP == "p2":
        a("s_branch KM_FIN")
    else:
        import km3
        km3.gen_p3(a)
    a.label("P2_SLOW")
    a(f"s_mov_b32 s{T0}, 8192")
    a(f"v_mov_b32 v27, 0xff800000")
    a(f"v_mov_b32 v{RS}, 0")
    for i in range(16): a(f"v_mov_b32 v{OA+i}, 0")
    a.label("P2_SL")
    a(f"s_add_u32 s{T1}, s{T0}, 0x20000")
    a(f"buffer_load_dwordx4 {v(KB,4)}, v{VKVD}, s[{SKV}:{SKV+3}], s{T0} offen")
    a(f"buffer_load_dwordx4 {v(KB+4,4)}, v{VKVD}, s[{SKV}:{SKV+3}], s{T0} offen offset:1024")
    a(f"buffer_load_dwordx4 {v(VB,4)}, v{VKVD}, s[{SKV}:{SKV+3}], s{T1} offen")
    a(f"buffer_load_dwordx4 {v(VB+4,4)}, v{VKVD}, s[{SKV}:{SKV+3}], s{T1} offen offset:1024")
    a("s_waitcnt vmcnt(0)")
    a(mf32(SB, KB, QF, "0"))
    a(mf32(SB, KB + 4, QF + 4, v(SB, 16)))
    a("s_nop 15")
    a(f"v_max3_f32 v26, v27, v{SB}, v{SB+1}")
    for i in range(2, 16, 2): a(f"v_max3_f32 v26, v26, v{SB+i}, v{SB+i+1}")
    a("v_mov_b32 v28, v26")
    a("s_nop 1")
    a("v_permlane32_swap_b32 v26, v28")
    a("s_nop 0")
    a("v_max_f32 v26, v26, v28")
    a("v_sub_f32 v28, v27, v26")
    a("v_exp_f32 v28, v28")
    a("v_mov_b32 v27, v26")
    for i in range(16): a(f"v_sub_f32 v{SB+i}, v{SB+i}, v26")
    for i in range(16): a(f"v_exp_f32 v{SB+i}, v{SB+i}")
    for i in range(16): a(f"v_mul_f32 v{OA+i}, v{OA+i}, v28")
    a(f"v_mul_f32 v{RS}, v{RS}, v28")
    for i in range(8): a(f"v_cvt_pk_bf16_f32 v{PB+i}, v{SB+2*i}, v{SB+2*i+1}")
    a("s_nop 1")
    a(mf32(OA, VB, PB, v(OA, 16)))
    a(f"v_mfma_f32_16x16x32_bf16 {v(RS,4)}, {v(SEL,4)}, {v(PB,4)}, {v(RS,4)}")
    a(mf32(OA, VB + 4, PB + 4, v(OA, 16)))
    a(f"v_mfma_f32_16x16x32_bf16 {v(RS,4)}, {v(SEL,4)}, {v(PB+4,4)}, {v(RS,4)}")
    a("s_nop 15")
    a(f"s_add_u32 s{T0}, s{T0}, 2048")
    a(f"s_cmp_lt_u32 s{T0}, {8192 + 64*2048}")
    a("s_cbranch_scc1 P2_SL")
    a("s_branch P2_FIN")
    a.label("KM_FIN")
    if STAMPS: a("s_waitcnt vmcnt(0)")
    stamp(a, 7)
    stamp_flush(a, 1, 8, P_WS, S_WAVE)
    a.label("KM_END")
    a("s_endpgm")
    return dict(name=NAME, grid=256, block=512, lds=163840, vgpr=256, sgpr=102)
```

```python
from asmlib import *
from km import *
GA = 128
def ga(ci, ti): return GA + (ci * 2 + ti) * 16
def gb(p, ti, s_): return 32 + p * 32 + (ti * 2 + s_) * 4
def gw(p, ci, s_): return 48 + p * 32 + (ci * 2 + s_) * 4
BA, BW0, BW1, BWO = 4, 6, 8, 10
VPO, VXA = 12, 14
PART, XR = 192, 224
NDOWN, NOUT = 56, 32
NT = NDOWN + NOUT

def g_reads(t):
    p = t & 1; slot = t & 7; h = slot >> 2; o = (slot & 3) * 16384
    r = []
    for s_ in range(2):
        if t < NDOWN:
            for ci in range(2):
                for half in range(2):
                    r.append(f"ds_read_b64_tr_b16 {v(gw(p,ci,s_)+2*half,2)}, v{(BW0,BW1)[ci]+h} offset:{o + 8192 + s_*2048 + half*4096}")
        else:
            for half in range(2):
                r.append(f"ds_read_b64_tr_b16 {v(gw(p,0,s_)+2*half,2)}, v{BWO+h} offset:{o + 8192 + s_*1024 + half*2048}")
        for ti in range(2):
            r.append(f"ds_read_b128 {v(gb(p,ti,s_),4)}, v{BA+h} offset:{o + ti*2048 + s_*1024}")
    return r

def g_ustep(a, t, extra=()):
    p = t & 1
    m = []
    for s_ in range(2):
        if t < NDOWN:
            order = [(0,0),(0,1),(1,1),(1,0)] if s_ == 0 else [(1,0),(1,1),(0,1),(0,0)]
        else:
            order = [(0,0),(0,1)] if s_ == 0 else [(0,1),(0,0)]
        for ci, ti in order:
            m.append(mf32(ga(ci,ti), gw(p,ci,s_), gb(p,ti,s_), v(ga(ci,ti),16)))
    rd = g_reads(t + 1) if t + 1 < NT else []
    fill = [rd[i:i+2] for i in range(0, len(rd), 2)]
    while len(fill) < len(m): fill.append([])
    for i, e in enumerate(extra):
        fill[min(i * len(m) // max(len(extra), 1), len(m) - 1)] += list(e)
    weave(a, m, fill)
    a("s_waitcnt lgkmcnt(0)")

def l_ustep(a, kind):
    a(f"s_add_u32 m0, s{S_RING}, s{T3}")
    a(f"s_add_u32 s{S_RING}, s{S_RING}, 16384")
    a(f"buffer_load_dwordx4 v4, s[{SACT}:{SACT+3}], s{S_AO} offen lds")
    a(f"buffer_load_dwordx4 v4, s[{SACT}:{SACT+3}], s{S_AO} offen offset:1024 lds")
    if kind == "d":
        a("s_add_u32 m0, m0, 8192")
        a(f"s_and_b32 s{S_RING}, s{S_RING}, 0x1ffff")
        a(f"buffer_load_dwordx4 v5, s[{SWD}:{SWD+3}], s{S_WDO} offen lds")
        a(f"buffer_load_dwordx4 v6, s[{SWD}:{SWD+3}], s{S_WDO} offen offset:1024 lds")
    else:
        a(f"s_add_u32 m0, m0, s{T2}")
        a(f"s_and_b32 s{S_RING}, s{S_RING}, 0x1ffff")
        a(f"buffer_load_dwordx4 v7, s[{SWO}:{SWO+3}], s{S_WDO} offen lds")
    a(f"s_add_u32 s{S_AO}, s{S_AO}, 8192")
    a(f"s_add_u32 s{S_WDO}, s{S_WDO}, 65536")

def gen_p3(a):
    a(f"s_cmp_lg_u32 s{S_WM}, 0")
    a("s_cbranch_scc1 P3_L")
    a(f"s_lshr_b32 s{T0}, s{S_WN}, 1")
    a(f"s_lshl_b32 s{T0}, s{T0}, 12")
    a(f"v_add_u32 v{BA}, s{T0}, v{VKVD}")
    a(f"v_add_u32 v{BA+1}, 0x10000, v{BA}")
    a(f"v_lshrrev_b32 v22, 2, v{VT}")
    a(f"v_lshrrev_b32 v23, 5, v{VL}")
    a("v_lshl_add_u32 v23, v23, 2, v22")
    a(f"v_and_b32 v25, 1, v{VQQ}")
    a(f"s_lshl_b32 s{T0}, s{S_KH}, 2")
    a(f"s_lshl_b32 s{T1}, s{S_P}, 1")
    a(f"s_add_u32 s{T0}, s{T0}, s{T1}")
    a(f"v_add_u32 v26, s{T0}, v25")
    a("v_lshlrev_b32 v27, 1, v22")
    a("v_xor_b32 v26, v26, v27")
    a("v_lshlrev_b32 v26, 5, v26")
    a("v_lshl_add_u32 v26, v23, 8, v26")
    a(f"v_and_b32 v27, 3, v{VL}")
    a(f"v_lshl_add_u32 v{BW0}, v27, 3, v26")
    a(f"v_add_u32 v{BW0+1}, 0x10000, v{BW0}")
    a(f"v_xor_b32 v{BW1}, 128, v{BW0}")
    a(f"v_xor_b32 v{BW1+1}, 128, v{BW0+1}")
    for x in g_reads(0): a(x)
    a(f"v_add_u32 v26, s{T1}, v25")
    a("v_and_b32 v28, 2, v22")
    a("v_xor_b32 v26, v26, v28")
    a("v_lshlrev_b32 v26, 5, v26")
    a("v_lshl_add_u32 v26, v23, 7, v26")
    a(f"v_lshl_add_u32 v{BWO}, v27, 3, v26")
    a(f"v_add_u32 v{BWO+1}, 0x10000, v{BWO}")
    a(f"v_mov_b32 v{VPO}, v{VKVD}")
    a(f"v_add_u32 v{VPO+1}, 0x1000, v{VKVD}")
    a(f"v_and_b32 v26, 31, v{VL}")
    a("v_lshlrev_b32 v26, 11, v26")
    a(f"v_lshrrev_b32 v27, 5, v{VL}")
    a(f"v_lshl_add_u32 v{VXA}, v27, 4, v26")
    a(f"v_add_u32 v{VXA+1}, 0x10000, v{VXA}")
    a(f"s_lshl_b32 s{S_AO}, s{S_G}, 18")
    a(f"s_lshr_b32 s{T0}, s{S_WN}, 1")
    a(f"s_lshl_b32 s{T0}, s{T0}, 17")
    a(f"s_add_u32 s{S_AO}, s{S_AO}, s{T0}")
    a(f"s_lshl_b32 s{T0}, s{S_C2}, 8")
    a(f"s_add_u32 s{S_AO}, s{S_AO}, s{T0}")
    a(f"s_lshl_b32 s{T0}, s{S_KH}, 7")
    a(f"s_add_u32 s{S_AO}, s{S_AO}, s{T0}")
    a(f"s_lshl_b32 s{T0}, s{S_P}, 6")
    a(f"s_add_u32 s{S_AO}, s{S_AO}, s{T0}")
    srd(a, SX, P_X, P_X + 1, 4 << 20)
    srd(a, SKV, P_OUT, P_OUT + 1, 4 << 20)
    a(f"s_lshl_b32 s{T0}, s{S_WN}, 13")
    a(f"s_lshl_b32 s{S_RING}, s2, 15")
    a(f"s_add_u32 s{S_RING}, s{S_RING}, s{T0}")
    a(f"s_xor_b32 s{S_WDO}, s{S_RING}, {128 << 15}")
    a(f"s_lshl_b32 s{S_KVO}, s2, 7")
    a(f"s_add_u32 s{S_KVO}, s{S_KVO}, {F_P}")
    a(f"s_xor_b32 s{S_MKV}, s{S_KVO}, {128 << 7}")
    for i in range(64): a(f"v_mov_b32 v{GA+i}, 0")
    a("s_waitcnt lgkmcnt(0)")
    def epoch(e, pre=None, x0=(), x1=()):
        a("s_barrier")
        if pre: pre()
        g_ustep(a, 2 * e, x0)
        g_ustep(a, 2 * e + 1, x1)
    def sigO():
        a("s_waitcnt vmcnt(0)")
        signal(a, S_XO)
    epoch(0); epoch(1); epoch(2, pre=sigO); epoch(3)
    a(f"s_mov_b32 s{S_CNT}, 5")
    a.raw(".p2align 6")
    a.label("P3_GL")
    for e in range(4, 8): epoch(e)
    a(f"s_sub_u32 s{S_CNT}, s{S_CNT}, 1")
    a(f"s_cmp_lg_u32 s{S_CNT}, 0")
    a("s_cbranch_scc1 P3_GL")
    for e in range(24, 28): epoch(e)
    stamp(a, 5)
    st = [[f"buffer_store_dwordx4 {v(ga(1,q//4)+4*(q%4),4)}, v{VPO + q//4}, s[{SPART}:{SPART+3}], s{S_WDO} offen offset:{(q%4)*1024} sc1"] for q in range(8)]
    xl = [[f"buffer_load_dwordx4 {v(XR+4*q,4)}, v{VXA + q//2}, s[{SX}:{SX+3}], s{S_AO} offen offset:{(q%2)*32}"] for q in range(4)]
    pl = [[f"buffer_load_dwordx4 {v(PART+4*q,4)}, v{VPO + q//4}, s[{SPART}:{SPART+3}], s{S_RING} offen offset:{(q%4)*1024} sc1"] for q in range(8)]
    def sigP():
        a("s_waitcnt vmcnt(0)")
        signal(a, S_MKV)
    def chkP():
        a("s_waitcnt vmcnt(0)")
        poll_check(a, 4, 28, 29)
    epoch(28, x1=st[:4]); epoch(29, x0=st[4:], x1=xl)
    epoch(30); epoch(31); epoch(32, pre=sigP); epoch(33); epoch(34); epoch(35)
    epoch(36, pre=lambda: poll_issue(a, S_KVO, 28, 29)); epoch(37)
    epoch(38, pre=chkP, x0=pl[:4], x1=pl[4:])
    for e in range(39, 44): epoch(e)
    stamp(a, 6)
    a("s_waitcnt vmcnt(0)")
    a(f"s_mov_b32 s{T0}, 0xffff0000")
    a("s_nop 11")
    for ti in range(2):
        d = ga(0, ti)
        for i in range(0, 16, 2):
            a(f"v_pk_add_f32 {v(d+i,2)}, {v(d+i,2)}, {v(PART+16*ti+i,2)}")
        a("s_nop 0")
        for gp in range(2):
            for i in range(4):
                a(f"v_permlane32_swap_b32 v{d+8*gp+i}, v{d+8*gp+4+i}")
        for gp in range(2):
            xr = XR + 8 * ti + 4 * gp
            for k in range(4):
                a(f"v_lshlrev_b32 v22, 16, v{xr+k}")
                a(f"v_and_b32 v23, s{T0}, v{xr+k}")
                a(f"v_pk_add_f32 {v(d+8*gp+2*k,2)}, {v(d+8*gp+2*k,2)}, v[22:23]")
                a(f"v_cvt_pk_bf16_f32 v{xr+k}, v{d+8*gp+2*k}, v{d+8*gp+2*k+1}")
            a(f"buffer_store_dwordx4 {v(xr,4)}, v{VXA+ti}, s[{SKV}:{SKV+3}], s{S_AO} offen offset:{gp*32}")
    a("s_branch KM_FIN")
    a.label("P3_L")
    a(f"s_lshl_b32 s{T3}, s{S_WN}, 11")
    a(f"v_add_u32 v4, s{T3}, v{VKVD}")
    a(f"s_lshl_b32 s{T0}, s{S_WN}, 14")
    a(f"s_lshl_b32 s{T1}, s{S_C2}, 8")
    a(f"s_add_u32 s{T0}, s{T0}, s{T1}")
    a(f"v_add_u32 v5, s{T0}, v24")
    a(f"v_add_u32 v6, {8192-1024}, v5")
    a(f"v_lshrrev_b32 v22, 3, v{VL}")
    a("v_lshlrev_b32 v22, 11, v22")
    a(f"v_and_b32 v23, 1, v{VQQ}")
    a("v_lshlrev_b32 v23, 2, v23")
    a(f"v_and_b32 v25, 7, v{VL}")
    a("v_xor_b32 v23, v23, v25")
    a("v_lshl_add_u32 v22, v23, 4, v22")
    a(f"s_lshl_b32 s{T1}, s{S_KH}, 7")
    a(f"s_add_u32 s{T0}, s{T0}, s{T1}")
    a(f"v_add_u32 v7, s{T0}, v22")
    a(f"s_lshl_b32 s{T2}, s{S_WN}, 10")
    a(f"s_sub_u32 s{T2}, 8192, s{T2}")
    def lep(kinds, wait, pre=None, mid=None):
        a("s_barrier")
        if pre: pre()
        for i, k in enumerate(kinds):
            if mid and i == 1: mid()
            l_ustep(a, k)
        if wait is not None: a(f"s_waitcnt vmcnt({wait})")
    def loop(n, name, kinds, wait):
        a(f"s_mov_b32 s{S_CNT}, {n}")
        a.label(name)
        lep(kinds, wait)
        a(f"s_sub_u32 s{S_CNT}, s{S_CNT}, 1")
        a(f"s_cmp_lg_u32 s{S_CNT}, 0")
        a(f"s_cbranch_scc1 {name}")
    lep("dd", 16); lep("dd", 16)
    lep("dd", 16, pre=lambda: signal(a, S_XO))
    loop(17, "P3_LA", "dd", 16)
    def pollO():
        a(f"s_lshl_b32 s{T0}, s{S_G}, 7")
        a(f"s_add_u32 s{T0}, s{T0}, {F_O}")
        poll_issue(a, T0, 28, 29)
    lep("dd", 16, pre=pollO); lep("dd", 16); lep("dd", 16)
    lep("dd", 16, pre=lambda: poll_check(a, 128, 28, 29))
    def toO():
        a(f"s_mul_i32 s{S_AO}, s{S_G}, {ACT_NU}")
        a(f"s_add_u32 s{S_AO}, s{S_AO}, 112")
        a(f"s_lshl_b32 s{S_AO}, s{S_AO}, 13")
        a(f"s_mov_b32 s{S_WDO}, 0")
    lep("do", 15, mid=toO)
    lep("oo", 13)
    loop(14, "P3_LB", "oo", 12)
    lep("o", 9); lep("", 3); lep("", 0); lep("", None)
    stamp(a, 5); stamp(a, 6)
    a("s_branch KM_FIN")
```

```python
import sys, importlib
from asmlib import *
OUT = "parallel_sum__grouped_kv_mqa__glu_gated_reglu__prompt.s"
def build(mods, out=OUT):
    ref = open(OUT + ".ref").read().split("\n")
    head = [l for l in ref if l.startswith(";") and "@launch" not in l and "Override launch" not in l and "grid=ceil" not in l]
    a = A()
    infos = []
    for m in mods:
        infos.append(m(a))
    txt = "\n".join(head) + "\n"
    for i in infos:
        txt += f"; @launch kernel={i['name']} grid=({i['grid']},1,1) block=({i['block']},1,1) lds={i['lds']}\n"
    txt += '.amdgcn_target "amdgcn-amd-amdhsa--gfx950"\n.text\n' + a.text()
    txt += '.section .rodata,"a"\n'
    for i in infos:
        txt += kernel_desc(i['name'], i['vgpr'], i['sgpr'], i.get('agpr', 0))
    open(out, "w").write(txt)
if __name__ == "__main__":
    import k0, km
    build([k0.gen, km.gen], sys.argv[1] if len(sys.argv) > 1 else OUT)
```

```python
class A:
    def __init__(self):
        self.l = []
    def __call__(self, s):
        for x in s.strip("\n").split("\n"):
            self.l.append("    " + x.strip() if not x.strip().endswith(":") else x.strip())
    def label(self, n): self.l.append(n + ":")
    def c(self, s): self.l.append("    ; " + s)
    def raw(self, s): self.l.append(s)
    def text(self): return "\n".join(self.l) + "\n"

def v(i, n=1): return f"v{i}" if n == 1 else f"v[{i}:{i+n-1}]"
def s(i, n=1): return f"s{i}" if n == 1 else f"s[{i}:{i+n-1}]"

def srd(a, d, base_lo, base_hi, nbytes, add_lo=None):
    if add_lo is None:
        a(f"s_mov_b32 s{d}, s{base_lo}")
        a(f"s_mov_b32 s{d+1}, s{base_hi}")
    else:
        a(f"s_add_u32 s{d}, s{base_lo}, {add_lo}")
        a(f"s_addc_u32 s{d+1}, s{base_hi}, 0")
    a(f"s_mov_b32 s{d+2}, {nbytes}")
    a(f"s_mov_b32 s{d+3}, 0x20000")

def kernel_head(a, name):
    a.raw(f".globl {name}")
    a.raw(".p2align 8")
    a.raw(f".type {name},@function")
    a.raw(f"{name}:")

def kernel_desc(name, vgpr, sgpr=102, agpr=0):
    acc = (vgpr + 3) // 4 * 4
    return f""".p2align 6
.amdhsa_kernel {name}
  .amdhsa_next_free_vgpr {acc + agpr if agpr else vgpr}
  .amdhsa_next_free_sgpr {sgpr}
  .amdhsa_accum_offset {acc}
  .amdhsa_group_segment_fixed_size 0
  .amdhsa_kernarg_size 96
  .amdhsa_user_sgpr_count 2
  .amdhsa_user_sgpr_kernarg_segment_ptr 1
  .amdhsa_system_sgpr_workgroup_id_x 1
.end_amdhsa_kernel
"""

K_X, K_WQ, K_WK, K_WV, K_WO, K_BX, K_WG, K_WU, K_WD, K_OUT, K_DBG, K_WS = [8 * i for i in range(12)]
WS_XN = 0
WS_Q = 4 << 20
WS_WQP = 4 << 20
WS_KV = 8 << 20
WS_FLAG = (8 << 20) + (512 << 10)
WS_ACT = 9 << 20
ACT_NU = 144
WS_PART = 32 << 20

import os
STAMPS = os.environ.get("STAMPS", "0") == "1"
WS_STAMP = 128 << 20
STAMP_MAP = dict(x.split("=") for x in os.environ.get("SMAP", "").split(",") if x)
def nstamp(a, name):
    if name in STAMP_MAP: stamp(a, int(STAMP_MAP[name]), True)
def stamp(a, i, force=False):
    if not STAMPS: return
    if STAMP_MAP and not force and i not in (0, 7): return
    a(f"s_memtime s[{60+4*i}:{61+4*i}]")
    a(f"s_memrealtime s[{62+4*i}:{63+4*i}]")
def stamp_flush(a, kidx, n, wsreg, wave_sgpr, vt=1):
    if not STAMPS: return
    a("s_waitcnt lgkmcnt(0)")
    a(f"s_add_u32 s100, s{wsreg}, {WS_STAMP + kidx * (1 << 20)}")
    a(f"s_addc_u32 s101, s{wsreg+1}, 0")
    a("s_lshl_b32 s32, s2, 3")
    a(f"s_add_u32 s32, s32, s{wave_sgpr}")
    a("s_lshl_b32 s32, s32, 6")
    a(f"v_mov_b32 v{vt}, s32")
    if os.environ.get("XCC"):
        a("s_getreg_b32 s60, hwreg(HW_REG_XCC_ID)")
    for i in range(n):
        a(f"v_mov_b32 v{vt+1}, s{60+4*i}")
        a(f"v_mov_b32 v{vt+2}, s{62+4*i}")
        a(f"global_store_dword v{vt}, v{vt+1}, s[100:101] offset:{8*i}")
        a(f"global_store_dword v{vt}, v{vt+2}, s[100:101] offset:{8*i+4}")
```

```python
from asmlib import *
import struct, math, os
NAME = "parallel_sum__grouped_kv_mqa__glu_gated_reglu__prompt_kernel"
QSCALE = struct.unpack("<I", struct.pack("<f", math.log2(math.e) / math.sqrt(32.0)))[0]
STOP = os.environ.get("STOP", "")
KVL = 131072
QLDS = 0
TLDS = 0
F_XN, F_WQ, F_KV, F_H, F_O, F_NONCE, F_P = 0, 2048, 8192, 12288, 16384, 24576, 32768
SPIN_MAX = 1 << 21
NPRE = int(os.environ.get('X_NPRE', 4))
P1TOUCH = int(os.environ.get('X_P1T', 1))

S_WAVE = 3
S_TW, S_TA = 4, 5
P_WS = 6
NONCE = 8
QMASK = 10
SX = 12
SWD = 16
S_XO, S_AO, S_WDO, S_MX, S_MW, S_CNT = 20, 21, 22, 23, 24, 25
S_HO = 24
S_CT, S_RP, S_WM, S_P, S_BB, S_WN = 26, 27, 28, 29, 30, 31
T0, T1, T2, T3 = 32, 33, 34, 35
SACT, SKV = 36, 40
P_X, P_OUT, P_WO, S_TD = 44, 46, 48, 50
S_G, S_C2, S_KH, S_KVO, S_MKV, S_RING = 52, 53, 54, 55, 56, 57
SFLAG = 58
SWO, SPART = 92, 96
VL, VXD, VWA, VWB, VWS, VXR, VW0R, VW1R, VQQ, VT = 1, 2, 4, 6, 8, 10, 12, 14, 16, 17
VKVR, VKVD, VPA, VPW = 18, 19, 20, 21
HS, VHO, VWOD = 160, 4, 7
VTCH, VDUM = 31, 30
VPL, VPD = 27, 28
ACC, XF, WF = 128, 64, 32
def acc(st, t, j): return ACC + ((st * 2 + t) * 8 + j) * 4
def xf(p, j): return XF + (p * 8 + j) * 4
def wf(p, st, t): return WF + (p * 4 + st * 2 + t) * 4
def emit(a, groups):
    for g in groups:
        for x in g: a(x)

def flag_set(a, off_sgpr):
    a(f"v_mov_b32 v22, s{off_sgpr}")
    a(f"v_mov_b32 v24, s{NONCE}")
    a(f"v_mov_b32 v25, s{NONCE+1}")
    a("s_mov_b64 exec, 1")
    a(f"global_store_dwordx2 v22, v[24:25], s[{SFLAG}:{SFLAG+1}] sc1")
    a("s_mov_b64 exec, -1")
def poll_load(): return f"global_load_dwordx2 {v(VPD,2)}, v{VPL}, s[{SFLAG}:{SFLAG+1}] sc1"
def poll_issue(a, off_sgpr, n):
    a(f"v_and_b32 v{VPL}, {n-1}, v{VL}")
    a(f"v_lshlrev_b32 v{VPL}, 3, v{VPL}")
    a(f"v_add_u32 v{VPL}, s{off_sgpr}, v{VPL}")
    a(poll_load())
_lab = [0]
def spin(a, cmps, loads):
    _lab[0] += 1
    n = _lab[0]
    a(f"s_mov_b32 s{T1}, {SPIN_MAX}")
    a.label(f"PL{n}")
    for x in cmps: a(x)
    a("s_cmp_eq_u64 vcc, -1")
    a(f"s_cbranch_scc1 PD{n}")
    a(f"s_sub_u32 s{T1}, s{T1}, 1")
    a(f"s_cbranch_scc1 PD{n}")
    a("s_sleep 1")
    for x in loads: a(x)
    a("s_waitcnt vmcnt(0)")
    a(f"s_branch PL{n}")
    a.label(f"PD{n}")
def poll_check(a):
    spin(a, [f"v_cmp_eq_u64 vcc, s[{NONCE}:{NONCE+1}], {v(VPD,2)}"], [poll_load()])
def wave0(a, fn):
    _lab[0] += 1
    n = _lab[0]
    a(f"s_cmp_lg_u32 s{S_WAVE}, 0")
    a(f"s_cbranch_scc1 W0_{n}")
    fn()
    a.label(f"W0_{n}")

def p1_dma_x(slot):
    return [[f"s_add_u32 m0, s{S_MX}, {slot*32768}", "s_nop 0",
             f"buffer_load_dwordx4 v{VXD}, s[{SX}:{SX+3}], s{S_XO} offen lds"],
            [f"buffer_load_dwordx4 v{VXD}, s[{SX}:{SX+3}], s{S_XO} offen offset:1024 lds",
             f"s_add_u32 s{S_XO}, s{S_XO}, 16384"]]
def p1_dma_w(slot):
    return [[f"s_add_u32 m0, s{S_MW}, {slot*32768}", "s_nop 0", f"global_load_lds_dwordx4 {v(VWA,2)}, off",
             f"s_add_u32 m0, s{S_MW}, {slot*32768+2048}",
             f"v_lshl_add_u64 {v(VWA,2)}, {v(VWS,2)}, 0, {v(VWA,2)}"],
            [f"global_load_lds_dwordx4 {v(VWB,2)}, off",
             f"v_lshl_add_u64 {v(VWB,2)}, {v(VWS,2)}, 0, {v(VWB,2)}"]]
def p1_reads(slot, p):
    h = slot >> 1; o = (slot & 1) * 32768
    r = []
    for st in range(2):
        for t in range(2):
            for half in range(2):
                base = (VW0R if t == 0 else VW1R) + h
                r.append(f"ds_read_b64_tr_b16 {v(wf(p,st,t)+2*half,2)}, v{base} offset:{o + st*8192 + half*4096}")
    for j in range(8):
        r.append(f"ds_read_b128 {v(xf(p,j),4)}, v{VXR+h} offset:{o + j*1024}")
    return r
def p1_mfma(p):
    m = []
    for j in range(8):
        order = [(0,0),(0,1),(1,0),(1,1)]
        if j & 1: order = order[::-1]
        for st, t in order:
            d = acc(st, t, j)
            m.append(f"v_mfma_f32_16x16x32_bf16 {v(d,4)}, {v(wf(p,st,t),4)}, {v(xf(p,j),4)}, {v(d,4)}")
    return m
def weave(a, m, fill):
    for i, ins in enumerate(m):
        a(ins)
        if i < len(fill):
            for x in fill[i]: a(x)
    emit(a, fill[len(m):])
def p1_step(a, t, dma, reads, endwait, barrier, extra=(), late=(), pre_bar=None):
    p = t & 1
    fill = list(extra)
    if dma: fill += p1_dma_x(t % 4) + p1_dma_w(t % 4)
    if reads: fill += [[x] for x in p1_reads((t + 1) % 4, p ^ 1)]
    fill += list(late)
    weave(a, p1_mfma(p), fill)
    if endwait: a(endwait)
    if pre_bar: pre_bar()
    if barrier: a("s_barrier")
def kv_dma():
    return [[f"s_mov_b32 m0, s{S_MKV}", f"s_xor_b32 s{S_MKV}, s{S_MKV}, 0x4000",
             f"buffer_load_dwordx4 v{VKVD}, s[{SKV}:{SKV+3}], s{S_KVO} offen lds"],
            [f"buffer_load_dwordx4 v{VKVD}, s[{SKV}:{SKV+3}], s{S_KVO} offen offset:1024 lds",
             f"s_add_u32 s{S_KVO}, s{S_KVO}, 8192"]]

QF, KB, VB, PB, SEL, RS, SB, OA, NM = 32, 40, 56, 72, 88, 92, 96, 128, 144
def mf32(d, x, y, c): return f"v_mfma_f32_32x32x16_bf16 {v(d,16)}, {v(x,4)}, {v(y,4)}, {c}"
def mfrs(p): return f"v_mfma_f32_16x16x32_bf16 {v(RS,4)}, {v(SEL,4)}, {v(p,4)}, {v(RS,4)}"
def att_slot(a, n, qk=True, pv=True, rd=True, pre=()):
    b = n & 1
    S = SB + 16 * b; S1 = SB + 16 * (b ^ 1)
    P = PB + 8 * b; P1 = PB + 8 * (b ^ 1)
    K1 = KB + 8 * (b ^ 1); V1 = VB + 8 * (b ^ 1)
    m = []
    if qk:
        m.append(mf32(S1, K1, QF, v(NM, 16)))
        m.append(mf32(S1, K1 + 4, QF + 4, v(S1, 16)))
    if pv:
        m += [mf32(OA, V1, P1, v(OA, 16)), mfrs(P1), mf32(OA, V1 + 4, P1 + 4, v(OA, 16)), mfrs(P1 + 4)]
    val = []
    for i in range(16):
        val.append(f"v_exp_f32 v{S+i}, v{S+i}")
        if i >= 2 and i % 2 == 0:
            val.append(f"v_cvt_pk_bf16_f32 v{P+i//2-1}, v{S+i-2}, v{S+i-1}")
    val.append("s_nop 0")
    val.append(f"v_cvt_pk_bf16_f32 v{P+7}, v{S+14}, v{S+15}")
    rds = []
    if rd:
        pos = (n & 3) * 2048
        rds = [f"ds_read_b128 {v(KB+8*b,4)}, v{VKVR} offset:{pos}",
               f"ds_read_b128 {v(KB+8*b+4,4)}, v{VKVR} offset:{pos+1024}",
               f"ds_read_b128 {v(VB+8*b,4)}, v{VKVR} offset:{8192+pos}",
               f"ds_read_b128 {v(VB+8*b+4,4)}, v{VKVR} offset:{8192+pos+1024}"]
    other = [list(g) for g in pre] + [[x] for x in rds]
    cuts = [0, 4, 9, 13, 16, 21][:len(m)]
    k = 0; oi = 0
    for i, x in enumerate(val):
        if k < len(m) and i == cuts[k]:
            a(m[k]); k += 1
            if oi < len(other):
                emit(a, [other[oi]]); oi += 1
        a(x)
        if i in (2, 6, 11) and oi < len(other) and len(other) > len(m):
            emit(a, [other[oi]]); oi += 1
    emit(a, other[oi:])
def prefill_dma():
    return [[f"s_add_u32 m0, s{S_RING}, s{T3}", "s_nop 0",
             f"buffer_load_dwordx4 v{VPA}, s[{SACT}:{SACT+3}], s{S_AO} offen lds",
             f"s_add_u32 s{S_AO}, s{S_AO}, 8192"],
            [f"s_add_u32 m0, m0, 8192", f"s_add_u32 s{S_RING}, s{S_RING}, 16384",
             f"buffer_load_dwordx4 v{VPW}, s[{SWD}:{SWD+3}], s{S_WDO} offen lds",
             f"s_add_u32 s{S_WDO}, s{S_WDO}, 65536"]]
def touch_w(n0):
    return [[f"s_add_u32 s{T0}, s{S_WAVE}, {n0}", f"s_lshl_b32 s{T0}, s{T0}, 17", f"s_add_u32 s{T0}, s{T0}, s{S_TW}",
             f"buffer_load_dword v{VDUM}, v{VTCH}, s[{SWD}:{SWD+3}], s{T0} offen"]]
def touch_a(m0):
    return [[f"s_add_u32 s{T0}, s{S_WAVE}, {m0}", f"s_lshl_b32 s{T0}, s{T0}, 15", f"s_add_u32 s{T0}, s{T0}, s{S_TA}",
             f"buffer_load_dword v{VDUM}, v{VTCH}, s[{SACT}:{SACT+3}], s{T0} offen"]]
def touch_wo():
    return [[f"s_lshl_b32 s{T0}, s2, 13", f"s_add_u32 s{T0}, s{T0}, s{T3}",
             f"buffer_load_dword v{VDUM}, v{VKVD}, s[{SWO}:{SWO+3}], s{T0} offen"]]
def h_store(j):
    off = (j >> 1) * 2048 + (j & 1) * 256
    tail = f"v{VHO + (off>>12)}, s[{SACT}:{SACT+3}], s{S_HO} offen offset:{off & 4095} sc1"
    return [[f"s_cmp_eq_u32 s{S_WN}, 3", f"s_cbranch_scc1 HS{j}A", f"buffer_store_dwordx4 {v(HS+4*j,4)}, {tail}",
             f"s_branch HS{j}B", f"HS{j}A:", f"buffer_store_dwordx2 {v(HS+4*j,2)}, {tail}", f"HS{j}B:"]]
def att_epoch(a, E, first=False, last=False, prefill=0, wait=0, post=None, pre_bar=None, x1=(), x2=(), x3=()):
    nstamp(a, f"e{E}a")
    a(f"s_waitcnt vmcnt({wait}) lgkmcnt(0)")
    if pre_bar: pre_bar()
    a("s_barrier")
    nstamp(a, f"e{E}c")
    if not first: a(f"v_xor_b32 v{VKVR}, 0x4000, v{VKVR}")
    if post: post()
    for i in range(4):
        pre = []
        if i == 0 and not last: pre += kv_dma()
        if i in (1, 2)[:prefill]: pre += prefill_dma()
        if i == 1: pre += list(x1)
        if i == 2: pre += list(x2)
        if i == 3: pre += list(x3)
        if i: a("s_waitcnt lgkmcnt(0)")
        att_slot(a, 4 * E + i, qk=not (last and i == 3), pv=not (first and i == 0), pre=pre)

def wave_sum(a, r, t):
    for mod in ("quad_perm:[1,0,3,2]", "quad_perm:[2,3,0,1]", "row_half_mirror", "row_mirror"):
        a("s_nop 1")
        a(f"v_add_f32_dpp v{r}, v{r}, v{r} {mod} row_mask:0xf bank_mask:0xf")
    for sw in ("v_permlane16_swap_b32", "v_permlane32_swap_b32"):
        a(f"v_mov_b32 v{t}, v{r}")
        a("s_nop 1")
        a(f"{sw} v{r}, v{t}")
        a(f"v_add_f32 v{r}, v{r}, v{t}")

def p1_setup(a):
    a(f"s_lshl_b32 s{T0}, s{S_WM}, 13")
    a(f"v_add_u32 v{VXR}, s{T0}, v{VKVD}")
    a(f"v_add_u32 v{VXR+1}, 0x10000, v{VXR}")
    a(f"v_lshrrev_b32 v22, 2, v{VT}")
    a(f"v_lshl_add_u32 v22, v{VQQ}, 2, v22")
    a("v_and_b32 v23, 7, v22")
    a(f"s_lshl_b32 s{T0}, s{S_WN}, 1")
    a(f"v_xor_b32 v23, s{T0}, v23")
    a("v_lshlrev_b32 v23, 5, v23")
    a("v_lshl_add_u32 v23, v22, 8, v23")
    a(f"v_and_b32 v24, 3, v{VL}")
    a("v_lshl_add_u32 v23, v24, 3, v23")
    a(f"v_add_u32 v{VW0R}, 0x4000, v23")
    a(f"v_add_u32 v{VW0R+1}, 0x14000, v23")
    a(f"v_xor_b32 v{VW1R}, 32, v{VW0R}")
    a(f"v_xor_b32 v{VW1R+1}, 32, v{VW0R+1}")
    a(f"s_mov_b32 s{S_XO}, 0")
    a(f"s_lshl_b32 s{S_KVO}, s{S_WN}, 11")
    a(f"s_cmp_eq_u32 s{S_WM}, 0")
    a(f"s_movk_i32 s{T0}, 4096")
    a(f"s_cselect_b32 s{T0}, s{T0}, 0x20000")
    a(f"s_add_u32 s{S_KVO}, s{S_KVO}, s{T0}")
    a(f"s_add_u32 s{S_MKV}, s{S_MX}, {KVL + 0x4000}")
    a(f"v_add_u32 v{VKVR}, {KVL}, v{VKVD}")
    for i in range(128): a(f"v_mov_b32 v{ACC+i}, 0")

def allflags(a, base):
    ld = [f"global_load_dwordx4 v[22:25], v26, s[{SFLAG}:{SFLAG+1}] sc1", f"global_load_dwordx4 v[28:31], v26, s[{SFLAG}:{SFLAG+1}] offset:16 sc1"]
    addr = [f"v_lshlrev_b32 v26, 5, v{VL}", f"v_add_u32 v26, {base}, v26"]
    def check():
        n = f"s[{NONCE}:{NONCE+1}]"
        spin(a, [f"v_cmp_eq_u64 vcc, {n}, v[22:23]", f"v_cmp_eq_u64 s[{T2}:{T3}], {n}, v[24:25]", f"s_and_b64 vcc, vcc, s[{T2}:{T3}]",
                 f"v_cmp_eq_u64 s[{T2}:{T3}], {n}, v[28:29]", f"s_and_b64 vcc, vcc, s[{T2}:{T3}]",
                 f"v_cmp_eq_u64 s[{T2}:{T3}], {n}, v[30:31]", f"s_and_b64 vcc, vcc, s[{T2}:{T3}]"], ld)
    return addr, ld, check

def gen_p0(a):
    VTW, VXO, VLR, VFR, VTR, VQD = 20, 21, 23, 26, 3, 30
    a(f"s_load_dwordx2 s[{P_X}:{P_X+1}], s[0:1], {K_X}")
    a(f"s_load_dwordx8 s[92:99], s[0:1], {K_WQ}")
    a(f"s_load_dwordx2 s[{P_WS}:{P_WS+1}], s[0:1], {K_WS}")
    a(f"s_load_dwordx8 s[36:43], s[0:1], {K_WG}")
    a(f"v_and_b32 v{VL}, 63, v0")
    a("v_lshrrev_b32 v22, 6, v0")
    a(f"v_lshrrev_b32 v{VQQ}, 4, v{VL}")
    a(f"v_and_b32 v{VT}, 15, v{VL}")
    a(f"v_readfirstlane_b32 s{S_WAVE}, v22")
    a(f"v_lshlrev_b32 v{VKVD}, 4, v{VL}")
    a(f"v_bfe_u32 v23, v{VL}, 1, 2")
    a(f"v_and_b32 v24, 1, v{VL}")
    a("v_lshrrev_b32 v25, 3, v0")
    a("v_lshlrev_b32 v27, 11, v23")
    a("v_lshl_add_u32 v27, v25, 5, v27")
    a("v_lshl_add_u32 v27, v24, 4, v27")
    a(f"s_lshl_b32 s{T0}, s2, 3")
    a(f"s_add_u32 s{T0}, s{T0}, s{S_WAVE}")
    a(f"s_lshl_b32 s{T0}, s{T0}, 11")
    a(f"s_lshl_b32 s{T2}, s2, 13")
    a("s_waitcnt lgkmcnt(0)")
    srd(a, SX, P_X, P_X + 1, 4 << 20)
    a(f"buffer_load_dwordx4 v[32:35], v{VKVD}, s[{SX}:{SX+3}], s{T0} offen")
    a(f"buffer_load_dwordx4 v[36:39], v{VKVD}, s[{SX}:{SX+3}], s{T0} offen offset:1024")
    srd(a, SWD, 92, 93, 2 << 20)
    a(f"buffer_load_dwordx4 v[40:43], v27, s[{SWD}:{SWD+3}], s{T2} offen")
    a(f"s_add_u32 s{SFLAG}, s{P_WS}, {WS_FLAG}")
    a(f"s_addc_u32 s{SFLAG+1}, s{P_WS+1}, 0")
    a(f"s_load_dwordx2 s[{NONCE}:{NONCE+1}], s[{SFLAG}:{SFLAG+1}], {F_NONCE}")
    a(f"s_mov_b32 s{P_OUT}, s42")
    a(f"s_mov_b32 s{P_OUT+1}, s43")
    a(f"s_mov_b32 s{P_WO}, s98")
    a(f"s_mov_b32 s{P_WO+1}, s99")
    srd(a, SWD, 40, 41, 3584 * 2048)
    a(f"s_cmp_lt_u32 s{S_WAVE}, 4")
    a(f"s_cselect_b32 s{S_TW}, s36, s38")
    a(f"s_cselect_b32 s{S_TA}, s37, s39")
    srd(a, SACT, 94, 95, 65536)
    srd(a, SKV, 96, 97, 65536)
    a(f"s_lshr_b32 s{T0}, s2, 3")
    a(f"s_lshl_b32 s{T1}, s{T0}, 11")
    a("v_lshlrev_b32 v28, 2, v0")
    a(f"buffer_load_dword v31, v28, s[{SACT}:{SACT+3}], s{T1} offen")
    a(f"buffer_load_dword v31, v28, s[{SKV}:{SKV+3}], s{T1} offen")
    a("v_lshrrev_b32 v28, 1, v25")
    a(f"v_lshlrev_b32 v{VQD}, 16, v28")
    a("v_and_b32 v28, 1, v25")
    a(f"v_lshl_add_u32 v{VQD}, v28, 10, v{VQD}")
    a(f"v_lshl_add_u32 v{VQD}, v23, 5, v{VQD}")
    a(f"v_lshl_add_u32 v{VQD}, v24, 4, v{VQD}")
    a(f"s_and_b32 s{S_RP}, s2, 1")
    a(f"s_lshl_b32 s{S_RP}, s{S_RP}, 2")
    a(f"s_and_b32 s{T1}, s{T0}, 3")
    a(f"s_add_u32 s{S_RP}, s{S_RP}, s{T1}")
    a(f"s_bfe_u32 s{S_CT}, s2, 0x20001")
    a(f"s_lshl_b32 s{S_G}, s{S_CT}, 2")
    a(f"s_lshl_b32 s{S_CT}, s{S_CT}, 3")
    a(f"s_lshr_b32 s{S_C2}, s{T0}, 2")
    a(f"s_add_u32 s{S_CT}, s{S_CT}, s{S_C2}")
    a(f"s_add_u32 s{S_G}, s{S_G}, s{T1}")
    a(f"s_and_b32 s{S_KH}, s2, 1")
    a(f"s_lshr_b32 s{S_WM}, s{S_WAVE}, 2")
    a(f"s_and_b32 s{S_P}, s{S_WAVE}, 1")
    a(f"s_bfe_u32 s{S_BB}, s{S_WAVE}, 0x10001")
    a(f"s_and_b32 s{S_WN}, s{S_WAVE}, 3")
    a(f"v_lshl_add_u32 v{VXD}, v22, 11, v{VKVD}")
    a(f"s_lshl_b32 s{S_MX}, s{S_WAVE}, 11")
    a(f"s_lshl_b32 s{S_MW}, s{S_BB}, 2")
    a(f"s_add_u32 s{S_MW}, s{S_MW}, s{S_P}")
    a(f"s_lshl_b32 s{S_MW}, s{S_MW}, 10")
    a(f"s_lshl_b32 s{T0}, s{S_WM}, 13")
    a(f"s_add_u32 s{S_MW}, s{S_MW}, s{T0}")
    a(f"s_add_u32 s{S_MW}, s{S_MW}, 16384")
    a(f"s_lshl_b32 s{T0}, s{S_P}, 3")
    a(f"s_lshl_b32 s{T1}, s{S_BB}, 2")
    a(f"s_add_u32 s{T0}, s{T0}, s{T1}")
    a(f"v_add_u32 v22, s{T0}, v{VQQ}")
    a(f"s_lshl_b32 s{T0}, s{S_P}, 2")
    a(f"v_add_u32 v23, s{T0}, v{VQQ}")
    a("v_lshlrev_b32 v23, 1, v23")
    a(f"v_xor_b32 v23, v23, v{VT}")
    a("v_lshlrev_b32 v24, 4, v23")
    a("v_subrev_u32 v25, 192, v24")
    a("v_add_u32 v26, 32, v24")
    a("v_cmp_le_u32 vcc, 12, v23")
    a(f"s_and_b32 s{T0}, s{S_CT}, 1")
    a("s_nop 0")
    a("v_cndmask_b32 v25, v26, v25, vcc")
    a(f"s_cmp_eq_u32 s{T0}, 1")
    a(f"s_cselect_b64 s[{T2}:{T3}], -1, 0")
    a(f"v_cndmask_b32 v25, v24, v25, s[{T2}:{T3}]")
    a(f"s_mul_i32 s{T0}, s{S_CT}, 224")
    a(f"v_add_u32 v25, s{T0}, v25")
    a("v_mov_b32 v27, 7168")
    a("v_mad_u32_u24 v25, v22, v27, v25")
    a(f"s_lshl_b32 s{T0}, s{S_CT}, 16")
    a(f"s_lshl_b32 s{T1}, s{S_WM}, 10")
    a(f"s_add_u32 s{T0}, s{T0}, s{T1}")
    a(f"s_lshl_b32 s{T1}, s{S_P}, 8")
    a(f"s_add_u32 s{T0}, s{T0}, s{T1}")
    a(f"s_lshl_b32 s{T1}, s{S_BB}, 7")
    a(f"s_add_u32 s{T0}, s{T0}, s{T1}")
    a(f"s_add_u32 s{T0}, s{T0}, {WS_WQP}")
    a("v_and_b32 v26, 16, v24")
    a(f"v_lshl_add_u32 v26, v{VQQ}, 5, v26")
    a(f"v_add_u32 v26, s{T0}, v26")
    a(f"v_cmp_le_u32 s[{QMASK}:{QMASK+1}], 14, v23")
    a("v_mov_b32 v28, 64")
    a("v_mov_b32 v22, 512")
    a(f"v_mov_b32 v23, {16*7168}")
    a(f"v_cndmask_b32 v25, v25, v26, s[{QMASK}:{QMASK+1}]")
    a(f"v_cndmask_b32 v27, v27, v28, s[{QMASK}:{QMASK+1}]")
    a(f"v_cndmask_b32 v24, v23, v22, s[{QMASK}:{QMASK+1}]")
    a(f"v_lshlrev_b32 v{VWS}, 5, v27")
    a(f"v_mov_b32 v{VWS+1}, 0")
    a(f"v_mov_b32 v28, s{S_TW}")
    a(f"v_mov_b32 v29, s{S_TA}")
    a(f"v_mov_b32 v22, s{P_WS}")
    a(f"v_mov_b32 v23, s{P_WS+1}")
    a(f"v_cndmask_b32 v28, v28, v22, s[{QMASK}:{QMASK+1}]")
    a(f"v_cndmask_b32 v29, v29, v23, s[{QMASK}:{QMASK+1}]")
    a(f"v_add_co_u32 v{VWA}, vcc, v25, v28")
    a("v_mov_b32 v25, 0")
    a("s_nop 0")
    a(f"v_addc_co_u32 v{VWA+1}, vcc, 0, v29, vcc")
    a(f"v_lshl_add_u64 {v(VWB,2)}, v[24:25], 0, {v(VWA,2)}")
    p1_setup(a)
    a(f"s_lshl_b32 s{S_RING}, s{S_WAVE}, 14")
    a(f"s_add_u32 s{S_RING}, s{S_RING}, 32768")
    srd(a, SWO, P_WS, P_WS + 1, 8 << 20)
    srd(a, SPART, P_WS, P_WS + 1, 256 << 10, add_lo=WS_KV)
    a(f"v_lshlrev_b32 v{VTW}, 7, v{VL}")
    a(f"s_lshl_b32 s{T0}, s{S_WAVE}, 4")
    a(f"v_add_u32 v{VTW}, s{T0}, v{VTW}")
    a(f"v_lshrrev_b32 v{VXO}, 5, v{VL}")
    a(f"v_lshlrev_b32 v{VXO}, 14, v{VXO}")
    a(f"v_bfe_u32 v22, v{VL}, 3, 2")
    a(f"v_lshl_add_u32 v{VXO}, v22, 8, v{VXO}")
    a(f"v_and_b32 v22, 7, v{VL}")
    a(f"v_lshl_add_u32 v{VXO}, v22, 4, v{VXO}")
    a(f"s_lshr_b32 s{S_AO}, s2, 5")
    a(f"s_lshl_b32 s{S_AO}, s{S_AO}, 19")
    a(f"s_bfe_u32 s{T1}, s2, 0x40001")
    a(f"s_lshl_b32 s{T1}, s{T1}, 10")
    a(f"s_add_u32 s{S_AO}, s{S_AO}, s{T1}")
    a(f"s_lshl_b32 s{T1}, s{S_KH}, 7")
    a(f"s_add_u32 s{S_AO}, s{S_AO}, s{T1}")
    a(f"s_lshl_b32 s{T1}, s{S_WAVE}, 16")
    a(f"s_add_u32 s{S_AO}, s{S_AO}, s{T1}")
    a(f"s_add_u32 s{S_WDO}, s{S_AO}, 32768")
    a(f"v_lshlrev_b32 v{VFR}, 7, v{VQQ}")
    a(f"v_lshl_add_u32 v{VFR}, v22, 4, v{VFR}")
    a(f"v_add_u32 v{VFR}, s{S_MX}, v{VFR}")
    a(f"v_lshrrev_b32 v{VTR}, 2, v{VT}")
    a(f"v_lshl_add_u32 v{VTR}, v{VQQ}, 3, v{VTR}")
    a(f"v_lshlrev_b32 v{VTR}, 6, v{VTR}")
    a(f"v_and_b32 v22, 3, v{VL}")
    a(f"v_lshl_add_u32 v{VTR}, v22, 3, v{VTR}")
    a(f"v_add_u32 v{VTR}, s{S_RING}, v{VTR}")
    a(f"v_and_b32 v{VPL}, 31, v{VL}")
    a(f"v_lshlrev_b32 v{VPL}, 3, v{VPL}")
    a(f"s_lshl_b32 s{T0}, s{S_RP}, 8")
    a(f"v_add_u32 v22, s{T0}, v{VPL}")
    a(f"v_cmp_gt_u32 vcc, 32, v{VL}")
    a(f"s_lshr_b32 s{S_CNT}, s2, 3")
    a(f"s_lshl_b32 s{S_CNT}, s{S_CNT}, 11")
    a(f"v_cndmask_b32 v{VPL}, v{VPL}, v22, vcc")
    a(f"s_and_b32 s{T0}, s2, 7")
    a(f"s_lshl_b32 s{T0}, s{T0}, 7")
    a(f"s_add_u32 s{S_CNT}, s{S_CNT}, s{T0}")
    a(f"s_add_u32 s{S_CNT}, s{S_CNT}, {WS_WQP}")
    a(f"s_mov_b32 s{T3}, 0xffff0000")
    a("s_waitcnt vmcnt(3)")
    nstamp(a, "xl")
    X = 64
    for k in range(8):
        a(f"v_lshlrev_b32 v{X+2*k}, 16, v{32+k}")
        a(f"v_and_b32 v{X+2*k+1}, s{T3}, v{32+k}")
    a(f"v_pk_add_f32 v[50:51], v[{X}:{X+1}], v[{X+2}:{X+3}]")
    a(f"v_pk_add_f32 v[52:53], v[{X+4}:{X+5}], v[{X+6}:{X+7}]")
    for k in (4, 6):
        a(f"v_pk_add_f32 v[50:51], v[50:51], v[{X+2*k}:{X+2*k+1}]")
        a(f"v_pk_add_f32 v[52:53], v[52:53], v[{X+2*k+2}:{X+2*k+3}]")
    a("v_pk_add_f32 v[50:51], v[50:51], v[52:53]")
    a("v_add_f32 v50, v50, v51")
    wave_sum(a, 50, 51)
    a("v_mul_f32 v54, 0x3a800000, v50")
    a("v_mov_b32 v55, v54")
    for k in range(8):
        t = 80 + 2 * k
        a(f"v_pk_add_f32 v[{t}:{t+1}], v[{X+2*k}:{X+2*k+1}], v[54:55] neg_lo:[0,1] neg_hi:[0,1]")
    a("v_pk_mul_f32 v[50:51], v[80:81], v[80:81]")
    a("v_pk_mul_f32 v[52:53], v[82:83], v[82:83]")
    for k in range(2, 8):
        t = 80 + 2 * k; r = 50 + 2 * (k % 2)
        a(f"v_pk_fma_f32 v[{r}:{r+1}], v[{t}:{t+1}], v[{t}:{t+1}], v[{r}:{r+1}]")
    a("v_pk_add_f32 v[50:51], v[50:51], v[52:53]")
    a("v_add_f32 v50, v50, v51")
    def rbf(r):
        a(f"v_cvt_pk_bf16_f32 v{r}, v{r}, v{r}")
        a(f"v_and_b32 v{r}, s{T3}, v{r}")
    rbf(54)
    a("v_mov_b32 v55, v54")
    for k in range(8):
        t = 80 + 2 * k
        a(f"v_pk_add_f32 v[{t}:{t+1}], v[{X+2*k}:{X+2*k+1}], v[54:55] neg_lo:[0,1] neg_hi:[0,1]")
    wave_sum(a, 50, 51)
    for k in range(8): a(f"v_cvt_pk_bf16_f32 v{81+2*k}, v{80+2*k}, v{81+2*k}")
    a("v_mul_f32 v50, 0x3a800000, v50")
    rbf(50)
    a("v_add_f32 v50, 0x3727c5ac, v50")
    rbf(50)
    a("v_sqrt_f32 v50, v50")
    for k in range(4):
        a(f"v_lshlrev_b32 v{80+2*k}, 16, v{81+2*k}")
        a(f"v_and_b32 v{81+2*k}, s{T3}, v{81+2*k}")
    rbf(50)
    a("v_rcp_f32 v56, v50")
    for k in range(4, 8):
        a(f"v_lshlrev_b32 v{80+2*k}, 16, v{81+2*k}")
        a(f"v_and_b32 v{81+2*k}, s{T3}, v{81+2*k}")
    a("v_mov_b32 v57, v56")
    for k in range(8): a(f"v_pk_mul_f32 v[{80+2*k}:{81+2*k}], v[{80+2*k}:{81+2*k}], v[56:57]")
    for k in range(8): a(f"v_cvt_pk_bf16_f32 v{32+k}, v{80+2*k}, v{81+2*k}")
    nstamp(a, "ln")
    a(f"ds_write_b128 v{VTW}, v[32:35]")
    a(f"ds_write_b128 v{VTW}, v[36:39] offset:8192")
    a("s_waitcnt vmcnt(2)")
    a(f"buffer_store_dwordx4 v[40:43], v{VQD}, s[{SWO}:{SWO+3}], s{S_CNT} offen sc1")
    a("s_waitcnt lgkmcnt(0)")
    a(f"s_add_u32 s{NONCE}, s{NONCE}, 0x9e3779b9")
    a(f"s_add_u32 s{NONCE+1}, s{NONCE+1}, 0x85ebca6b")
    a("s_barrier")
    nstamp(a, "b1")
    a(f"ds_read_b128 v[32:35], v{VXD}")
    a(f"ds_read_b128 v[36:39], v{VXD} offset:1024")
    for j in range(4): a(f"ds_read_b128 {v(48+4*j,4)}, v{VFR} offset:{j*512}")
    a("s_waitcnt lgkmcnt(5)")
    a(f"buffer_store_dwordx4 v[32:35], v{VXO}, s[{SWO}:{SWO+3}], s{S_AO} offen sc1")
    a("s_waitcnt lgkmcnt(4)")
    a(f"buffer_store_dwordx4 v[36:39], v{VXO}, s[{SWO}:{SWO+3}], s{S_WDO} offen sc1")
    a(f"s_lshl_b32 s{T2}, s{S_WAVE}, 13")
    def wkdma(m, h):
        a(f"s_add_u32 m0, s{S_RING}, {m*8192 + h*4096}")
        a(f"s_add_u32 s{T0}, s{T2}, {h*4096}")
        for i in range(4):
            a(f"buffer_load_dwordx4 v{VKVD}, s[{(SACT,SKV)[m]}:{(SACT,SKV)[m]+3}], s{T0} offen offset:{i*1024} lds")
    wkdma(0, 0)
    a(f"s_lshl_b32 s{S_CNT}, s2, 3")
    a("s_waitcnt vmcnt(4) lgkmcnt(0)")
    a("s_barrier")
    nstamp(a, "xs")
    wave0(a, lambda: flag_set(a, S_CNT))
    wkdma(0, 1); wkdma(1, 0); wkdma(1, 1)
    a(f"v_mov_b32 v40, v{VWA}")
    a(f"v_mov_b32 v41, v{VWA+1}")
    a(f"v_mov_b32 v42, v{VWB}")
    a(f"v_mov_b32 v43, v{VWB+1}")
    a(f"s_andn2_b64 exec, exec, s[{QMASK}:{QMASK+1}]")
    for i in range(NPRE):
        a(f"global_load_dword v31, v[40:41], off")
        a(f"global_load_dword v31, v[42:43], off")
        a(f"v_lshl_add_u64 v[40:41], {v(VWS,2)}, 0, v[40:41]")
        a(f"v_lshl_add_u64 v[42:43], {v(VWS,2)}, 0, v[42:43]")
    a("s_mov_b64 exec, -1")
    a(f"s_waitcnt vmcnt({2*NPRE})")
    nstamp(a, "wk")
    for j in range(4):
        for m in range(2):
            for dt in range(2):
                for h in range(2):
                    r = 64 + ((m * 2 + dt) * 4 + j) * 4 + 2 * h
                    a(f"ds_read_b64_tr_b16 {v(r,2)}, v{VTR} offset:{m*8192 + j*2048 + h*256 + dt*32}")
    a(poll_load())
    for j in range(4):
        a(f"s_waitcnt lgkmcnt({min(15, 8*(3-j))})")
        for m in range(2):
            for dt in range(2):
                w = 64 + ((m * 2 + dt) * 4 + j) * 4; x = 48 + 4 * j; d = 32 + (m * 2 + dt) * 4
                c = "0" if j == 0 else v(d, 4)
                ab = (w, x) if m == 0 else (x, w)
                a(f"v_mfma_f32_16x16x32_bf16 {v(d,4)}, {v(ab[0],4)}, {v(ab[1],4)}, {c}")
    a(f"v_add_u32 v62, s{S_RING}, v{VKVD}")
    a(f"s_lshl_b32 s{T0}, s{S_RP}, 19")
    srd(a, SX, P_WS, P_WS + 1, 512 << 10, add_lo=f"s{T0}")
    srd(a, SACT, P_WS, P_WS + 1, 16 * ACT_NU * 8192, add_lo=WS_ACT)
    for tl in range(4): a(f"ds_write_b128 v62, {v(32+4*tl,4)} offset:{tl*1024}")
    srd(a, SKV, P_WS, P_WS + 1, (256 << 10) + 32768, add_lo=WS_KV - 8192)
    srd(a, SWO, P_WO, P_WO + 1, 1024 * 2048)
    a("s_waitcnt lgkmcnt(0)")
    a("s_barrier")
    a(f"s_cmp_lg_u32 s{S_WM}, 0")
    a("s_cbranch_scc1 P0_KVD")
    a(f"s_lshl_b32 s{T0}, s{S_WAVE}, 10")
    a(f"v_add_u32 v62, s{T0}, v{VKVD}")
    a("v_add_u32 v63, 0x18000, v62")
    a("v_add_u32 v62, 0x8000, v62")
    for w in range(8): a(f"ds_read_b128 {v(64+4*w,4)}, v{62 + w // 4} offset:{(w % 4) * 16384}")
    a(f"s_lshr_b32 s{T0}, s2, 2")
    a(f"s_lshl_b32 s{T0}, s{T0}, 11")
    a(f"v_lshlrev_b32 v60, 9, v{VQQ}")
    a(f"v_lshl_add_u32 v60, v{VT}, 4, v60")
    a(f"s_and_b32 s{T1}, s2, 3")
    a(f"s_lshl_b32 s{T1}, s{T1}, 7")
    a(f"s_lshl_b32 s{T2}, s{S_P}, 3")
    a(f"s_add_u32 s{T1}, s{T1}, s{T2}")
    a(f"s_bfe_u32 s{T2}, s2, 0x10001")
    a(f"s_lshl_b32 s{T2}, s{T2}, 10")
    a(f"s_lshl_b32 s{T3}, s{S_P}, 8")
    a(f"s_add_u32 s{T2}, s{T2}, s{T3}")
    a(f"s_lshl_b32 s{T3}, s{S_KH}, 3")
    a(f"s_add_u32 s{T2}, s{T2}, s{T3}")
    a(f"s_add_u32 s{T2}, s{T2}, 0x20000")
    a(f"s_cmp_eq_u32 s{S_BB}, 0")
    a(f"s_cselect_b32 s{T1}, s{T1}, s{T2}")
    a(f"s_mov_b32 s{T2}, 0x00ff00ff")
    a(f"s_cselect_b32 s{T2}, s{T2}, -1")
    a(f"s_cselect_b32 s{T3}, s{T2}, 0")
    a(f"s_add_u32 s{T0}, s{T0}, s{T1}")
    a("s_waitcnt lgkmcnt(0)")
    for st in (1, 2, 4):
        for w in range(0, 8, 2 * st):
            for h in range(2):
                d = 64 + 4 * w + 2 * h; e = 64 + 4 * (w + st) + 2 * h
                a(f"v_pk_add_f32 {v(d,2)}, {v(d,2)}, {v(e,2)}")
    a("v_cvt_pk_bf16_f32 v64, v64, v65")
    a("v_cvt_pk_bf16_f32 v65, v66, v67")
    a(f"s_mov_b64 exec, s[{T2}:{T3}]")
    a(f"buffer_store_dwordx2 v[64:65], v60, s[{SPART}:{SPART+3}], s{T0} offen sc1")
    a("s_mov_b64 exec, -1")
    a.label("P0_KVD")
    srd(a, SPART, P_WS, P_WS + 1, 8 << 20, add_lo=WS_PART)

def gen(a):
    kernel_head(a, NAME)
    a("s_cmp_ge_u32 s2, 256")
    a("s_cbranch_scc1 KM_END")
    stamp(a, 0)
    gen_p0(a)
    nstamp(a, "kvd")
    def chk0():
        a("s_waitcnt vmcnt(1)")
        poll_check(a)
    wave0(a, chk0)
    a("s_barrier")
    nstamp(a, "fl")
    stamp(a, 1)
    addr, ld, check = allflags(a, F_XN)
    for st_ in range(4):
        emit(a, p1_dma_x(st_) + p1_dma_w(st_))
        if st_ == 1: wave0(a, lambda: emit(a, [addr, ld]))
    a(f"s_lshl_b32 s{S_CNT}, s2, 3")
    a(f"s_add_u32 s{S_CNT}, s{S_CNT}, {F_KV}")
    a("s_waitcnt vmcnt(12)")
    a("s_barrier")
    for x in p1_reads(0, 0): a(x)
    def chk1():
        a("s_waitcnt vmcnt(8)")
        check()
        flag_set(a, S_CNT)
    wave0(a, chk1)
    a("s_waitcnt vmcnt(8) lgkmcnt(0)")
    a("s_barrier")
    nstamp(a, "p1s")
    a(f"s_mov_b32 s{S_CNT}, 7")
    a.raw(".p2align 6")
    a.label("P1_LOOP")
    for t in range(4):
        p1_step(a, t, True, True, "s_waitcnt vmcnt(8) lgkmcnt(0)", True)
    a(f"s_sub_u32 s{S_CNT}, s{S_CNT}, 1")
    a(f"s_cmp_lg_u32 s{S_CNT}, 0")
    a("s_cbranch_scc1 P1_LOOP")
    addr, ld, check = allflags(a, F_KV)
    p1_step(a, 28, False, True, "s_waitcnt vmcnt(4) lgkmcnt(0)", True, late=[addr])
    p1_step(a, 29, False, True, "s_waitcnt vmcnt(0) lgkmcnt(0)", True, extra=[[ld[0]], [ld[1]]], pre_bar=lambda: wave0(a, check))
    p1_step(a, 30, False, True, "s_waitcnt lgkmcnt(0)", False, extra=kv_dma() + kv_dma())
    p1_step(a, 31, False, False, None, False)
    stamp(a, 2)
    a(f"v_lshlrev_b32 v{VHO}, 9, v{VQQ}")
    a(f"v_lshl_add_u32 v{VHO}, v{VT}, 4, v{VHO}")
    a(f"v_add_u32 v{VHO+1}, 0x1000, v{VHO}")
    a(f"s_lshr_b32 s{T0}, s{S_CT}, 1")
    a(f"s_mul_i32 s{T0}, s{T0}, 7")
    a(f"s_and_b32 s{T1}, s{S_CT}, 1")
    a(f"s_lshl_b32 s{T2}, s{T1}, 2")
    a(f"s_add_u32 s{T2}, s{T2}, s{S_WN}")
    a(f"s_cmp_eq_u32 s{S_WN}, 3")
    a(f"s_cselect_b32 s{T2}, 3, s{T2}")
    a(f"s_add_u32 s{T0}, s{T0}, s{T2}")
    a(f"s_lshl_b32 s{T2}, s{S_RP}, 1")
    a(f"s_add_u32 s{T2}, s{T2}, s{S_WM}")
    a(f"s_mul_i32 s{T3}, s{T2}, {ACT_NU}")
    a(f"s_add_u32 s{T0}, s{T0}, s{T3}")
    a(f"s_lshl_b32 s{S_HO}, s{T0}, 13")
    a(f"s_lshl_b32 s{S_XO}, s{S_RP}, 8")
    a(f"s_lshl_b32 s{T3}, s{S_CT}, 3")
    a(f"s_add_u32 s{S_XO}, s{S_XO}, s{T3}")
    a(f"s_add_u32 s{S_XO}, s{S_XO}, {F_H}")
    a(f"s_cmp_eq_u32 s{S_WN}, 3")
    a("s_cbranch_scc1 P1_EP3")
    def hpair(t, j):
        g = acc(0, t, j); u = acc(1, t, j); dst = HS + 4 * j + 2 * t
        for i in range(4): a(f"v_max_f32 v{g+i}, 0, v{g+i}")
        for i in (0, 2): a(f"v_pk_mul_f32 {v(g+i,2)}, {v(g+i,2)}, {v(u+i,2)}")
        for i in (2, 0): a(f"v_cvt_pk_bf16_f32 v{dst+i//2}, v{g+i}, v{g+i+1}")
    for j in range(8):
        hpair(1, j); hpair(0, j)
    a("s_branch P1_EPD")
    a.label("P1_EP3")
    a(f"s_mov_b32 s{T2}, {QSCALE}")
    a(f"s_mov_b32 s{T3}, {QSCALE}")
    a(f"s_lshl_b32 s{S_CNT}, s{S_WM}, 13")
    a(f"v_add_u32 v24, s{S_CNT}, v{VHO}")
    for j in range(8):
        tmp = XF + 32 + 4 * j
        for st in range(2):
            g = acc(st, 1, j)
            for i in (0, 2): a(f"v_pk_mul_f32 {v(g+i,2)}, {v(g+i,2)}, s[{T2}:{T3}]")
            for i in (0, 2): a(f"v_cvt_pk_bf16_f32 v{tmp+2*st+i//2}, v{g+i}, v{g+i+1}")
        a(f"ds_write_b128 v24, {v(tmp,4)} offset:{QLDS + (j>>1)*2048 + (j&1)*256}")
    a(f"s_lshl_b32 s{T1}, s{T1}, 3")
    a(f"s_add_u32 s{S_HO}, s{S_HO}, s{T1}")
    for j in range(8): hpair(0, j)
    a.label("P1_EPD")
    a(f"s_lshl_b32 s{T3}, s{S_WAVE}, 10")
    a(f"v_add_u32 v{VPA}, s{T3}, v{VKVD}")
    a(f"v_lshlrev_b32 v3, 2, v{VQQ}")
    a(f"v_xor_b32 v3, v3, v{VT}")
    a("v_lshlrev_b32 v3, 4, v3")
    a(f"v_lshl_add_u32 v3, v{VQQ}, 11, v3")
    a(f"s_lshl_b32 s{T0}, s{S_WAVE}, 13")
    a(f"s_lshl_b32 s{T1}, s{S_C2}, 8")
    a(f"s_add_u32 s{T0}, s{T0}, s{T1}")
    a(f"v_add_u32 v{VPW}, s{T0}, v3")
    a(f"s_mul_i32 s{T0}, s{S_G}, {ACT_NU}")
    a(f"s_mul_i32 s{T1}, s{S_KH}, 56")
    a(f"s_add_u32 s{T0}, s{T0}, s{T1}")
    a(f"s_lshl_b32 s{S_AO}, s{T0}, 13")
    a(f"s_lshl_b32 s{S_WDO}, s{T1}, 16")
    a(f"s_mov_b32 s{S_RING}, 0")
    a(f"v_lshlrev_b32 v{VTCH}, 6, v{VL}")
    a(f"s_lshr_b32 s{T0}, s2, 3")
    a(f"s_lshl_b32 s{T0}, s{T0}, 12")
    a(f"s_add_u32 s{S_TW}, s{S_WDO}, s{T0}")
    a(f"s_lshl_b32 s{T0}, s{S_C2}, 12")
    a(f"s_add_u32 s{S_TA}, s{S_AO}, s{T0}")
    a(f"v_lshrrev_b32 v25, 2, v{VL}")
    a(f"v_xor_b32 v25, v25, v{VQQ}")
    a("v_and_b32 v25, 1, v25")
    a(f"v_and_b32 v26, 3, v{VL}")
    a("v_or_b32 v25, v25, v26")
    a("v_cmp_eq_u32 vcc, 0, v25")
    a("v_mov_b32 v26, 0x3f803f80")
    a("v_mov_b32 v27, 0")
    a("s_waitcnt vmcnt(0) lgkmcnt(0)")
    a("s_barrier")
    a(f"ds_read_b128 {v(QF,4)}, v{VXD} offset:{QLDS}")
    a(f"ds_read_b128 {v(QF+4,4)}, v{VXD} offset:{QLDS+1024}")
    for b in range(2):
        for s_ in range(2):
            a(f"ds_read_b128 {v(KB+8*b+4*s_,4)}, v{VKVR} offset:{0x4000 + (2+b)*2048 + s_*1024}")
    for i in range(4): a(f"v_cndmask_b32 v{SEL+i}, v27, v26, vcc")
    for i in range(4): a(f"v_mov_b32 v{RS+i}, 0")
    for i in range(16): a(f"v_mov_b32 v{OA+i}, 0")
    a("s_waitcnt lgkmcnt(0)")
    a(mf32(SB, KB, QF, "0"))
    a(mf32(SB, KB + 4, QF + 4, v(SB, 16)))
    a("s_nop 11")
    a(f"v_max3_f32 v26, v{SB}, v{SB+1}, v{SB+2}")
    for i in range(3, 15, 2): a(f"v_max3_f32 v26, v26, v{SB+i}, v{SB+i+1}")
    a(f"v_max_f32 v26, v26, v{SB+15}")
    a("v_mov_b32 v27, v26")
    a("s_nop 1")
    a("v_permlane32_swap_b32 v26, v27")
    a("s_nop 0")
    a("v_max_f32 v26, v26, v27")
    for i in range(16): a(f"v_sub_f32 v{NM+i}, 0, v26")
    for i in range(16): a(f"v_sub_f32 v{SB+i}, v{SB+i}, v26")
    stamp(a, 3)
    def pollH():
        a(f"s_lshr_b32 s{T0}, s{S_G}, 1")
        a(f"s_lshl_b32 s{T0}, s{T0}, 8")
        a(f"s_lshl_b32 s{T1}, s{S_KH}, 7")
        a(f"s_add_u32 s{T0}, s{T0}, s{T1}")
        a(f"s_add_u32 s{T0}, s{T0}, {F_H}")
        poll_issue(a, T0, 16)
    att_epoch(a, 0, first=True, x2=h_store(0), x3=h_store(1))
    att_epoch(a, 1, wait=2, x2=h_store(2), x3=h_store(3))
    att_epoch(a, 2, wait=2, x2=h_store(4), x3=h_store(5))
    att_epoch(a, 3, wait=2, x2=h_store(6), x3=h_store(7))
    att_epoch(a, 4, wait=2)
    att_epoch(a, 5, post=lambda: wave0(a, lambda: flag_set(a, S_XO)), x1=touch_wo())
    att_epoch(a, 6, wait=1, x1=touch_w(20))
    att_epoch(a, 7, wait=1, post=lambda: wave0(a, pollH), x1=touch_w(12))
    att_epoch(a, 8, wait=1, post=lambda: wave0(a, lambda: poll_check(a)), x1=touch_w(4))
    att_epoch(a, 9, prefill=2, wait=1, x3=touch_a(6))
    att_epoch(a, 10, prefill=2, wait=5)
    att_epoch(a, 11, prefill=2, wait=4)
    att_epoch(a, 12, prefill=2, wait=4, x3=touch_a(0))
    att_epoch(a, 13, wait=5)
    att_epoch(a, 14)
    att_epoch(a, 15, last=True)
    a("s_waitcnt lgkmcnt(0)")
    a(mf32(OA, VB + 8, PB + 8, v(OA, 16)))
    a(mfrs(PB + 8))
    a(mf32(OA, VB + 12, PB + 12, v(OA, 16)))
    a(mfrs(PB + 12))
    a(f"s_add_u32 s{S_XO}, s{S_XO}, {F_O - F_H}")
    a(f"s_lshl_b32 s{T0}, s{S_RP}, 1")
    a(f"s_add_u32 s{T0}, s{T0}, s{S_WM}")
    a(f"s_mul_i32 s{T0}, s{T0}, {ACT_NU}")
    a(f"s_add_u32 s{T0}, s{T0}, s{S_CT}")
    a(f"s_add_u32 s{T0}, s{T0}, 112")
    a(f"s_lshl_b32 s{T0}, s{T0}, 13")
    a(f"s_lshl_b32 s{T1}, s{S_WN}, 11")
    a(f"s_add_u32 s{S_CNT}, s{T0}, s{T1}")
    a("s_nop 4")
    a(f"v_mul_f32 v26, 0, v{RS}")
    for i in range(16): a(f"v_fma_f32 v26, v{OA+i}, 0, v26")
    a("v_cmp_u_f32 vcc, v26, v26")
    a("s_cmp_lg_u64 vcc, 0")
    a("s_cbranch_scc1 P2_SLOW")
    a.label("P2_FIN")
    a(f"v_rcp_f32 v26, v{RS}")
    a("s_nop 0")
    for i in range(16): a(f"v_mul_f32 v{OA+i}, v{OA+i}, v26")
    for k, base in enumerate((0, 8, 4, 12)):
        a(f"v_cvt_pk_bf16_f32 v{PB+2*k}, v{OA+base}, v{OA+base+1}")
        a(f"v_cvt_pk_bf16_f32 v{PB+2*k+1}, v{OA+base+2}, v{OA+base+3}")
    a(f"buffer_store_dwordx4 {v(PB,4)}, v{VKVD}, s[{SACT}:{SACT+3}], s{S_CNT} offen sc1")
    a(f"buffer_store_dwordx4 {v(PB+4,4)}, v{VKVD}, s[{SACT}:{SACT+3}], s{S_CNT} offen offset:1024 sc1")
    stamp(a, 4)
    import mk3
    mk3.gen_p3(a)
    a.label("P2_SLOW")
    a(f"s_mov_b32 s{T0}, 8192")
    a(f"v_mov_b32 v27, 0xff800000")
    a(f"v_mov_b32 v{RS}, 0")
    for i in range(16): a(f"v_mov_b32 v{OA+i}, 0")
    a.label("P2_SL")
    a(f"s_add_u32 s{T1}, s{T0}, 0x20000")
    a(f"buffer_load_dwordx4 {v(KB,4)}, v{VKVD}, s[{SKV}:{SKV+3}], s{T0} offen")
    a(f"buffer_load_dwordx4 {v(KB+4,4)}, v{VKVD}, s[{SKV}:{SKV+3}], s{T0} offen offset:1024")
    a(f"buffer_load_dwordx4 {v(VB,4)}, v{VKVD}, s[{SKV}:{SKV+3}], s{T1} offen")
    a(f"buffer_load_dwordx4 {v(VB+4,4)}, v{VKVD}, s[{SKV}:{SKV+3}], s{T1} offen offset:1024")
    a("s_waitcnt vmcnt(0)")
    a(mf32(SB, KB, QF, "0"))
    a(mf32(SB, KB + 4, QF + 4, v(SB, 16)))
    a("s_nop 15")
    a(f"v_max3_f32 v26, v27, v{SB}, v{SB+1}")
    for i in range(2, 16, 2): a(f"v_max3_f32 v26, v26, v{SB+i}, v{SB+i+1}")
    a("v_mov_b32 v28, v26")
    a("s_nop 1")
    a("v_permlane32_swap_b32 v26, v28")
    a("s_nop 0")
    a("v_max_f32 v26, v26, v28")
    a("v_sub_f32 v28, v27, v26")
    a("v_exp_f32 v28, v28")
    a("v_mov_b32 v27, v26")
    for i in range(16): a(f"v_sub_f32 v{SB+i}, v{SB+i}, v26")
    for i in range(16): a(f"v_exp_f32 v{SB+i}, v{SB+i}")
    for i in range(16): a(f"v_mul_f32 v{OA+i}, v{OA+i}, v28")
    a(f"v_mul_f32 v{RS}, v{RS}, v28")
    for i in range(8): a(f"v_cvt_pk_bf16_f32 v{PB+i}, v{SB+2*i}, v{SB+2*i+1}")
    a("s_nop 1")
    a(mf32(OA, VB, PB, v(OA, 16)))
    a(mfrs(PB))
    a(mf32(OA, VB + 4, PB + 4, v(OA, 16)))
    a(mfrs(PB + 4))
    a("s_nop 15")
    a(f"s_add_u32 s{T0}, s{T0}, 2048")
    a(f"s_cmp_lt_u32 s{T0}, {8192 + 64*2048}")
    a("s_cbranch_scc1 P2_SL")
    a("s_branch P2_FIN")
    a.label("KM_FIN")
    if STAMPS: a("s_waitcnt vmcnt(0)")
    stamp(a, 7)
    stamp_flush(a, 0, 8, P_WS, S_WAVE)
    a.label("KM_END")
    a("s_endpgm")
    return dict(name=NAME, grid=256, block=512, lds=163840, vgpr=256, sgpr=102)
```

```python
from asmlib import *
from mk import *
GA = 128
def ga(ci, ti): return GA + (ci * 2 + ti) * 16
def gb(p, ti, s_): return 32 + p * 32 + (ti * 2 + s_) * 4
def gw(p, ci, s_): return 48 + p * 32 + (ci * 2 + s_) * 4
BA, BW0, BW1, BWO = 4, 7, 10, 13
NSLOT = 10
VPO, VXA = 16, 20
PART, XR = 192, 224
NDOWN, NOUT = 56, 32
NT = NDOWN + NOUT

def g_reads(t, s_):
    p = t & 1; slot = t % NSLOT; h = slot >> 2; o = (slot & 3) * 16384
    r = []
    if t >= NT: return r
    if t < NDOWN:
        for ci in range(2):
            for half in range(2):
                r.append(f"ds_read_b64_tr_b16 {v(gw(p,ci,s_)+2*half,2)}, v{(BW0,BW1)[ci]+h} offset:{o + 8192 + s_*2048 + half*4096}")
    else:
        for half in range(2):
            r.append(f"ds_read_b64_tr_b16 {v(gw(p,0,s_)+2*half,2)}, v{BWO+h} offset:{o + 8192 + s_*1024 + half*2048}")
    for ti in range(2):
        r.append(f"ds_read_b128 {v(gb(p,ti,s_),4)}, v{BA+h} offset:{o + ti*2048 + s_*1024}")
    return r

def g_ustep(a, t, extra=()):
    p = t & 1
    for s_ in range(2):
        if t < NDOWN:
            order = [(0,0),(0,1),(1,1),(1,0)] if s_ == 0 else [(1,0),(1,1),(0,1),(0,0)]
        else:
            order = [(0,0),(0,1)] if s_ == 0 else [(0,1),(0,0)]
        m = [mf32(ga(ci,ti), gw(p,ci,s_), gb(p,ti,s_), v(ga(ci,ti),16)) for ci, ti in order]
        nxt = g_reads(t, 1) if s_ == 0 else g_reads(t + 1, 0)
        a(f"s_waitcnt lgkmcnt({len(nxt)})")
        rd = g_reads(t + 1, s_)
        fill = [rd[i:i+2] for i in range(0, len(rd), 2)]
        while len(fill) < len(m): fill.append([])
        ex = list(extra)[s_::2]
        for i, e in enumerate(ex):
            fill[len(m) - 1 - (i % len(m))] += list(e)
        weave(a, m, fill)

def l_ustep(a, kind):
    a(f"s_add_u32 m0, s{S_RING}, s{T3}")
    a(f"s_add_u32 s{S_RING}, s{S_RING}, 16384")
    a(f"buffer_load_dwordx4 v4, s[{SACT}:{SACT+3}], s{S_AO} offen lds")
    a(f"buffer_load_dwordx4 v4, s[{SACT}:{SACT+3}], s{S_AO} offen offset:1024 lds")
    if kind == "d":
        a("s_add_u32 m0, m0, 8192")
        a(f"s_cmp_lt_u32 s{S_RING}, {NSLOT*16384}")
        a(f"buffer_load_dwordx4 v5, s[{SWD}:{SWD+3}], s{S_WDO} offen lds")
        a(f"buffer_load_dwordx4 v6, s[{SWD}:{SWD+3}], s{S_WDO} offen offset:1024 lds")
    else:
        a(f"s_add_u32 m0, m0, s{T2}")
        a(f"s_cmp_lt_u32 s{S_RING}, {NSLOT*16384}")
        a(f"buffer_load_dwordx4 v7, s[{SWO}:{SWO+3}], s{S_WDO} offen lds")
    a(f"s_cselect_b32 s{S_RING}, s{S_RING}, 0")
    a(f"s_add_u32 s{S_AO}, s{S_AO}, 8192")
    a(f"s_add_u32 s{S_WDO}, s{S_WDO}, 65536")

def gen_p3(a):
    a(f"s_cmp_lg_u32 s{S_WM}, 0")
    a("s_cbranch_scc1 P3_L")
    a(f"s_lshr_b32 s{T0}, s{S_WN}, 1")
    a(f"s_lshl_b32 s{T0}, s{T0}, 12")
    a(f"v_add_u32 v{BA}, s{T0}, v{VKVD}")
    a(f"v_add_u32 v{BA+1}, 0x10000, v{BA}")
    a(f"v_add_u32 v{BA+2}, 0x20000, v{BA}")
    a(f"v_lshrrev_b32 v22, 2, v{VT}")
    a(f"v_lshrrev_b32 v23, 5, v{VL}")
    a("v_lshl_add_u32 v23, v23, 2, v22")
    a(f"v_and_b32 v25, 1, v{VQQ}")
    a(f"s_lshl_b32 s{T0}, s{S_KH}, 2")
    a(f"s_lshl_b32 s{T1}, s{S_P}, 1")
    a(f"s_add_u32 s{T0}, s{T0}, s{T1}")
    a(f"v_add_u32 v26, s{T0}, v25")
    a("v_lshlrev_b32 v27, 1, v22")
    a("v_xor_b32 v26, v26, v27")
    a("v_lshlrev_b32 v26, 5, v26")
    a("v_lshl_add_u32 v26, v23, 8, v26")
    a(f"v_and_b32 v27, 3, v{VL}")
    a(f"v_lshl_add_u32 v{BW0}, v27, 3, v26")
    a(f"v_add_u32 v{BW0+1}, 0x10000, v{BW0}")
    a(f"v_add_u32 v{BW0+2}, 0x20000, v{BW0}")
    a(f"v_xor_b32 v{BW1}, 128, v{BW0}")
    a(f"v_xor_b32 v{BW1+1}, 128, v{BW0+1}")
    a(f"v_xor_b32 v{BW1+2}, 128, v{BW0+2}")
    for x in g_reads(0, 0) + g_reads(0, 1): a(x)
    a(f"v_add_u32 v26, s{T1}, v25")
    a("v_and_b32 v28, 2, v22")
    a("v_xor_b32 v26, v26, v28")
    a("v_lshlrev_b32 v26, 5, v26")
    a("v_lshl_add_u32 v26, v23, 7, v26")
    a(f"v_lshl_add_u32 v{BWO}, v27, 3, v26")
    a(f"v_add_u32 v{BWO+1}, 0x10000, v{BWO}")
    a(f"v_add_u32 v{BWO+2}, 0x20000, v{BWO}")
    a(f"v_mov_b32 v{VPO}, v{VKVD}")
    a(f"v_add_u32 v{VPO+1}, 0x1000, v{VKVD}")
    a(f"v_and_b32 v26, 31, v{VL}")
    a("v_lshlrev_b32 v26, 11, v26")
    a(f"v_lshrrev_b32 v27, 5, v{VL}")
    a(f"v_lshl_add_u32 v{VXA}, v27, 4, v26")
    a(f"v_add_u32 v{VXA+1}, 0x10000, v{VXA}")
    a(f"s_lshl_b32 s{S_AO}, s{S_G}, 18")
    a(f"s_lshr_b32 s{T0}, s{S_WN}, 1")
    a(f"s_lshl_b32 s{T0}, s{T0}, 17")
    a(f"s_add_u32 s{S_AO}, s{S_AO}, s{T0}")
    a(f"s_lshl_b32 s{T0}, s{S_C2}, 8")
    a(f"s_add_u32 s{S_AO}, s{S_AO}, s{T0}")
    a(f"s_lshl_b32 s{T0}, s{S_KH}, 7")
    a(f"s_add_u32 s{S_AO}, s{S_AO}, s{T0}")
    a(f"s_lshl_b32 s{T0}, s{S_P}, 6")
    a(f"s_add_u32 s{S_AO}, s{S_AO}, s{T0}")
    srd(a, SX, P_X, P_X + 1, 4 << 20)
    srd(a, SKV, P_OUT, P_OUT + 1, 4 << 20)
    a(f"s_lshl_b32 s{T0}, s{S_WN}, 13")
    a(f"s_lshl_b32 s{S_RING}, s2, 15")
    a(f"s_add_u32 s{S_RING}, s{S_RING}, s{T0}")
    a(f"s_xor_b32 s{S_WDO}, s{S_RING}, {1 << 15}")
    a(f"s_lshl_b32 s{S_KVO}, s2, 7")
    a(f"s_add_u32 s{S_KVO}, s{S_KVO}, {F_P}")
    a(f"s_xor_b32 s{S_MKV}, s{S_KVO}, {1 << 7}")
    for q in range(4):
        a(f"buffer_load_dwordx4 {v(XR+4*q,4)}, v{VXA + q//2}, s[{SX}:{SX+3}], s{S_AO} offen offset:{(q%2)*32}")
    for i in range(64): a(f"v_mov_b32 v{GA+i}, 0")
    def epoch(e, pre=None, x0=(), x1=()):
        a("s_barrier")
        nstamp(a, f"g{e}")
        if pre: pre()
        g_ustep(a, 2 * e, x0)
        g_ustep(a, 2 * e + 1, x1)
    def pollO():
        a(f"s_lshr_b32 s{T0}, s{S_G}, 1")
        a(f"s_lshl_b32 s{T0}, s{T0}, 8")
        a(f"s_add_u32 s{T0}, s{T0}, {F_O}")
        poll_issue(a, T0, 32)
    def chkO():
        a("s_waitcnt vmcnt(0)")
        poll_check(a)
    for e in range(28):
        epoch(e, pre={3: lambda: wave0(a, lambda: flag_set(a, S_XO)), 18: lambda: wave0(a, pollO), 20: lambda: wave0(a, chkO)}.get(e))
        if e == 2: a("s_waitcnt vmcnt(0)")
    stamp(a, 5)
    st = [[f"buffer_store_dwordx4 {v(ga(1,q//4)+4*(q%4),4)}, v{VPO + q//4}, s[{SPART}:{SPART+3}], s{S_WDO} offen offset:{(q%4)*1024} sc1"] for q in range(8)]
    pl = [[f"buffer_load_dwordx4 {v(PART+4*q,4)}, v{VPO + q//4}, s[{SPART}:{SPART+3}], s{S_RING} offen offset:{(q%4)*1024} sc1"] for q in range(8)]
    def nonce_out():
        a(f"s_cmp_lg_u32 s2, 0")
        a("s_cbranch_scc1 P3_NN")
        a(f"s_movk_i32 s{T0}, {F_NONCE}")
        flag_set(a, T0)
        a.label("P3_NN")
    epoch(28, x1=st[:4]); epoch(29, x0=st[4:])
    epoch(30); epoch(31)
    a("s_waitcnt vmcnt(0)")
    epoch(32, pre=lambda: wave0(a, lambda: (flag_set(a, S_MKV), nonce_out())))
    epoch(33); epoch(34); epoch(35)
    epoch(36, pre=lambda: wave0(a, lambda: poll_issue(a, S_KVO, 1))); epoch(37)
    epoch(38, pre=lambda: wave0(a, chkO))
    epoch(39, x0=pl[:4], x1=pl[4:])
    for e in range(40, 44): epoch(e)
    stamp(a, 6)
    a("s_waitcnt vmcnt(0)")
    a(f"s_mov_b32 s{T0}, 0xffff0000")
    a("s_nop 11")
    for ti in range(2):
        d = ga(0, ti)
        for i in range(0, 16, 2):
            a(f"v_pk_add_f32 {v(d+i,2)}, {v(d+i,2)}, {v(PART+16*ti+i,2)}")
        a("s_nop 0")
        for gp in range(2):
            for i in range(4):
                a(f"v_permlane32_swap_b32 v{d+8*gp+i}, v{d+8*gp+4+i}")
        for gp in range(2):
            xr = XR + 8 * ti + 4 * gp
            for k in range(4):
                a(f"v_lshlrev_b32 v22, 16, v{xr+k}")
                a(f"v_and_b32 v23, s{T0}, v{xr+k}")
                a(f"v_pk_add_f32 {v(d+8*gp+2*k,2)}, {v(d+8*gp+2*k,2)}, v[22:23]")
                a(f"v_cvt_pk_bf16_f32 v{xr+k}, v{d+8*gp+2*k}, v{d+8*gp+2*k+1}")
            a(f"buffer_store_dwordx4 {v(xr,4)}, v{VXA+ti}, s[{SKV}:{SKV+3}], s{S_AO} offen offset:{gp*32}")
    a("s_branch KM_FIN")
    a.label("P3_L")
    a(f"s_lshl_b32 s{T3}, s{S_WN}, 11")
    a(f"v_add_u32 v4, s{T3}, v{VKVD}")
    a(f"s_lshl_b32 s{T0}, s{S_WN}, 14")
    a(f"s_lshl_b32 s{T1}, s{S_C2}, 8")
    a(f"s_add_u32 s{T0}, s{T0}, s{T1}")
    a(f"v_add_u32 v5, s{T0}, v3")
    a(f"v_add_u32 v6, {8192-1024}, v5")
    a(f"v_lshrrev_b32 v22, 3, v{VL}")
    a("v_lshlrev_b32 v22, 11, v22")
    a(f"v_and_b32 v23, 1, v{VQQ}")
    a("v_lshlrev_b32 v23, 2, v23")
    a(f"v_and_b32 v25, 7, v{VL}")
    a("v_xor_b32 v23, v23, v25")
    a("v_lshl_add_u32 v22, v23, 4, v22")
    a(f"s_lshl_b32 s{T1}, s{S_KH}, 7")
    a(f"s_add_u32 s{T0}, s{T0}, s{T1}")
    a(f"v_add_u32 v7, s{T0}, v22")
    a(f"s_lshl_b32 s{T2}, s{S_WN}, 10")
    a(f"s_sub_u32 s{T2}, 8192, s{T2}")
    def toO():
        a(f"s_mul_i32 s{S_AO}, s{S_G}, {ACT_NU}")
        a(f"s_add_u32 s{S_AO}, s{S_AO}, 112")
        a(f"s_lshl_b32 s{S_AO}, s{S_AO}, 13")
        a(f"s_mov_b32 s{S_WDO}, 0")
    def kind(t): return "d" if t < NDOWN else "o"
    cost = {"d": 4, "o": 3}
    def lep(e):
        ts = [t for t in (2 * e + 8, 2 * e + 9) if t < NT]
        young = [t for t in range(2 * e + 5, 2 * e + 10) if 8 <= t < NT]
        a("s_barrier")
        for t in ts:
            if t == NDOWN: toO()
            l_ustep(a, kind(t))
        n = sum(cost[kind(t)] for t in young)
        if e < 43: a(f"s_waitcnt vmcnt({n})")
    for e in range(4): lep(e)
    a(f"s_mov_b32 s{S_CNT}, 20")
    a.label("P3_LA")
    lep(4)
    a(f"s_sub_u32 s{S_CNT}, s{S_CNT}, 1")
    a(f"s_cmp_lg_u32 s{S_CNT}, 0")
    a(f"s_cbranch_scc1 P3_LA")
    for e in range(24, 44): lep(e)
    stamp(a, 5); stamp(a, 6)
    a("s_branch KM_FIN")
```

```python
import sys, importlib, re
from asmlib import *
OUT = "parallel_sum__grouped_kv_mqa__glu_gated_reglu__prompt.s"
NOTES = """;
"""
def build(mods, out=OUT):
    ref = open(OUT + ".ref").read().split("\n")
    head = [l for l in ref if l.startswith(";") and "@launch" not in l and "Override launch" not in l and "grid=ceil" not in l]
    a = A()
    infos = []
    for m in mods:
        infos.append(m(a))
    txt = "\n".join(head) + "\n"
    if len(infos) == 1:
        i = infos[0]
        txt += f"; @launch grid=({i['grid']},1,1) block=({i['block']},1,1) lds={i['lds']}\n"
    for i in (infos if len(infos) > 1 else []):
        txt += f"; @launch kernel={i['name']} grid=({i['grid']},1,1) block=({i['block']},1,1) lds={i['lds']}\n"
    txt += NOTES
    txt += '.amdgcn_target "amdgcn-amd-amdhsa--gfx950"\n.text\n' + a.text()
    txt += '.section .rodata,"a"\n'
    for i in infos:
        txt += kernel_desc(i['name'], i['vgpr'], i['sgpr'], i.get('agpr', 0))
    txt = re.sub(r"(buffer_load_dwordx4 [^\n]*?) lds\n", lambda m: m.group(1) + " sc1 lds\n", txt)
    txt = re.sub(r"(global_load_lds_dwordx4 [^\n]*?off)\n", lambda m: m.group(1) + " sc1\n", txt)
    open(out, "w").write(txt)
if __name__ == "__main__":
    import mk
    build([mk.gen], sys.argv[1] if len(sys.argv) > 1 else OUT)
```

```python
from asmlib import *
import struct, math, os
NAME = "parallel_sum__grouped_kv_mqa__glu_gated_reglu__prompt_kernel"
QSCALE = struct.unpack("<I", struct.pack("<f", math.log2(math.e) / math.sqrt(32.0)))[0]
STOP = os.environ.get("STOP", "")
KVL = 131072
QLDS = 0
TLDS = 0
F_XN, F_WQ, F_KV, F_H, F_O, F_NONCE, F_P = 0, 2048, 8192, 12288, 16384, 24576, 32768
SPIN_MAX = 1 << 21
P1MODE = int(os.environ.get('X_P1MODE', 1))
P1SHIFT = int(os.environ.get('X_P1SHIFT', 6))
P1PRIO = int(os.environ.get('X_P1PRIO', 0))
UNROLL = int(os.environ.get('X_UNROLL', 0))
NPRE = int(os.environ.get('X_NPRE', 4))
P1TOUCH = int(os.environ.get('X_P1T', 1))

S_WAVE = 3
S_TW, S_TA = 4, 5
P_WS = 6
NONCE = 8
QMASK = 10
SX = 12
SWD = 16
S_XO, S_AO, S_WDO, S_MX, S_MW, S_CNT = 20, 21, 22, 23, 24, 25
S_HO = 24
S_CT, S_RP, S_WM, S_P, S_BB, S_WN = 26, 27, 28, 29, 30, 31
T0, T1, T2, T3 = 32, 33, 34, 35
SACT, SKV = 36, 40
P_X, P_OUT, P_WO, S_TD = 44, 46, 48, 50
S_G, S_C2, S_KH, S_KVO, S_MKV, S_RING = 52, 53, 54, 55, 56, 57
SFLAG = 58
SWO, SPART = 92, 96
VL, VXD, VWA, VWB, VWS, VXR, VW0R, VW1R, VQQ, VT = 1, 2, 4, 6, 8, 10, 12, 14, 16, 17
VKVR, VKVD, VPA, VPW = 18, 19, 20, 21
HS, VHO, VWOD = 160, 4, 7
VTCH, VDUM = 31, 30
VPL, VPD = 27, 28
ACC, XF, WF = 128, 64, 32
def acc(st, t, j): return ACC + ((st * 2 + t) * 8 + j) * 4
def xf(p, j): return XF + (p * 8 + j) * 4
def wf(p, st, t): return WF + (p * 4 + st * 2 + t) * 4
def emit(a, groups):
    for g in groups:
        for x in g: a(x)

def flag_set(a, off_sgpr):
    a(f"v_mov_b32 v22, s{off_sgpr}")
    a(f"v_mov_b32 v24, s{NONCE}")
    a(f"v_mov_b32 v25, s{NONCE+1}")
    a("s_mov_b64 exec, 1")
    a(f"global_store_dwordx2 v22, v[24:25], s[{SFLAG}:{SFLAG+1}] sc1")
    a("s_mov_b64 exec, -1")
def poll_load(): return f"global_load_dwordx2 {v(VPD,2)}, v{VPL}, s[{SFLAG}:{SFLAG+1}] sc1"
def poll_issue(a, off_sgpr, n):
    a(f"v_and_b32 v{VPL}, {n-1}, v{VL}")
    a(f"v_lshlrev_b32 v{VPL}, 3, v{VPL}")
    a(f"v_add_u32 v{VPL}, s{off_sgpr}, v{VPL}")
    a(poll_load())
_lab = [0]
def spin(a, cmps, loads):
    _lab[0] += 1
    n = _lab[0]
    a(f"s_mov_b32 s{T1}, {SPIN_MAX}")
    a.label(f"PL{n}")
    for x in cmps: a(x)
    a("s_cmp_eq_u64 vcc, -1")
    a(f"s_cbranch_scc1 PD{n}")
    a(f"s_sub_u32 s{T1}, s{T1}, 1")
    a(f"s_cbranch_scc1 PD{n}")
    a("s_sleep 1")
    for x in loads: a(x)
    a("s_waitcnt vmcnt(0)")
    a(f"s_branch PL{n}")
    a.label(f"PD{n}")
def poll_check(a):
    spin(a, [f"v_cmp_eq_u64 vcc, s[{NONCE}:{NONCE+1}], {v(VPD,2)}"], [poll_load()])
def wave0(a, fn):
    _lab[0] += 1
    n = _lab[0]
    a(f"s_cmp_lg_u32 s{S_WAVE}, 0")
    a(f"s_cbranch_scc1 W0_{n}")
    fn()
    a.label(f"W0_{n}")

def p1_dma_x(slot):
    return [[f"s_add_u32 m0, s{S_MX}, {slot*32768}", "s_nop 0",
             f"buffer_load_dwordx4 v{VXD}, s[{SX}:{SX+3}], s{S_XO} offen lds"],
            [f"buffer_load_dwordx4 v{VXD}, s[{SX}:{SX+3}], s{S_XO} offen offset:1024 lds",
             f"s_add_u32 s{S_XO}, s{S_XO}, 16384"]]
def p1_dma_w(slot):
    return [[f"s_add_u32 m0, s{S_MW}, {slot*32768}", "s_nop 0", f"global_load_lds_dwordx4 {v(VWA,2)}, off",
             f"s_add_u32 m0, s{S_MW}, {slot*32768+2048}",
             f"v_lshl_add_u64 {v(VWA,2)}, {v(VWS,2)}, 0, {v(VWA,2)}"],
            [f"global_load_lds_dwordx4 {v(VWB,2)}, off",
             f"v_lshl_add_u64 {v(VWB,2)}, {v(VWS,2)}, 0, {v(VWB,2)}"]]
def p1_reads(slot, p):
    h = slot >> 1; o = (slot & 1) * 32768
    r = []
    for st in range(2):
        for t in range(2):
            for half in range(2):
                base = (VW0R if t == 0 else VW1R) + h
                r.append(f"ds_read_b64_tr_b16 {v(wf(p,st,t)+2*half,2)}, v{base} offset:{o + st*8192 + half*4096}")
    for j in range(8):
        r.append(f"ds_read_b128 {v(xf(p,j),4)}, v{VXR+h} offset:{o + j*1024}")
    return r
def p1_mfma(p):
    m = []
    for j in range(8):
        order = [(0,0),(0,1),(1,0),(1,1)]
        if j & 1: order = order[::-1]
        for st, t in order:
            d = acc(st, t, j)
            m.append(f"v_mfma_f32_16x16x32_bf16 {v(d,4)}, {v(wf(p,st,t),4)}, {v(xf(p,j),4)}, {v(d,4)}")
    return m
def weave(a, m, fill):
    for i, ins in enumerate(m):
        a(ins)
        if i < len(fill):
            for x in fill[i]: a(x)
    emit(a, fill[len(m):])
def p1_step(a, t, dma, reads, endwait, barrier, extra=(), late=(), pre_bar=None, grp=0):
    p = t & 1
    fill = list(extra)
    if dma: fill += p1_dma_x(t % 4) + p1_dma_w(t % 4)
    if reads: fill += [[x] for x in p1_reads((t + 1) % 4, p ^ 1)]
    fill += list(late)
    if grp and P1MODE == 1: fill = [[] for _ in range(P1SHIFT)] + fill
    if grp and P1MODE == 2 and dma and reads: fill = fill[4:] + fill[:4]
    weave(a, p1_mfma(p), fill)
    if endwait: a(endwait)
    if pre_bar: pre_bar()
    if barrier: a("s_barrier")
def kv_dma():
    return [[f"s_mov_b32 m0, s{S_MKV}", f"s_xor_b32 s{S_MKV}, s{S_MKV}, 0x4000",
             f"buffer_load_dwordx4 v{VKVD}, s[{SKV}:{SKV+3}], s{S_KVO} offen lds"],
            [f"buffer_load_dwordx4 v{VKVD}, s[{SKV}:{SKV+3}], s{S_KVO} offen offset:1024 lds",
             f"s_add_u32 s{S_KVO}, s{S_KVO}, 8192"]]

QF, KB, VB, PB, SEL, RS, SB, OA, NM = 32, 40, 56, 72, 88, 92, 96, 128, 144
def mf32(d, x, y, c): return f"v_mfma_f32_32x32x16_bf16 {v(d,16)}, {v(x,4)}, {v(y,4)}, {c}"
def mfrs(p): return f"v_mfma_f32_16x16x32_bf16 {v(RS,4)}, {v(SEL,4)}, {v(p,4)}, {v(RS,4)}"
def att_slot(a, n, qk=True, pv=True, rd=True, pre=()):
    b = n & 1
    S = SB + 16 * b; S1 = SB + 16 * (b ^ 1)
    P = PB + 8 * b; P1 = PB + 8 * (b ^ 1)
    K1 = KB + 8 * (b ^ 1); V1 = VB + 8 * (b ^ 1)
    m = []
    if qk:
        m.append(mf32(S1, K1, QF, v(NM, 16)))
        m.append(mf32(S1, K1 + 4, QF + 4, v(S1, 16)))
    if pv:
        m += [mf32(OA, V1, P1, v(OA, 16)), mfrs(P1), mf32(OA, V1 + 4, P1 + 4, v(OA, 16)), mfrs(P1 + 4)]
    val = []
    for i in range(16):
        val.append(f"v_exp_f32 v{S+i}, v{S+i}")
        if i >= 2 and i % 2 == 0:
            val.append(f"v_cvt_pk_bf16_f32 v{P+i//2-1}, v{S+i-2}, v{S+i-1}")
    val.append("s_nop 0")
    val.append(f"v_cvt_pk_bf16_f32 v{P+7}, v{S+14}, v{S+15}")
    rds = []
    if rd:
        pos = (n & 3) * 2048
        rds = [f"ds_read_b128 {v(KB+8*b,4)}, v{VKVR} offset:{pos}",
               f"ds_read_b128 {v(KB+8*b+4,4)}, v{VKVR} offset:{pos+1024}",
               f"ds_read_b128 {v(VB+8*b,4)}, v{VKVR} offset:{8192+pos}",
               f"ds_read_b128 {v(VB+8*b+4,4)}, v{VKVR} offset:{8192+pos+1024}"]
    other = [list(g) for g in pre] + [[x] for x in rds]
    cuts = [0, 4, 9, 13, 16, 21][:len(m)]
    k = 0; oi = 0
    for i, x in enumerate(val):
        if k < len(m) and i == cuts[k]:
            a(m[k]); k += 1
            if oi < len(other):
                emit(a, [other[oi]]); oi += 1
        a(x)
        if i in (2, 6, 11) and oi < len(other) and len(other) > len(m):
            emit(a, [other[oi]]); oi += 1
    emit(a, other[oi:])
def prefill_dma():
    return [[f"s_add_u32 m0, s{S_RING}, s{T3}", "s_nop 0",
             f"buffer_load_dwordx4 v{VPA}, s[{SACT}:{SACT+3}], s{S_AO} offen lds",
             f"s_add_u32 s{S_AO}, s{S_AO}, 8192"],
            [f"s_add_u32 m0, m0, 8192", f"s_add_u32 s{S_RING}, s{S_RING}, 16384",
             f"buffer_load_dwordx4 v{VPW}, s[{SWD}:{SWD+3}], s{S_WDO} offen lds",
             f"s_add_u32 s{S_WDO}, s{S_WDO}, 65536"]]
def touch_w(n0):
    return [[f"s_add_u32 s{T0}, s{S_WAVE}, {n0}", f"s_lshl_b32 s{T0}, s{T0}, 17", f"s_add_u32 s{T0}, s{T0}, s{S_TW}",
             f"buffer_load_dword v{VDUM}, v{VTCH}, s[{SWD}:{SWD+3}], s{T0} offen"]]
def touch_a(m0):
    return [[f"s_add_u32 s{T0}, s{S_WAVE}, {m0}", f"s_lshl_b32 s{T0}, s{T0}, 15", f"s_add_u32 s{T0}, s{T0}, s{S_TA}",
             f"buffer_load_dword v{VDUM}, v{VTCH}, s[{SACT}:{SACT+3}], s{T0} offen"]]
def touch_wo():
    return [[f"s_lshl_b32 s{T0}, s2, 13", f"s_add_u32 s{T0}, s{T0}, s{T3}",
             f"buffer_load_dword v{VDUM}, v{VKVD}, s[{SWO}:{SWO+3}], s{T0} offen"]]
def h_store(j):
    off = (j >> 1) * 2048 + (j & 1) * 256
    tail = f"v{VHO + (off>>12)}, s[{SACT}:{SACT+3}], s{S_HO} offen offset:{off & 4095} sc1"
    return [[f"s_cmp_eq_u32 s{S_WN}, 3", f"s_cbranch_scc1 HS{j}A", f"buffer_store_dwordx4 {v(HS+4*j,4)}, {tail}",
             f"s_branch HS{j}B", f"HS{j}A:", f"buffer_store_dwordx2 {v(HS+4*j,2)}, {tail}", f"HS{j}B:"]]
def att_epoch(a, E, first=False, last=False, prefill=0, wait=0, post=None, pre_bar=None, x1=(), x2=(), x3=()):
    nstamp(a, f"e{E}a")
    a(f"s_waitcnt vmcnt({wait}) lgkmcnt(0)")
    if pre_bar: pre_bar()
    a("s_barrier")
    nstamp(a, f"e{E}c")
    if not first: a(f"v_xor_b32 v{VKVR}, 0x4000, v{VKVR}")
    if post: post()
    for i in range(4):
        pre = []
        if i == 0 and not last: pre += kv_dma()
        if i in (1, 2)[:prefill]: pre += prefill_dma()
        if i == 1: pre += list(x1)
        if i == 2: pre += list(x2)
        if i == 3: pre += list(x3)
        if i: a("s_waitcnt lgkmcnt(0)")
        att_slot(a, 4 * E + i, qk=not (last and i == 3), pv=not (first and i == 0), pre=pre)

def wave_sum(a, r, t):
    for mod in ("quad_perm:[1,0,3,2]", "quad_perm:[2,3,0,1]", "row_half_mirror", "row_mirror"):
        a("s_nop 1")
        a(f"v_add_f32_dpp v{r}, v{r}, v{r} {mod} row_mask:0xf bank_mask:0xf")
    for sw in ("v_permlane16_swap_b32", "v_permlane32_swap_b32"):
        a(f"v_mov_b32 v{t}, v{r}")
        a("s_nop 1")
        a(f"{sw} v{r}, v{t}")
        a(f"v_add_f32 v{r}, v{r}, v{t}")

def p1_setup(a):
    a(f"s_lshl_b32 s{T0}, s{S_WM}, 13")
    a(f"v_add_u32 v{VXR}, s{T0}, v{VKVD}")
    a(f"v_add_u32 v{VXR+1}, 0x10000, v{VXR}")
    a(f"v_lshrrev_b32 v22, 2, v{VT}")
    a(f"v_lshl_add_u32 v22, v{VQQ}, 2, v22")
    a("v_and_b32 v23, 7, v22")
    a(f"s_lshl_b32 s{T0}, s{S_WN}, 1")
    a(f"v_xor_b32 v23, s{T0}, v23")
    a("v_lshlrev_b32 v23, 5, v23")
    a("v_lshl_add_u32 v23, v22, 8, v23")
    a(f"v_and_b32 v24, 3, v{VL}")
    a("v_lshl_add_u32 v23, v24, 3, v23")
    a(f"v_add_u32 v{VW0R}, 0x4000, v23")
    a(f"v_add_u32 v{VW0R+1}, 0x14000, v23")
    a(f"v_xor_b32 v{VW1R}, 32, v{VW0R}")
    a(f"v_xor_b32 v{VW1R+1}, 32, v{VW0R+1}")
    a(f"s_mov_b32 s{S_XO}, 0")
    a(f"s_lshl_b32 s{S_KVO}, s{S_WN}, 11")
    a(f"s_cmp_eq_u32 s{S_WM}, 0")
    a(f"s_movk_i32 s{T0}, 4096")
    a(f"s_cselect_b32 s{T0}, s{T0}, 0x20000")
    a(f"s_add_u32 s{S_KVO}, s{S_KVO}, s{T0}")
    a(f"s_add_u32 s{S_MKV}, s{S_MX}, {KVL + 0x4000}")
    a(f"v_add_u32 v{VKVR}, {KVL}, v{VKVD}")
    for i in range(128): a(f"v_mov_b32 v{ACC+i}, 0")

def allflags(a, base):
    ld = [f"global_load_dwordx4 v[22:25], v26, s[{SFLAG}:{SFLAG+1}] sc1", f"global_load_dwordx4 v[28:31], v26, s[{SFLAG}:{SFLAG+1}] offset:16 sc1"]
    addr = [f"v_lshlrev_b32 v26, 5, v{VL}", f"v_add_u32 v26, {base}, v26"]
    def check():
        n = f"s[{NONCE}:{NONCE+1}]"
        spin(a, [f"v_cmp_eq_u64 vcc, {n}, v[22:23]", f"v_cmp_eq_u64 s[{T2}:{T3}], {n}, v[24:25]", f"s_and_b64 vcc, vcc, s[{T2}:{T3}]",
                 f"v_cmp_eq_u64 s[{T2}:{T3}], {n}, v[28:29]", f"s_and_b64 vcc, vcc, s[{T2}:{T3}]",
                 f"v_cmp_eq_u64 s[{T2}:{T3}], {n}, v[30:31]", f"s_and_b64 vcc, vcc, s[{T2}:{T3}]"], ld)
    return addr, ld, check

def gen_p0(a):
    VTW, VXO, VLR, VFR, VTR, VQD = 20, 21, 23, 26, 3, 30
    a(f"s_load_dwordx2 s[{P_X}:{P_X+1}], s[0:1], {K_X}")
    a(f"s_load_dwordx8 s[92:99], s[0:1], {K_WQ}")
    a(f"s_load_dwordx2 s[{P_WS}:{P_WS+1}], s[0:1], {K_WS}")
    a(f"s_load_dwordx8 s[36:43], s[0:1], {K_WG}")
    a(f"v_and_b32 v{VL}, 63, v0")
    a("v_lshrrev_b32 v22, 6, v0")
    a(f"v_lshrrev_b32 v{VQQ}, 4, v{VL}")
    a(f"v_and_b32 v{VT}, 15, v{VL}")
    a(f"v_readfirstlane_b32 s{S_WAVE}, v22")
    a(f"v_lshlrev_b32 v{VKVD}, 4, v{VL}")
    a(f"v_bfe_u32 v23, v{VL}, 1, 2")
    a(f"v_and_b32 v24, 1, v{VL}")
    a("v_lshrrev_b32 v25, 3, v0")
    a("v_lshlrev_b32 v27, 11, v23")
    a("v_lshl_add_u32 v27, v25, 5, v27")
    a("v_lshl_add_u32 v27, v24, 4, v27")
    a(f"s_lshl_b32 s{T0}, s2, 3")
    a(f"s_add_u32 s{T0}, s{T0}, s{S_WAVE}")
    a(f"s_lshl_b32 s{T0}, s{T0}, 11")
    a(f"s_lshl_b32 s{T2}, s2, 13")
    a("s_waitcnt lgkmcnt(0)")
    srd(a, SX, P_X, P_X + 1, 4 << 20)
    a(f"buffer_load_dwordx4 v[32:35], v{VKVD}, s[{SX}:{SX+3}], s{T0} offen")
    a(f"buffer_load_dwordx4 v[36:39], v{VKVD}, s[{SX}:{SX+3}], s{T0} offen offset:1024")
    srd(a, SWD, 92, 93, 2 << 20)
    a(f"buffer_load_dwordx4 v[40:43], v27, s[{SWD}:{SWD+3}], s{T2} offen")
    a(f"s_add_u32 s{SFLAG}, s{P_WS}, {WS_FLAG}")
    a(f"s_addc_u32 s{SFLAG+1}, s{P_WS+1}, 0")
    a(f"s_load_dwordx2 s[{NONCE}:{NONCE+1}], s[{SFLAG}:{SFLAG+1}], {F_NONCE}")
    a(f"s_mov_b32 s{P_OUT}, s42")
    a(f"s_mov_b32 s{P_OUT+1}, s43")
    a(f"s_mov_b32 s{P_WO}, s98")
    a(f"s_mov_b32 s{P_WO+1}, s99")
    srd(a, SWD, 40, 41, 3584 * 2048)
    a(f"s_cmp_lt_u32 s{S_WAVE}, 4")
    a(f"s_cselect_b32 s{S_TW}, s36, s38")
    a(f"s_cselect_b32 s{S_TA}, s37, s39")
    srd(a, SACT, 94, 95, 65536)
    srd(a, SKV, 96, 97, 65536)
    a(f"s_lshr_b32 s{T0}, s2, 3")
    a(f"s_lshl_b32 s{T1}, s{T0}, 11")
    a("v_lshlrev_b32 v28, 2, v0")
    a(f"buffer_load_dword v31, v28, s[{SACT}:{SACT+3}], s{T1} offen")
    a(f"buffer_load_dword v31, v28, s[{SKV}:{SKV+3}], s{T1} offen")
    a("v_lshrrev_b32 v28, 1, v25")
    a(f"v_lshlrev_b32 v{VQD}, 16, v28")
    a("v_and_b32 v28, 1, v25")
    a(f"v_lshl_add_u32 v{VQD}, v28, 10, v{VQD}")
    a(f"v_lshl_add_u32 v{VQD}, v23, 5, v{VQD}")
    a(f"v_lshl_add_u32 v{VQD}, v24, 4, v{VQD}")
    a(f"s_and_b32 s{S_RP}, s2, 1")
    a(f"s_lshl_b32 s{S_RP}, s{S_RP}, 2")
    a(f"s_and_b32 s{T1}, s{T0}, 3")
    a(f"s_add_u32 s{S_RP}, s{S_RP}, s{T1}")
    a(f"s_bfe_u32 s{S_CT}, s2, 0x20001")
    a(f"s_lshl_b32 s{S_G}, s{S_CT}, 2")
    a(f"s_lshl_b32 s{S_CT}, s{S_CT}, 3")
    a(f"s_lshr_b32 s{S_C2}, s{T0}, 2")
    a(f"s_add_u32 s{S_CT}, s{S_CT}, s{S_C2}")
    a(f"s_add_u32 s{S_G}, s{S_G}, s{T1}")
    a(f"s_and_b32 s{S_KH}, s2, 1")
    a(f"s_lshr_b32 s{S_WM}, s{S_WAVE}, 2")
    a(f"s_and_b32 s{S_P}, s{S_WAVE}, 1")
    a(f"s_bfe_u32 s{S_BB}, s{S_WAVE}, 0x10001")
    a(f"s_and_b32 s{S_WN}, s{S_WAVE}, 3")
    a(f"v_lshl_add_u32 v{VXD}, v22, 11, v{VKVD}")
    a(f"s_lshl_b32 s{S_MX}, s{S_WAVE}, 11")
    a(f"s_lshl_b32 s{S_MW}, s{S_BB}, 2")
    a(f"s_add_u32 s{S_MW}, s{S_MW}, s{S_P}")
    a(f"s_lshl_b32 s{S_MW}, s{S_MW}, 10")
    a(f"s_lshl_b32 s{T0}, s{S_WM}, 13")
    a(f"s_add_u32 s{S_MW}, s{S_MW}, s{T0}")
    a(f"s_add_u32 s{S_MW}, s{S_MW}, 16384")
    a(f"s_lshl_b32 s{T0}, s{S_P}, 3")
    a(f"s_lshl_b32 s{T1}, s{S_BB}, 2")
    a(f"s_add_u32 s{T0}, s{T0}, s{T1}")
    a(f"v_add_u32 v22, s{T0}, v{VQQ}")
    a(f"s_lshl_b32 s{T0}, s{S_P}, 2")
    a(f"v_add_u32 v23, s{T0}, v{VQQ}")
    a("v_lshlrev_b32 v23, 1, v23")
    a(f"v_xor_b32 v23, v23, v{VT}")
    a("v_lshlrev_b32 v24, 4, v23")
    a("v_subrev_u32 v25, 192, v24")
    a("v_add_u32 v26, 32, v24")
    a("v_cmp_le_u32 vcc, 12, v23")
    a(f"s_and_b32 s{T0}, s{S_CT}, 1")
    a("s_nop 0")
    a("v_cndmask_b32 v25, v26, v25, vcc")
    a(f"s_cmp_eq_u32 s{T0}, 1")
    a(f"s_cselect_b64 s[{T2}:{T3}], -1, 0")
    a(f"v_cndmask_b32 v25, v24, v25, s[{T2}:{T3}]")
    a(f"s_mul_i32 s{T0}, s{S_CT}, 224")
    a(f"v_add_u32 v25, s{T0}, v25")
    a("v_mov_b32 v27, 7168")
    a("v_mad_u32_u24 v25, v22, v27, v25")
    a(f"s_lshl_b32 s{T0}, s{S_CT}, 16")
    a(f"s_lshl_b32 s{T1}, s{S_WM}, 10")
    a(f"s_add_u32 s{T0}, s{T0}, s{T1}")
    a(f"s_lshl_b32 s{T1}, s{S_P}, 8")
    a(f"s_add_u32 s{T0}, s{T0}, s{T1}")
    a(f"s_lshl_b32 s{T1}, s{S_BB}, 7")
    a(f"s_add_u32 s{T0}, s{T0}, s{T1}")
    a(f"s_add_u32 s{T0}, s{T0}, {WS_WQP}")
    a("v_and_b32 v26, 16, v24")
    a(f"v_lshl_add_u32 v26, v{VQQ}, 5, v26")
    a(f"v_add_u32 v26, s{T0}, v26")
    a(f"v_cmp_le_u32 s[{QMASK}:{QMASK+1}], 14, v23")
    a("v_mov_b32 v28, 64")
    a("v_mov_b32 v22, 512")
    a(f"v_mov_b32 v23, {16*7168}")
    a(f"v_cndmask_b32 v25, v25, v26, s[{QMASK}:{QMASK+1}]")
    a(f"v_cndmask_b32 v27, v27, v28, s[{QMASK}:{QMASK+1}]")
    a(f"v_cndmask_b32 v24, v23, v22, s[{QMASK}:{QMASK+1}]")
    a(f"v_lshlrev_b32 v{VWS}, 5, v27")
    a(f"v_mov_b32 v{VWS+1}, 0")
    a(f"v_mov_b32 v28, s{S_TW}")
    a(f"v_mov_b32 v29, s{S_TA}")
    a(f"v_mov_b32 v22, s{P_WS}")
    a(f"v_mov_b32 v23, s{P_WS+1}")
    a(f"v_cndmask_b32 v28, v28, v22, s[{QMASK}:{QMASK+1}]")
    a(f"v_cndmask_b32 v29, v29, v23, s[{QMASK}:{QMASK+1}]")
    a(f"v_add_co_u32 v{VWA}, vcc, v25, v28")
    a("v_mov_b32 v25, 0")
    a("s_nop 0")
    a(f"v_addc_co_u32 v{VWA+1}, vcc, 0, v29, vcc")
    a(f"v_lshl_add_u64 {v(VWB,2)}, v[24:25], 0, {v(VWA,2)}")
    p1_setup(a)
    a(f"s_lshl_b32 s{S_RING}, s{S_WAVE}, 14")
    a(f"s_add_u32 s{S_RING}, s{S_RING}, 32768")
    srd(a, SWO, P_WS, P_WS + 1, 8 << 20)
    srd(a, SPART, P_WS, P_WS + 1, 256 << 10, add_lo=WS_KV)
    a(f"v_lshlrev_b32 v{VTW}, 7, v{VL}")
    a(f"s_lshl_b32 s{T0}, s{S_WAVE}, 4")
    a(f"v_add_u32 v{VTW}, s{T0}, v{VTW}")
    a(f"v_lshrrev_b32 v{VXO}, 5, v{VL}")
    a(f"v_lshlrev_b32 v{VXO}, 14, v{VXO}")
    a(f"v_bfe_u32 v22, v{VL}, 3, 2")
    a(f"v_lshl_add_u32 v{VXO}, v22, 8, v{VXO}")
    a(f"v_and_b32 v22, 7, v{VL}")
    a(f"v_lshl_add_u32 v{VXO}, v22, 4, v{VXO}")
    a(f"s_lshr_b32 s{S_AO}, s2, 5")
    a(f"s_lshl_b32 s{S_AO}, s{S_AO}, 19")
    a(f"s_bfe_u32 s{T1}, s2, 0x40001")
    a(f"s_lshl_b32 s{T1}, s{T1}, 10")
    a(f"s_add_u32 s{S_AO}, s{S_AO}, s{T1}")
    a(f"s_lshl_b32 s{T1}, s{S_KH}, 7")
    a(f"s_add_u32 s{S_AO}, s{S_AO}, s{T1}")
    a(f"s_lshl_b32 s{T1}, s{S_WAVE}, 16")
    a(f"s_add_u32 s{S_AO}, s{S_AO}, s{T1}")
    a(f"s_add_u32 s{S_WDO}, s{S_AO}, 32768")
    a(f"v_lshlrev_b32 v{VFR}, 7, v{VQQ}")
    a(f"v_lshl_add_u32 v{VFR}, v22, 4, v{VFR}")
    a(f"v_add_u32 v{VFR}, s{S_MX}, v{VFR}")
    a(f"v_lshrrev_b32 v{VTR}, 2, v{VT}")
    a(f"v_lshl_add_u32 v{VTR}, v{VQQ}, 3, v{VTR}")
    a(f"v_lshlrev_b32 v{VTR}, 6, v{VTR}")
    a(f"v_and_b32 v22, 3, v{VL}")
    a(f"v_lshl_add_u32 v{VTR}, v22, 3, v{VTR}")
    a(f"v_add_u32 v{VTR}, s{S_RING}, v{VTR}")
    a(f"v_and_b32 v{VPL}, 31, v{VL}")
    a(f"v_lshlrev_b32 v{VPL}, 3, v{VPL}")
    a(f"s_lshl_b32 s{T0}, s{S_RP}, 8")
    a(f"v_add_u32 v22, s{T0}, v{VPL}")
    a(f"v_cmp_gt_u32 vcc, 32, v{VL}")
    a(f"s_lshr_b32 s{S_CNT}, s2, 3")
    a(f"s_lshl_b32 s{S_CNT}, s{S_CNT}, 11")
    a(f"v_cndmask_b32 v{VPL}, v{VPL}, v22, vcc")
    a(f"s_and_b32 s{T0}, s2, 7")
    a(f"s_lshl_b32 s{T0}, s{T0}, 7")
    a(f"s_add_u32 s{S_CNT}, s{S_CNT}, s{T0}")
    a(f"s_add_u32 s{S_CNT}, s{S_CNT}, {WS_WQP}")
    a(f"s_mov_b32 s{T3}, 0xffff0000")
    a("s_waitcnt vmcnt(3)")
    nstamp(a, "xl")
    X = 64
    for k in range(8):
        a(f"v_lshlrev_b32 v{X+2*k}, 16, v{32+k}")
        a(f"v_and_b32 v{X+2*k+1}, s{T3}, v{32+k}")
    a(f"v_pk_add_f32 v[50:51], v[{X}:{X+1}], v[{X+2}:{X+3}]")
    a(f"v_pk_add_f32 v[52:53], v[{X+4}:{X+5}], v[{X+6}:{X+7}]")
    for k in (4, 6):
        a(f"v_pk_add_f32 v[50:51], v[50:51], v[{X+2*k}:{X+2*k+1}]")
        a(f"v_pk_add_f32 v[52:53], v[52:53], v[{X+2*k+2}:{X+2*k+3}]")
    a("v_pk_add_f32 v[50:51], v[50:51], v[52:53]")
    a("v_add_f32 v50, v50, v51")
    wave_sum(a, 50, 51)
    a("v_mul_f32 v54, 0x3a800000, v50")
    a("v_mov_b32 v55, v54")
    for k in range(8):
        t = 80 + 2 * k
        a(f"v_pk_add_f32 v[{t}:{t+1}], v[{X+2*k}:{X+2*k+1}], v[54:55] neg_lo:[0,1] neg_hi:[0,1]")
    a("v_pk_mul_f32 v[50:51], v[80:81], v[80:81]")
    a("v_pk_mul_f32 v[52:53], v[82:83], v[82:83]")
    for k in range(2, 8):
        t = 80 + 2 * k; r = 50 + 2 * (k % 2)
        a(f"v_pk_fma_f32 v[{r}:{r+1}], v[{t}:{t+1}], v[{t}:{t+1}], v[{r}:{r+1}]")
    a("v_pk_add_f32 v[50:51], v[50:51], v[52:53]")
    a("v_add_f32 v50, v50, v51")
    def rbf(r):
        a(f"v_cvt_pk_bf16_f32 v{r}, v{r}, v{r}")
        a(f"v_and_b32 v{r}, s{T3}, v{r}")
    rbf(54)
    a("v_mov_b32 v55, v54")
    for k in range(8):
        t = 80 + 2 * k
        a(f"v_pk_add_f32 v[{t}:{t+1}], v[{X+2*k}:{X+2*k+1}], v[54:55] neg_lo:[0,1] neg_hi:[0,1]")
    wave_sum(a, 50, 51)
    for k in range(8): a(f"v_cvt_pk_bf16_f32 v{81+2*k}, v{80+2*k}, v{81+2*k}")
    a("v_mul_f32 v50, 0x3a800000, v50")
    rbf(50)
    a("v_add_f32 v50, 0x3727c5ac, v50")
    rbf(50)
    a("v_sqrt_f32 v50, v50")
    for k in range(4):
        a(f"v_lshlrev_b32 v{80+2*k}, 16, v{81+2*k}")
        a(f"v_and_b32 v{81+2*k}, s{T3}, v{81+2*k}")
    rbf(50)
    a("v_rcp_f32 v56, v50")
    for k in range(4, 8):
        a(f"v_lshlrev_b32 v{80+2*k}, 16, v{81+2*k}")
        a(f"v_and_b32 v{81+2*k}, s{T3}, v{81+2*k}")
    a("v_mov_b32 v57, v56")
    for k in range(8): a(f"v_pk_mul_f32 v[{80+2*k}:{81+2*k}], v[{80+2*k}:{81+2*k}], v[56:57]")
    for k in range(8): a(f"v_cvt_pk_bf16_f32 v{32+k}, v{80+2*k}, v{81+2*k}")
    nstamp(a, "ln")
    a(f"ds_write_b128 v{VTW}, v[32:35]")
    a(f"ds_write_b128 v{VTW}, v[36:39] offset:8192")
    a("s_waitcnt vmcnt(2)")
    a(f"buffer_store_dwordx4 v[40:43], v{VQD}, s[{SWO}:{SWO+3}], s{S_CNT} offen sc1")
    a("s_waitcnt lgkmcnt(0)")
    a(f"s_add_u32 s{NONCE}, s{NONCE}, 0x9e3779b9")
    a(f"s_add_u32 s{NONCE+1}, s{NONCE+1}, 0x85ebca6b")
    a("s_barrier")
    nstamp(a, "b1")
    a(f"ds_read_b128 v[32:35], v{VXD}")
    a(f"ds_read_b128 v[36:39], v{VXD} offset:1024")
    for j in range(4): a(f"ds_read_b128 {v(48+4*j,4)}, v{VFR} offset:{j*512}")
    a("s_waitcnt lgkmcnt(5)")
    a(f"buffer_store_dwordx4 v[32:35], v{VXO}, s[{SWO}:{SWO+3}], s{S_AO} offen sc1")
    a("s_waitcnt lgkmcnt(4)")
    a(f"buffer_store_dwordx4 v[36:39], v{VXO}, s[{SWO}:{SWO+3}], s{S_WDO} offen sc1")
    a(f"s_lshl_b32 s{T2}, s{S_WAVE}, 13")
    def wkdma(m, h):
        a(f"s_add_u32 m0, s{S_RING}, {m*8192 + h*4096}")
        a(f"s_add_u32 s{T0}, s{T2}, {h*4096}")
        for i in range(4):
            a(f"buffer_load_dwordx4 v{VKVD}, s[{(SACT,SKV)[m]}:{(SACT,SKV)[m]+3}], s{T0} offen offset:{i*1024} lds")
    wkdma(0, 0)
    a(f"s_lshl_b32 s{S_CNT}, s2, 3")
    a("s_waitcnt vmcnt(4) lgkmcnt(0)")
    a("s_barrier")
    nstamp(a, "xs")
    wave0(a, lambda: flag_set(a, S_CNT))
    wkdma(0, 1); wkdma(1, 0); wkdma(1, 1)
    a(f"v_mov_b32 v40, v{VWA}")
    a(f"v_mov_b32 v41, v{VWA+1}")
    a(f"v_mov_b32 v42, v{VWB}")
    a(f"v_mov_b32 v43, v{VWB+1}")
    a(f"s_andn2_b64 exec, exec, s[{QMASK}:{QMASK+1}]")
    for i in range(NPRE):
        a(f"global_load_dword v31, v[40:41], off")
        a(f"global_load_dword v31, v[42:43], off")
        a(f"v_lshl_add_u64 v[40:41], {v(VWS,2)}, 0, v[40:41]")
        a(f"v_lshl_add_u64 v[42:43], {v(VWS,2)}, 0, v[42:43]")
    a("s_mov_b64 exec, -1")
    a(f"s_waitcnt vmcnt({2*NPRE})")
    nstamp(a, "wk")
    for j in range(4):
        for m in range(2):
            for dt in range(2):
                for h in range(2):
                    r = 64 + ((m * 2 + dt) * 4 + j) * 4 + 2 * h
                    a(f"ds_read_b64_tr_b16 {v(r,2)}, v{VTR} offset:{m*8192 + j*2048 + h*256 + dt*32}")
    a(poll_load())
    for j in range(4):
        a(f"s_waitcnt lgkmcnt({min(15, 8*(3-j))})")
        for m in range(2):
            for dt in range(2):
                w = 64 + ((m * 2 + dt) * 4 + j) * 4; x = 48 + 4 * j; d = 32 + (m * 2 + dt) * 4
                c = "0" if j == 0 else v(d, 4)
                ab = (w, x) if m == 0 else (x, w)
                a(f"v_mfma_f32_16x16x32_bf16 {v(d,4)}, {v(ab[0],4)}, {v(ab[1],4)}, {c}")
    a(f"v_add_u32 v62, s{S_RING}, v{VKVD}")
    a(f"s_lshl_b32 s{T0}, s{S_RP}, 19")
    srd(a, SX, P_WS, P_WS + 1, 512 << 10, add_lo=f"s{T0}")
    srd(a, SACT, P_WS, P_WS + 1, 16 * ACT_NU * 8192, add_lo=WS_ACT)
    for tl in range(4): a(f"ds_write_b128 v62, {v(32+4*tl,4)} offset:{tl*1024}")
    srd(a, SKV, P_WS, P_WS + 1, (256 << 10) + 32768, add_lo=WS_KV - 8192)
    srd(a, SWO, P_WO, P_WO + 1, 1024 * 2048)
    a("s_waitcnt lgkmcnt(0)")
    a("s_barrier")
    a(f"s_cmp_lg_u32 s{S_WM}, 0")
    a("s_cbranch_scc1 P0_KVD")
    a(f"s_lshl_b32 s{T0}, s{S_WAVE}, 10")
    a(f"v_add_u32 v62, s{T0}, v{VKVD}")
    a("v_add_u32 v63, 0x18000, v62")
    a("v_add_u32 v62, 0x8000, v62")
    for w in range(8): a(f"ds_read_b128 {v(64+4*w,4)}, v{62 + w // 4} offset:{(w % 4) * 16384}")
    a(f"s_lshr_b32 s{T0}, s2, 2")
    a(f"s_lshl_b32 s{T0}, s{T0}, 11")
    a(f"v_lshlrev_b32 v60, 9, v{VQQ}")
    a(f"v_lshl_add_u32 v60, v{VT}, 4, v60")
    a(f"s_and_b32 s{T1}, s2, 3")
    a(f"s_lshl_b32 s{T1}, s{T1}, 7")
    a(f"s_lshl_b32 s{T2}, s{S_P}, 3")
    a(f"s_add_u32 s{T1}, s{T1}, s{T2}")
    a(f"s_bfe_u32 s{T2}, s2, 0x10001")
    a(f"s_lshl_b32 s{T2}, s{T2}, 10")
    a(f"s_lshl_b32 s{T3}, s{S_P}, 8")
    a(f"s_add_u32 s{T2}, s{T2}, s{T3}")
    a(f"s_lshl_b32 s{T3}, s{S_KH}, 3")
    a(f"s_add_u32 s{T2}, s{T2}, s{T3}")
    a(f"s_add_u32 s{T2}, s{T2}, 0x20000")
    a(f"s_cmp_eq_u32 s{S_BB}, 0")
    a(f"s_cselect_b32 s{T1}, s{T1}, s{T2}")
    a(f"s_mov_b32 s{T2}, 0x00ff00ff")
    a(f"s_cselect_b32 s{T2}, s{T2}, -1")
    a(f"s_cselect_b32 s{T3}, s{T2}, 0")
    a(f"s_add_u32 s{T0}, s{T0}, s{T1}")
    a("s_waitcnt lgkmcnt(0)")
    for st in (1, 2, 4):
        for w in range(0, 8, 2 * st):
            for h in range(2):
                d = 64 + 4 * w + 2 * h; e = 64 + 4 * (w + st) + 2 * h
                a(f"v_pk_add_f32 {v(d,2)}, {v(d,2)}, {v(e,2)}")
    a("v_cvt_pk_bf16_f32 v64, v64, v65")
    a("v_cvt_pk_bf16_f32 v65, v66, v67")
    a(f"s_mov_b64 exec, s[{T2}:{T3}]")
    a(f"buffer_store_dwordx2 v[64:65], v60, s[{SPART}:{SPART+3}], s{T0} offen sc1")
    a("s_mov_b64 exec, -1")
    a.label("P0_KVD")
    srd(a, SPART, P_WS, P_WS + 1, 8 << 20, add_lo=WS_PART)

def gen(a):
    kernel_head(a, NAME)
    a("s_cmp_ge_u32 s2, 256")
    a("s_cbranch_scc1 KM_END")
    stamp(a, 0)
    gen_p0(a)
    nstamp(a, "kvd")
    def chk0():
        a("s_waitcnt vmcnt(1)")
        poll_check(a)
    wave0(a, chk0)
    a("s_barrier")
    nstamp(a, "fl")
    stamp(a, 1)
    addr, ld, check = allflags(a, F_XN)
    for st_ in range(4):
        emit(a, p1_dma_x(st_) + p1_dma_w(st_))
        if st_ == 1: wave0(a, lambda: emit(a, [addr, ld]))
    a(f"s_lshl_b32 s{S_CNT}, s2, 3")
    a(f"s_add_u32 s{S_CNT}, s{S_CNT}, {F_KV}")
    a("s_waitcnt vmcnt(12)")
    a("s_barrier")
    for x in p1_reads(0, 0): a(x)
    def chk1():
        a("s_waitcnt vmcnt(8)")
        check()
        flag_set(a, S_CNT)
    wave0(a, chk1)
    a("s_waitcnt vmcnt(8) lgkmcnt(0)")
    a("s_barrier")
    nstamp(a, "p1s")
    a(f"s_mov_b32 s{S_CNT}, 7")
    a(f"s_cmp_lg_u32 s{S_WM}, 0")
    a("s_cbranch_scc1 P1_LOOPB")
    for grp in range(2):
        if grp and P1PRIO: pass
        a.raw(".p2align 6")
        a.label("P1_LOOP" + "AB"[grp])
        if grp and P1PRIO: a(f"s_setprio {P1PRIO}")
        for t in range(28 if UNROLL else 4):
            nstamp(a, f"s{t}")
            p1_step(a, t, True, True, "s_waitcnt vmcnt(8) lgkmcnt(0)", True, grp=grp)
        if not UNROLL:
            a(f"s_sub_u32 s{S_CNT}, s{S_CNT}, 1")
            a(f"s_cmp_lg_u32 s{S_CNT}, 0")
            a("s_cbranch_scc1 P1_LOOP" + "AB"[grp])
        if not grp: a("s_branch P1_TAIL")
    a("s_setprio 0")
    a.label("P1_TAIL")
    addr, ld, check = allflags(a, F_KV)
    p1_step(a, 28, False, True, "s_waitcnt vmcnt(4) lgkmcnt(0)", True, late=[addr])
    p1_step(a, 29, False, True, "s_waitcnt vmcnt(0) lgkmcnt(0)", True, extra=[[ld[0]], [ld[1]]], pre_bar=lambda: wave0(a, check))
    p1_step(a, 30, False, True, "s_waitcnt lgkmcnt(0)", False, extra=kv_dma() + kv_dma())
    p1_step(a, 31, False, False, None, False)
    stamp(a, 2)
    nstamp(a, "p1e")
    if STOP == "p1": a("s_branch KM_FIN")
    a(f"v_lshlrev_b32 v{VHO}, 9, v{VQQ}")
    a(f"v_lshl_add_u32 v{VHO}, v{VT}, 4, v{VHO}")
    a(f"v_add_u32 v{VHO+1}, 0x1000, v{VHO}")
    a(f"s_lshr_b32 s{T0}, s{S_CT}, 1")
    a(f"s_mul_i32 s{T0}, s{T0}, 7")
    a(f"s_and_b32 s{T1}, s{S_CT}, 1")
    a(f"s_lshl_b32 s{T2}, s{T1}, 2")
    a(f"s_add_u32 s{T2}, s{T2}, s{S_WN}")
    a(f"s_cmp_eq_u32 s{S_WN}, 3")
    a(f"s_cselect_b32 s{T2}, 3, s{T2}")
    a(f"s_add_u32 s{T0}, s{T0}, s{T2}")
    a(f"s_lshl_b32 s{T2}, s{S_RP}, 1")
    a(f"s_add_u32 s{T2}, s{T2}, s{S_WM}")
    a(f"s_mul_i32 s{T3}, s{T2}, {ACT_NU}")
    a(f"s_add_u32 s{T0}, s{T0}, s{T3}")
    a(f"s_lshl_b32 s{S_HO}, s{T0}, 13")
    a(f"s_lshl_b32 s{S_XO}, s{S_RP}, 8")
    a(f"s_lshl_b32 s{T3}, s{S_CT}, 3")
    a(f"s_add_u32 s{S_XO}, s{S_XO}, s{T3}")
    a(f"s_add_u32 s{S_XO}, s{S_XO}, {F_H}")
    a(f"s_cmp_eq_u32 s{S_WN}, 3")
    a("s_cbranch_scc1 P1_EP3")
    def hpair(t, j):
        g = acc(0, t, j); u = acc(1, t, j); dst = HS + 4 * j + 2 * t
        for i in range(4): a(f"v_max_f32 v{g+i}, 0, v{g+i}")
        for i in (0, 2): a(f"v_pk_mul_f32 {v(g+i,2)}, {v(g+i,2)}, {v(u+i,2)}")
        for i in (2, 0): a(f"v_cvt_pk_bf16_f32 v{dst+i//2}, v{g+i}, v{g+i+1}")
    for j in range(8):
        hpair(1, j); hpair(0, j)
    a("s_branch P1_EPD")
    a.label("P1_EP3")
    a(f"s_mov_b32 s{T2}, {QSCALE}")
    a(f"s_mov_b32 s{T3}, {QSCALE}")
    a(f"s_lshl_b32 s{S_CNT}, s{S_WM}, 13")
    a(f"v_add_u32 v24, s{S_CNT}, v{VHO}")
    for j in range(8):
        tmp = XF + 32 + 4 * j
        for st in range(2):
            g = acc(st, 1, j)
            for i in (0, 2): a(f"v_pk_mul_f32 {v(g+i,2)}, {v(g+i,2)}, s[{T2}:{T3}]")
            for i in (0, 2): a(f"v_cvt_pk_bf16_f32 v{tmp+2*st+i//2}, v{g+i}, v{g+i+1}")
        a(f"ds_write_b128 v24, {v(tmp,4)} offset:{QLDS + (j>>1)*2048 + (j&1)*256}")
    a(f"s_lshl_b32 s{T1}, s{T1}, 3")
    a(f"s_add_u32 s{S_HO}, s{S_HO}, s{T1}")
    for j in range(8): hpair(0, j)
    a.label("P1_EPD")
    a(f"s_lshl_b32 s{T3}, s{S_WAVE}, 10")
    a(f"v_add_u32 v{VPA}, s{T3}, v{VKVD}")
    a(f"v_lshlrev_b32 v3, 2, v{VQQ}")
    a(f"v_xor_b32 v3, v3, v{VT}")
    a("v_lshlrev_b32 v3, 4, v3")
    a(f"v_lshl_add_u32 v3, v{VQQ}, 11, v3")
    a(f"s_lshl_b32 s{T0}, s{S_WAVE}, 13")
    a(f"s_lshl_b32 s{T1}, s{S_C2}, 8")
    a(f"s_add_u32 s{T0}, s{T0}, s{T1}")
    a(f"v_add_u32 v{VPW}, s{T0}, v3")
    a(f"s_mul_i32 s{T0}, s{S_G}, {ACT_NU}")
    a(f"s_mul_i32 s{T1}, s{S_KH}, 56")
    a(f"s_add_u32 s{T0}, s{T0}, s{T1}")
    a(f"s_lshl_b32 s{S_AO}, s{T0}, 13")
    a(f"s_lshl_b32 s{S_WDO}, s{T1}, 16")
    a(f"s_mov_b32 s{S_RING}, 0")
    a(f"v_lshlrev_b32 v{VTCH}, 6, v{VL}")
    a(f"s_lshr_b32 s{T0}, s2, 3")
    a(f"s_lshl_b32 s{T0}, s{T0}, 12")
    a(f"s_add_u32 s{S_TW}, s{S_WDO}, s{T0}")
    a(f"s_lshl_b32 s{T0}, s{S_C2}, 12")
    a(f"s_add_u32 s{S_TA}, s{S_AO}, s{T0}")
    a(f"v_lshrrev_b32 v25, 2, v{VL}")
    a(f"v_xor_b32 v25, v25, v{VQQ}")
    a("v_and_b32 v25, 1, v25")
    a(f"v_and_b32 v26, 3, v{VL}")
    a("v_or_b32 v25, v25, v26")
    a("v_cmp_eq_u32 vcc, 0, v25")
    a("v_mov_b32 v26, 0x3f803f80")
    a("v_mov_b32 v27, 0")
    a("s_waitcnt vmcnt(0) lgkmcnt(0)")
    a("s_barrier")
    a(f"ds_read_b128 {v(QF,4)}, v{VXD} offset:{QLDS}")
    a(f"ds_read_b128 {v(QF+4,4)}, v{VXD} offset:{QLDS+1024}")
    for b in range(2):
        for s_ in range(2):
            a(f"ds_read_b128 {v(KB+8*b+4*s_,4)}, v{VKVR} offset:{0x4000 + (2+b)*2048 + s_*1024}")
    for i in range(4): a(f"v_cndmask_b32 v{SEL+i}, v27, v26, vcc")
    for i in range(4): a(f"v_mov_b32 v{RS+i}, 0")
    for i in range(16): a(f"v_mov_b32 v{OA+i}, 0")
    a("s_waitcnt lgkmcnt(0)")
    a(mf32(SB, KB, QF, "0"))
    a(mf32(SB, KB + 4, QF + 4, v(SB, 16)))
    a("s_nop 11")
    a(f"v_max3_f32 v26, v{SB}, v{SB+1}, v{SB+2}")
    for i in range(3, 15, 2): a(f"v_max3_f32 v26, v26, v{SB+i}, v{SB+i+1}")
    a(f"v_max_f32 v26, v26, v{SB+15}")
    a("v_mov_b32 v27, v26")
    a("s_nop 1")
    a("v_permlane32_swap_b32 v26, v27")
    a("s_nop 0")
    a("v_max_f32 v26, v26, v27")
    for i in range(16): a(f"v_sub_f32 v{NM+i}, 0, v26")
    for i in range(16): a(f"v_sub_f32 v{SB+i}, v{SB+i}, v26")
    stamp(a, 3)
    def pollH():
        a(f"s_lshr_b32 s{T0}, s{S_G}, 1")
        a(f"s_lshl_b32 s{T0}, s{T0}, 8")
        a(f"s_lshl_b32 s{T1}, s{S_KH}, 7")
        a(f"s_add_u32 s{T0}, s{T0}, s{T1}")
        a(f"s_add_u32 s{T0}, s{T0}, {F_H}")
        poll_issue(a, T0, 16)
    att_epoch(a, 0, first=True, x2=h_store(0), x3=h_store(1))
    att_epoch(a, 1, wait=2, x2=h_store(2), x3=h_store(3))
    att_epoch(a, 2, wait=2, x2=h_store(4), x3=h_store(5))
    att_epoch(a, 3, wait=2, x2=h_store(6), x3=h_store(7))
    att_epoch(a, 4, wait=2)
    att_epoch(a, 5, post=lambda: wave0(a, lambda: flag_set(a, S_XO)), x1=touch_wo())
    att_epoch(a, 6, wait=1, x1=touch_w(20))
    att_epoch(a, 7, wait=1, post=lambda: wave0(a, pollH), x1=touch_w(12))
    att_epoch(a, 8, wait=1, post=lambda: wave0(a, lambda: poll_check(a)), x1=touch_w(4))
    att_epoch(a, 9, prefill=2, wait=1, x3=touch_a(6))
    att_epoch(a, 10, prefill=2, wait=5)
    att_epoch(a, 11, prefill=2, wait=4)
    att_epoch(a, 12, prefill=2, wait=4, x3=touch_a(0))
    att_epoch(a, 13, wait=5)
    att_epoch(a, 14)
    att_epoch(a, 15, last=True)
    a("s_waitcnt lgkmcnt(0)")
    a(mf32(OA, VB + 8, PB + 8, v(OA, 16)))
    a(mfrs(PB + 8))
    a(mf32(OA, VB + 12, PB + 12, v(OA, 16)))
    a(mfrs(PB + 12))
    a(f"s_add_u32 s{S_XO}, s{S_XO}, {F_O - F_H}")
    a(f"s_lshl_b32 s{T0}, s{S_RP}, 1")
    a(f"s_add_u32 s{T0}, s{T0}, s{S_WM}")
    a(f"s_mul_i32 s{T0}, s{T0}, {ACT_NU}")
    a(f"s_add_u32 s{T0}, s{T0}, s{S_CT}")
    a(f"s_add_u32 s{T0}, s{T0}, 112")
    a(f"s_lshl_b32 s{T0}, s{T0}, 13")
    a(f"s_lshl_b32 s{T1}, s{S_WN}, 11")
    a(f"s_add_u32 s{S_CNT}, s{T0}, s{T1}")
    a("s_nop 4")
    a(f"v_mul_f32 v26, 0, v{RS}")
    for i in range(16): a(f"v_fma_f32 v26, v{OA+i}, 0, v26")
    a("v_cmp_u_f32 vcc, v26, v26")
    a("s_cmp_lg_u64 vcc, 0")
    a("s_cbranch_scc1 P2_SLOW")
    a.label("P2_FIN")
    a(f"v_rcp_f32 v26, v{RS}")
    a("s_nop 0")
    for i in range(16): a(f"v_mul_f32 v{OA+i}, v{OA+i}, v26")
    for k, base in enumerate((0, 8, 4, 12)):
        a(f"v_cvt_pk_bf16_f32 v{PB+2*k}, v{OA+base}, v{OA+base+1}")
        a(f"v_cvt_pk_bf16_f32 v{PB+2*k+1}, v{OA+base+2}, v{OA+base+3}")
    a(f"buffer_store_dwordx4 {v(PB,4)}, v{VKVD}, s[{SACT}:{SACT+3}], s{S_CNT} offen sc1")
    a(f"buffer_store_dwordx4 {v(PB+4,4)}, v{VKVD}, s[{SACT}:{SACT+3}], s{S_CNT} offen offset:1024 sc1")
    stamp(a, 4)
    import mk3
    mk3.gen_p3(a)
    a.label("P2_SLOW")
    a(f"s_mov_b32 s{T0}, 8192")
    a(f"v_mov_b32 v27, 0xff800000")
    a(f"v_mov_b32 v{RS}, 0")
    for i in range(16): a(f"v_mov_b32 v{OA+i}, 0")
    a.label("P2_SL")
    a(f"s_add_u32 s{T1}, s{T0}, 0x20000")
    a(f"buffer_load_dwordx4 {v(KB,4)}, v{VKVD}, s[{SKV}:{SKV+3}], s{T0} offen")
    a(f"buffer_load_dwordx4 {v(KB+4,4)}, v{VKVD}, s[{SKV}:{SKV+3}], s{T0} offen offset:1024")
    a(f"buffer_load_dwordx4 {v(VB,4)}, v{VKVD}, s[{SKV}:{SKV+3}], s{T1} offen")
    a(f"buffer_load_dwordx4 {v(VB+4,4)}, v{VKVD}, s[{SKV}:{SKV+3}], s{T1} offen offset:1024")
    a("s_waitcnt vmcnt(0)")
    a(mf32(SB, KB, QF, "0"))
    a(mf32(SB, KB + 4, QF + 4, v(SB, 16)))
    a("s_nop 15")
    a(f"v_max3_f32 v26, v27, v{SB}, v{SB+1}")
    for i in range(2, 16, 2): a(f"v_max3_f32 v26, v26, v{SB+i}, v{SB+i+1}")
    a("v_mov_b32 v28, v26")
    a("s_nop 1")
    a("v_permlane32_swap_b32 v26, v28")
    a("s_nop 0")
    a("v_max_f32 v26, v26, v28")
    a("v_sub_f32 v28, v27, v26")
    a("v_exp_f32 v28, v28")
    a("v_mov_b32 v27, v26")
    for i in range(16): a(f"v_sub_f32 v{SB+i}, v{SB+i}, v26")
    for i in range(16): a(f"v_exp_f32 v{SB+i}, v{SB+i}")
    for i in range(16): a(f"v_mul_f32 v{OA+i}, v{OA+i}, v28")
    a(f"v_mul_f32 v{RS}, v{RS}, v28")
    for i in range(8): a(f"v_cvt_pk_bf16_f32 v{PB+i}, v{SB+2*i}, v{SB+2*i+1}")
    a("s_nop 1")
    a(mf32(OA, VB, PB, v(OA, 16)))
    a(mfrs(PB))
    a(mf32(OA, VB + 4, PB + 4, v(OA, 16)))
    a(mfrs(PB + 4))
    a("s_nop 15")
    a(f"s_add_u32 s{T0}, s{T0}, 2048")
    a(f"s_cmp_lt_u32 s{T0}, {8192 + 64*2048}")
    a("s_cbranch_scc1 P2_SL")
    a("s_branch P2_FIN")
    a.label("KM_FIN")
    if STAMPS: a("s_waitcnt vmcnt(0)")
    stamp(a, 7)
    stamp_flush(a, 0, 8, P_WS, S_WAVE)
    a.label("KM_END")
    a("s_endpgm")
    return dict(name=NAME, grid=256, block=512, lds=163840, vgpr=256, sgpr=102)
```

```python
from asmlib import *
from mk import *
GA = 128
def ga(ci, ti): return GA + (ci * 2 + ti) * 16
def gb(p, ti, s_): return 32 + p * 32 + (ti * 2 + s_) * 4
def gw(p, ci, s_): return 48 + p * 32 + (ci * 2 + s_) * 4
BA, BW0, BW1, BWO = 4, 7, 10, 13
NSLOT = 10
VPO, VXA = 16, 20
PART, XR = 192, 224
NDOWN, NOUT = 56, 32
NT = NDOWN + NOUT

def g_reads(t, s_):
    p = t & 1; slot = t % NSLOT; h = slot >> 2; o = (slot & 3) * 16384
    r = []
    if t >= NT: return r
    if t < NDOWN:
        for ci in range(2):
            for half in range(2):
                r.append(f"ds_read_b64_tr_b16 {v(gw(p,ci,s_)+2*half,2)}, v{(BW0,BW1)[ci]+h} offset:{o + 8192 + s_*2048 + half*4096}")
    else:
        for half in range(2):
            r.append(f"ds_read_b64_tr_b16 {v(gw(p,0,s_)+2*half,2)}, v{BWO+h} offset:{o + 8192 + s_*1024 + half*2048}")
    for ti in range(2):
        r.append(f"ds_read_b128 {v(gb(p,ti,s_),4)}, v{BA+h} offset:{o + ti*2048 + s_*1024}")
    return r

def g_ustep(a, t, extra=()):
    p = t & 1
    for s_ in range(2):
        if t < NDOWN:
            order = [(0,0),(0,1),(1,1),(1,0)] if s_ == 0 else [(1,0),(1,1),(0,1),(0,0)]
        else:
            order = [(0,0),(0,1)] if s_ == 0 else [(0,1),(0,0)]
        m = [mf32(ga(ci,ti), gw(p,ci,s_), gb(p,ti,s_), v(ga(ci,ti),16)) for ci, ti in order]
        nxt = g_reads(t, 1) if s_ == 0 else g_reads(t + 1, 0)
        a(f"s_waitcnt lgkmcnt({len(nxt)})")
        rd = g_reads(t + 1, s_)
        fill = [rd[i:i+2] for i in range(0, len(rd), 2)]
        while len(fill) < len(m): fill.append([])
        ex = list(extra)[s_::2]
        for i, e in enumerate(ex):
            fill[len(m) - 1 - (i % len(m))] += list(e)
        weave(a, m, fill)

def l_ustep(a, kind):
    a(f"s_add_u32 m0, s{S_RING}, s{T3}")
    a(f"s_add_u32 s{S_RING}, s{S_RING}, 16384")
    a(f"buffer_load_dwordx4 v4, s[{SACT}:{SACT+3}], s{S_AO} offen lds")
    a(f"buffer_load_dwordx4 v4, s[{SACT}:{SACT+3}], s{S_AO} offen offset:1024 lds")
    if kind == "d":
        a("s_add_u32 m0, m0, 8192")
        a(f"s_cmp_lt_u32 s{S_RING}, {NSLOT*16384}")
        a(f"buffer_load_dwordx4 v5, s[{SWD}:{SWD+3}], s{S_WDO} offen lds")
        a(f"buffer_load_dwordx4 v6, s[{SWD}:{SWD+3}], s{S_WDO} offen offset:1024 lds")
    else:
        a(f"s_add_u32 m0, m0, s{T2}")
        a(f"s_cmp_lt_u32 s{S_RING}, {NSLOT*16384}")
        a(f"buffer_load_dwordx4 v7, s[{SWO}:{SWO+3}], s{S_WDO} offen lds")
    a(f"s_cselect_b32 s{S_RING}, s{S_RING}, 0")
    a(f"s_add_u32 s{S_AO}, s{S_AO}, 8192")
    a(f"s_add_u32 s{S_WDO}, s{S_WDO}, 65536")

def gen_p3(a):
    a(f"s_cmp_lg_u32 s{S_WM}, 0")
    a("s_cbranch_scc1 P3_L")
    a(f"s_lshr_b32 s{T0}, s{S_WN}, 1")
    a(f"s_lshl_b32 s{T0}, s{T0}, 12")
    a(f"v_add_u32 v{BA}, s{T0}, v{VKVD}")
    a(f"v_add_u32 v{BA+1}, 0x10000, v{BA}")
    a(f"v_add_u32 v{BA+2}, 0x20000, v{BA}")
    a(f"v_lshrrev_b32 v22, 2, v{VT}")
    a(f"v_lshrrev_b32 v23, 5, v{VL}")
    a("v_lshl_add_u32 v23, v23, 2, v22")
    a(f"v_and_b32 v25, 1, v{VQQ}")
    a(f"s_lshl_b32 s{T0}, s{S_KH}, 2")
    a(f"s_lshl_b32 s{T1}, s{S_P}, 1")
    a(f"s_add_u32 s{T0}, s{T0}, s{T1}")
    a(f"v_add_u32 v26, s{T0}, v25")
    a("v_lshlrev_b32 v27, 1, v22")
    a("v_xor_b32 v26, v26, v27")
    a("v_lshlrev_b32 v26, 5, v26")
    a("v_lshl_add_u32 v26, v23, 8, v26")
    a(f"v_and_b32 v27, 3, v{VL}")
    a(f"v_lshl_add_u32 v{BW0}, v27, 3, v26")
    a(f"v_add_u32 v{BW0+1}, 0x10000, v{BW0}")
    a(f"v_add_u32 v{BW0+2}, 0x20000, v{BW0}")
    a(f"v_xor_b32 v{BW1}, 128, v{BW0}")
    a(f"v_xor_b32 v{BW1+1}, 128, v{BW0+1}")
    a(f"v_xor_b32 v{BW1+2}, 128, v{BW0+2}")
    for x in g_reads(0, 0) + g_reads(0, 1): a(x)
    a(f"v_add_u32 v26, s{T1}, v25")
    a("v_and_b32 v28, 2, v22")
    a("v_xor_b32 v26, v26, v28")
    a("v_lshlrev_b32 v26, 5, v26")
    a("v_lshl_add_u32 v26, v23, 7, v26")
    a(f"v_lshl_add_u32 v{BWO}, v27, 3, v26")
    a(f"v_add_u32 v{BWO+1}, 0x10000, v{BWO}")
    a(f"v_add_u32 v{BWO+2}, 0x20000, v{BWO}")
    a(f"v_mov_b32 v{VPO}, v{VKVD}")
    a(f"v_add_u32 v{VPO+1}, 0x1000, v{VKVD}")
    a(f"v_and_b32 v26, 31, v{VL}")
    a("v_lshlrev_b32 v26, 11, v26")
    a(f"v_lshrrev_b32 v27, 5, v{VL}")
    a(f"v_lshl_add_u32 v{VXA}, v27, 4, v26")
    a(f"v_add_u32 v{VXA+1}, 0x10000, v{VXA}")
    a(f"s_lshl_b32 s{S_AO}, s{S_G}, 18")
    a(f"s_lshr_b32 s{T0}, s{S_WN}, 1")
    a(f"s_lshl_b32 s{T0}, s{T0}, 17")
    a(f"s_add_u32 s{S_AO}, s{S_AO}, s{T0}")
    a(f"s_lshl_b32 s{T0}, s{S_C2}, 8")
    a(f"s_add_u32 s{S_AO}, s{S_AO}, s{T0}")
    a(f"s_lshl_b32 s{T0}, s{S_KH}, 7")
    a(f"s_add_u32 s{S_AO}, s{S_AO}, s{T0}")
    a(f"s_lshl_b32 s{T0}, s{S_P}, 6")
    a(f"s_add_u32 s{S_AO}, s{S_AO}, s{T0}")
    srd(a, SX, P_X, P_X + 1, 4 << 20)
    srd(a, SKV, P_OUT, P_OUT + 1, 4 << 20)
    a(f"s_lshl_b32 s{T0}, s{S_WN}, 13")
    a(f"s_lshl_b32 s{S_RING}, s2, 15")
    a(f"s_add_u32 s{S_RING}, s{S_RING}, s{T0}")
    a(f"s_xor_b32 s{S_WDO}, s{S_RING}, {1 << 15}")
    a(f"s_lshl_b32 s{S_KVO}, s2, 7")
    a(f"s_add_u32 s{S_KVO}, s{S_KVO}, {F_P}")
    a(f"s_xor_b32 s{S_MKV}, s{S_KVO}, {1 << 7}")
    for q in range(4):
        a(f"buffer_load_dwordx4 {v(XR+4*q,4)}, v{VXA + q//2}, s[{SX}:{SX+3}], s{S_AO} offen offset:{(q%2)*32}")
    for i in range(64): a(f"v_mov_b32 v{GA+i}, 0")
    def epoch(e, pre=None, x0=(), x1=()):
        a("s_barrier")
        nstamp(a, f"g{e}")
        if pre: pre()
        g_ustep(a, 2 * e, x0)
        g_ustep(a, 2 * e + 1, x1)
    def pollO():
        a(f"s_lshr_b32 s{T0}, s{S_G}, 1")
        a(f"s_lshl_b32 s{T0}, s{T0}, 8")
        a(f"s_add_u32 s{T0}, s{T0}, {F_O}")
        poll_issue(a, T0, 32)
    def chkO():
        a("s_waitcnt vmcnt(0)")
        poll_check(a)
    for e in range(28):
        epoch(e, pre={3: lambda: wave0(a, lambda: flag_set(a, S_XO)), 18: lambda: wave0(a, pollO), 20: lambda: wave0(a, chkO)}.get(e))
        if e == 2: a("s_waitcnt vmcnt(0)")
    stamp(a, 5)
    st = [[f"buffer_store_dwordx4 {v(ga(1,q//4)+4*(q%4),4)}, v{VPO + q//4}, s[{SPART}:{SPART+3}], s{S_WDO} offen offset:{(q%4)*1024} sc1"] for q in range(8)]
    pl = [[f"buffer_load_dwordx4 {v(PART+4*q,4)}, v{VPO + q//4}, s[{SPART}:{SPART+3}], s{S_RING} offen offset:{(q%4)*1024} sc1"] for q in range(8)]
    def nonce_out():
        a(f"s_cmp_lg_u32 s2, 0")
        a("s_cbranch_scc1 P3_NN")
        a(f"s_movk_i32 s{T0}, {F_NONCE}")
        flag_set(a, T0)
        a.label("P3_NN")
    epoch(28, x1=st[:4]); epoch(29, x0=st[4:])
    epoch(30); epoch(31)
    a("s_waitcnt vmcnt(0)")
    epoch(32, pre=lambda: wave0(a, lambda: (flag_set(a, S_MKV), nonce_out())))
    epoch(33); epoch(34); epoch(35)
    epoch(36, pre=lambda: wave0(a, lambda: poll_issue(a, S_KVO, 1))); epoch(37)
    epoch(38, pre=lambda: wave0(a, chkO))
    epoch(39, x0=pl[:4], x1=pl[4:])
    for e in range(40, 44): epoch(e)
    stamp(a, 6)
    a("s_waitcnt vmcnt(0)")
    a(f"s_mov_b32 s{T0}, 0xffff0000")
    a("s_nop 11")
    for ti in range(2):
        d = ga(0, ti)
        for i in range(0, 16, 2):
            a(f"v_pk_add_f32 {v(d+i,2)}, {v(d+i,2)}, {v(PART+16*ti+i,2)}")
        a("s_nop 0")
        for gp in range(2):
            for i in range(4):
                a(f"v_permlane32_swap_b32 v{d+8*gp+i}, v{d+8*gp+4+i}")
        for gp in range(2):
            xr = XR + 8 * ti + 4 * gp
            for k in range(4):
                a(f"v_lshlrev_b32 v22, 16, v{xr+k}")
                a(f"v_and_b32 v23, s{T0}, v{xr+k}")
                a(f"v_pk_add_f32 {v(d+8*gp+2*k,2)}, {v(d+8*gp+2*k,2)}, v[22:23]")
                if os.environ.get("X_BIAS"):
                    a(f"v_add_f32 v{d+8*gp+2*k}, {os.environ['X_BIAS']}, v{d+8*gp+2*k}")
                a(f"v_cvt_pk_bf16_f32 v{xr+k}, v{d+8*gp+2*k}, v{d+8*gp+2*k+1}")
            a(f"buffer_store_dwordx4 {v(xr,4)}, v{VXA+ti}, s[{SKV}:{SKV+3}], s{S_AO} offen offset:{gp*32}")
    a("s_branch KM_FIN")
    a.label("P3_L")
    a(f"s_lshl_b32 s{T3}, s{S_WN}, 11")
    a(f"v_add_u32 v4, s{T3}, v{VKVD}")
    a(f"s_lshl_b32 s{T0}, s{S_WN}, 14")
    a(f"s_lshl_b32 s{T1}, s{S_C2}, 8")
    a(f"s_add_u32 s{T0}, s{T0}, s{T1}")
    a(f"v_add_u32 v5, s{T0}, v3")
    a(f"v_add_u32 v6, {8192-1024}, v5")
    a(f"v_lshrrev_b32 v22, 3, v{VL}")
    a("v_lshlrev_b32 v22, 11, v22")
    a(f"v_and_b32 v23, 1, v{VQQ}")
    a("v_lshlrev_b32 v23, 2, v23")
    a(f"v_and_b32 v25, 7, v{VL}")
    a("v_xor_b32 v23, v23, v25")
    a("v_lshl_add_u32 v22, v23, 4, v22")
    a(f"s_lshl_b32 s{T1}, s{S_KH}, 7")
    a(f"s_add_u32 s{T0}, s{T0}, s{T1}")
    a(f"v_add_u32 v7, s{T0}, v22")
    a(f"s_lshl_b32 s{T2}, s{S_WN}, 10")
    a(f"s_sub_u32 s{T2}, 8192, s{T2}")
    def toO():
        a(f"s_mul_i32 s{S_AO}, s{S_G}, {ACT_NU}")
        a(f"s_add_u32 s{S_AO}, s{S_AO}, 112")
        a(f"s_lshl_b32 s{S_AO}, s{S_AO}, 13")
        a(f"s_mov_b32 s{S_WDO}, 0")
    def kind(t): return "d" if t < NDOWN else "o"
    cost = {"d": 4, "o": 3}
    def lep(e):
        ts = [t for t in (2 * e + 8, 2 * e + 9) if t < NT]
        young = [t for t in range(2 * e + 5, 2 * e + 10) if 8 <= t < NT]
        a("s_barrier")
        for t in ts:
            if t == NDOWN: toO()
            l_ustep(a, kind(t))
        n = sum(cost[kind(t)] for t in young)
        if e < 43: a(f"s_waitcnt vmcnt({n})")
    for e in range(4): lep(e)
    a(f"s_mov_b32 s{S_CNT}, 20")
    a.label("P3_LA")
    lep(4)
    a(f"s_sub_u32 s{S_CNT}, s{S_CNT}, 1")
    a(f"s_cmp_lg_u32 s{S_CNT}, 0")
    a(f"s_cbranch_scc1 P3_LA")
    for e in range(24, 44): lep(e)
    stamp(a, 5); stamp(a, 6)
    a("s_branch KM_FIN")
```

```python
from asmlib import *
from mk import *
GA = 128
def ga(ci, ti): return GA + (ci * 2 + ti) * 16
def gb(p, ti, s_): return 32 + p * 32 + (ti * 2 + s_) * 4
def gw(p, ci, s_): return 48 + p * 32 + (ci * 2 + s_) * 4
BA, BW0, BW1, BWO = 4, 7, 10, 13
NSLOT = 10
VPO, VXA = 16, 20
PART, XR = 192, 224
NDOWN, NOUT = 56, 32
NT = NDOWN + NOUT

def g_reads(t, s_):
    p = t & 1; slot = t % NSLOT; h = slot >> 2; o = (slot & 3) * 16384
    r = []
    if t >= NT: return r
    if t < NDOWN:
        for ci in range(2):
            for half in range(2):
                r.append(f"ds_read_b64_tr_b16 {v(gw(p,ci,s_)+2*half,2)}, v{(BW0,BW1)[ci]+h} offset:{o + 8192 + s_*2048 + half*4096}")
    else:
        for half in range(2):
            r.append(f"ds_read_b64_tr_b16 {v(gw(p,0,s_)+2*half,2)}, v{BWO+h} offset:{o + 8192 + s_*1024 + half*2048}")
    for ti in range(2):
        r.append(f"ds_read_b128 {v(gb(p,ti,s_),4)}, v{BA+h} offset:{o + ti*2048 + s_*1024}")
    return r

def g_ustep(a, t, extra=()):
    p = t & 1
    for s_ in range(2):
        if t < NDOWN:
            order = [(0,0),(0,1),(1,1),(1,0)] if s_ == 0 else [(1,0),(1,1),(0,1),(0,0)]
        else:
            order = [(0,0),(0,1)] if s_ == 0 else [(0,1),(0,0)]
        m = [mf32(ga(ci,ti), gw(p,ci,s_), gb(p,ti,s_), v(ga(ci,ti),16)) for ci, ti in order]
        nxt = g_reads(t, 1) if s_ == 0 else g_reads(t + 1, 0)
        a(f"s_waitcnt lgkmcnt({len(nxt)})")
        rd = g_reads(t + 1, s_)
        fill = [rd[i:i+2] for i in range(0, len(rd), 2)]
        while len(fill) < len(m): fill.append([])
        ex = list(extra)[s_::2]
        for i, e in enumerate(ex):
            fill[len(m) - 1 - (i % len(m))] += list(e)
        weave(a, m, fill)

def l_ustep(a, kind):
    a(f"s_add_u32 m0, s{S_RING}, s{T3}")
    a(f"s_add_u32 s{S_RING}, s{S_RING}, 16384")
    a(f"buffer_load_dwordx4 v4, s[{SACT}:{SACT+3}], s{S_AO} offen lds")
    a(f"buffer_load_dwordx4 v4, s[{SACT}:{SACT+3}], s{S_AO} offen offset:1024 lds")
    if kind == "d":
        a("s_add_u32 m0, m0, 8192")
        a(f"s_cmp_lt_u32 s{S_RING}, {NSLOT*16384}")
        a(f"buffer_load_dwordx4 v5, s[{SWD}:{SWD+3}], s{S_WDO} offen lds")
        a(f"buffer_load_dwordx4 v6, s[{SWD}:{SWD+3}], s{S_WDO} offen offset:1024 lds")
    else:
        a(f"s_add_u32 m0, m0, s{T2}")
        a(f"s_cmp_lt_u32 s{S_RING}, {NSLOT*16384}")
        a(f"buffer_load_dwordx4 v7, s[{SWO}:{SWO+3}], s{S_WDO} offen lds")
    a(f"s_cselect_b32 s{S_RING}, s{S_RING}, 0")
    a(f"s_add_u32 s{S_AO}, s{S_AO}, 8192")
    a(f"s_add_u32 s{S_WDO}, s{S_WDO}, 65536")

def gen_p3(a):
    a(f"s_cmp_lg_u32 s{S_WM}, 0")
    a("s_cbranch_scc1 P3_L")
    a(f"s_lshr_b32 s{T0}, s{S_WN}, 1")
    a(f"s_lshl_b32 s{T0}, s{T0}, 12")
    a(f"v_add_u32 v{BA}, s{T0}, v{VKVD}")
    a(f"v_add_u32 v{BA+1}, 0x10000, v{BA}")
    a(f"v_add_u32 v{BA+2}, 0x20000, v{BA}")
    a(f"v_lshrrev_b32 v22, 2, v{VT}")
    a(f"v_lshrrev_b32 v23, 5, v{VL}")
    a("v_lshl_add_u32 v23, v23, 2, v22")
    a(f"v_and_b32 v25, 1, v{VQQ}")
    a(f"s_lshl_b32 s{T0}, s{S_KH}, 2")
    a(f"s_lshl_b32 s{T1}, s{S_P}, 1")
    a(f"s_add_u32 s{T0}, s{T0}, s{T1}")
    a(f"v_add_u32 v26, s{T0}, v25")
    a("v_lshlrev_b32 v27, 1, v22")
    a("v_xor_b32 v26, v26, v27")
    a("v_lshlrev_b32 v26, 5, v26")
    a("v_lshl_add_u32 v26, v23, 8, v26")
    a(f"v_and_b32 v27, 3, v{VL}")
    a(f"v_lshl_add_u32 v{BW0}, v27, 3, v26")
    a(f"v_add_u32 v{BW0+1}, 0x10000, v{BW0}")
    a(f"v_add_u32 v{BW0+2}, 0x20000, v{BW0}")
    a(f"v_xor_b32 v{BW1}, 128, v{BW0}")
    a(f"v_xor_b32 v{BW1+1}, 128, v{BW0+1}")
    a(f"v_xor_b32 v{BW1+2}, 128, v{BW0+2}")
    for x in g_reads(0, 0) + g_reads(0, 1): a(x)
    a(f"v_add_u32 v26, s{T1}, v25")
    a("v_and_b32 v28, 2, v22")
    a("v_xor_b32 v26, v26, v28")
    a("v_lshlrev_b32 v26, 5, v26")
    a("v_lshl_add_u32 v26, v23, 7, v26")
    a(f"v_lshl_add_u32 v{BWO}, v27, 3, v26")
    a(f"v_add_u32 v{BWO+1}, 0x10000, v{BWO}")
    a(f"v_add_u32 v{BWO+2}, 0x20000, v{BWO}")
    a(f"v_mov_b32 v{VPO}, v{VKVD}")
    a(f"v_add_u32 v{VPO+1}, 0x1000, v{VKVD}")
    a(f"v_and_b32 v26, 31, v{VL}")
    a("v_lshlrev_b32 v26, 11, v26")
    a(f"v_lshrrev_b32 v27, 5, v{VL}")
    a(f"v_lshl_add_u32 v{VXA}, v27, 4, v26")
    a(f"v_add_u32 v{VXA+1}, 0x10000, v{VXA}")
    a(f"s_lshl_b32 s{S_AO}, s{S_G}, 18")
    a(f"s_lshr_b32 s{T0}, s{S_WN}, 1")
    a(f"s_lshl_b32 s{T0}, s{T0}, 17")
    a(f"s_add_u32 s{S_AO}, s{S_AO}, s{T0}")
    a(f"s_lshl_b32 s{T0}, s{S_C2}, 8")
    a(f"s_add_u32 s{S_AO}, s{S_AO}, s{T0}")
    a(f"s_lshl_b32 s{T0}, s{S_KH}, 7")
    a(f"s_add_u32 s{S_AO}, s{S_AO}, s{T0}")
    a(f"s_lshl_b32 s{T0}, s{S_P}, 6")
    a(f"s_add_u32 s{S_AO}, s{S_AO}, s{T0}")
    srd(a, SX, P_X, P_X + 1, 4 << 20)
    srd(a, SKV, P_OUT, P_OUT + 1, 4 << 20)
    a(f"s_lshl_b32 s{T0}, s{S_WN}, 13")
    a(f"s_lshl_b32 s{S_RING}, s2, 15")
    a(f"s_add_u32 s{S_RING}, s{S_RING}, s{T0}")
    a(f"s_xor_b32 s{S_WDO}, s{S_RING}, {1 << 15}")
    a(f"s_lshl_b32 s{S_KVO}, s2, 7")
    a(f"s_add_u32 s{S_KVO}, s{S_KVO}, {F_P}")
    a(f"s_xor_b32 s{S_MKV}, s{S_KVO}, {1 << 7}")
    for q in range(4):
        a(f"buffer_load_dwordx4 {v(XR+4*q,4)}, v{VXA + q//2}, s[{SX}:{SX+3}], s{S_AO} offen offset:{(q%2)*32}")
    for i in range(64): a(f"v_mov_b32 v{GA+i}, 0")
    def epoch(e, pre=None, x0=(), x1=()):
        a("s_barrier")
        nstamp(a, f"g{e}")
        if pre: pre()
        g_ustep(a, 2 * e, x0)
        g_ustep(a, 2 * e + 1, x1)
    def pollO():
        a(f"s_lshr_b32 s{T0}, s{S_G}, 1")
        a(f"s_lshl_b32 s{T0}, s{T0}, 8")
        a(f"s_add_u32 s{T0}, s{T0}, {F_O}")
        poll_issue(a, T0, 32)
    def chkO():
        a("s_waitcnt vmcnt(0)")
        poll_check(a)
    for e in range(28):
        epoch(e, pre={3: lambda: wave0(a, lambda: flag_set(a, S_XO)), 18: lambda: wave0(a, pollO), 20: lambda: wave0(a, chkO)}.get(e))
        if e == 2: a("s_waitcnt vmcnt(0)")
    stamp(a, 5)
    st = [[f"buffer_store_dwordx4 {v(ga(1,q//4)+4*(q%4),4)}, v{VPO + q//4}, s[{SPART}:{SPART+3}], s{S_WDO} offen offset:{(q%4)*1024} sc1"] for q in range(8)]
    pl = [[f"buffer_load_dwordx4 {v(PART+4*q,4)}, v{VPO + q//4}, s[{SPART}:{SPART+3}], s{S_RING} offen offset:{(q%4)*1024} sc1"] for q in range(8)]
    def nonce_out():
        a(f"s_cmp_lg_u32 s2, 0")
        a("s_cbranch_scc1 P3_NN")
        a(f"s_movk_i32 s{T0}, {F_NONCE}")
        flag_set(a, T0)
        a.label("P3_NN")
    epoch(28, x1=st[:4]); epoch(29, x0=st[4:])
    epoch(30); epoch(31)
    a("s_waitcnt vmcnt(0)")
    epoch(32, pre=lambda: wave0(a, lambda: (flag_set(a, S_MKV), nonce_out())))
    epoch(33); epoch(34); epoch(35)
    epoch(36, pre=lambda: wave0(a, lambda: poll_issue(a, S_KVO, 1))); epoch(37)
    epoch(38, pre=lambda: wave0(a, chkO))
    epoch(39, x0=pl[:4], x1=pl[4:])
    for e in range(40, 44): epoch(e)
    stamp(a, 6)
    a("s_waitcnt vmcnt(0)")
    a(f"s_mov_b32 s{T0}, 0xffff0000")
    a("s_nop 11")
    for ti in range(2):
        d = ga(0, ti)
        for i in range(0, 16, 2):
            a(f"v_pk_add_f32 {v(d+i,2)}, {v(d+i,2)}, {v(PART+16*ti+i,2)}")
        a("s_nop 0")
        for gp in range(2):
            for i in range(4):
                a(f"v_permlane32_swap_b32 v{d+8*gp+i}, v{d+8*gp+4+i}")
        for gp in range(2):
            xr = XR + 8 * ti + 4 * gp
            for k in range(4):
                a(f"v_lshlrev_b32 v22, 16, v{xr+k}")
                a(f"v_and_b32 v23, s{T0}, v{xr+k}")
                a(f"v_pk_add_f32 {v(d+8*gp+2*k,2)}, {v(d+8*gp+2*k,2)}, v[22:23]")
                if os.environ.get("X_BIAS"):
                    a(f"v_add_f32 v{d+8*gp+2*k}, {os.environ['X_BIAS']}, v{d+8*gp+2*k}")
                a(f"v_cvt_pk_bf16_f32 v{xr+k}, v{d+8*gp+2*k}, v{d+8*gp+2*k+1}")
            a(f"buffer_store_dwordx4 {v(xr,4)}, v{VXA+ti}, s[{SKV}:{SKV+3}], s{S_AO} offen offset:{gp*32}{os.environ.get('X_OSC', '')}")
    a("s_branch KM_FIN")
    a.label("P3_L")
    a(f"s_lshl_b32 s{T3}, s{S_WN}, 11")
    a(f"v_add_u32 v4, s{T3}, v{VKVD}")
    a(f"s_lshl_b32 s{T0}, s{S_WN}, 14")
    a(f"s_lshl_b32 s{T1}, s{S_C2}, 8")
    a(f"s_add_u32 s{T0}, s{T0}, s{T1}")
    a(f"v_add_u32 v5, s{T0}, v3")
    a(f"v_add_u32 v6, {8192-1024}, v5")
    a(f"v_lshrrev_b32 v22, 3, v{VL}")
    a("v_lshlrev_b32 v22, 11, v22")
    a(f"v_and_b32 v23, 1, v{VQQ}")
    a("v_lshlrev_b32 v23, 2, v23")
    a(f"v_and_b32 v25, 7, v{VL}")
    a("v_xor_b32 v23, v23, v25")
    a("v_lshl_add_u32 v22, v23, 4, v22")
    a(f"s_lshl_b32 s{T1}, s{S_KH}, 7")
    a(f"s_add_u32 s{T0}, s{T0}, s{T1}")
    a(f"v_add_u32 v7, s{T0}, v22")
    a(f"s_lshl_b32 s{T2}, s{S_WN}, 10")
    a(f"s_sub_u32 s{T2}, 8192, s{T2}")
    def toO():
        a(f"s_mul_i32 s{S_AO}, s{S_G}, {ACT_NU}")
        a(f"s_add_u32 s{S_AO}, s{S_AO}, 112")
        a(f"s_lshl_b32 s{S_AO}, s{S_AO}, 13")
        a(f"s_mov_b32 s{S_WDO}, 0")
    def kind(t): return "d" if t < NDOWN else "o"
    cost = {"d": 4, "o": 3}
    def lep(e):
        ts = [t for t in (2 * e + 8, 2 * e + 9) if t < NT]
        young = [t for t in range(2 * e + 5, 2 * e + 10) if 8 <= t < NT]
        a("s_barrier")
        for t in ts:
            if t == NDOWN: toO()
            l_ustep(a, kind(t))
        n = sum(cost[kind(t)] for t in young)
        if e < 43: a(f"s_waitcnt vmcnt({n})")
    for e in range(4): lep(e)
    a(f"s_mov_b32 s{S_CNT}, 20")
    a.label("P3_LA")
    lep(4)
    a(f"s_sub_u32 s{S_CNT}, s{S_CNT}, 1")
    a(f"s_cmp_lg_u32 s{S_CNT}, 0")
    a(f"s_cbranch_scc1 P3_LA")
    for e in range(24, 44): lep(e)
    stamp(a, 5); stamp(a, 6)
    a("s_branch KM_FIN")
```

```python
from asmlib import *
import struct, math, os
NAME = "parallel_sum__grouped_kv_mqa__glu_gated_reglu__prompt_kernel"
QSCALE = struct.unpack("<I", struct.pack("<f", math.log2(math.e) / math.sqrt(32.0)))[0]
STOP = os.environ.get("STOP", "")
KVL = 131072
QLDS = 0
TLDS = 0
F_XN, F_WQ, F_KV, F_H, F_O, F_NONCE, F_P = 0, 2048, 8192, 12288, 16384, 24576, 32768
SPIN_MAX = 1 << 21
P1MODE = int(os.environ.get('X_P1MODE', 1))
P1SHIFT = int(os.environ.get('X_P1SHIFT', 6))
P1PRIO = int(os.environ.get('X_P1PRIO', 0))
UNROLL = int(os.environ.get('X_UNROLL', 0))
NPRE = int(os.environ.get('X_NPRE', 4))
P1TOUCH = int(os.environ.get('X_P1T', 1))

S_WAVE = 3
S_TW, S_TA = 4, 5
P_WS = 6
NONCE = 8
QMASK = 10
SX = 12
SWD = 16
S_XO, S_AO, S_WDO, S_MX, S_MW, S_CNT = 20, 21, 22, 23, 24, 25
S_HO = 24
S_CT, S_RP, S_WM, S_P, S_BB, S_WN = 26, 27, 28, 29, 30, 31
T0, T1, T2, T3 = 32, 33, 34, 35
SACT, SKV = 36, 40
P_X, P_OUT, P_WO, S_TD = 44, 46, 48, 50
S_G, S_C2, S_KH, S_KVO, S_MKV, S_RING = 52, 53, 54, 55, 56, 57
SFLAG = 58
SWO, SPART = 92, 96
VL, VXD, VWA, VWB, VWS, VXR, VW0R, VW1R, VQQ, VT = 1, 2, 4, 6, 8, 10, 12, 14, 16, 17
VKVR, VKVD, VPA, VPW = 18, 19, 20, 21
HS, VHO, VWOD = 160, 4, 7
VTCH, VDUM = 31, 30
VPL, VPD = 27, 28
ACC, XF, WF = 128, 64, 32
def acc(st, t, j): return ACC + ((st * 2 + t) * 8 + j) * 4
def xf(p, j): return XF + (p * 8 + j) * 4
def wf(p, st, t): return WF + (p * 4 + st * 2 + t) * 4
def emit(a, groups):
    for g in groups:
        for x in g: a(x)

def flag_set(a, off_sgpr):
    a(f"v_mov_b32 v22, s{off_sgpr}")
    a(f"v_mov_b32 v24, s{NONCE}")
    a(f"v_mov_b32 v25, s{NONCE+1}")
    a("s_mov_b64 exec, 1")
    a(f"global_store_dwordx2 v22, v[24:25], s[{SFLAG}:{SFLAG+1}] sc1")
    a("s_mov_b64 exec, -1")
def poll_load(): return f"global_load_dwordx2 {v(VPD,2)}, v{VPL}, s[{SFLAG}:{SFLAG+1}] sc1"
def poll_issue(a, off_sgpr, n):
    a(f"v_and_b32 v{VPL}, {n-1}, v{VL}")
    a(f"v_lshlrev_b32 v{VPL}, 3, v{VPL}")
    a(f"v_add_u32 v{VPL}, s{off_sgpr}, v{VPL}")
    a(poll_load())
_lab = [0]
def spin(a, cmps, loads):
    _lab[0] += 1
    n = _lab[0]
    a(f"s_mov_b32 s{T1}, {SPIN_MAX}")
    a.label(f"PL{n}")
    for x in cmps: a(x)
    a("s_cmp_eq_u64 vcc, -1")
    a(f"s_cbranch_scc1 PD{n}")
    a(f"s_sub_u32 s{T1}, s{T1}, 1")
    a(f"s_cbranch_scc1 PD{n}")
    a("s_sleep 1")
    for x in loads: a(x)
    a("s_waitcnt vmcnt(0)")
    a(f"s_branch PL{n}")
    a.label(f"PD{n}")
def poll_check(a):
    spin(a, [f"v_cmp_eq_u64 vcc, s[{NONCE}:{NONCE+1}], {v(VPD,2)}"], [poll_load()])
def wave0(a, fn):
    _lab[0] += 1
    n = _lab[0]
    a(f"s_cmp_lg_u32 s{S_WAVE}, 0")
    a(f"s_cbranch_scc1 W0_{n}")
    fn()
    a.label(f"W0_{n}")

def p1_dma_x(slot):
    return [[f"s_add_u32 m0, s{S_MX}, {slot*32768}", "s_nop 0",
             f"buffer_load_dwordx4 v{VXD}, s[{SX}:{SX+3}], s{S_XO} offen lds"],
            [f"buffer_load_dwordx4 v{VXD}, s[{SX}:{SX+3}], s{S_XO} offen offset:1024 lds",
             f"s_add_u32 s{S_XO}, s{S_XO}, 16384"]]
def p1_dma_w(slot):
    return [[f"s_add_u32 m0, s{S_MW}, {slot*32768}", "s_nop 0", f"global_load_lds_dwordx4 {v(VWA,2)}, off",
             f"s_add_u32 m0, s{S_MW}, {slot*32768+2048}",
             f"v_lshl_add_u64 {v(VWA,2)}, {v(VWS,2)}, 0, {v(VWA,2)}"],
            [f"global_load_lds_dwordx4 {v(VWB,2)}, off",
             f"v_lshl_add_u64 {v(VWB,2)}, {v(VWS,2)}, 0, {v(VWB,2)}"]]
def p1_reads(slot, p):
    h = slot >> 1; o = (slot & 1) * 32768
    r = []
    for st in range(2):
        for t in range(2):
            for half in range(2):
                base = (VW0R if t == 0 else VW1R) + h
                r.append(f"ds_read_b64_tr_b16 {v(wf(p,st,t)+2*half,2)}, v{base} offset:{o + st*8192 + half*4096}")
    for j in range(8):
        r.append(f"ds_read_b128 {v(xf(p,j),4)}, v{VXR+h} offset:{o + j*1024}")
    return r
def p1_mfma(p):
    m = []
    for j in range(8):
        order = [(0,0),(0,1),(1,0),(1,1)]
        if j & 1: order = order[::-1]
        for st, t in order:
            d = acc(st, t, j)
            m.append(f"v_mfma_f32_16x16x32_bf16 {v(d,4)}, {v(wf(p,st,t),4)}, {v(xf(p,j),4)}, {v(d,4)}")
    return m
def weave(a, m, fill):
    for i, ins in enumerate(m):
        a(ins)
        if i < len(fill):
            for x in fill[i]: a(x)
    emit(a, fill[len(m):])
def p1_step(a, t, dma, reads, endwait, barrier, extra=(), late=(), pre_bar=None, grp=0):
    p = t & 1
    fill = list(extra)
    if dma: fill += p1_dma_x(t % 4) + p1_dma_w(t % 4)
    if reads: fill += [[x] for x in p1_reads((t + 1) % 4, p ^ 1)]
    fill += list(late)
    if grp and P1MODE == 1: fill = [[] for _ in range(P1SHIFT)] + fill
    if grp and P1MODE == 2 and dma and reads: fill = fill[4:] + fill[:4]
    m = p1_mfma(p)
    CS = os.environ.get("X_CS", "") if dma else ""
    if CS == "v":
        while len(fill) < 32: fill.append([])
        vv = []
        for f in range(2):
            for r in range(4):
                src = wf(p, f, grp) + r
                vv += [f"v_lshlrev_b32 v22, 16, v{src}", f"v_and_b32 v23, 0xffff0000, v{src}", f"v_add_f32 v{24+2*f}, v{24+2*f}, v22", f"v_add_f32 v{25+2*f}, v{25+2*f}, v23"]
        for i in range(32): fill[i] = list(fill[i]) + [vv[i]]
    if CS == "m":
        m = m[:10] + [f"v_mfma_f32_16x16x32_bf16 v[24:27], {v(wf(p,0,grp),4)}, v[20:23], v[24:27]"] + m[10:20] + [f"v_mfma_f32_16x16x32_bf16 v[28:31], {v(wf(p,1,grp),4)}, v[20:23], v[28:31]"] + m[20:]
    weave(a, m, fill)
    if endwait: a(endwait)
    if pre_bar: pre_bar()
    if barrier: a("s_barrier")
def kv_dma():
    return [[f"s_mov_b32 m0, s{S_MKV}", f"s_xor_b32 s{S_MKV}, s{S_MKV}, 0x4000",
             f"buffer_load_dwordx4 v{VKVD}, s[{SKV}:{SKV+3}], s{S_KVO} offen lds"],
            [f"buffer_load_dwordx4 v{VKVD}, s[{SKV}:{SKV+3}], s{S_KVO} offen offset:1024 lds",
             f"s_add_u32 s{S_KVO}, s{S_KVO}, 8192"]]

QF, KB, VB, PB, SEL, RS, SB, OA, NM = 32, 40, 56, 72, 88, 92, 96, 128, 144
def mf32(d, x, y, c): return f"v_mfma_f32_32x32x16_bf16 {v(d,16)}, {v(x,4)}, {v(y,4)}, {c}"
def mfrs(p): return f"v_mfma_f32_16x16x32_bf16 {v(RS,4)}, {v(SEL,4)}, {v(p,4)}, {v(RS,4)}"
def att_slot(a, n, qk=True, pv=True, rd=True, pre=()):
    b = n & 1
    S = SB + 16 * b; S1 = SB + 16 * (b ^ 1)
    P = PB + 8 * b; P1 = PB + 8 * (b ^ 1)
    K1 = KB + 8 * (b ^ 1); V1 = VB + 8 * (b ^ 1)
    m = []
    if qk:
        m.append(mf32(S1, K1, QF, v(NM, 16)))
        m.append(mf32(S1, K1 + 4, QF + 4, v(S1, 16)))
    if pv:
        m += [mf32(OA, V1, P1, v(OA, 16)), mfrs(P1), mf32(OA, V1 + 4, P1 + 4, v(OA, 16)), mfrs(P1 + 4)]
    val = []
    for i in range(16):
        val.append(f"v_exp_f32 v{S+i}, v{S+i}")
        if i >= 2 and i % 2 == 0:
            val.append(f"v_cvt_pk_bf16_f32 v{P+i//2-1}, v{S+i-2}, v{S+i-1}")
    val.append("s_nop 0")
    val.append(f"v_cvt_pk_bf16_f32 v{P+7}, v{S+14}, v{S+15}")
    rds = []
    if rd:
        pos = (n & 3) * 2048
        rds = [f"ds_read_b128 {v(KB+8*b,4)}, v{VKVR} offset:{pos}",
               f"ds_read_b128 {v(KB+8*b+4,4)}, v{VKVR} offset:{pos+1024}",
               f"ds_read_b128 {v(VB+8*b,4)}, v{VKVR} offset:{8192+pos}",
               f"ds_read_b128 {v(VB+8*b+4,4)}, v{VKVR} offset:{8192+pos+1024}"]
    other = [list(g) for g in pre] + [[x] for x in rds]
    cuts = [0, 4, 9, 13, 16, 21][:len(m)]
    k = 0; oi = 0
    for i, x in enumerate(val):
        if k < len(m) and i == cuts[k]:
            a(m[k]); k += 1
            if oi < len(other):
                emit(a, [other[oi]]); oi += 1
        a(x)
        if i in (2, 6, 11) and oi < len(other) and len(other) > len(m):
            emit(a, [other[oi]]); oi += 1
    emit(a, other[oi:])
def prefill_dma():
    return [[f"s_add_u32 m0, s{S_RING}, s{T3}", "s_nop 0",
             f"buffer_load_dwordx4 v{VPA}, s[{SACT}:{SACT+3}], s{S_AO} offen lds",
             f"s_add_u32 s{S_AO}, s{S_AO}, 8192"],
            [f"s_add_u32 m0, m0, 8192", f"s_add_u32 s{S_RING}, s{S_RING}, 16384",
             f"buffer_load_dwordx4 v{VPW}, s[{SWD}:{SWD+3}], s{S_WDO} offen lds",
             f"s_add_u32 s{S_WDO}, s{S_WDO}, 65536"]]
def touch_w(n0):
    return [[f"s_add_u32 s{T0}, s{S_WAVE}, {n0}", f"s_lshl_b32 s{T0}, s{T0}, 17", f"s_add_u32 s{T0}, s{T0}, s{S_TW}",
             f"buffer_load_dword v{VDUM}, v{VTCH}, s[{SWD}:{SWD+3}], s{T0} offen"]]
def touch_a(m0):
    return [[f"s_add_u32 s{T0}, s{S_WAVE}, {m0}", f"s_lshl_b32 s{T0}, s{T0}, 15", f"s_add_u32 s{T0}, s{T0}, s{S_TA}",
             f"buffer_load_dword v{VDUM}, v{VTCH}, s[{SACT}:{SACT+3}], s{T0} offen"]]
def touch_wo():
    return [[f"s_lshl_b32 s{T0}, s2, 13", f"s_add_u32 s{T0}, s{T0}, s{T3}",
             f"buffer_load_dword v{VDUM}, v{VKVD}, s[{SWO}:{SWO+3}], s{T0} offen"]]
def h_store(j):
    off = (j >> 1) * 2048 + (j & 1) * 256
    tail = f"v{VHO + (off>>12)}, s[{SACT}:{SACT+3}], s{S_HO} offen offset:{off & 4095} sc1"
    return [[f"s_cmp_eq_u32 s{S_WN}, 3", f"s_cbranch_scc1 HS{j}A", f"buffer_store_dwordx4 {v(HS+4*j,4)}, {tail}",
             f"s_branch HS{j}B", f"HS{j}A:", f"buffer_store_dwordx2 {v(HS+4*j,2)}, {tail}", f"HS{j}B:"]]
def att_epoch(a, E, first=False, last=False, prefill=0, wait=0, post=None, pre_bar=None, x1=(), x2=(), x3=()):
    nstamp(a, f"e{E}a")
    a(f"s_waitcnt vmcnt({wait}) lgkmcnt(0)")
    if pre_bar: pre_bar()
    a("s_barrier")
    nstamp(a, f"e{E}c")
    if not first: a(f"v_xor_b32 v{VKVR}, 0x4000, v{VKVR}")
    if post: post()
    for i in range(4):
        pre = []
        if i == 0 and not last: pre += kv_dma()
        if i in (1, 2)[:prefill]: pre += prefill_dma()
        if i == 1: pre += list(x1)
        if i == 2: pre += list(x2)
        if i == 3: pre += list(x3)
        if i: a("s_waitcnt lgkmcnt(0)")
        att_slot(a, 4 * E + i, qk=not (last and i == 3), pv=not (first and i == 0), pre=pre)

def wave_sum(a, r, t):
    for mod in ("quad_perm:[1,0,3,2]", "quad_perm:[2,3,0,1]", "row_half_mirror", "row_mirror"):
        a("s_nop 1")
        a(f"v_add_f32_dpp v{r}, v{r}, v{r} {mod} row_mask:0xf bank_mask:0xf")
    for sw in ("v_permlane16_swap_b32", "v_permlane32_swap_b32"):
        a(f"v_mov_b32 v{t}, v{r}")
        a("s_nop 1")
        a(f"{sw} v{r}, v{t}")
        a(f"v_add_f32 v{r}, v{r}, v{t}")

def p1_setup(a):
    a(f"s_lshl_b32 s{T0}, s{S_WM}, 13")
    a(f"v_add_u32 v{VXR}, s{T0}, v{VKVD}")
    a(f"v_add_u32 v{VXR+1}, 0x10000, v{VXR}")
    a(f"v_lshrrev_b32 v22, 2, v{VT}")
    a(f"v_lshl_add_u32 v22, v{VQQ}, 2, v22")
    a("v_and_b32 v23, 7, v22")
    a(f"s_lshl_b32 s{T0}, s{S_WN}, 1")
    a(f"v_xor_b32 v23, s{T0}, v23")
    a("v_lshlrev_b32 v23, 5, v23")
    a("v_lshl_add_u32 v23, v22, 8, v23")
    a(f"v_and_b32 v24, 3, v{VL}")
    a("v_lshl_add_u32 v23, v24, 3, v23")
    a(f"v_add_u32 v{VW0R}, 0x4000, v23")
    a(f"v_add_u32 v{VW0R+1}, 0x14000, v23")
    a(f"v_xor_b32 v{VW1R}, 32, v{VW0R}")
    a(f"v_xor_b32 v{VW1R+1}, 32, v{VW0R+1}")
    a(f"s_mov_b32 s{S_XO}, 0")
    a(f"s_lshl_b32 s{S_KVO}, s{S_WN}, 11")
    a(f"s_cmp_eq_u32 s{S_WM}, 0")
    a(f"s_movk_i32 s{T0}, 4096")
    a(f"s_cselect_b32 s{T0}, s{T0}, 0x20000")
    a(f"s_add_u32 s{S_KVO}, s{S_KVO}, s{T0}")
    a(f"s_add_u32 s{S_MKV}, s{S_MX}, {KVL + 0x4000}")
    a(f"v_add_u32 v{VKVR}, {KVL}, v{VKVD}")
    for i in range(128): a(f"v_mov_b32 v{ACC+i}, 0")

def allflags(a, base):
    ld = [f"global_load_dwordx4 v[22:25], v26, s[{SFLAG}:{SFLAG+1}] sc1", f"global_load_dwordx4 v[28:31], v26, s[{SFLAG}:{SFLAG+1}] offset:16 sc1"]
    addr = [f"v_lshlrev_b32 v26, 5, v{VL}", f"v_add_u32 v26, {base}, v26"]
    def check():
        n = f"s[{NONCE}:{NONCE+1}]"
        spin(a, [f"v_cmp_eq_u64 vcc, {n}, v[22:23]", f"v_cmp_eq_u64 s[{T2}:{T3}], {n}, v[24:25]", f"s_and_b64 vcc, vcc, s[{T2}:{T3}]",
                 f"v_cmp_eq_u64 s[{T2}:{T3}], {n}, v[28:29]", f"s_and_b64 vcc, vcc, s[{T2}:{T3}]",
                 f"v_cmp_eq_u64 s[{T2}:{T3}], {n}, v[30:31]", f"s_and_b64 vcc, vcc, s[{T2}:{T3}]"], ld)
    return addr, ld, check

def gen_p0(a):
    VTW, VXO, VLR, VFR, VTR, VQD = 20, 21, 23, 26, 3, 30
    a(f"s_load_dwordx2 s[{P_X}:{P_X+1}], s[0:1], {K_X}")
    a(f"s_load_dwordx8 s[92:99], s[0:1], {K_WQ}")
    a(f"s_load_dwordx2 s[{P_WS}:{P_WS+1}], s[0:1], {K_WS}")
    a(f"s_load_dwordx8 s[36:43], s[0:1], {K_WG}")
    a(f"v_and_b32 v{VL}, 63, v0")
    a("v_lshrrev_b32 v22, 6, v0")
    a(f"v_lshrrev_b32 v{VQQ}, 4, v{VL}")
    a(f"v_and_b32 v{VT}, 15, v{VL}")
    a(f"v_readfirstlane_b32 s{S_WAVE}, v22")
    a(f"v_lshlrev_b32 v{VKVD}, 4, v{VL}")
    a(f"v_bfe_u32 v23, v{VL}, 1, 2")
    a(f"v_and_b32 v24, 1, v{VL}")
    a("v_lshrrev_b32 v25, 3, v0")
    a("v_lshlrev_b32 v27, 11, v23")
    a("v_lshl_add_u32 v27, v25, 5, v27")
    a("v_lshl_add_u32 v27, v24, 4, v27")
    a(f"s_lshl_b32 s{T0}, s2, 3")
    a(f"s_add_u32 s{T0}, s{T0}, s{S_WAVE}")
    a(f"s_lshl_b32 s{T0}, s{T0}, 11")
    a(f"s_lshl_b32 s{T2}, s2, 13")
    a("s_waitcnt lgkmcnt(0)")
    if STOP == "p0": a("s_branch KM_FIN")
    srd(a, SX, P_X, P_X + 1, 4 << 20)
    a(f"buffer_load_dwordx4 v[32:35], v{VKVD}, s[{SX}:{SX+3}], s{T0} offen")
    a(f"buffer_load_dwordx4 v[36:39], v{VKVD}, s[{SX}:{SX+3}], s{T0} offen offset:1024")
    srd(a, SWD, 92, 93, 2 << 20)
    a(f"buffer_load_dwordx4 v[40:43], v27, s[{SWD}:{SWD+3}], s{T2} offen")
    a(f"s_add_u32 s{SFLAG}, s{P_WS}, {WS_FLAG}")
    a(f"s_addc_u32 s{SFLAG+1}, s{P_WS+1}, 0")
    a(f"s_load_dwordx2 s[{NONCE}:{NONCE+1}], s[{SFLAG}:{SFLAG+1}], {F_NONCE}")
    a(f"s_mov_b32 s{P_OUT}, s42")
    a(f"s_mov_b32 s{P_OUT+1}, s43")
    a(f"s_mov_b32 s{P_WO}, s98")
    a(f"s_mov_b32 s{P_WO+1}, s99")
    srd(a, SWD, 40, 41, 3584 * 2048)
    a(f"s_cmp_lt_u32 s{S_WAVE}, 4")
    a(f"s_cselect_b32 s{S_TW}, s36, s38")
    a(f"s_cselect_b32 s{S_TA}, s37, s39")
    srd(a, SACT, 94, 95, 65536)
    srd(a, SKV, 96, 97, 65536)
    a(f"s_lshr_b32 s{T0}, s2, 3")
    a(f"s_lshl_b32 s{T1}, s{T0}, 11")
    a("v_lshlrev_b32 v28, 2, v0")
    a(f"buffer_load_dword v31, v28, s[{SACT}:{SACT+3}], s{T1} offen")
    a(f"buffer_load_dword v31, v28, s[{SKV}:{SKV+3}], s{T1} offen")
    a("v_lshrrev_b32 v28, 1, v25")
    a(f"v_lshlrev_b32 v{VQD}, 16, v28")
    a("v_and_b32 v28, 1, v25")
    a(f"v_lshl_add_u32 v{VQD}, v28, 10, v{VQD}")
    a(f"v_lshl_add_u32 v{VQD}, v23, 5, v{VQD}")
    a(f"v_lshl_add_u32 v{VQD}, v24, 4, v{VQD}")
    a(f"s_and_b32 s{S_RP}, s2, 1")
    a(f"s_lshl_b32 s{S_RP}, s{S_RP}, 2")
    a(f"s_and_b32 s{T1}, s{T0}, 3")
    a(f"s_add_u32 s{S_RP}, s{S_RP}, s{T1}")
    a(f"s_bfe_u32 s{S_CT}, s2, 0x20001")
    a(f"s_lshl_b32 s{S_G}, s{S_CT}, 2")
    a(f"s_lshl_b32 s{S_CT}, s{S_CT}, 3")
    a(f"s_lshr_b32 s{S_C2}, s{T0}, 2")
    a(f"s_add_u32 s{S_CT}, s{S_CT}, s{S_C2}")
    a(f"s_add_u32 s{S_G}, s{S_G}, s{T1}")
    a(f"s_and_b32 s{S_KH}, s2, 1")
    a(f"s_lshr_b32 s{S_WM}, s{S_WAVE}, 2")
    a(f"s_and_b32 s{S_P}, s{S_WAVE}, 1")
    a(f"s_bfe_u32 s{S_BB}, s{S_WAVE}, 0x10001")
    a(f"s_and_b32 s{S_WN}, s{S_WAVE}, 3")
    a(f"v_lshl_add_u32 v{VXD}, v22, 11, v{VKVD}")
    a(f"s_lshl_b32 s{S_MX}, s{S_WAVE}, 11")
    a(f"s_lshl_b32 s{S_MW}, s{S_BB}, 2")
    a(f"s_add_u32 s{S_MW}, s{S_MW}, s{S_P}")
    a(f"s_lshl_b32 s{S_MW}, s{S_MW}, 10")
    a(f"s_lshl_b32 s{T0}, s{S_WM}, 13")
    a(f"s_add_u32 s{S_MW}, s{S_MW}, s{T0}")
    a(f"s_add_u32 s{S_MW}, s{S_MW}, 16384")
    a(f"s_lshl_b32 s{T0}, s{S_P}, 3")
    a(f"s_lshl_b32 s{T1}, s{S_BB}, 2")
    a(f"s_add_u32 s{T0}, s{T0}, s{T1}")
    a(f"v_add_u32 v22, s{T0}, v{VQQ}")
    a(f"s_lshl_b32 s{T0}, s{S_P}, 2")
    a(f"v_add_u32 v23, s{T0}, v{VQQ}")
    a("v_lshlrev_b32 v23, 1, v23")
    a(f"v_xor_b32 v23, v23, v{VT}")
    a("v_lshlrev_b32 v24, 4, v23")
    a("v_subrev_u32 v25, 192, v24")
    a("v_add_u32 v26, 32, v24")
    a("v_cmp_le_u32 vcc, 12, v23")
    a(f"s_and_b32 s{T0}, s{S_CT}, 1")
    a("s_nop 0")
    a("v_cndmask_b32 v25, v26, v25, vcc")
    a(f"s_cmp_eq_u32 s{T0}, 1")
    a(f"s_cselect_b64 s[{T2}:{T3}], -1, 0")
    a(f"v_cndmask_b32 v25, v24, v25, s[{T2}:{T3}]")
    a(f"s_mul_i32 s{T0}, s{S_CT}, 224")
    a(f"v_add_u32 v25, s{T0}, v25")
    a("v_mov_b32 v27, 7168")
    a("v_mad_u32_u24 v25, v22, v27, v25")
    a(f"s_lshl_b32 s{T0}, s{S_CT}, 16")
    a(f"s_lshl_b32 s{T1}, s{S_WM}, 10")
    a(f"s_add_u32 s{T0}, s{T0}, s{T1}")
    a(f"s_lshl_b32 s{T1}, s{S_P}, 8")
    a(f"s_add_u32 s{T0}, s{T0}, s{T1}")
    a(f"s_lshl_b32 s{T1}, s{S_BB}, 7")
    a(f"s_add_u32 s{T0}, s{T0}, s{T1}")
    a(f"s_add_u32 s{T0}, s{T0}, {WS_WQP}")
    a("v_and_b32 v26, 16, v24")
    a(f"v_lshl_add_u32 v26, v{VQQ}, 5, v26")
    a(f"v_add_u32 v26, s{T0}, v26")
    a(f"v_cmp_le_u32 s[{QMASK}:{QMASK+1}], 14, v23")
    a("v_mov_b32 v28, 64")
    a("v_mov_b32 v22, 512")
    a(f"v_mov_b32 v23, {16*7168}")
    a(f"v_cndmask_b32 v25, v25, v26, s[{QMASK}:{QMASK+1}]")
    a(f"v_cndmask_b32 v27, v27, v28, s[{QMASK}:{QMASK+1}]")
    a(f"v_cndmask_b32 v24, v23, v22, s[{QMASK}:{QMASK+1}]")
    a(f"v_lshlrev_b32 v{VWS}, 5, v27")
    a(f"v_mov_b32 v{VWS+1}, 0")
    a(f"v_mov_b32 v28, s{S_TW}")
    a(f"v_mov_b32 v29, s{S_TA}")
    a(f"v_mov_b32 v22, s{P_WS}")
    a(f"v_mov_b32 v23, s{P_WS+1}")
    a(f"v_cndmask_b32 v28, v28, v22, s[{QMASK}:{QMASK+1}]")
    a(f"v_cndmask_b32 v29, v29, v23, s[{QMASK}:{QMASK+1}]")
    a(f"v_add_co_u32 v{VWA}, vcc, v25, v28")
    a("v_mov_b32 v25, 0")
    a("s_nop 0")
    a(f"v_addc_co_u32 v{VWA+1}, vcc, 0, v29, vcc")
    a(f"v_lshl_add_u64 {v(VWB,2)}, v[24:25], 0, {v(VWA,2)}")
    p1_setup(a)
    a(f"s_lshl_b32 s{S_RING}, s{S_WAVE}, 14")
    a(f"s_add_u32 s{S_RING}, s{S_RING}, 32768")
    srd(a, SWO, P_WS, P_WS + 1, 8 << 20)
    srd(a, SPART, P_WS, P_WS + 1, 256 << 10, add_lo=WS_KV)
    a(f"v_lshlrev_b32 v{VTW}, 7, v{VL}")
    a(f"s_lshl_b32 s{T0}, s{S_WAVE}, 4")
    a(f"v_add_u32 v{VTW}, s{T0}, v{VTW}")
    a(f"v_lshrrev_b32 v{VXO}, 5, v{VL}")
    a(f"v_lshlrev_b32 v{VXO}, 14, v{VXO}")
    a(f"v_bfe_u32 v22, v{VL}, 3, 2")
    a(f"v_lshl_add_u32 v{VXO}, v22, 8, v{VXO}")
    a(f"v_and_b32 v22, 7, v{VL}")
    a(f"v_lshl_add_u32 v{VXO}, v22, 4, v{VXO}")
    a(f"s_lshr_b32 s{S_AO}, s2, 5")
    a(f"s_lshl_b32 s{S_AO}, s{S_AO}, 19")
    a(f"s_bfe_u32 s{T1}, s2, 0x40001")
    a(f"s_lshl_b32 s{T1}, s{T1}, 10")
    a(f"s_add_u32 s{S_AO}, s{S_AO}, s{T1}")
    a(f"s_lshl_b32 s{T1}, s{S_KH}, 7")
    a(f"s_add_u32 s{S_AO}, s{S_AO}, s{T1}")
    a(f"s_lshl_b32 s{T1}, s{S_WAVE}, 16")
    a(f"s_add_u32 s{S_AO}, s{S_AO}, s{T1}")
    a(f"s_add_u32 s{S_WDO}, s{S_AO}, 32768")
    a(f"v_lshlrev_b32 v{VFR}, 7, v{VQQ}")
    a(f"v_lshl_add_u32 v{VFR}, v22, 4, v{VFR}")
    a(f"v_add_u32 v{VFR}, s{S_MX}, v{VFR}")
    a(f"v_lshrrev_b32 v{VTR}, 2, v{VT}")
    a(f"v_lshl_add_u32 v{VTR}, v{VQQ}, 3, v{VTR}")
    a(f"v_lshlrev_b32 v{VTR}, 6, v{VTR}")
    a(f"v_and_b32 v22, 3, v{VL}")
    a(f"v_lshl_add_u32 v{VTR}, v22, 3, v{VTR}")
    a(f"v_add_u32 v{VTR}, s{S_RING}, v{VTR}")
    a(f"v_and_b32 v{VPL}, 31, v{VL}")
    a(f"v_lshlrev_b32 v{VPL}, 3, v{VPL}")
    a(f"s_lshl_b32 s{T0}, s{S_RP}, 8")
    a(f"v_add_u32 v22, s{T0}, v{VPL}")
    a(f"v_cmp_gt_u32 vcc, 32, v{VL}")
    a(f"s_lshr_b32 s{S_CNT}, s2, 3")
    a(f"s_lshl_b32 s{S_CNT}, s{S_CNT}, 11")
    a(f"v_cndmask_b32 v{VPL}, v{VPL}, v22, vcc")
    a(f"s_and_b32 s{T0}, s2, 7")
    a(f"s_lshl_b32 s{T0}, s{T0}, 7")
    a(f"s_add_u32 s{S_CNT}, s{S_CNT}, s{T0}")
    a(f"s_add_u32 s{S_CNT}, s{S_CNT}, {WS_WQP}")
    a(f"s_mov_b32 s{T3}, 0xffff0000")
    a("s_waitcnt vmcnt(3)")
    nstamp(a, "xl")
    X = 64
    for k in range(8):
        a(f"v_lshlrev_b32 v{X+2*k}, 16, v{32+k}")
        a(f"v_and_b32 v{X+2*k+1}, s{T3}, v{32+k}")
    a(f"v_pk_add_f32 v[50:51], v[{X}:{X+1}], v[{X+2}:{X+3}]")
    a(f"v_pk_add_f32 v[52:53], v[{X+4}:{X+5}], v[{X+6}:{X+7}]")
    for k in (4, 6):
        a(f"v_pk_add_f32 v[50:51], v[50:51], v[{X+2*k}:{X+2*k+1}]")
        a(f"v_pk_add_f32 v[52:53], v[52:53], v[{X+2*k+2}:{X+2*k+3}]")
    a("v_pk_add_f32 v[50:51], v[50:51], v[52:53]")
    a("v_add_f32 v50, v50, v51")
    wave_sum(a, 50, 51)
    a("v_mul_f32 v54, 0x3a800000, v50")
    a("v_mov_b32 v55, v54")
    for k in range(8):
        t = 80 + 2 * k
        a(f"v_pk_add_f32 v[{t}:{t+1}], v[{X+2*k}:{X+2*k+1}], v[54:55] neg_lo:[0,1] neg_hi:[0,1]")
    a("v_pk_mul_f32 v[50:51], v[80:81], v[80:81]")
    a("v_pk_mul_f32 v[52:53], v[82:83], v[82:83]")
    for k in range(2, 8):
        t = 80 + 2 * k; r = 50 + 2 * (k % 2)
        a(f"v_pk_fma_f32 v[{r}:{r+1}], v[{t}:{t+1}], v[{t}:{t+1}], v[{r}:{r+1}]")
    a("v_pk_add_f32 v[50:51], v[50:51], v[52:53]")
    a("v_add_f32 v50, v50, v51")
    def rbf(r):
        a(f"v_cvt_pk_bf16_f32 v{r}, v{r}, v{r}")
        a(f"v_and_b32 v{r}, s{T3}, v{r}")
    rbf(54)
    a("v_mov_b32 v55, v54")
    for k in range(8):
        t = 80 + 2 * k
        a(f"v_pk_add_f32 v[{t}:{t+1}], v[{X+2*k}:{X+2*k+1}], v[54:55] neg_lo:[0,1] neg_hi:[0,1]")
    wave_sum(a, 50, 51)
    for k in range(8): a(f"v_cvt_pk_bf16_f32 v{81+2*k}, v{80+2*k}, v{81+2*k}")
    a("v_mul_f32 v50, 0x3a800000, v50")
    rbf(50)
    a("v_add_f32 v50, 0x3727c5ac, v50")
    rbf(50)
    a("v_sqrt_f32 v50, v50")
    for k in range(4):
        a(f"v_lshlrev_b32 v{80+2*k}, 16, v{81+2*k}")
        a(f"v_and_b32 v{81+2*k}, s{T3}, v{81+2*k}")
    rbf(50)
    a("v_rcp_f32 v56, v50")
    for k in range(4, 8):
        a(f"v_lshlrev_b32 v{80+2*k}, 16, v{81+2*k}")
        a(f"v_and_b32 v{81+2*k}, s{T3}, v{81+2*k}")
    a("v_mov_b32 v57, v56")
    for k in range(8): a(f"v_pk_mul_f32 v[{80+2*k}:{81+2*k}], v[{80+2*k}:{81+2*k}], v[56:57]")
    for k in range(8): a(f"v_cvt_pk_bf16_f32 v{32+k}, v{80+2*k}, v{81+2*k}")
    nstamp(a, "ln")
    a(f"ds_write_b128 v{VTW}, v[32:35]")
    a(f"ds_write_b128 v{VTW}, v[36:39] offset:8192")
    a("s_waitcnt vmcnt(2)")
    a(f"buffer_store_dwordx4 v[40:43], v{VQD}, s[{SWO}:{SWO+3}], s{S_CNT} offen sc1")
    a("s_waitcnt lgkmcnt(0)")
    a(f"s_add_u32 s{NONCE}, s{NONCE}, 0x9e3779b9")
    a(f"s_add_u32 s{NONCE+1}, s{NONCE+1}, 0x85ebca6b")
    a("s_barrier")
    nstamp(a, "b1")
    a(f"ds_read_b128 v[32:35], v{VXD}")
    a(f"ds_read_b128 v[36:39], v{VXD} offset:1024")
    for j in range(4): a(f"ds_read_b128 {v(48+4*j,4)}, v{VFR} offset:{j*512}")
    a("s_waitcnt lgkmcnt(5)")
    a(f"buffer_store_dwordx4 v[32:35], v{VXO}, s[{SWO}:{SWO+3}], s{S_AO} offen sc1")
    a("s_waitcnt lgkmcnt(4)")
    a(f"buffer_store_dwordx4 v[36:39], v{VXO}, s[{SWO}:{SWO+3}], s{S_WDO} offen sc1")
    a(f"s_lshl_b32 s{T2}, s{S_WAVE}, 13")
    def wkdma(m, h):
        a(f"s_add_u32 m0, s{S_RING}, {m*8192 + h*4096}")
        a(f"s_add_u32 s{T0}, s{T2}, {h*4096}")
        for i in range(4):
            a(f"buffer_load_dwordx4 v{VKVD}, s[{(SACT,SKV)[m]}:{(SACT,SKV)[m]+3}], s{T0} offen offset:{i*1024} lds")
    wkdma(0, 0)
    a(f"s_lshl_b32 s{S_CNT}, s2, 3")
    a("s_waitcnt vmcnt(4) lgkmcnt(0)")
    a("s_barrier")
    nstamp(a, "xs")
    wave0(a, lambda: flag_set(a, S_CNT))
    wkdma(0, 1); wkdma(1, 0); wkdma(1, 1)
    a(f"v_mov_b32 v40, v{VWA}")
    a(f"v_mov_b32 v41, v{VWA+1}")
    a(f"v_mov_b32 v42, v{VWB}")
    a(f"v_mov_b32 v43, v{VWB+1}")
    a(f"s_andn2_b64 exec, exec, s[{QMASK}:{QMASK+1}]")
    for i in range(NPRE):
        a(f"global_load_dword v31, v[40:41], off")
        a(f"global_load_dword v31, v[42:43], off")
        a(f"v_lshl_add_u64 v[40:41], {v(VWS,2)}, 0, v[40:41]")
        a(f"v_lshl_add_u64 v[42:43], {v(VWS,2)}, 0, v[42:43]")
    a("s_mov_b64 exec, -1")
    a(f"s_waitcnt vmcnt({2*NPRE})")
    nstamp(a, "wk")
    for j in range(4):
        for m in range(2):
            for dt in range(2):
                for h in range(2):
                    r = 64 + ((m * 2 + dt) * 4 + j) * 4 + 2 * h
                    a(f"ds_read_b64_tr_b16 {v(r,2)}, v{VTR} offset:{m*8192 + j*2048 + h*256 + dt*32}")
    a(poll_load())
    for j in range(4):
        a(f"s_waitcnt lgkmcnt({min(15, 8*(3-j))})")
        for m in range(2):
            for dt in range(2):
                w = 64 + ((m * 2 + dt) * 4 + j) * 4; x = 48 + 4 * j; d = 32 + (m * 2 + dt) * 4
                c = "0" if j == 0 else v(d, 4)
                ab = (w, x) if m == 0 else (x, w)
                a(f"v_mfma_f32_16x16x32_bf16 {v(d,4)}, {v(ab[0],4)}, {v(ab[1],4)}, {c}")
    a(f"v_add_u32 v62, s{S_RING}, v{VKVD}")
    a(f"s_lshl_b32 s{T0}, s{S_RP}, 19")
    srd(a, SX, P_WS, P_WS + 1, 512 << 10, add_lo=f"s{T0}")
    srd(a, SACT, P_WS, P_WS + 1, 16 * ACT_NU * 8192, add_lo=WS_ACT)
    for tl in range(4): a(f"ds_write_b128 v62, {v(32+4*tl,4)} offset:{tl*1024}")
    srd(a, SKV, P_WS, P_WS + 1, (256 << 10) + 32768, add_lo=WS_KV - 8192)
    srd(a, SWO, P_WO, P_WO + 1, 1024 * 2048)
    a("s_waitcnt lgkmcnt(0)")
    a("s_barrier")
    a(f"s_cmp_lg_u32 s{S_WM}, 0")
    a("s_cbranch_scc1 P0_KVD")
    a(f"s_lshl_b32 s{T0}, s{S_WAVE}, 10")
    a(f"v_add_u32 v62, s{T0}, v{VKVD}")
    a("v_add_u32 v63, 0x18000, v62")
    a("v_add_u32 v62, 0x8000, v62")
    for w in range(8): a(f"ds_read_b128 {v(64+4*w,4)}, v{62 + w // 4} offset:{(w % 4) * 16384}")
    a(f"s_lshr_b32 s{T0}, s2, 2")
    a(f"s_lshl_b32 s{T0}, s{T0}, 11")
    a(f"v_lshlrev_b32 v60, 9, v{VQQ}")
    a(f"v_lshl_add_u32 v60, v{VT}, 4, v60")
    a(f"s_and_b32 s{T1}, s2, 3")
    a(f"s_lshl_b32 s{T1}, s{T1}, 7")
    a(f"s_lshl_b32 s{T2}, s{S_P}, 3")
    a(f"s_add_u32 s{T1}, s{T1}, s{T2}")
    a(f"s_bfe_u32 s{T2}, s2, 0x10001")
    a(f"s_lshl_b32 s{T2}, s{T2}, 10")
    a(f"s_lshl_b32 s{T3}, s{S_P}, 8")
    a(f"s_add_u32 s{T2}, s{T2}, s{T3}")
    a(f"s_lshl_b32 s{T3}, s{S_KH}, 3")
    a(f"s_add_u32 s{T2}, s{T2}, s{T3}")
    a(f"s_add_u32 s{T2}, s{T2}, 0x20000")
    a(f"s_cmp_eq_u32 s{S_BB}, 0")
    a(f"s_cselect_b32 s{T1}, s{T1}, s{T2}")
    a(f"s_mov_b32 s{T2}, 0x00ff00ff")
    a(f"s_cselect_b32 s{T2}, s{T2}, -1")
    a(f"s_cselect_b32 s{T3}, s{T2}, 0")
    a(f"s_add_u32 s{T0}, s{T0}, s{T1}")
    a("s_waitcnt lgkmcnt(0)")
    for st in (1, 2, 4):
        for w in range(0, 8, 2 * st):
            for h in range(2):
                d = 64 + 4 * w + 2 * h; e = 64 + 4 * (w + st) + 2 * h
                a(f"v_pk_add_f32 {v(d,2)}, {v(d,2)}, {v(e,2)}")
    a("v_cvt_pk_bf16_f32 v64, v64, v65")
    a("v_cvt_pk_bf16_f32 v65, v66, v67")
    a(f"s_mov_b64 exec, s[{T2}:{T3}]")
    a(f"buffer_store_dwordx2 v[64:65], v60, s[{SPART}:{SPART+3}], s{T0} offen sc1")
    a("s_mov_b64 exec, -1")
    a.label("P0_KVD")
    srd(a, SPART, P_WS, P_WS + 1, 8 << 20, add_lo=WS_PART)

def gen(a):
    kernel_head(a, NAME)
    a("s_cmp_ge_u32 s2, 256")
    a("s_cbranch_scc1 KM_END")
    stamp(a, 0)
    gen_p0(a)
    nstamp(a, "kvd")
    def chk0():
        a("s_waitcnt vmcnt(1)")
        poll_check(a)
    wave0(a, chk0)
    a("s_barrier")
    nstamp(a, "fl")
    stamp(a, 1)
    addr, ld, check = allflags(a, F_XN)
    for st_ in range(4):
        emit(a, p1_dma_x(st_) + p1_dma_w(st_))
        if st_ == 1: wave0(a, lambda: emit(a, [addr, ld]))
    a(f"s_lshl_b32 s{S_CNT}, s2, 3")
    a(f"s_add_u32 s{S_CNT}, s{S_CNT}, {F_KV}")
    a("s_waitcnt vmcnt(12)")
    a("s_barrier")
    for x in p1_reads(0, 0): a(x)
    def chk1():
        a("s_waitcnt vmcnt(8)")
        check()
        flag_set(a, S_CNT)
    wave0(a, chk1)
    a("s_waitcnt vmcnt(8) lgkmcnt(0)")
    a("s_barrier")
    nstamp(a, "p1s")
    a(f"s_mov_b32 s{S_CNT}, 7")
    a(f"s_cmp_lg_u32 s{S_WM}, 0")
    a("s_cbranch_scc1 P1_LOOPB")
    for grp in range(2):
        if grp and P1PRIO: pass
        a.raw(".p2align 6")
        a.label("P1_LOOP" + "AB"[grp])
        if grp and P1PRIO: a(f"s_setprio {P1PRIO}")
        for t in range(28 if UNROLL else 4):
            nstamp(a, f"s{t}")
            p1_step(a, t, True, True, "s_waitcnt vmcnt(8) lgkmcnt(0)", True, grp=grp)
        if not UNROLL:
            a(f"s_sub_u32 s{S_CNT}, s{S_CNT}, 1")
            a(f"s_cmp_lg_u32 s{S_CNT}, 0")
            a("s_cbranch_scc1 P1_LOOP" + "AB"[grp])
        if not grp: a("s_branch P1_TAIL")
    a("s_setprio 0")
    a.label("P1_TAIL")
    addr, ld, check = allflags(a, F_KV)
    p1_step(a, 28, False, True, "s_waitcnt vmcnt(4) lgkmcnt(0)", True, late=[addr])
    p1_step(a, 29, False, True, "s_waitcnt vmcnt(0) lgkmcnt(0)", True, extra=[[ld[0]], [ld[1]]], pre_bar=lambda: wave0(a, check))
    p1_step(a, 30, False, True, "s_waitcnt lgkmcnt(0)", False, extra=kv_dma() + kv_dma())
    p1_step(a, 31, False, False, None, False)
    stamp(a, 2)
    nstamp(a, "p1e")
    if STOP == "p1": a("s_branch KM_FIN")
    a(f"v_lshlrev_b32 v{VHO}, 9, v{VQQ}")
    a(f"v_lshl_add_u32 v{VHO}, v{VT}, 4, v{VHO}")
    a(f"v_add_u32 v{VHO+1}, 0x1000, v{VHO}")
    a(f"s_lshr_b32 s{T0}, s{S_CT}, 1")
    a(f"s_mul_i32 s{T0}, s{T0}, 7")
    a(f"s_and_b32 s{T1}, s{S_CT}, 1")
    a(f"s_lshl_b32 s{T2}, s{T1}, 2")
    a(f"s_add_u32 s{T2}, s{T2}, s{S_WN}")
    a(f"s_cmp_eq_u32 s{S_WN}, 3")
    a(f"s_cselect_b32 s{T2}, 3, s{T2}")
    a(f"s_add_u32 s{T0}, s{T0}, s{T2}")
    a(f"s_lshl_b32 s{T2}, s{S_RP}, 1")
    a(f"s_add_u32 s{T2}, s{T2}, s{S_WM}")
    a(f"s_mul_i32 s{T3}, s{T2}, {ACT_NU}")
    a(f"s_add_u32 s{T0}, s{T0}, s{T3}")
    a(f"s_lshl_b32 s{S_HO}, s{T0}, 13")
    a(f"s_lshl_b32 s{S_XO}, s{S_RP}, 8")
    a(f"s_lshl_b32 s{T3}, s{S_CT}, 3")
    a(f"s_add_u32 s{S_XO}, s{S_XO}, s{T3}")
    a(f"s_add_u32 s{S_XO}, s{S_XO}, {F_H}")
    a(f"s_cmp_eq_u32 s{S_WN}, 3")
    a("s_cbranch_scc1 P1_EP3")
    def hpair(t, j):
        g = acc(0, t, j); u = acc(1, t, j); dst = HS + 4 * j + 2 * t
        for i in range(4): a(f"v_max_f32 v{g+i}, 0, v{g+i}")
        for i in (0, 2): a(f"v_pk_mul_f32 {v(g+i,2)}, {v(g+i,2)}, {v(u+i,2)}")
        for i in (2, 0): a(f"v_cvt_pk_bf16_f32 v{dst+i//2}, v{g+i}, v{g+i+1}")
    for j in range(8):
        hpair(1, j); hpair(0, j)
    a("s_branch P1_EPD")
    a.label("P1_EP3")
    a(f"s_mov_b32 s{T2}, {QSCALE}")
    a(f"s_mov_b32 s{T3}, {QSCALE}")
    a(f"s_lshl_b32 s{S_CNT}, s{S_WM}, 13")
    a(f"v_add_u32 v24, s{S_CNT}, v{VHO}")
    for j in range(8):
        tmp = XF + 32 + 4 * j
        for st in range(2):
            g = acc(st, 1, j)
            for i in (0, 2): a(f"v_pk_mul_f32 {v(g+i,2)}, {v(g+i,2)}, s[{T2}:{T3}]")
            for i in (0, 2): a(f"v_cvt_pk_bf16_f32 v{tmp+2*st+i//2}, v{g+i}, v{g+i+1}")
        a(f"ds_write_b128 v24, {v(tmp,4)} offset:{QLDS + (j>>1)*2048 + (j&1)*256}")
    a(f"s_lshl_b32 s{T1}, s{T1}, 3")
    a(f"s_add_u32 s{S_HO}, s{S_HO}, s{T1}")
    for j in range(8): hpair(0, j)
    a.label("P1_EPD")
    a(f"s_lshl_b32 s{T3}, s{S_WAVE}, 10")
    a(f"v_add_u32 v{VPA}, s{T3}, v{VKVD}")
    a(f"v_lshlrev_b32 v3, 2, v{VQQ}")
    a(f"v_xor_b32 v3, v3, v{VT}")
    a("v_lshlrev_b32 v3, 4, v3")
    a(f"v_lshl_add_u32 v3, v{VQQ}, 11, v3")
    a(f"s_lshl_b32 s{T0}, s{S_WAVE}, 13")
    a(f"s_lshl_b32 s{T1}, s{S_C2}, 8")
    a(f"s_add_u32 s{T0}, s{T0}, s{T1}")
    a(f"v_add_u32 v{VPW}, s{T0}, v3")
    a(f"s_mul_i32 s{T0}, s{S_G}, {ACT_NU}")
    a(f"s_mul_i32 s{T1}, s{S_KH}, 56")
    a(f"s_add_u32 s{T0}, s{T0}, s{T1}")
    a(f"s_lshl_b32 s{S_AO}, s{T0}, 13")
    a(f"s_lshl_b32 s{S_WDO}, s{T1}, 16")
    a(f"s_mov_b32 s{S_RING}, 0")
    a(f"v_lshlrev_b32 v{VTCH}, 6, v{VL}")
    a(f"s_lshr_b32 s{T0}, s2, 3")
    a(f"s_lshl_b32 s{T0}, s{T0}, 12")
    a(f"s_add_u32 s{S_TW}, s{S_WDO}, s{T0}")
    a(f"s_lshl_b32 s{T0}, s{S_C2}, 12")
    a(f"s_add_u32 s{S_TA}, s{S_AO}, s{T0}")
    a(f"v_lshrrev_b32 v25, 2, v{VL}")
    a(f"v_xor_b32 v25, v25, v{VQQ}")
    a("v_and_b32 v25, 1, v25")
    a(f"v_and_b32 v26, 3, v{VL}")
    a("v_or_b32 v25, v25, v26")
    a("v_cmp_eq_u32 vcc, 0, v25")
    a("v_mov_b32 v26, 0x3f803f80")
    a("v_mov_b32 v27, 0")
    a("s_waitcnt vmcnt(0) lgkmcnt(0)")
    a("s_barrier")
    a(f"ds_read_b128 {v(QF,4)}, v{VXD} offset:{QLDS}")
    a(f"ds_read_b128 {v(QF+4,4)}, v{VXD} offset:{QLDS+1024}")
    for b in range(2):
        for s_ in range(2):
            a(f"ds_read_b128 {v(KB+8*b+4*s_,4)}, v{VKVR} offset:{0x4000 + (2+b)*2048 + s_*1024}")
    for i in range(4): a(f"v_cndmask_b32 v{SEL+i}, v27, v26, vcc")
    for i in range(4): a(f"v_mov_b32 v{RS+i}, 0")
    for i in range(16): a(f"v_mov_b32 v{OA+i}, 0")
    a("s_waitcnt lgkmcnt(0)")
    a(mf32(SB, KB, QF, "0"))
    a(mf32(SB, KB + 4, QF + 4, v(SB, 16)))
    a("s_nop 11")
    a(f"v_max3_f32 v26, v{SB}, v{SB+1}, v{SB+2}")
    for i in range(3, 15, 2): a(f"v_max3_f32 v26, v26, v{SB+i}, v{SB+i+1}")
    a(f"v_max_f32 v26, v26, v{SB+15}")
    a("v_mov_b32 v27, v26")
    a("s_nop 1")
    a("v_permlane32_swap_b32 v26, v27")
    a("s_nop 0")
    a("v_max_f32 v26, v26, v27")
    for i in range(16): a(f"v_sub_f32 v{NM+i}, 0, v26")
    for i in range(16): a(f"v_sub_f32 v{SB+i}, v{SB+i}, v26")
    stamp(a, 3)
    def pollH():
        a(f"s_lshr_b32 s{T0}, s{S_G}, 1")
        a(f"s_lshl_b32 s{T0}, s{T0}, 8")
        a(f"s_lshl_b32 s{T1}, s{S_KH}, 7")
        a(f"s_add_u32 s{T0}, s{T0}, s{T1}")
        a(f"s_add_u32 s{T0}, s{T0}, {F_H}")
        poll_issue(a, T0, 16)
    att_epoch(a, 0, first=True, x2=h_store(0), x3=h_store(1))
    att_epoch(a, 1, wait=2, x2=h_store(2), x3=h_store(3))
    att_epoch(a, 2, wait=2, x2=h_store(4), x3=h_store(5))
    att_epoch(a, 3, wait=2, x2=h_store(6), x3=h_store(7))
    att_epoch(a, 4, wait=2)
    att_epoch(a, 5, post=lambda: wave0(a, lambda: flag_set(a, S_XO)), x1=touch_wo())
    att_epoch(a, 6, wait=1, x1=touch_w(20))
    att_epoch(a, 7, wait=1, post=lambda: wave0(a, pollH), x1=touch_w(12))
    att_epoch(a, 8, wait=1, post=lambda: wave0(a, lambda: poll_check(a)), x1=touch_w(4))
    att_epoch(a, 9, prefill=2, wait=1, x3=touch_a(6))
    att_epoch(a, 10, prefill=2, wait=5)
    att_epoch(a, 11, prefill=2, wait=4)
    att_epoch(a, 12, prefill=2, wait=4, x3=touch_a(0))
    att_epoch(a, 13, wait=5)
    att_epoch(a, 14)
    att_epoch(a, 15, last=True)
    a("s_waitcnt lgkmcnt(0)")
    a(mf32(OA, VB + 8, PB + 8, v(OA, 16)))
    a(mfrs(PB + 8))
    a(mf32(OA, VB + 12, PB + 12, v(OA, 16)))
    a(mfrs(PB + 12))
    a(f"s_add_u32 s{S_XO}, s{S_XO}, {F_O - F_H}")
    a(f"s_lshl_b32 s{T0}, s{S_RP}, 1")
    a(f"s_add_u32 s{T0}, s{T0}, s{S_WM}")
    a(f"s_mul_i32 s{T0}, s{T0}, {ACT_NU}")
    a(f"s_add_u32 s{T0}, s{T0}, s{S_CT}")
    a(f"s_add_u32 s{T0}, s{T0}, 112")
    a(f"s_lshl_b32 s{T0}, s{T0}, 13")
    a(f"s_lshl_b32 s{T1}, s{S_WN}, 11")
    a(f"s_add_u32 s{S_CNT}, s{T0}, s{T1}")
    a("s_nop 4")
    a(f"v_mul_f32 v26, 0, v{RS}")
    for i in range(16): a(f"v_fma_f32 v26, v{OA+i}, 0, v26")
    a("v_cmp_u_f32 vcc, v26, v26")
    a("s_cmp_lg_u64 vcc, 0")
    a("s_cbranch_scc1 P2_SLOW")
    a.label("P2_FIN")
    a(f"v_rcp_f32 v26, v{RS}")
    a("s_nop 0")
    for i in range(16): a(f"v_mul_f32 v{OA+i}, v{OA+i}, v26")
    for k, base in enumerate((0, 8, 4, 12)):
        a(f"v_cvt_pk_bf16_f32 v{PB+2*k}, v{OA+base}, v{OA+base+1}")
        a(f"v_cvt_pk_bf16_f32 v{PB+2*k+1}, v{OA+base+2}, v{OA+base+3}")
    a(f"buffer_store_dwordx4 {v(PB,4)}, v{VKVD}, s[{SACT}:{SACT+3}], s{S_CNT} offen sc1")
    a(f"buffer_store_dwordx4 {v(PB+4,4)}, v{VKVD}, s[{SACT}:{SACT+3}], s{S_CNT} offen offset:1024 sc1")
    stamp(a, 4)
    import mk3
    mk3.gen_p3(a)
    a.label("P2_SLOW")
    a(f"s_mov_b32 s{T0}, 8192")
    a(f"v_mov_b32 v27, 0xff800000")
    a(f"v_mov_b32 v{RS}, 0")
    for i in range(16): a(f"v_mov_b32 v{OA+i}, 0")
    a.label("P2_SL")
    a(f"s_add_u32 s{T1}, s{T0}, 0x20000")
    a(f"buffer_load_dwordx4 {v(KB,4)}, v{VKVD}, s[{SKV}:{SKV+3}], s{T0} offen")
    a(f"buffer_load_dwordx4 {v(KB+4,4)}, v{VKVD}, s[{SKV}:{SKV+3}], s{T0} offen offset:1024")
    a(f"buffer_load_dwordx4 {v(VB,4)}, v{VKVD}, s[{SKV}:{SKV+3}], s{T1} offen")
    a(f"buffer_load_dwordx4 {v(VB+4,4)}, v{VKVD}, s[{SKV}:{SKV+3}], s{T1} offen offset:1024")
    a("s_waitcnt vmcnt(0)")
    a(mf32(SB, KB, QF, "0"))
    a(mf32(SB, KB + 4, QF + 4, v(SB, 16)))
    a("s_nop 15")
    a(f"v_max3_f32 v26, v27, v{SB}, v{SB+1}")
    for i in range(2, 16, 2): a(f"v_max3_f32 v26, v26, v{SB+i}, v{SB+i+1}")
    a("v_mov_b32 v28, v26")
    a("s_nop 1")
    a("v_permlane32_swap_b32 v26, v28")
    a("s_nop 0")
    a("v_max_f32 v26, v26, v28")
    a("v_sub_f32 v28, v27, v26")
    a("v_exp_f32 v28, v28")
    a("v_mov_b32 v27, v26")
    for i in range(16): a(f"v_sub_f32 v{SB+i}, v{SB+i}, v26")
    for i in range(16): a(f"v_exp_f32 v{SB+i}, v{SB+i}")
    for i in range(16): a(f"v_mul_f32 v{OA+i}, v{OA+i}, v28")
    a(f"v_mul_f32 v{RS}, v{RS}, v28")
    for i in range(8): a(f"v_cvt_pk_bf16_f32 v{PB+i}, v{SB+2*i}, v{SB+2*i+1}")
    a("s_nop 1")
    a(mf32(OA, VB, PB, v(OA, 16)))
    a(mfrs(PB))
    a(mf32(OA, VB + 4, PB + 4, v(OA, 16)))
    a(mfrs(PB + 4))
    a("s_nop 15")
    a(f"s_add_u32 s{T0}, s{T0}, 2048")
    a(f"s_cmp_lt_u32 s{T0}, {8192 + 64*2048}")
    a("s_cbranch_scc1 P2_SL")
    a("s_branch P2_FIN")
    a.label("KM_FIN")
    if STAMPS: a("s_waitcnt vmcnt(0)")
    stamp(a, 7)
    stamp_flush(a, 0, 8, P_WS, S_WAVE)
    a.label("KM_END")
    a("s_endpgm")
    return dict(name=NAME, grid=256, block=512, lds=int(os.environ.get('X_LDS', 163840)), vgpr=256, sgpr=102)
```

```python
from asmlib import *
import struct, math, os
NAME = "parallel_sum__grouped_kv_mqa__glu_gated_reglu__prompt_kernel"
QSCALE = struct.unpack("<I", struct.pack("<f", math.log2(math.e) / math.sqrt(32.0)))[0]
STOP = os.environ.get("STOP", "")
KVL = 131072
QLDS = 0
TLDS = 0
F_KV, F_H, F_O, F_NONCE, F_P = 8192, 12288, 16384, 24576, 32768
WS_ST = WS_XN
WLDS = 98304
KXL = 16384
CSL = 16384
NS = int(os.environ.get('X_NS', 9))
SPIN_MAX = 1 << 21
P1MODE = int(os.environ.get('X_P1MODE', 1))
P1SHIFT = int(os.environ.get('X_P1SHIFT', 6))
P1PRIO = int(os.environ.get('X_P1PRIO', 0))
UNROLL = int(os.environ.get('X_UNROLL', 0))
NPRE = int(os.environ.get('X_NPRE', 1))
TLBW = int(os.environ.get('X_TLBW', 0))
EARLY = int(os.environ.get('X_EARLY', 4))
NPRO = int(os.environ.get('X_NPRO', 4))
TE = int(os.environ.get('X_TE', 0))
TLATE = int(os.environ.get('X_TLATE', 1))
CODEPF = int(os.environ.get('X_CODEPF', 1))
XL = int(os.environ.get('X_XL', 3))
P1TOUCH = int(os.environ.get('X_P1T', 1))

S_WAVE = 3
S_TW, S_TA = 4, 5
P_WS = 6
NONCE = 8
QMASK = 10
SX = 12
SWD = 16
S_XO, S_AO, S_WDO, S_MX, S_MW, S_CNT = 20, 21, 22, 23, 24, 25
S_HO = 24
S_CT, S_RP, S_WM, S_P, S_BB, S_WN = 26, 27, 28, 29, 30, 31
T0, T1, T2, T3 = 32, 33, 34, 35
SACT, SKV = 36, 40
P_X, P_OUT, P_WO, S_ISV, S_PB = 44, 46, 48, 50, 51
S_G, S_C2, S_KH, S_KVO, S_MKV, S_RING = 52, 53, 54, 55, 56, 57
SFLAG = 58
SWO, SPART = 92, 96
VL, VXD, VWA, VWB, VWS, VXR, VWR, VWP, VQQ, VT = 1, 2, 4, 6, 8, 10, 12, 14, 16, 17
ONES, CS = 20, 24
VKVR, VKVD, VPA, VPW = 18, 19, 20, 21
HS, VHO, VWOD = 160, 4, 7
VTCH, VDUM = 31, 30
VPL, VPD = 27, 28
ACC, XF, WF = 128, 64, 32
def acc(st, t, j): return ACC + ((st * 2 + t) * 8 + j) * 4
def xf(p, j): return XF + (p * 8 + j) * 4
def wf(p, st, t): return WF + (p * 4 + st * 2 + t) * 4
def emit(a, groups):
    for g in groups:
        for x in g: a(x)

def flag_set(a, off_sgpr):
    a(f"v_mov_b32 v22, s{off_sgpr}")
    a(f"v_mov_b32 v24, s{NONCE}")
    a(f"v_mov_b32 v25, s{NONCE+1}")
    a("s_mov_b64 exec, 1")
    a(f"global_store_dwordx2 v22, v[24:25], s[{SFLAG}:{SFLAG+1}] sc1")
    a("s_mov_b64 exec, -1")
def poll_load(): return f"global_load_dwordx2 {v(VPD,2)}, v{VPL}, s[{SFLAG}:{SFLAG+1}] sc1"
def poll_issue(a, off_sgpr, n):
    a(f"v_and_b32 v{VPL}, {n-1}, v{VL}")
    a(f"v_lshlrev_b32 v{VPL}, 3, v{VPL}")
    a(f"v_add_u32 v{VPL}, s{off_sgpr}, v{VPL}")
    a(poll_load())
_lab = [0]
def spin(a, cmps, loads, sleep=1):
    _lab[0] += 1
    n = _lab[0]
    a(f"s_mov_b32 s{T1}, {SPIN_MAX}")
    a.label(f"PL{n}")
    for x in cmps: a(x)
    a("s_cmp_eq_u64 vcc, -1")
    a(f"s_cbranch_scc1 PD{n}")
    a(f"s_sub_u32 s{T1}, s{T1}, 1")
    a(f"s_cbranch_scc1 PD{n}")
    a(f"s_sleep {sleep}")
    for x in loads: a(x)
    a("s_waitcnt vmcnt(0)")
    a(f"s_branch PL{n}")
    a.label(f"PD{n}")
def poll_check(a):
    spin(a, [f"v_cmp_eq_u64 vcc, s[{NONCE}:{NONCE+1}], {v(VPD,2)}"], [poll_load()])
def wave0(a, fn):
    _lab[0] += 1
    n = _lab[0]
    a(f"s_cmp_lg_u32 s{S_WAVE}, 0")
    a(f"s_cbranch_scc1 W0_{n}")
    fn()
    a.label(f"W0_{n}")

def p1_dma_x(h, tau):
    if os.environ.get("X_ROT"):
        return [[f"s_add_u32 s{S_XO}, s{S_ROT}, {tau*128}", f"s_and_b32 s{S_XO}, s{S_XO}, 2047", f"s_add_u32 m0, s{S_MX}, {(h*3 + tau%3)*16384}",
             f"s_or_b32 s{S_XO}, s{S_XO}, {h*128*2048}" if h else "s_nop 0",
             f"buffer_load_dwordx4 v{VXD}, s[{SX}:{SX+3}], s{S_XO} offen lds"],
            [f"buffer_load_dwordx4 v{VXD+1}, s[{SX}:{SX+3}], s{S_XO} offen offset:1024 lds"]]
    return [[f"s_add_u32 m0, s{S_MX}, {(h*3 + tau%3)*16384}", f"s_mov_b32 s{S_XO}, {h*128*2048 + tau*128}",
             f"buffer_load_dwordx4 v{VXD}, s[{SX}:{SX+3}], s{S_XO} offen lds"],
            [f"buffer_load_dwordx4 v{VXD+1}, s[{SX}:{SX+3}], s{S_XO} offen offset:1024 lds"]]
def p1_dma_w(k):
    slot = k % 4
    return [[f"s_add_u32 m0, s{S_MW}, {slot*16384}", "s_nop 0", f"global_load_lds_dwordx4 {v(VWA,2)}, off",
             f"s_add_u32 m0, s{S_MW}, {slot*16384+2048}",
             f"v_lshl_add_u64 {v(VWA,2)}, {v(VWS,2)}, 0, {v(VWA,2)}"],
            [f"global_load_lds_dwordx4 {v(VWB,2)}, off",
             f"v_lshl_add_u64 {v(VWB,2)}, {v(VWS,2)}, 0, {v(VWB,2)}"]]
def p1_reads(k):
    p = k & 1
    r = []
    for st in range(2):
        for t in range(2):
            for half in range(2):
                r.append(f"ds_read_b64_tr_b16 {v(wf(p,st,t)+2*half,2)}, v{VWR+t} offset:{(k%4)*16384 + st*8192 + half*4096}")
    for j in range(8):
        r.append(f"ds_read_b128 {v(xf(p,j),4)}, v{VXR+(k&1)} offset:{((k>>1)%3)*16384 + j*2048}")
    return r
def p1_mfma(p):
    m = []
    for j in range(8):
        order = [(0,0),(0,1),(1,0),(1,1)]
        if j & 1: order = order[::-1]
        for st, t in order:
            d = acc(st, t, j)
            m.append(f"v_mfma_f32_16x16x32_bf16 {v(d,4)}, {v(wf(p,st,t),4)}, {v(xf(p,j),4)}, {v(d,4)}")
    return m
def cs_mfma(p, st, grp): return f"v_mfma_f32_16x16x32_bf16 {v(CS+4*st,4)}, {v(wf(p,st,grp),4)}, {v(ONES,4)}, {v(CS+4*st,4)}"
def weave(a, m, fill):
    for i, ins in enumerate(m):
        a(ins)
        if i < len(fill):
            for x in fill[i]: a(x)
    emit(a, fill[len(m):])
class VM:
    def __init__(self): self.q = []
    def add(self, need, n=1): self.q += [need] * n
    def wait(self, b):
        last = max([i for i, x in enumerate(self.q) if x <= b], default=-1)
        return len(self.q) - 1 - last
def gen_p1(a, grp, vm0):
    vm = VM(); vm.q = list(vm0.q)
    BIG = 99
    for s_ in range(32):
        p = s_ & 1
        nstamp(a, f"s{s_}")
        fill = []
        if s_ == NS - 6:
            mark = len(vm.q)
            if not grp:
                fill.append([f"s_cmp_gt_u32 s{S_WAVE}, 1", "s_cbranch_scc1 P1_NP0", f"global_load_dwordx4 v[16:19], v0, s[{SFLAG}:{SFLAG+1}] sc1", "P1_NP0:"])
        if s_ == 1:
            if not grp:
                fill.append([f"s_cmp_lg_u32 s{S_WAVE}, 0", "s_cbranch_scc1 P1_NF", f"v_mov_b32 v16, s{NONCE}", f"v_mov_b32 v17, s{NONCE+1}", f"v_mov_b32 v18, s{S_CNT}",
                             "s_mov_b64 exec, 1", f"global_store_dwordx2 v18, v[16:17], s[{SFLAG}:{SFLAG+1}] sc1", "s_mov_b64 exec, -1", "P1_NF:"])
        if s_ == 0:
            fill += p1_dma_x(1, 1); vm.add(1, 2)
            fill += p1_dma_w(2); vm.add(1, 2)
            fill += p1_dma_w(3); vm.add(2, 2)
        if s_ + 4 == NS:
            fill.append([f"s_mov_b64 exec, s[{QMASK}:{QMASK+1}]", f"v_mov_b32 v{VWA}, v{VWP}", f"v_mov_b32 v{VWA+1}, v{VWP+1}",
                         f"v_mov_b32 v{VWS}, 512", f"v_lshl_add_u64 {v(VWB,2)}, {v(VWS,2)}, 0, {v(VWA,2)}", f"v_mov_b32 v{VWS}, 2048", "s_mov_b64 exec, -1"])
        h = (s_ + 1) & 1; tau = (s_ - 1 - h) // 2 + 3
        if tau < 16:
            fill += p1_dma_x(h, tau); vm.add(2 * tau - 1, 2)
        if s_ + 4 < 32:
            fill += p1_dma_w(s_ + 4); vm.add(s_ + 3, 2)
        m = p1_mfma(p)
        if s_ == 30:
            fill.append([f"v_lshlrev_b32 v{VKVD}, 4, v{VL}", f"v_lshrrev_b32 v{VQQ}, 4, v{VL}", f"v_and_b32 v{VT}, 15, v{VL}",
                         f"v_add_u32 v{VKVR}, {KVL}, v{VKVD}"])
            fill.append([f"v_lshlrev_b32 v0, 3, v{VT}", f"v_add_u32 v{VWP}, s{S_MX}, v{VKVD}",
                         f"s_lshl_b32 s{T0}, s{S_WN}, 11", f"v_add_u32 v{VWP+1}, s{T0}, v{VKVD}"])
        if s_ < 31:
            fill += [[x] for x in p1_reads(s_ + 1)]
            m = m[:10] + [cs_mfma(p, 0, grp)] + m[10:20] + [cs_mfma(p, 1, grp)] + m[20:]
            if grp: fill = [[] for _ in range(P1SHIFT if len(fill) <= 26 else 0)] + fill
        else:
            m = [cs_mfma(p, 0, grp), cs_mfma(p, 1, grp)] + m
            fill = kv_dma() + kv_dma()
            fill += [[f"buffer_load_dwordx2 {v(XF+2*j,2)}, v0, s[{SPART}:{SPART+3}], s{S_AO} offen offset:{j*128}"] for j in range(8)]
            fill += [[f"ds_write_b128 v{VWP}, {v(CS+4*st,4)} offset:{CSL + st*1024}"] for st in range(2)]
        weave(a, m, fill)
        if s_ < 31:
            a(f"s_waitcnt vmcnt({vm.wait(s_ + 1)}) lgkmcnt(0)")
        else:
            a("s_waitcnt lgkmcnt(0)")
        if s_ == NS - 5 and not grp:
            n = f"s[{NONCE}:{NONCE+1}]"
            a(f"s_cmp_gt_u32 s{S_WAVE}, 1")
            a("s_cbranch_scc1 P1_NP1")
            a(f"s_waitcnt vmcnt({len(vm.q) - mark})")
            spin(a, [f"v_cmp_eq_u64 vcc, {n}, v[16:17]", f"v_cmp_eq_u64 s[{T2}:{T3}], {n}, v[18:19]", f"s_and_b64 vcc, vcc, s[{T2}:{T3}]"],
                 [f"global_load_dwordx4 v[16:19], v0, s[{SFLAG}:{SFLAG+1}] sc1"], sleep=8)
            a.label("P1_NP1")
        a("s_barrier")
def kv_dma():
    return [[f"s_mov_b32 m0, s{S_MKV}", f"s_xor_b32 s{S_MKV}, s{S_MKV}, 0x4000",
             f"buffer_load_dwordx4 v{VKVD}, s[{SKV}:{SKV+3}], s{S_KVO} offen lds"],
            [f"buffer_load_dwordx4 v{VKVD}, s[{SKV}:{SKV+3}], s{S_KVO} offen offset:1024 lds",
             f"s_add_u32 s{S_KVO}, s{S_KVO}, 8192"]]

QF, KB, VB, PB, SEL, RS, SB, OA, NM = 32, 40, 56, 72, 88, 92, 96, 128, 144
def mf32(d, x, y, c): return f"v_mfma_f32_32x32x16_bf16 {v(d,16)}, {v(x,4)}, {v(y,4)}, {c}"
def mfrs(p): return f"v_mfma_f32_16x16x32_bf16 {v(RS,4)}, {v(SEL,4)}, {v(p,4)}, {v(RS,4)}"
def att_slot(a, n, qk=True, pv=True, rd=True, pre=()):
    b = n & 1
    S = SB + 16 * b; S1 = SB + 16 * (b ^ 1)
    P = PB + 8 * b; P1 = PB + 8 * (b ^ 1)
    K1 = KB + 8 * (b ^ 1); V1 = VB + 8 * (b ^ 1)
    m = []
    if qk:
        m.append(mf32(S1, K1, QF, v(NM, 16)))
        m.append(mf32(S1, K1 + 4, QF + 4, v(S1, 16)))
    if pv:
        m += [mf32(OA, V1, P1, v(OA, 16)), mfrs(P1), mf32(OA, V1 + 4, P1 + 4, v(OA, 16)), mfrs(P1 + 4)]
    val = []
    for i in range(16):
        val.append(f"v_exp_f32 v{S+i}, v{S+i}")
        if i >= 2 and i % 2 == 0:
            val.append(f"v_cvt_pk_bf16_f32 v{P+i//2-1}, v{S+i-2}, v{S+i-1}")
    val.append("s_nop 0")
    val.append(f"v_cvt_pk_bf16_f32 v{P+7}, v{S+14}, v{S+15}")
    rds = []
    if rd:
        pos = (n & 3) * 2048
        rds = [f"ds_read_b128 {v(KB+8*b,4)}, v{VKVR} offset:{pos}",
               f"ds_read_b128 {v(KB+8*b+4,4)}, v{VKVR} offset:{pos+1024}",
               f"ds_read_b128 {v(VB+8*b,4)}, v{VKVR} offset:{8192+pos}",
               f"ds_read_b128 {v(VB+8*b+4,4)}, v{VKVR} offset:{8192+pos+1024}"]
    other = [list(g) for g in pre] + [[x] for x in rds]
    cuts = [0, 4, 9, 13, 16, 21][:len(m)]
    k = 0; oi = 0
    for i, x in enumerate(val):
        if k < len(m) and i == cuts[k]:
            a(m[k]); k += 1
            if oi < len(other):
                emit(a, [other[oi]]); oi += 1
        a(x)
        if i in (2, 6, 11) and oi < len(other) and len(other) > len(m):
            emit(a, [other[oi]]); oi += 1
    emit(a, other[oi:])
def prefill_dma():
    return [[f"s_add_u32 m0, s{S_RING}, s{T3}", "s_nop 0",
             f"buffer_load_dwordx4 v{VPA}, s[{SACT}:{SACT+3}], s{S_AO} offen lds",
             f"s_add_u32 s{S_AO}, s{S_AO}, 8192"],
            [f"s_add_u32 m0, m0, 8192", f"s_add_u32 s{S_RING}, s{S_RING}, 16384",
             f"buffer_load_dwordx4 v{VPW}, s[{SWD}:{SWD+3}], s{S_WDO} offen lds",
             f"s_add_u32 s{S_WDO}, s{S_WDO}, 65536"]]
def touch_w(n0):
    return [[f"s_add_u32 s{T0}, s{S_WAVE}, {n0}", f"s_lshl_b32 s{T0}, s{T0}, 17", f"s_add_u32 s{T0}, s{T0}, s{S_TW}",
             f"buffer_load_dword v{VDUM}, v{VTCH}, s[{SWD}:{SWD+3}], s{T0} offen"]]
def touch_a(m0):
    return [[f"s_add_u32 s{T0}, s{S_WAVE}, {m0}", f"s_lshl_b32 s{T0}, s{T0}, 15", f"s_add_u32 s{T0}, s{T0}, s{S_TA}",
             f"buffer_load_dword v{VDUM}, v{VTCH}, s[{SACT}:{SACT+3}], s{T0} offen"]]
def touch_wo():
    return [[f"s_lshl_b32 s{T0}, s2, 13", f"s_add_u32 s{T0}, s{T0}, s{T3}",
             f"buffer_load_dword v{VDUM}, v{VKVD}, s[{SWO}:{SWO+3}], s{T0} offen"]]
def h_store(j):
    off = (j >> 1) * 2048 + (j & 1) * 256
    tail = f"v{VHO + (off>>12)}, s[{SACT}:{SACT+3}], s{S_HO} offen offset:{off & 4095} sc1"
    return [[f"s_cmp_eq_u32 s{S_WN}, 3", f"s_cbranch_scc1 HS{j}A", f"buffer_store_dwordx4 {v(HS+4*j,4)}, {tail}",
             f"s_branch HS{j}B", f"HS{j}A:", f"buffer_store_dwordx2 {v(HS+4*j,2)}, {tail}", f"HS{j}B:"]]
def att_epoch(a, E, first=False, last=False, prefill=0, wait=0, post=None, pre_bar=None, x1=(), x2=(), x3=()):
    nstamp(a, f"e{E}a")
    a(f"s_waitcnt vmcnt({wait}) lgkmcnt(0)")
    if pre_bar: pre_bar()
    a("s_barrier")
    nstamp(a, f"e{E}c")
    if not first: a(f"v_xor_b32 v{VKVR}, 0x4000, v{VKVR}")
    if post: post()
    for i in range(4):
        pre = []
        if i == 0 and not last: pre += kv_dma()
        if i in (1, 2)[:prefill]: pre += prefill_dma()
        if i == 1: pre += list(x1)
        if i == 2: pre += list(x2)
        if i == 3: pre += list(x3)
        if i: a("s_waitcnt lgkmcnt(0)")
        att_slot(a, 4 * E + i, qk=not (last and i == 3), pv=not (first and i == 0), pre=pre)

def wave_sum(a, r, t):
    for mod in ("quad_perm:[1,0,3,2]", "quad_perm:[2,3,0,1]", "row_half_mirror", "row_mirror"):
        a("s_nop 1")
        a(f"v_add_f32_dpp v{r}, v{r}, v{r} {mod} row_mask:0xf bank_mask:0xf")
    for sw in ("v_permlane16_swap_b32", "v_permlane32_swap_b32"):
        a(f"v_mov_b32 v{t}, v{r}")
        a("s_nop 1")
        a(f"{sw} v{r}, v{t}")
        a(f"v_add_f32 v{r}, v{r}, v{t}")

def p1_setup(a):
    a(f"v_lshrrev_b32 v23, 1, v{VT}")
    a(f"v_xor_b32 v23, v23, v{VQQ}")
    a("v_lshlrev_b32 v23, 4, v23")
    a(f"v_lshl_add_u32 v23, v{VT}, 7, v23")
    a(f"s_mul_i32 s{T0}, s{S_WM}, 49152")
    a(f"v_add_u32 v{VXR}, s{T0}, v23")
    a(f"v_xor_b32 v{VXR+1}, 64, v{VXR}")
    a(f"v_lshrrev_b32 v22, 2, v{VT}")
    a(f"v_lshl_add_u32 v22, v{VQQ}, 2, v22")
    a("v_and_b32 v23, 7, v22")
    a(f"s_lshl_b32 s{T0}, s{S_WN}, 1")
    a(f"v_xor_b32 v23, s{T0}, v23")
    a("v_lshlrev_b32 v23, 5, v23")
    a("v_lshl_add_u32 v23, v22, 8, v23")
    a(f"v_and_b32 v24, 3, v{VL}")
    a("v_lshl_add_u32 v23, v24, 3, v23")
    a(f"v_add_u32 v{VWR}, {WLDS}, v23")
    a(f"v_xor_b32 v{VWR+1}, 32, v{VWR}")
    if os.environ.get("X_ROT"): a(f"s_lshl_b32 s{S_ROT}, s{S_CT}, 8")
    a(f"s_lshl_b32 s{S_KVO}, s{S_WN}, 11")
    a(f"s_cmp_eq_u32 s{S_WM}, 0")
    a(f"s_movk_i32 s{T0}, 4096")
    a(f"s_cselect_b32 s{T0}, s{T0}, 0x20000")
    a(f"s_add_u32 s{S_KVO}, s{S_KVO}, s{T0}")
    a(f"s_add_u32 s{S_MKV}, s{S_MX}, {KVL + 0x4000}")
    for i in range(128): a(f"v_mov_b32 v{ACC+i}, 0")

def gen_p0(a, vm):
    VTW, VFR, VTR, VQD, VEX, VKS = 20, 21, 0, 30, 28, 29
    TL = 16384
    a(f"s_load_dwordx2 s[{P_X}:{P_X+1}], s[0:1], {K_X}")
    a(f"s_load_dwordx8 s[92:99], s[0:1], {K_WQ}")
    a(f"s_load_dwordx2 s[{P_WS}:{P_WS+1}], s[0:1], {K_WS}")
    a(f"s_load_dwordx8 s[36:43], s[0:1], {K_WG}")
    a(f"v_and_b32 v{VL}, 63, v0")
    a("v_lshrrev_b32 v22, 6, v0")
    a(f"v_lshrrev_b32 v{VQQ}, 4, v{VL}")
    a(f"v_and_b32 v{VT}, 15, v{VL}")
    a(f"v_readfirstlane_b32 s{S_WAVE}, v22")
    a(f"v_lshlrev_b32 v{VKVD}, 4, v{VL}")
    a(f"v_bfe_u32 v23, v{VL}, 1, 2")
    a(f"v_and_b32 v24, 1, v{VL}")
    a("v_lshrrev_b32 v25, 3, v0")
    a("v_lshlrev_b32 v27, 11, v23")
    a("v_lshl_add_u32 v27, v25, 5, v27")
    a("v_lshl_add_u32 v27, v24, 4, v27")
    a(f"s_lshr_b32 s{S_PB}, s2, 4")
    a(f"s_lshl_b32 s{S_PB}, s{S_PB}, 3")
    a(f"s_and_b32 s{T0}, s2, 7")
    a(f"s_add_u32 s{S_PB}, s{S_PB}, s{T0}")
    a(f"s_bfe_u32 s{S_ISV}, s2, 0x10003")
    a(f"s_lshl_b32 s{T0}, s{S_PB}, 4")
    a(f"s_add_u32 s{S_AO}, s{T0}, s{S_WAVE}")
    a(f"s_lshl_b32 s{T0}, s{S_AO}, 11")
    a(f"s_add_u32 s{T1}, s{T0}, {8*2048}")
    a(f"s_lshl_b32 s{T2}, s2, 13")
    a(f"s_and_b32 s{S_KH}, s2, 1")
    a(f"s_lshl_b32 s{S_RING}, s{S_WAVE}, 13")
    a(f"s_cmp_lt_u32 s{S_WAVE}, 4")
    a(f"s_mov_b32 s{T3}, 0x18000")
    a(f"s_cselect_b32 s{T3}, 0x10000, s{T3}")
    a(f"s_add_u32 s{S_CNT}, s{S_RING}, s{T3}")
    a("s_waitcnt lgkmcnt(0)")
    if STOP == "p0": a("s_branch KM_FIN")
    srd(a, SX, P_X, P_X + 1, 4 << 20)
    a(f"buffer_load_dwordx4 v[32:35], v{VKVD}, s[{SX}:{SX+3}], s{T0} offen")
    a(f"buffer_load_dwordx4 v[36:39], v{VKVD}, s[{SX}:{SX+3}], s{T0} offen offset:1024")
    a(f"buffer_load_dwordx4 v[40:43], v{VKVD}, s[{SX}:{SX+3}], s{T1} offen")
    a(f"buffer_load_dwordx4 v[44:47], v{VKVD}, s[{SX}:{SX+3}], s{T1} offen offset:1024")
    srd(a, SWD, 92, 93, 2 << 20)
    a("s_barrier")
    a(f"buffer_load_dwordx4 v[48:51], v27, s[{SWD}:{SWD+3}], s{T2} offen")
    if CODEPF:
        a(f"s_getpc_b64 s[{T0}:{T1}]")
        a.label("PF_BASE")
        a(f"s_lshr_b32 s{T3}, s2, 3")
        a(f"s_lshl_b32 s{T3}, s{T3}, 12")
        a("v_lshrrev_b32 v26, 3, v0")
        a("v_lshlrev_b32 v26, 6, v26")
        a(f"v_add_u32 v26, s{T3}, v26")
        a("v_min_u32 v26, KM_END - PF_BASE, v26")
        a(f"global_load_dword v18, v26, s[{T0}:{T1}]")
    a(f"s_cmp_eq_u32 s{S_ISV}, 0")
    a(f"s_cselect_b32 s{SWD}, s94, s96")
    a(f"s_cselect_b32 s{SWD+1}, s95, s97")
    a(f"s_mov_b32 s{SWD+2}, 65536")
    for h in range(2):
        a(f"s_add_u32 m0, s{S_CNT}, {h*4096}")
        a(f"s_add_u32 s{T0}, s{S_RING}, {h*4096}")
        for i in range(4):
            a(f"buffer_load_dwordx4 v{VKVD}, s[{SWD}:{SWD+3}], s{T0} offen offset:{i*1024} lds")
    a(f"s_add_u32 s{SFLAG}, s{P_WS}, {WS_FLAG}")
    a(f"s_addc_u32 s{SFLAG+1}, s{P_WS+1}, 0")
    a(f"s_load_dwordx2 s[{NONCE}:{NONCE+1}], s[{SFLAG}:{SFLAG+1}], {F_NONCE}")
    a(f"s_mov_b32 s{P_OUT}, s42")
    a(f"s_mov_b32 s{P_OUT+1}, s43")
    a(f"s_mov_b32 s{P_WO}, s98")
    a(f"s_mov_b32 s{P_WO+1}, s99")
    srd(a, SWD, 40, 41, 3584 * 2048)
    a(f"s_cmp_lt_u32 s{S_WAVE}, 4")
    a(f"s_cselect_b32 s{S_TW}, s36, s38")
    a(f"s_cselect_b32 s{S_TA}, s37, s39")
    a("v_lshrrev_b32 v28, 1, v25")
    a(f"v_lshlrev_b32 v{VQD}, 16, v28")
    a("v_and_b32 v28, 1, v25")
    a(f"v_lshl_add_u32 v{VQD}, v28, 10, v{VQD}")
    a(f"v_lshl_add_u32 v{VQD}, v23, 5, v{VQD}")
    a(f"v_lshl_add_u32 v{VQD}, v24, 4, v{VQD}")
    a(f"s_lshr_b32 s{T0}, s2, 3")
    a(f"s_lshl_b32 s{S_RP}, s{S_KH}, 2")
    a(f"s_and_b32 s{T1}, s{T0}, 3")
    a(f"s_add_u32 s{S_RP}, s{S_RP}, s{T1}")
    a(f"s_bfe_u32 s{S_CT}, s2, 0x20001")
    a(f"s_lshl_b32 s{S_G}, s{S_CT}, 2")
    a(f"s_lshl_b32 s{S_CT}, s{S_CT}, 3")
    a(f"s_lshr_b32 s{S_C2}, s{T0}, 2")
    a(f"s_add_u32 s{S_CT}, s{S_CT}, s{S_C2}")
    a(f"s_add_u32 s{S_G}, s{S_G}, s{T1}")
    a(f"s_lshr_b32 s{S_WM}, s{S_WAVE}, 2")
    a(f"s_and_b32 s{S_P}, s{S_WAVE}, 1")
    a(f"s_bfe_u32 s{S_BB}, s{S_WAVE}, 0x10001")
    a(f"s_and_b32 s{S_WN}, s{S_WAVE}, 3")
    a(f"s_lshl_b32 s{S_MX}, s{S_WAVE}, 11")
    a(f"v_lshrrev_b32 v23, 3, v{VL}")
    a(f"s_lshl_b32 s{T0}, s{S_WAVE}, 4")
    a(f"v_add_u32 v23, s{T0}, v23")
    a("v_lshlrev_b32 v23, 11, v23")
    a(f"v_and_b32 v24, 7, v{VL}")
    a(f"v_xor_b32 v24, v24, v{VQQ}")
    a(f"v_lshl_add_u32 v{VXD}, v24, 4, v23")
    a(f"v_xor_b32 v{VXD+1}, 64, v{VXD}")
    a(f"v_add_u32 v{VXD+1}, {8*2048 - 1024}, v{VXD+1}")
    a(f"s_lshl_b32 s{T0}, s{S_RP}, 19")
    srd(a, SX, P_X, P_X + 1, 512 << 10, add_lo=f"s{T0}")
    if TE >= 1: emit(a, p1_dma_x(0, 0) + p1_dma_x(1, 0)); vm.add(-1, 4)
    a(f"s_lshl_b32 s{S_MW}, s{S_BB}, 2")
    a(f"s_add_u32 s{S_MW}, s{S_MW}, s{S_P}")
    a(f"s_lshl_b32 s{S_MW}, s{S_MW}, 10")
    a(f"s_lshl_b32 s{T0}, s{S_WM}, 13")
    a(f"s_add_u32 s{S_MW}, s{S_MW}, s{T0}")
    a(f"s_add_u32 s{S_MW}, s{S_MW}, {WLDS}")
    a(f"s_lshl_b32 s{T0}, s{S_P}, 3")
    a(f"s_lshl_b32 s{T1}, s{S_BB}, 2")
    a(f"s_add_u32 s{T0}, s{T0}, s{T1}")
    a(f"v_add_u32 v22, s{T0}, v{VQQ}")
    a(f"s_lshl_b32 s{T0}, s{S_P}, 2")
    a(f"v_add_u32 v23, s{T0}, v{VQQ}")
    a("v_lshlrev_b32 v23, 1, v23")
    a(f"v_xor_b32 v23, v23, v{VT}")
    a("v_lshlrev_b32 v24, 4, v23")
    a("v_subrev_u32 v25, 192, v24")
    a("v_add_u32 v26, 32, v24")
    a("v_cmp_le_u32 vcc, 12, v23")
    a(f"s_and_b32 s{T0}, s{S_CT}, 1")
    a("s_nop 0")
    a("v_cndmask_b32 v25, v26, v25, vcc")
    a(f"s_cmp_eq_u32 s{T0}, 1")
    a(f"s_cselect_b64 s[{T2}:{T3}], -1, 0")
    a(f"v_cndmask_b32 v25, v24, v25, s[{T2}:{T3}]")
    a(f"s_mul_i32 s{T0}, s{S_CT}, 224")
    a(f"v_add_u32 v25, s{T0}, v25")
    a("v_mov_b32 v27, 7168")
    a("v_mad_u32_u24 v25, v22, v27, v25")
    a(f"s_lshl_b32 s{T0}, s{S_CT}, 6")
    a(f"s_lshl_b32 s{T1}, s{S_WM}, 5")
    a(f"s_add_u32 s{T0}, s{T0}, s{T1}")
    a("v_and_b32 v31, 16, v24")
    a(f"v_add_u32 v26, s{T0}, v31")
    a("v_lshl_add_u32 v26, v22, 11, v26")
    a(f"v_cmp_le_u32 s[{QMASK}:{QMASK+1}], 14, v23")
    a("v_mov_b32 v28, 2048")
    a("v_mov_b32 v22, s92")
    a("v_mov_b32 v23, s93")
    a(f"v_cndmask_b32 v25, v25, v26, s[{QMASK}:{QMASK+1}]")
    a(f"v_cndmask_b32 v27, v27, v28, s[{QMASK}:{QMASK+1}]")
    a(f"v_lshlrev_b32 v{VWS}, 5, v27")
    a("v_lshlrev_b32 v24, 4, v27")
    a(f"v_mov_b32 v{VWS+1}, 0")
    a(f"v_mov_b32 v28, s{S_TW}")
    a(f"v_mov_b32 v29, s{S_TA}")
    a(f"v_cndmask_b32 v28, v28, v22, s[{QMASK}:{QMASK+1}]")
    a(f"v_cndmask_b32 v29, v29, v23, s[{QMASK}:{QMASK+1}]")
    a(f"v_add_co_u32 v{VWA}, vcc, v25, v28")
    a("v_mov_b32 v25, 0")
    a("s_nop 0")
    a(f"v_addc_co_u32 v{VWA+1}, vcc, 0, v29, vcc")
    a(f"v_lshl_add_u64 {v(VWB,2)}, v[24:25], 0, {v(VWA,2)}")
    if TE >= 2:
        emit(a, p1_dma_w(0)); vm.add(-1, 2)
        emit(a, p1_dma_w(1)); vm.add(0, 2)
    a(f"s_lshl_b32 s{T0}, s{S_CT}, 16")
    a(f"s_lshl_b32 s{T1}, s{S_WM}, 10")
    a(f"s_add_u32 s{T0}, s{T0}, s{T1}")
    a(f"s_lshl_b32 s{T1}, s{S_P}, 8")
    a(f"s_add_u32 s{T0}, s{T0}, s{T1}")
    a(f"s_lshl_b32 s{T1}, s{S_BB}, 7")
    a(f"s_add_u32 s{T0}, s{T0}, s{T1}")
    a(f"s_add_u32 s{T0}, s{T0}, {WS_WQP + NS*2048}")
    a(f"s_add_u32 s{T0}, s{T0}, s{P_WS}")
    a(f"s_addc_u32 s{T1}, s{P_WS+1}, 0")
    a(f"v_lshl_add_u32 v28, v{VQQ}, 5, v31")
    a("v_mov_b32 v29, 0")
    a(f"v_lshl_add_u64 {v(VWP,2)}, v[28:29], 0, s[{T0}:{T1}]")
    srd(a, SWO, P_WS, P_WS + 1, 8 << 20)
    a(f"v_lshlrev_b32 v{VTW}, 8, v{VL}")
    a(f"s_lshl_b32 s{T0}, s{S_WAVE}, 4")
    a(f"s_add_u32 s{T0}, s{T0}, {TL}")
    a(f"v_add_u32 v{VTW}, s{T0}, v{VTW}")
    a(f"s_lshl_b32 s{S_AO}, s{S_AO}, 3")
    a(f"s_lshr_b32 s{S_CNT}, s2, 3")
    a(f"s_lshl_b32 s{S_CNT}, s{S_CNT}, 11")
    a(f"s_and_b32 s{T0}, s2, 7")
    a(f"s_lshl_b32 s{T0}, s{T0}, 7")
    a(f"s_add_u32 s{S_CNT}, s{S_CNT}, s{T0}")
    a(f"s_add_u32 s{S_CNT}, s{S_CNT}, {WS_WQP}")
    a(f"s_mov_b32 s{T3}, 0xffff0000")
    a(f"s_waitcnt vmcnt({9+4*TE+CODEPF})")
    nstamp(a, "xl")
    def ln(r):
        o = []
        I = 32 + 8 * r; X = 64 + 32 * r; C = X + 16; A_ = 52 + 6 * r
        M = A_ + 4
        def wsum(x, t):
            for mod in ("quad_perm:[1,0,3,2]", "quad_perm:[2,3,0,1]", "row_half_mirror", "row_mirror"):
                o.append("NOP2"); o.append(f"v_add_f32_dpp v{x}, v{x}, v{x} {mod} row_mask:0xf bank_mask:0xf")
            for sw in ("v_permlane16_swap_b32", "v_permlane32_swap_b32"):
                o.append(f"v_mov_b32 v{t}, v{x}"); o.append("NOP2"); o.append(f"{sw} v{x}, v{t}"); o.append(f"v_add_f32 v{x}, v{x}, v{t}")
        def rbf(x):
            o.append(f"v_cvt_pk_bf16_f32 v{x}, v{x}, v{x}"); o.append(f"v_and_b32 v{x}, s{T3}, v{x}")
        for k in range(8):
            o.append(f"v_lshlrev_b32 v{X+2*k}, 16, v{I+k}"); o.append(f"v_and_b32 v{X+2*k+1}, s{T3}, v{I+k}")
        o.append(f"v_pk_add_f32 {v(A_,2)}, {v(X,2)}, {v(X+2,2)}"); o.append(f"v_pk_add_f32 {v(A_+2,2)}, {v(X+4,2)}, {v(X+6,2)}")
        for k in (4, 6):
            o.append(f"v_pk_add_f32 {v(A_,2)}, {v(A_,2)}, {v(X+2*k,2)}"); o.append(f"v_pk_add_f32 {v(A_+2,2)}, {v(A_+2,2)}, {v(X+2*k+2,2)}")
        o.append(f"v_pk_add_f32 {v(A_,2)}, {v(A_,2)}, {v(A_+2,2)}"); o.append(f"v_add_f32 v{A_}, v{A_}, v{A_+1}")
        wsum(A_, A_ + 1)
        o.append(f"v_mul_f32 v{M}, 0xba800000, v{A_}")
        for k in range(8): o.append(f"v_pk_add_f32 {v(C+2*k,2)}, {v(X+2*k,2)}, {v(M,2)} op_sel_hi:[1,0]")
        o.append(f"v_pk_mul_f32 {v(A_,2)}, {v(C,2)}, {v(C,2)}"); o.append(f"v_pk_mul_f32 {v(A_+2,2)}, {v(C+2,2)}, {v(C+2,2)}")
        for k in range(2, 8):
            q = A_ + 2 * (k % 2); o.append(f"v_pk_fma_f32 {v(q,2)}, {v(C+2*k,2)}, {v(C+2*k,2)}, {v(q,2)}")
        o.append(f"v_pk_add_f32 {v(A_,2)}, {v(A_,2)}, {v(A_+2,2)}"); o.append(f"v_add_f32 v{A_}, v{A_}, v{A_+1}")
        rbf(M)
        wsum(A_, A_ + 1)
        for k in range(8): o.append(f"v_pk_add_f32 {v(C+2*k,2)}, {v(X+2*k,2)}, {v(M,2)} op_sel_hi:[1,0]")
        o.append(f"v_mul_f32 v{A_}, 0x3a800000, v{A_}"); rbf(A_)
        o.append(f"v_add_f32 v{A_}, 0x3727c5ac, v{A_}"); rbf(A_)
        o.append(f"v_sqrt_f32 v{A_}, v{A_}"); o.append("NOP1"); rbf(A_)
        o.append(f"v_rcp_f32 v{M+1}, v{A_}"); o.append("NOP1")
        for k in range(8): o.append(f"v_pk_mul_f32 {v(C+2*k,2)}, {v(C+2*k,2)}, {v(M,2)} op_sel:[0,1] op_sel_hi:[1,1]")
        for k in range(8): o.append(f"v_cvt_pk_bf16_f32 v{I+k}, v{C+2*k}, v{C+2*k+1}")
        return o
    def touches():
        a(f"s_and_b32 s{T0}, s{S_RP}, 3")
        a(f"v_mul_lo_u32 v96, v{VWS}, s{T0}")
        a("v_mov_b32 v97, 0")
        a(f"v_lshl_add_u64 v[98:99], v[96:97], 0, {v(VWA,2)}")
        a(f"v_lshl_add_u64 v[100:101], v[96:97], 0, {v(VWB,2)}")
        a("global_load_dword v18, v[98:99], off")
        a("global_load_dword v18, v[100:101], off")
        a("v_lshrrev_b32 v96, 4, v102")
        a("v_lshlrev_b32 v96, 11, v96")
        a(f"v_lshl_add_u32 v96, v{VT}, 7, v96")
        a(f"s_lshl_b32 s{T0}, s{S_C2}, 16")
        mk_ = (((1 << XL) - 1) << 1) * 0x10001
        a(f"s_mov_b32 exec_lo, {mk_}")
        a(f"s_mov_b32 exec_hi, {mk_}")
        a(f"buffer_load_dword v18, v96, s[{SX}:{SX+3}], s{T0} offen")
        a("s_mov_b64 exec, -1")
        vm.add(99, 3)
    for x0, x1 in zip(ln(0), ln(1)):
        if x0 == "NOP2": a("s_nop 0")
        elif x0 == "NOP1": pass
        else:
            a(x0); a(x1)
    nstamp(a, "ln")
    a("v_mov_b32 v102, v0")
    for r in range(2):
        a(f"ds_write_b128 v{VTW}, {v(32+8*r,4)} offset:{r*128}")
        a(f"ds_write_b128 v{VTW}, {v(36+8*r,4)} offset:{16384 + r*128}")
    a(f"s_waitcnt vmcnt({8+4*TE+CODEPF})")
    a(f"buffer_store_dwordx4 v[48:51], v{VQD}, s[{SWO}:{SWO+3}], s{S_CNT} offen sc1")
    a("s_mov_b64 exec, 1")
    a(f"buffer_store_dwordx2 v[56:57], v{VKVD}, s[{SWO}:{SWO+3}], s{S_AO} offen sc1")
    a(f"buffer_store_dwordx2 v[62:63], v{VKVD}, s[{SWO}:{SWO+3}], s{S_AO} offen offset:64 sc1")
    a("s_mov_b64 exec, -1")
    vm.add(99, 3)
    if TE < 1: emit(a, p1_dma_x(0, 0) + p1_dma_x(1, 0)); vm.add(-1, 4)
    if TE < 2:
        emit(a, p1_dma_w(0)); vm.add(-1, 2)
        emit(a, p1_dma_w(1)); vm.add(0, 2)
    if not TLATE: touches()
    p1_setup(a)
    a(f"s_lshr_b32 s{T0}, s{S_WAVE}, 1")
    a(f"s_lshl_b32 s{T1}, s{T0}, 13")
    a(f"s_add_u32 s{T1}, s{T1}, {TL}")
    a(f"v_add_u32 v{VFR}, s{T1}, v{VKVD}")
    a(f"s_lshl_b32 s{T0}, s{T0}, 14")
    a(f"s_lshl_b32 s{T1}, s{S_WM}, 15")
    a(f"s_add_u32 s{T0}, s{T0}, s{T1}")
    a(f"s_lshl_b32 s{T1}, s{S_P}, 5")
    a(f"s_add_u32 s{T1}, s{T1}, 0x10000")
    a(f"s_add_u32 s{T0}, s{T0}, s{T1}")
    a(f"v_lshrrev_b32 v{VTR}, 2, v{VT}")
    a(f"v_lshl_add_u32 v{VTR}, v{VQQ}, 3, v{VTR}")
    a(f"v_lshlrev_b32 v{VTR}, 6, v{VTR}")
    a(f"v_and_b32 v22, 3, v{VL}")
    a(f"v_lshl_add_u32 v{VTR}, v22, 3, v{VTR}")
    a(f"v_add_u32 v{VTR}, s{T0}, v{VTR}")
    a(f"v_lshrrev_b32 v{VEX}, 1, v{VL}")
    a(f"v_lshlrev_b32 v{VEX}, 6, v{VEX}")
    a(f"v_and_b32 v22, 1, v{VL}")
    a(f"v_lshl_add_u32 v{VEX}, v22, 4, v{VEX}")
    a(f"v_add_u32 v{VEX}, s{T0}, v{VEX}")
    a(f"s_lshr_b32 s{S_WDO}, s{S_PB}, 1")
    a(f"s_lshl_b32 s{S_WDO}, s{S_WDO}, 11")
    a(f"s_and_b32 s{T0}, s{S_PB}, 1")
    a(f"s_lshl_b32 s{T1}, s{T0}, 8")
    a(f"s_lshl_b32 s{T2}, s{S_P}, 3")
    a(f"s_add_u32 s{T1}, s{T1}, s{T2}")
    a(f"s_lshl_b32 s{T0}, s{T0}, 10")
    a(f"s_lshl_b32 s{T2}, s{S_P}, 8")
    a(f"s_add_u32 s{T0}, s{T0}, s{T2}")
    a(f"s_add_u32 s{T0}, s{T0}, 0x20000")
    a(f"s_cmp_eq_u32 s{S_ISV}, 0")
    a(f"s_cselect_b32 s{T0}, s{T1}, s{T0}")
    a(f"s_cselect_b64 vcc, -1, 0")
    a(f"s_add_u32 s{S_WDO}, s{S_WDO}, s{T0}")
    a(f"s_add_u32 s{S_WDO}, s{S_WDO}, 8192")
    a(f"v_lshlrev_b32 v22, 9, v{VQQ}")
    a(f"v_and_b32 v23, 512, v22")
    a(f"v_lshrrev_b32 v24, 1, v{VQQ}")
    a("v_lshl_add_u32 v23, v24, 3, v23")
    a("v_cndmask_b32 v22, v23, v22, vcc")
    a(f"v_lshl_add_u32 v{VKS}, v{VT}, 4, v22")
    srd(a, SACT, P_WS, P_WS + 1, 16 * ACT_NU * 8192, add_lo=WS_ACT)
    srd(a, SKV, P_WS, P_WS + 1, (256 << 10) + 32768, add_lo=WS_KV - 8192)
    srd(a, SWO, P_WO, P_WO + 1, 1024 * 2048)
    srd(a, SPART, P_WS, P_WS + 1, 16384, add_lo=WS_ST)
    a(f"s_waitcnt vmcnt({len(vm.q)}) lgkmcnt(0)")
    a(f"s_add_u32 s{NONCE}, s{NONCE}, 0x9e3779b9")
    a(f"s_add_u32 s{NONCE+1}, s{NONCE+1}, 0x85ebca6b")
    a("s_barrier")
    nstamp(a, "b1")
    for u in range(8):
        a(f"ds_read_b128 {v(32+4*u,4)}, v{VFR} offset:{u*1024}")
        for h in range(2):
            a(f"ds_read_b64_tr_b16 {v(64+4*u+2*h,2)}, v{VTR} offset:{u*2048 + h*256}")
    if TLATE: touches()
    a(f"s_cmp_lg_u32 s{S_ISV}, 0")
    a("s_cbranch_scc1 P0_V")
    for isv in range(2):
        if isv: a.label("P0_V")
        for u in range(8):
            a(f"s_waitcnt lgkmcnt({min(15, 3*(7-u))})")
            x = 32 + 4 * u; w = 64 + 4 * u; d = (20, 24)[u & 1]
            c = "0" if u < 2 else v(d, 4)
            ab = (x, w) if isv else (w, x)
            a(f"v_mfma_f32_16x16x32_bf16 {v(d,4)}, {v(ab[0],4)}, {v(ab[1],4)}, {c}")
        if not isv: a("s_branch P0_MD")
    a.label("P0_MD")
    a("s_nop 7")
    a("v_pk_add_f32 v[20:21], v[20:21], v[24:25]")
    a("v_pk_add_f32 v[22:23], v[22:23], v[26:27]")
    a(f"ds_write_b128 v{VEX}, v[20:23]")
    a(f"s_waitcnt vmcnt({vm.wait(-1)}) lgkmcnt(0)")
    a("s_barrier")

def p0_finish(a):
    a(f"s_cmp_gt_u32 s{S_WAVE}, 1")
    a("s_cbranch_scc1 P0_KVD")
    a("v_add_u32 v30, 0x10000, v28")
    a("ds_read_b128 v[24:27], v28 offset:16384")
    a("ds_read_b128 v[48:51], v30")
    a("ds_read_b128 v[52:55], v30 offset:16384")
    a("s_waitcnt lgkmcnt(0)")
    for h in (0, 2):
        a(f"v_pk_add_f32 {v(20+h,2)}, {v(20+h,2)}, {v(24+h,2)}")
        a(f"v_pk_add_f32 {v(48+h,2)}, {v(48+h,2)}, {v(52+h,2)}")
        a(f"v_pk_add_f32 {v(20+h,2)}, {v(20+h,2)}, {v(48+h,2)}")
    a("v_cvt_pk_bf16_f32 v20, v20, v21")
    a("v_cvt_pk_bf16_f32 v21, v22, v23")
    a(f"buffer_store_dwordx2 v[20:21], v29, s[{SKV}:{SKV+3}], s{S_WDO} offen sc1")
    a.label("P0_KVD")

def gen(a):
    kernel_head(a, NAME)
    a("s_cmp_ge_u32 s2, 256")
    a("s_cbranch_scc1 KM_END")
    stamp(a, 0)
    vm = VM()
    gen_p0(a, vm)
    nstamp(a, "fl")
    stamp(a, 1)
    for x in p1_reads(0): a(x)
    emit(a, p1_dma_x(0, 1)); vm.add(1, 2)
    p0_finish(a)
    vm.add(1)
    emit(a, p1_dma_x(0, 2)); vm.add(3, 2)
    a(f"s_lshl_b32 s{S_CNT}, s2, 3")
    a(f"s_add_u32 s{S_CNT}, s{S_CNT}, {F_KV}")
    a(f"s_lshl_b32 s{T0}, s{S_P}, 10")
    a(f"s_add_u32 s{T0}, s{T0}, {F_KV}")
    a(f"v_add_u32 v0, s{T0}, v{VKVD}")
    a(f"s_lshl_b32 s{S_AO}, s{S_RP}, 1")
    a(f"s_add_u32 s{S_AO}, s{S_AO}, s{S_WM}")
    a(f"s_lshl_b32 s{S_AO}, s{S_AO}, 10")
    for i in range(4): a(f"v_mov_b32 v{ONES+i}, 0x3f803f80")
    for i in range(8): a(f"v_mov_b32 v{CS+i}, 0")
    a(f"s_waitcnt vmcnt({vm.wait(0) - 1}) lgkmcnt(0)")
    a("s_barrier")
    nstamp(a, "p1s")
    a(f"s_cmp_lg_u32 s{S_WM}, 0")
    a("s_cbranch_scc1 P1_B")
    gen_p1(a, 0, vm)
    a("s_branch P1_END")
    a.label("P1_B")
    gen_p1(a, 1, vm)
    a.label("P1_END")
    stamp(a, 2)
    nstamp(a, "p1e")
    if STOP == "p1": a("s_branch KM_FIN")
    CSR = XF + 16
    for t in range(2):
        for st in range(2):
            a(f"ds_read_b128 {v(CSR+(st*2+t)*4,4)}, v{VWP+1} offset:{CSL + t*8192 + st*1024}")
    a(f"v_lshlrev_b32 v{VHO}, 9, v{VQQ}")
    a(f"v_lshl_add_u32 v{VHO}, v{VT}, 4, v{VHO}")
    a(f"v_add_u32 v{VHO+1}, 0x1000, v{VHO}")
    a(f"s_lshr_b32 s{T0}, s{S_CT}, 1")
    a(f"s_mul_i32 s{T0}, s{T0}, 7")
    a(f"s_and_b32 s{T1}, s{S_CT}, 1")
    a(f"s_lshl_b32 s{T2}, s{T1}, 2")
    a(f"s_add_u32 s{T2}, s{T2}, s{S_WN}")
    a(f"s_cmp_eq_u32 s{S_WN}, 3")
    a(f"s_cselect_b32 s{T2}, 3, s{T2}")
    a(f"s_add_u32 s{T0}, s{T0}, s{T2}")
    a(f"s_lshl_b32 s{T2}, s{S_RP}, 1")
    a(f"s_add_u32 s{T2}, s{T2}, s{S_WM}")
    a(f"s_mul_i32 s{T3}, s{T2}, {ACT_NU}")
    a(f"s_add_u32 s{T0}, s{T0}, s{T3}")
    a(f"s_lshl_b32 s{S_HO}, s{T0}, 13")
    a(f"s_lshl_b32 s{S_XO}, s{S_RP}, 8")
    a(f"s_lshl_b32 s{T3}, s{S_CT}, 3")
    a(f"s_add_u32 s{S_XO}, s{S_XO}, s{T3}")
    a(f"s_add_u32 s{S_XO}, s{S_XO}, {F_H}")
    a("s_waitcnt vmcnt(0) lgkmcnt(0)")
    for j in range(8): a(f"v_mul_f32 v{XF+32+j}, v{XF+2*j+1}, v{XF+2*j+1}")
    a(f"s_cmp_eq_u32 s{S_WN}, 3")
    a("s_cbranch_scc1 P1_EP3")
    def center(st, t, j):
        g = acc(st, t, j); c = CSR + (st * 2 + t) * 4
        for i in (0, 2): a(f"v_pk_fma_f32 {v(g+i,2)}, {v(c+i,2)}, {v(XF+2*j,2)}, {v(g+i,2)} op_sel_hi:[1,0,1]")
    def hpair(t, j):
        g = acc(0, t, j); u = acc(1, t, j); dst = HS + 4 * j + 2 * t
        r2 = XF + 32 + (j & ~1); sel = "op_sel:[0,1] op_sel_hi:[1,1]" if j & 1 else "op_sel_hi:[1,0]"
        center(0, t, j); center(1, t, j)
        for i in range(4): a(f"v_max_f32 v{g+i}, 0, v{g+i}")
        for i in (0, 2): a(f"v_pk_mul_f32 {v(u+i,2)}, {v(u+i,2)}, {v(r2,2)} {sel}")
        for i in (0, 2): a(f"v_pk_mul_f32 {v(g+i,2)}, {v(g+i,2)}, {v(u+i,2)}")
        for i in (2, 0): a(f"v_cvt_pk_bf16_f32 v{dst+i//2}, v{g+i}, v{g+i+1}")
    for j in range(8):
        hpair(1, j); hpair(0, j)
    a("s_branch P1_EPD")
    a.label("P1_EP3")
    a(f"s_lshl_b32 s{S_CNT}, s{S_WM}, 13")
    a(f"v_add_u32 v24, s{S_CNT}, v{VHO}")
    for j in range(8): a(f"v_mul_f32 v{XF+2*j+1}, {QSCALE}, v{XF+2*j+1}")
    for j in range(8):
        tmp = XF + 40 + 4 * (j & 3)
        for st in range(2):
            g = acc(st, 1, j)
            center(st, 1, j)
            for i in (0, 2): a(f"v_pk_mul_f32 {v(g+i,2)}, {v(g+i,2)}, {v(XF+2*j,2)} op_sel:[0,1] op_sel_hi:[1,1]")
            for i in (0, 2): a(f"v_cvt_pk_bf16_f32 v{tmp+2*st+i//2}, v{g+i}, v{g+i+1}")
        a(f"ds_write_b128 v24, {v(tmp,4)} offset:{QLDS + (j>>1)*2048 + (j&1)*256}")
    a(f"s_lshl_b32 s{T1}, s{T1}, 3")
    a(f"s_add_u32 s{S_HO}, s{S_HO}, s{T1}")
    for j in range(8): hpair(0, j)
    a.label("P1_EPD")
    srd(a, SPART, P_WS, P_WS + 1, 8 << 20, add_lo=WS_PART)
    a(f"s_lshl_b32 s{T3}, s{S_WAVE}, 10")
    a(f"v_add_u32 v{VPA}, s{T3}, v{VKVD}")
    a(f"v_lshlrev_b32 v3, 2, v{VQQ}")
    a(f"v_xor_b32 v3, v3, v{VT}")
    a("v_lshlrev_b32 v3, 4, v3")
    a(f"v_lshl_add_u32 v3, v{VQQ}, 11, v3")
    a(f"s_lshl_b32 s{T0}, s{S_WAVE}, 13")
    a(f"s_lshl_b32 s{T1}, s{S_C2}, 8")
    a(f"s_add_u32 s{T0}, s{T0}, s{T1}")
    a(f"v_add_u32 v{VPW}, s{T0}, v3")
    a(f"s_mul_i32 s{T0}, s{S_G}, {ACT_NU}")
    a(f"s_mul_i32 s{T1}, s{S_KH}, 56")
    a(f"s_add_u32 s{T0}, s{T0}, s{T1}")
    a(f"s_lshl_b32 s{S_AO}, s{T0}, 13")
    a(f"s_lshl_b32 s{S_WDO}, s{T1}, 16")
    a(f"s_mov_b32 s{S_RING}, 0")
    a(f"v_lshlrev_b32 v{VTCH}, 6, v{VL}")
    a(f"s_lshr_b32 s{T0}, s2, 3")
    a(f"s_lshl_b32 s{T0}, s{T0}, 12")
    a(f"s_add_u32 s{S_TW}, s{S_WDO}, s{T0}")
    a(f"s_lshl_b32 s{T0}, s{S_C2}, 12")
    a(f"s_add_u32 s{S_TA}, s{S_AO}, s{T0}")
    a(f"v_lshrrev_b32 v25, 2, v{VL}")
    a(f"v_xor_b32 v25, v25, v{VQQ}")
    a("v_and_b32 v25, 1, v25")
    a(f"v_and_b32 v26, 3, v{VL}")
    a("v_or_b32 v25, v25, v26")
    a("v_cmp_eq_u32 vcc, 0, v25")
    a("v_mov_b32 v26, 0x3f803f80")
    a("v_mov_b32 v27, 0")
    a("s_waitcnt vmcnt(0) lgkmcnt(0)")
    a("s_barrier")
    a(f"ds_read_b128 {v(QF,4)}, v{VWP} offset:{QLDS}")
    a(f"ds_read_b128 {v(QF+4,4)}, v{VWP} offset:{QLDS+1024}")
    for b in range(2):
        for s_ in range(2):
            a(f"ds_read_b128 {v(KB+8*b+4*s_,4)}, v{VKVR} offset:{0x4000 + (2+b)*2048 + s_*1024}")
    for i in range(4): a(f"v_cndmask_b32 v{SEL+i}, v27, v26, vcc")
    for i in range(4): a(f"v_mov_b32 v{RS+i}, 0")
    for i in range(16): a(f"v_mov_b32 v{OA+i}, 0")
    a("s_waitcnt lgkmcnt(0)")
    a(mf32(SB, KB, QF, "0"))
    a(mf32(SB, KB + 4, QF + 4, v(SB, 16)))
    a("s_nop 11")
    a(f"v_max3_f32 v26, v{SB}, v{SB+1}, v{SB+2}")
    for i in range(3, 15, 2): a(f"v_max3_f32 v26, v26, v{SB+i}, v{SB+i+1}")
    a(f"v_max_f32 v26, v26, v{SB+15}")
    a("v_mov_b32 v27, v26")
    a("s_nop 1")
    a("v_permlane32_swap_b32 v26, v27")
    a("s_nop 0")
    a("v_max_f32 v26, v26, v27")
    for i in range(16): a(f"v_sub_f32 v{NM+i}, 0, v26")
    for i in range(16): a(f"v_sub_f32 v{SB+i}, v{SB+i}, v26")
    stamp(a, 3)
    def pollH():
        a(f"s_lshr_b32 s{T0}, s{S_G}, 1")
        a(f"s_lshl_b32 s{T0}, s{T0}, 8")
        a(f"s_lshl_b32 s{T1}, s{S_KH}, 7")
        a(f"s_add_u32 s{T0}, s{T0}, s{T1}")
        a(f"s_add_u32 s{T0}, s{T0}, {F_H}")
        poll_issue(a, T0, 16)
    att_epoch(a, 0, first=True, x2=h_store(0), x3=h_store(1))
    att_epoch(a, 1, wait=2, x2=h_store(2), x3=h_store(3))
    att_epoch(a, 2, wait=2, x2=h_store(4), x3=h_store(5))
    att_epoch(a, 3, wait=2, x2=h_store(6), x3=h_store(7))
    att_epoch(a, 4, wait=2)
    att_epoch(a, 5, post=lambda: wave0(a, lambda: flag_set(a, S_XO)), x1=touch_wo())
    att_epoch(a, 6, wait=1, x1=touch_w(20))
    att_epoch(a, 7, wait=1, post=lambda: wave0(a, pollH), x1=touch_w(12))
    att_epoch(a, 8, wait=1, post=lambda: wave0(a, lambda: poll_check(a)), x1=touch_w(4))
    att_epoch(a, 9, prefill=2, wait=1, x3=touch_a(6))
    att_epoch(a, 10, prefill=2, wait=5)
    att_epoch(a, 11, prefill=2, wait=4)
    att_epoch(a, 12, prefill=2, wait=4, x3=touch_a(0))
    att_epoch(a, 13, wait=5)
    att_epoch(a, 14)
    att_epoch(a, 15, last=True)
    a("s_waitcnt lgkmcnt(0)")
    a(mf32(OA, VB + 8, PB + 8, v(OA, 16)))
    a(mfrs(PB + 8))
    a(mf32(OA, VB + 12, PB + 12, v(OA, 16)))
    a(mfrs(PB + 12))
    a(f"s_add_u32 s{S_XO}, s{S_XO}, {F_O - F_H}")
    a(f"s_lshl_b32 s{T0}, s{S_RP}, 1")
    a(f"s_add_u32 s{T0}, s{T0}, s{S_WM}")
    a(f"s_mul_i32 s{T0}, s{T0}, {ACT_NU}")
    a(f"s_add_u32 s{T0}, s{T0}, s{S_CT}")
    a(f"s_add_u32 s{T0}, s{T0}, 112")
    a(f"s_lshl_b32 s{T0}, s{T0}, 13")
    a(f"s_lshl_b32 s{T1}, s{S_WN}, 11")
    a(f"s_add_u32 s{S_CNT}, s{T0}, s{T1}")
    a("s_nop 4")
    a(f"v_mul_f32 v26, 0, v{RS}")
    for i in range(16): a(f"v_fma_f32 v26, v{OA+i}, 0, v26")
    a("v_cmp_u_f32 vcc, v26, v26")
    a("s_cmp_lg_u64 vcc, 0")
    a("s_cbranch_scc1 P2_SLOW")
    a.label("P2_FIN")
    a(f"v_rcp_f32 v26, v{RS}")
    a("s_nop 0")
    for i in range(16): a(f"v_mul_f32 v{OA+i}, v{OA+i}, v26")
    for k, base in enumerate((0, 8, 4, 12)):
        a(f"v_cvt_pk_bf16_f32 v{PB+2*k}, v{OA+base}, v{OA+base+1}")
        a(f"v_cvt_pk_bf16_f32 v{PB+2*k+1}, v{OA+base+2}, v{OA+base+3}")
    a(f"buffer_store_dwordx4 {v(PB,4)}, v{VKVD}, s[{SACT}:{SACT+3}], s{S_CNT} offen sc1")
    a(f"buffer_store_dwordx4 {v(PB+4,4)}, v{VKVD}, s[{SACT}:{SACT+3}], s{S_CNT} offen offset:1024 sc1")
    stamp(a, 4)
    import mk3
    mk3.gen_p3(a)
    a.label("P2_SLOW")
    a(f"s_mov_b32 s{T0}, 8192")
    a(f"v_mov_b32 v27, 0xff800000")
    a(f"v_mov_b32 v{RS}, 0")
    for i in range(16): a(f"v_mov_b32 v{OA+i}, 0")
    a.label("P2_SL")
    a(f"s_add_u32 s{T1}, s{T0}, 0x20000")
    a(f"buffer_load_dwordx4 {v(KB,4)}, v{VKVD}, s[{SKV}:{SKV+3}], s{T0} offen")
    a(f"buffer_load_dwordx4 {v(KB+4,4)}, v{VKVD}, s[{SKV}:{SKV+3}], s{T0} offen offset:1024")
    a(f"buffer_load_dwordx4 {v(VB,4)}, v{VKVD}, s[{SKV}:{SKV+3}], s{T1} offen")
    a(f"buffer_load_dwordx4 {v(VB+4,4)}, v{VKVD}, s[{SKV}:{SKV+3}], s{T1} offen offset:1024")
    a("s_waitcnt vmcnt(0)")
    a(mf32(SB, KB, QF, "0"))
    a(mf32(SB, KB + 4, QF + 4, v(SB, 16)))
    a("s_nop 15")
    a(f"v_max3_f32 v26, v27, v{SB}, v{SB+1}")
    for i in range(2, 16, 2): a(f"v_max3_f32 v26, v26, v{SB+i}, v{SB+i+1}")
    a("v_mov_b32 v28, v26")
    a("s_nop 1")
    a("v_permlane32_swap_b32 v26, v28")
    a("s_nop 0")
    a("v_max_f32 v26, v26, v28")
    a("v_sub_f32 v28, v27, v26")
    a("v_exp_f32 v28, v28")
    a("v_mov_b32 v27, v26")
    for i in range(16): a(f"v_sub_f32 v{SB+i}, v{SB+i}, v26")
    for i in range(16): a(f"v_exp_f32 v{SB+i}, v{SB+i}")
    for i in range(16): a(f"v_mul_f32 v{OA+i}, v{OA+i}, v28")
    a(f"v_mul_f32 v{RS}, v{RS}, v28")
    for i in range(8): a(f"v_cvt_pk_bf16_f32 v{PB+i}, v{SB+2*i}, v{SB+2*i+1}")
    a("s_nop 1")
    a(mf32(OA, VB, PB, v(OA, 16)))
    a(mfrs(PB))
    a(mf32(OA, VB + 4, PB + 4, v(OA, 16)))
    a(mfrs(PB + 4))
    a("s_nop 15")
    a(f"s_add_u32 s{T0}, s{T0}, 2048")
    a(f"s_cmp_lt_u32 s{T0}, {8192 + 64*2048}")
    a("s_cbranch_scc1 P2_SL")
    a("s_branch P2_FIN")
    a.label("KM_FIN")
    if STAMPS: a("s_waitcnt vmcnt(0)")
    stamp(a, 7)
    stamp_flush(a, 0, 8, P_WS, S_WAVE)
    a.label("KM_END")
    a("s_endpgm")
    return dict(name=NAME, grid=256, block=512, lds=int(os.environ.get('X_LDS', 163840)), vgpr=256, sgpr=102)
```

```python
from asmlib import *
import struct, math, os
NAME = "parallel_sum__grouped_kv_mqa__glu_gated_reglu__prompt_kernel"
QSCALE = struct.unpack("<I", struct.pack("<f", math.log2(math.e) / math.sqrt(32.0)))[0]
STOP = os.environ.get("STOP", "")
KVL = 131072
QLDS = 0
TLDS = 0
F_KV, F_H, F_O, F_NONCE, F_P = 8192, 12288, 16384, 24576, 32768
WS_ST = WS_XN
WLDS = 98304
KXL = 16384
STL = 32768
CSL = 16384
NS = int(os.environ.get('X_NS', 9))
SPIN_MAX = 1 << 21
P1MODE = int(os.environ.get('X_P1MODE', 1))
P1SHIFT = int(os.environ.get('X_P1SHIFT', 6))
P1PRIO = int(os.environ.get('X_P1PRIO', 0))
UNROLL = int(os.environ.get('X_UNROLL', 0))
NPRE = int(os.environ.get('X_NPRE', 1))
TLBW = int(os.environ.get('X_TLBW', 0))
TLBS = int(os.environ.get('X_TLBS', 21))
TLBP = 4
EARLY = int(os.environ.get('X_EARLY', 4))
NPRO = int(os.environ.get('X_NPRO', 4))
TE = int(os.environ.get('X_TE', 0))
TLATE = int(os.environ.get('X_TLATE', 1))
CODEPF = int(os.environ.get('X_CODEPF', 1))
XL = int(os.environ.get('X_XL', 3))
P1TOUCH = int(os.environ.get('X_P1T', 1))

S_WAVE = 3
S_TW, S_TA = 4, 5
P_WS = 6
NONCE = 8
QMASK = 10
SX = 12
SWD = 16
S_XO, S_AO, S_WDO, S_MX, S_MW, S_CNT = 20, 21, 22, 23, 24, 25
S_HO = 24
S_CT, S_RP, S_WM, S_P, S_BB, S_WN = 26, 27, 28, 29, 30, 31
T0, T1, T2, T3 = 32, 33, 34, 35
SACT, SKV = 36, 40
P_X, P_OUT, P_WO, S_ISV, S_PB = 44, 46, 48, 50, 51
S_G, S_C2, S_KH, S_KVO, S_MKV, S_RING = 52, 53, 54, 55, 56, 57
SFLAG = 58
SWO, SPART = 92, 96
VL, VXD, VWA, VWB, VWS, VXR, VWR, VWP, VQQ, VT = 1, 2, 4, 6, 8, 10, 12, 14, 16, 17
ONES, CS = 20, 24
VKVR, VKVD, VPA, VPW = 18, 19, 20, 21
HS, VHO, VWOD = 160, 4, 7
VTCH, VDUM = 31, 30
VPL, VPD = 27, 28
ACC, XF, WF = 128, 64, 32
def acc(st, t, j): return ACC + ((st * 2 + t) * 8 + j) * 4
def xf(p, j): return XF + (p * 8 + j) * 4
def wf(p, st, t): return WF + (p * 4 + st * 2 + t) * 4
def emit(a, groups):
    for g in groups:
        for x in g: a(x)

def flag_set(a, off_sgpr):
    a(f"v_mov_b32 v22, s{off_sgpr}")
    a(f"v_mov_b32 v24, s{NONCE}")
    a(f"v_mov_b32 v25, s{NONCE+1}")
    a("s_mov_b64 exec, 1")
    a(f"global_store_dwordx2 v22, v[24:25], s[{SFLAG}:{SFLAG+1}] sc1")
    a("s_mov_b64 exec, -1")
def poll_load(): return f"global_load_dwordx2 {v(VPD,2)}, v{VPL}, s[{SFLAG}:{SFLAG+1}] sc1"
def poll_issue(a, off_sgpr, n):
    a(f"v_and_b32 v{VPL}, {n-1}, v{VL}")
    a(f"v_lshlrev_b32 v{VPL}, 3, v{VPL}")
    a(f"v_add_u32 v{VPL}, s{off_sgpr}, v{VPL}")
    a(poll_load())
_lab = [0]
def spin(a, cmps, loads, sleep=1):
    _lab[0] += 1
    n = _lab[0]
    a(f"s_mov_b32 s{T1}, {SPIN_MAX}")
    a.label(f"PL{n}")
    for x in cmps: a(x)
    a("s_cmp_eq_u64 vcc, -1")
    a(f"s_cbranch_scc1 PD{n}")
    a(f"s_sub_u32 s{T1}, s{T1}, 1")
    a(f"s_cbranch_scc1 PD{n}")
    a(f"s_sleep {sleep}")
    for x in loads: a(x)
    a("s_waitcnt vmcnt(0)")
    a(f"s_branch PL{n}")
    a.label(f"PD{n}")
def poll_check(a):
    spin(a, [f"v_cmp_eq_u64 vcc, s[{NONCE}:{NONCE+1}], {v(VPD,2)}"], [poll_load()])
def wave0(a, fn):
    _lab[0] += 1
    n = _lab[0]
    a(f"s_cmp_lg_u32 s{S_WAVE}, 0")
    a(f"s_cbranch_scc1 W0_{n}")
    fn()
    a.label(f"W0_{n}")

def p1_dma_x(h, tau):
    if os.environ.get("X_ROT"):
        return [[f"s_add_u32 s{S_XO}, s{S_ROT}, {tau*128}", f"s_and_b32 s{S_XO}, s{S_XO}, 2047", f"s_add_u32 m0, s{S_MX}, {(h*3 + tau%3)*16384}",
             f"s_or_b32 s{S_XO}, s{S_XO}, {h*128*2048}" if h else "s_nop 0",
             f"buffer_load_dwordx4 v{VXD}, s[{SX}:{SX+3}], s{S_XO} offen lds"],
            [f"buffer_load_dwordx4 v{VXD+1}, s[{SX}:{SX+3}], s{S_XO} offen offset:1024 lds"]]
    return [[f"s_add_u32 m0, s{S_MX}, {(h*3 + tau%3)*16384}", f"s_mov_b32 s{S_XO}, {h*128*2048 + tau*128}",
             f"buffer_load_dwordx4 v{VXD}, s[{SX}:{SX+3}], s{S_XO} offen lds"],
            [f"buffer_load_dwordx4 v{VXD+1}, s[{SX}:{SX+3}], s{S_XO} offen offset:1024 lds"]]
def p1_dma_w(k):
    slot = k % 4
    return [[f"s_add_u32 m0, s{S_MW}, {slot*16384}", "s_nop 0", f"global_load_lds_dwordx4 {v(VWA,2)}, off",
             f"s_add_u32 m0, s{S_MW}, {slot*16384+2048}",
             f"v_lshl_add_u64 {v(VWA,2)}, {v(VWS,2)}, 0, {v(VWA,2)}"],
            [f"global_load_lds_dwordx4 {v(VWB,2)}, off",
             f"v_lshl_add_u64 {v(VWB,2)}, {v(VWS,2)}, 0, {v(VWB,2)}"]]
def p1_reads(k):
    p = k & 1
    r = []
    for st in range(2):
        for t in range(2):
            for half in range(2):
                r.append(f"ds_read_b64_tr_b16 {v(wf(p,st,t)+2*half,2)}, v{VWR+t} offset:{(k%4)*16384 + st*8192 + half*4096}")
    for j in range(8):
        r.append(f"ds_read_b128 {v(xf(p,j),4)}, v{VXR+(k&1)} offset:{((k>>1)%3)*16384 + j*2048}")
    return r
def p1_mfma(p, first=False):
    m = []
    for j in range(8):
        order = [(0,0),(0,1),(1,0),(1,1)]
        if j & 1: order = order[::-1]
        for st, t in order:
            d = acc(st, t, j)
            m.append(f"v_mfma_f32_16x16x32_bf16 {v(d,4)}, {v(wf(p,st,t),4)}, {v(xf(p,j),4)}, {0 if first else v(d,4)}")
    return m
def cs_mfma(p, st, grp): return f"v_mfma_f32_16x16x32_bf16 {v(CS+4*st,4)}, {v(wf(p,st,grp),4)}, {v(ONES,4)}, {v(CS+4*st,4)}"
CSV = int(os.environ.get("X_CSV", 0))
def cs_valu(p, grp):
    o = []
    for st in range(2):
        for r in range(4):
            src = wf(p, st, grp) + r; t = 20 + 2 * (r & 1)
            o += [f"v_lshlrev_b32 v{t}, 16, v{src}", f"v_and_b32 v{t+1}, 0xffff0000, v{src}",
                  f"v_add_f32 v{CS+2*st}, v{CS+2*st}, v{t}", f"v_add_f32 v{CS+2*st+1}, v{CS+2*st+1}, v{t+1}"]
    return o
def add_cs(m, fill, p, grp):
    if not CSV:
        return m[:10] + [cs_mfma(p, 0, grp)] + m[10:20] + [cs_mfma(p, 1, grp)] + m[20:], fill
    fill = [list(f) for f in fill]
    while len(fill) < 32: fill.append([])
    order = sorted(range(32), key=lambda i: (len(fill[i]) > 0, i))
    vv = cs_valu(p, grp)
    slots = sorted([i for i in range(32) if not fill[i]] * 2 + [i for i in range(32) if fill[i]])
    empt = [i for i in range(32) if not fill[i]]
    rest = [i for i in range(32) if fill[i]]
    need = 32 - 2 * len(empt)
    pick = sorted(empt * 2 + rest[-need:] if need > 0 else (empt * 2)[:32])
    for i, x in zip(pick, vv): fill[i].append(x)
    return m, fill
def weave(a, m, fill):
    for i, ins in enumerate(m):
        a(ins)
        if i < len(fill):
            for x in fill[i]: a(x)
    emit(a, fill[len(m):])
class VM:
    def __init__(self): self.q = []
    def add(self, need, n=1): self.q += [need] * n
    def wait(self, b):
        last = max([i for i, x in enumerate(self.q) if x <= b], default=-1)
        return len(self.q) - 1 - last
S_XM, S_XT, S_WM0, S_DX, S_DW = S_TW, S_TA, S_RING, S_ISV, S_PB
def gen_p1(a, grp, vm0):
    vm = VM(); vm.q = list(vm0.q)
    LO, HI = NS - 3, 26
    LO += LO & 1
    if not os.environ.get('X_LOOP'): LO = HI = 99
    G = "AB"[grp]
    def dyn_entry(k):
        tau = k // 2 + 2
        a(f"s_add_u32 s{S_XM}, s{S_MX}, {(tau % 3) * 16384}")
        a(f"s_movk_i32 s{S_XT}, {tau * 128}")
        a(f"s_movk_i32 s{S_WM0}, {k % 4}")
        a(f"s_movk_i32 s{S_DX}, {(k // 2) % 3}")
        for i in range(2):
            a(f"v_add_u32 v{VXR+i}, {((k // 2) % 3) * 16384}, v{VXR+i}")
            a(f"v_add_u32 v{VWR+i}, {((k + 1) % 4) * 16384}, v{VWR+i}")
    def dyn_exit(k):
        for i in range(2):
            a(f"v_subrev_u32 v{VXR+i}, {((k // 2) % 3) * 16384}, v{VXR+i}")
            a(f"v_subrev_u32 v{VWR+i}, {((k + 1) % 4) * 16384}, v{VWR+i}")
    def dyn_step(p):
        fill = []
        if p == 0:
            fill.append([f"s_add_u32 m0, s{S_XM}, 49152", f"s_or_b32 s{S_XO}, s{S_XT}, {128*2048}",
                         f"buffer_load_dwordx4 v{VXD}, s[{SX}:{SX+3}], s{S_XO} offen lds"])
            fill.append([f"buffer_load_dwordx4 v{VXD+1}, s[{SX}:{SX+3}], s{S_XO} offen offset:1024 lds",
                         f"s_add_u32 s{S_XT}, s{S_XT}, 128", f"s_cmp_eq_u32 s{S_DX}, 0", f"s_movk_i32 s{T0}, 16384",
                         f"s_cselect_b32 s{T0}, {-32768 & 0xffffffff}, s{T0}", f"s_add_u32 s{S_XM}, s{S_XM}, s{T0}"])
        else:
            fill.append([f"s_mov_b32 m0, s{S_XM}", "s_nop 0", f"buffer_load_dwordx4 v{VXD}, s[{SX}:{SX+3}], s{S_XT} offen lds"])
            fill.append([f"buffer_load_dwordx4 v{VXD+1}, s[{SX}:{SX+3}], s{S_XT} offen offset:1024 lds"])
        fill.append([f"s_lshl_b32 s{T1}, s{S_WM0}, 14", f"s_add_u32 m0, s{S_MW}, s{T1}", f"s_add_u32 s{S_WM0}, s{S_WM0}, 1",
                     f"global_load_lds_dwordx4 {v(VWA,2)}, off", "s_add_u32 m0, m0, 2048",
                     f"v_lshl_add_u64 {v(VWA,2)}, {v(VWS,2)}, 0, {v(VWA,2)}"])
        fill.append([f"global_load_lds_dwordx4 {v(VWB,2)}, off", f"s_and_b32 s{S_WM0}, s{S_WM0}, 3",
                     f"v_lshl_add_u64 {v(VWB,2)}, {v(VWS,2)}, 0, {v(VWB,2)}"])
        q = p ^ 1
        rd = [[f"ds_read_b64_tr_b16 {v(wf(q,st,t)+2*half,2)}, v{VWR+t} offset:{st*8192 + half*4096}"] for st in range(2) for t in range(2) for half in range(2)]
        rd[-1] += [f"s_cmp_eq_u32 s{S_WM0}, 3", f"s_movk_i32 s{T0}, 16384", f"s_cselect_b32 s{T0}, {-49152 & 0xffffffff}, s{T0}",
                   f"v_add_u32 v{VWR}, s{T0}, v{VWR}", f"v_add_u32 v{VWR+1}, s{T0}, v{VWR+1}"]
        rd += [[f"ds_read_b128 {v(xf(q,j),4)}, v{VXR+q} offset:{j*2048}"] for j in range(8)]
        if p == 0:
            rd[-1] += [f"s_cmp_eq_u32 s{S_DX}, 2", f"s_movk_i32 s{T0}, 16384", f"s_cselect_b32 s{T0}, {-32768 & 0xffffffff}, s{T0}",
                       f"s_cselect_b32 s{S_DX}, -1, s{S_DX}", f"v_add_u32 v{VXR}, s{T0}, v{VXR}", f"v_add_u32 v{VXR+1}, s{T0}, v{VXR+1}",
                       f"s_add_u32 s{S_DX}, s{S_DX}, 1"]
        fill += rd
        if grp: fill = [[] for _ in range(P1SHIFT)] + fill
        m, fill = add_cs(p1_mfma(p), fill, p, grp)
        weave(a, m, fill)
        a("s_waitcnt vmcnt(8) lgkmcnt(0)")
        if p == 1:
            a(f"s_sub_u32 s{S_DW}, s{S_DW}, 1")
            a(f"s_cmp_lg_u32 s{S_DW}, 0")
        a("s_barrier")
    for s_ in range(32):
        p = s_ & 1
        h = (s_ + 1) & 1; tau = (s_ - 1 - h) // 2 + 3
        if LO <= s_ < HI:
            vm.add(2 * tau - 1, 2); vm.add(s_ + 3, 2)
            assert vm.wait(s_ + 1) == 8
            if s_ == LO:
                dyn_entry(LO)
                a(f"s_movk_i32 s{S_DW}, {(HI - LO) // 2}")
                a.raw(".p2align 6")
                a.label("P1_L" + G)
                dyn_step(0); dyn_step(1)
                a("s_cbranch_scc1 P1_L" + G)
                dyn_exit(HI)
            continue
        nstamp(a, f"s{s_}")
        fill = []
        if s_ == NS - 6:
            mark = len(vm.q)
            if not grp:
                fill.append([f"s_cmp_gt_u32 s{S_WAVE}, 1", "s_cbranch_scc1 P1_NP0", f"global_load_dwordx4 v[16:19], v0, s[{SFLAG}:{SFLAG+1}] sc1", "P1_NP0:"])
        if s_ == 1:
            if not grp:
                fill.append([f"s_cmp_lg_u32 s{S_WAVE}, 0", "s_cbranch_scc1 P1_NF", f"v_mov_b32 v16, s{NONCE}", f"v_mov_b32 v17, s{NONCE+1}", f"v_mov_b32 v18, s{S_CNT}",
                             "s_mov_b64 exec, 1", f"global_store_dwordx2 v18, v[16:17], s[{SFLAG}:{SFLAG+1}] sc1", "s_mov_b64 exec, -1", "P1_NF:"])
        if s_ == 0:
            fill += p1_dma_x(1, 1); vm.add(1, 2)
            fill += p1_dma_w(2); vm.add(1, 2)
            fill += p1_dma_w(3); vm.add(2, 2)
        if s_ + 4 == NS:
            fill.append([f"s_mov_b64 exec, s[{QMASK}:{QMASK+1}]", f"v_mov_b32 v{VWA}, v{VWP}", f"v_mov_b32 v{VWA+1}, v{VWP+1}",
                         f"v_mov_b32 v{VWS}, 512", f"v_lshl_add_u64 {v(VWB,2)}, {v(VWS,2)}, 0, {v(VWA,2)}", f"v_mov_b32 v{VWS}, 2048", "s_mov_b64 exec, -1"])
        if tau < 16:
            fill += p1_dma_x(h, tau); vm.add(2 * tau - 1, 2)
        if s_ + 4 < 32:
            fill += p1_dma_w(s_ + 4); vm.add(s_ + 3, 2)
        if s_ == 27:
            fill.append([f"v_lshlrev_b32 v{VKVD}, 4, v{VL}", f"s_lshr_b32 s{T0}, s2, 3", f"s_lshl_b32 s{T0}, s{T0}, 13", f"s_lshr_b32 s{T1}, s{S_MX}, 1", f"s_add_u32 s{T0}, s{T0}, s{T1}",
                         f"s_add_u32 s{T0}, s{T0}, 8192", f"buffer_load_dword v16, v{VKVD}, s[{SKV}:{SKV+3}], s{T0} offen"])
            vm.add(30, 1)
        if s_ == 29:
            fill.append([f"s_lshr_b32 s{T0}, s{S_MX}, 1", f"s_add_u32 m0, s{T0}, {STL}", "s_nop 0",
                         f"buffer_load_dwordx4 v{VKVD}, s[{SPART}:{SPART+3}], s{S_AO} offen lds"])
            vm.add(31, 1)
        if s_ == 30:
            fill.append([f"s_xor_b32 m0, s{S_MKV}, 0x4000", f"s_add_u32 s{T0}, s{S_KVO}, 8192",
                         f"buffer_load_dwordx4 v{VKVD}, s[{SKV}:{SKV+3}], s{T0} offen lds"])
            fill.append([f"buffer_load_dwordx4 v{VKVD}, s[{SKV}:{SKV+3}], s{T0} offen offset:1024 lds"])
            vm.add(99, 2)
        m = p1_mfma(p, s_ == 0)
        if s_ == 30:
            fill.append([f"v_lshlrev_b32 v{VKVD}, 4, v{VL}", f"v_lshrrev_b32 v{VQQ}, 4, v{VL}", f"v_and_b32 v{VT}, 15, v{VL}",
                         f"v_add_u32 v{VKVR}, {KVL}, v{VKVD}"])
            fill.append([f"v_lshlrev_b32 v0, 3, v{VT}", f"s_lshr_b32 s{T0}, s{S_MX}, 1", f"v_add_u32 v0, s{T0}, v0", f"v_add_u32 v{VWP}, s{S_MX}, v{VKVD}",
                         f"s_lshl_b32 s{T0}, s{S_WN}, 11", f"v_add_u32 v{VWP+1}, s{T0}, v{VKVD}"])
            if CSV:
                fill.append([f"s_lshl_b32 s{T0}, s{S_WAVE}, 7", f"v_lshlrev_b32 v28, 2, v{VT}", f"v_add_u32 v28, s{T0}, v28",
                             f"s_lshl_b32 s{T0}, s{S_WN}, 7", f"v_lshlrev_b32 v{VWP+1}, 4, v{VQQ}", f"v_add_u32 v{VWP+1}, s{T0}, v{VWP+1}"])
        if s_ < 31:
            fill += [[x] for x in p1_reads(s_ + 1)]
            if grp: fill = [[] for _ in range(P1SHIFT if len(fill) <= 26 else 0)] + fill
            m, fill = add_cs(m, fill, p, grp)
        elif CSV:
            vv = cs_valu(p, grp)
            fill = [vv[2*i:2*i+2] for i in range(16)]
            fill += [[f"v_add_f32 v{CS}, v{CS}, v{CS+1}", f"v_add_f32 v{CS+2}, v{CS+2}, v{CS+3}"]]
            for sw in ("v_permlane16_swap_b32", "v_permlane32_swap_b32"):
                fill += [[f"v_mov_b32 v{CS+1}, v{CS}", f"v_mov_b32 v{CS+3}, v{CS+2}"], ["s_nop 0", f"{sw} v{CS}, v{CS+1}", f"{sw} v{CS+2}, v{CS+3}"],
                         [f"v_add_f32 v{CS}, v{CS}, v{CS+1}", f"v_add_f32 v{CS+2}, v{CS+2}, v{CS+3}"]]
            fill += [[f"ds_write_b32 v28, v{CS} offset:{CSL}", f"ds_write_b32 v28, v{CS+2} offset:{CSL+64}"]]
            ex = kv_dma() + kv_dma() + [[f"buffer_load_dwordx2 {v(XF+2*j,2)}, v0, s[{SPART}:{SPART+3}], s{S_AO} offen offset:{j*128}"] for j in range(8)]
            for i, e in enumerate(ex): fill[i] = fill[i] + list(e)
        else:
            m = [cs_mfma(p, 0, grp), cs_mfma(p, 1, grp)] + m
            fill = [[f"s_mov_b32 m0, s{S_MKV}", "s_nop 0", f"buffer_load_dwordx4 v{VKVD}, s[{SKV}:{SKV+3}], s{S_KVO} offen lds"],
                    [f"buffer_load_dwordx4 v{VKVD}, s[{SKV}:{SKV+3}], s{S_KVO} offen offset:1024 lds", f"s_add_u32 s{S_KVO}, s{S_KVO}, 16384"]]
            fill += [[f"ds_read_b64 {v(XF+2*j,2)}, v0 offset:{STL + j*128}"] for j in range(8)] + [[], []]
            fill += [[f"ds_write_b128 v{VWP}, {v(CS+4*st,4)} offset:{CSL + st*1024}"] for st in range(2)]
        weave(a, m, fill)
        if s_ < 31:
            a(f"s_waitcnt vmcnt({vm.wait(s_ + 1)}) lgkmcnt(0)")
        else:
            a("s_waitcnt lgkmcnt(0)")
        if s_ == NS - 5 and not grp:
            n = f"s[{NONCE}:{NONCE+1}]"
            a(f"s_cmp_gt_u32 s{S_WAVE}, 1")
            a("s_cbranch_scc1 P1_NP1")
            a(f"s_waitcnt vmcnt({len(vm.q) - mark})")
            spin(a, [f"v_cmp_eq_u64 vcc, {n}, v[16:17]", f"v_cmp_eq_u64 s[{T2}:{T3}], {n}, v[18:19]", f"s_and_b64 vcc, vcc, s[{T2}:{T3}]"],
                 [f"global_load_dwordx4 v[16:19], v0, s[{SFLAG}:{SFLAG+1}] sc1"], sleep=8)
            a.label("P1_NP1")
        a("s_barrier")
def kv_dma():
    return [[f"s_mov_b32 m0, s{S_MKV}", f"s_xor_b32 s{S_MKV}, s{S_MKV}, 0x4000",
             f"buffer_load_dwordx4 v{VKVD}, s[{SKV}:{SKV+3}], s{S_KVO} offen lds"],
            [f"buffer_load_dwordx4 v{VKVD}, s[{SKV}:{SKV+3}], s{S_KVO} offen offset:1024 lds",
             f"s_add_u32 s{S_KVO}, s{S_KVO}, 8192"]]

QF, KB, VB, PB, SEL, RS, SB, OA, NM = 32, 40, 56, 72, 88, 92, 96, 128, 144
def mf32(d, x, y, c): return f"v_mfma_f32_32x32x16_bf16 {v(d,16)}, {v(x,4)}, {v(y,4)}, {c}"
def mfrs(p): return f"v_mfma_f32_16x16x32_bf16 {v(RS,4)}, {v(SEL,4)}, {v(p,4)}, {v(RS,4)}"
def att_slot(a, n, qk=True, pv=True, rd=True, pre=()):
    b = n & 1
    S = SB + 16 * b; S1 = SB + 16 * (b ^ 1)
    P = PB + 8 * b; P1 = PB + 8 * (b ^ 1)
    K1 = KB + 8 * (b ^ 1); V1 = VB + 8 * (b ^ 1)
    m = []
    if qk:
        m.append(mf32(S1, K1, QF, v(NM, 16)))
        m.append(mf32(S1, K1 + 4, QF + 4, v(S1, 16)))
    if pv:
        m += [mf32(OA, V1, P1, v(OA, 16)), mfrs(P1), mf32(OA, V1 + 4, P1 + 4, v(OA, 16)), mfrs(P1 + 4)]
    val = []
    for i in range(16):
        val.append(f"v_exp_f32 v{S+i}, v{S+i}")
        if i >= 2 and i % 2 == 0:
            val.append(f"v_cvt_pk_bf16_f32 v{P+i//2-1}, v{S+i-2}, v{S+i-1}")
    val.append("s_nop 0")
    val.append(f"v_cvt_pk_bf16_f32 v{P+7}, v{S+14}, v{S+15}")
    rds = []
    if rd:
        pos = (n & 3) * 2048
        rds = [f"ds_read_b128 {v(KB+8*b,4)}, v{VKVR} offset:{pos}",
               f"ds_read_b128 {v(KB+8*b+4,4)}, v{VKVR} offset:{pos+1024}",
               f"ds_read_b128 {v(VB+8*b,4)}, v{VKVR} offset:{8192+pos}",
               f"ds_read_b128 {v(VB+8*b+4,4)}, v{VKVR} offset:{8192+pos+1024}"]
    other = [list(g) for g in pre] + [[x] for x in rds]
    cuts = [0, 4, 9, 13, 16, 21][:len(m)]
    k = 0; oi = 0
    for i, x in enumerate(val):
        if k < len(m) and i == cuts[k]:
            a(m[k]); k += 1
            if oi < len(other):
                emit(a, [other[oi]]); oi += 1
        a(x)
        if i in (2, 6, 11) and oi < len(other) and len(other) > len(m):
            emit(a, [other[oi]]); oi += 1
    emit(a, other[oi:])
def prefill_dma():
    return [[f"s_add_u32 m0, s{S_RING}, s{T3}", "s_nop 0",
             f"buffer_load_dwordx4 v{VPA}, s[{SACT}:{SACT+3}], s{S_AO} offen lds",
             f"s_add_u32 s{S_AO}, s{S_AO}, 8192"],
            [f"s_add_u32 m0, m0, 8192", f"s_add_u32 s{S_RING}, s{S_RING}, 16384",
             f"buffer_load_dwordx4 v{VPW}, s[{SWD}:{SWD+3}], s{S_WDO} offen lds",
             f"s_add_u32 s{S_WDO}, s{S_WDO}, 65536"]]
def touch_w(n0):
    return [[f"s_add_u32 s{T0}, s{S_WAVE}, {n0}", f"s_lshl_b32 s{T0}, s{T0}, 17", f"s_add_u32 s{T0}, s{T0}, s{S_TW}",
             f"buffer_load_dword v{VDUM}, v{VTCH}, s[{SWD}:{SWD+3}], s{T0} offen"]]
def touch_a(m0):
    return [[f"s_add_u32 s{T0}, s{S_WAVE}, {m0}", f"s_lshl_b32 s{T0}, s{T0}, 15", f"s_add_u32 s{T0}, s{T0}, s{S_TA}",
             f"buffer_load_dword v{VDUM}, v{VTCH}, s[{SACT}:{SACT+3}], s{T0} offen"]]
def touch_wo():
    return [[f"s_lshl_b32 s{T0}, s2, 13", f"s_add_u32 s{T0}, s{T0}, s{T3}",
             f"buffer_load_dword v{VDUM}, v{VKVD}, s[{SWO}:{SWO+3}], s{T0} offen"]]
def h_store(j):
    off = (j >> 1) * 2048 + (j & 1) * 256
    tail = f"v{VHO + (off>>12)}, s[{SACT}:{SACT+3}], s{S_HO} offen offset:{off & 4095} sc1"
    return [[f"s_cmp_eq_u32 s{S_WN}, 3", f"s_cbranch_scc1 HS{j}A", f"buffer_store_dwordx4 {v(HS+4*j,4)}, {tail}",
             f"s_branch HS{j}B", f"HS{j}A:", f"buffer_store_dwordx2 {v(HS+4*j,2)}, {tail}", f"HS{j}B:"]]
def att_epoch(a, E, first=False, last=False, prefill=0, wait=0, post=None, pre_bar=None, x1=(), x2=(), x3=()):
    nstamp(a, f"e{E}a")
    a(f"s_waitcnt vmcnt({wait}) lgkmcnt(0)")
    if pre_bar: pre_bar()
    a("s_barrier")
    nstamp(a, f"e{E}c")
    if not first: a(f"v_xor_b32 v{VKVR}, 0x4000, v{VKVR}")
    if post: post()
    for i in range(4):
        pre = []
        if i == 0 and not last: pre += kv_dma()
        if i in (1, 2)[:prefill]: pre += prefill_dma()
        if i == 1: pre += list(x1)
        if i == 2: pre += list(x2)
        if i == 3: pre += list(x3)
        if i: a("s_waitcnt lgkmcnt(0)")
        att_slot(a, 4 * E + i, qk=not (last and i == 3), pv=not (first and i == 0), pre=pre)

def wave_sum(a, r, t):
    for mod in ("quad_perm:[1,0,3,2]", "quad_perm:[2,3,0,1]", "row_half_mirror", "row_mirror"):
        a("s_nop 1")
        a(f"v_add_f32_dpp v{r}, v{r}, v{r} {mod} row_mask:0xf bank_mask:0xf")
    for sw in ("v_permlane16_swap_b32", "v_permlane32_swap_b32"):
        a(f"v_mov_b32 v{t}, v{r}")
        a("s_nop 1")
        a(f"{sw} v{r}, v{t}")
        a(f"v_add_f32 v{r}, v{r}, v{t}")

def p1_setup(a):
    a(f"v_lshrrev_b32 v23, 1, v{VT}")
    a(f"v_xor_b32 v23, v23, v{VQQ}")
    a("v_lshlrev_b32 v23, 4, v23")
    a(f"v_lshl_add_u32 v23, v{VT}, 7, v23")
    a(f"s_mul_i32 s{T0}, s{S_WM}, 49152")
    a(f"v_add_u32 v{VXR}, s{T0}, v23")
    a(f"v_xor_b32 v{VXR+1}, 64, v{VXR}")
    a(f"v_lshrrev_b32 v22, 2, v{VT}")
    a(f"v_lshl_add_u32 v22, v{VQQ}, 2, v22")
    a("v_and_b32 v23, 7, v22")
    a(f"s_lshl_b32 s{T0}, s{S_WN}, 1")
    a(f"v_xor_b32 v23, s{T0}, v23")
    a("v_lshlrev_b32 v23, 5, v23")
    a("v_lshl_add_u32 v23, v22, 8, v23")
    a(f"v_and_b32 v24, 3, v{VL}")
    a("v_lshl_add_u32 v23, v24, 3, v23")
    a(f"v_add_u32 v{VWR}, {WLDS}, v23")
    a(f"v_xor_b32 v{VWR+1}, 32, v{VWR}")
    if os.environ.get("X_ROT"): a(f"s_lshl_b32 s{S_ROT}, s{S_CT}, 8")
    a(f"s_lshl_b32 s{S_KVO}, s{S_WN}, 11")
    a(f"s_cmp_eq_u32 s{S_WM}, 0")
    a(f"s_movk_i32 s{T0}, 4096")
    a(f"s_cselect_b32 s{T0}, s{T0}, 0x20000")
    a(f"s_add_u32 s{S_KVO}, s{S_KVO}, s{T0}")
    a(f"s_add_u32 s{S_MKV}, s{S_MX}, {KVL + 0x4000}")

def gen_p0(a, vm):
    VTW, VFR, VTR, VQD, VEX, VKS = 20, 21, 0, 30, 28, 29
    TL = 16384
    a(f"s_load_dwordx2 s[{P_X}:{P_X+1}], s[0:1], {K_X}")
    a(f"s_load_dwordx8 s[92:99], s[0:1], {K_WQ}")
    a(f"s_load_dwordx2 s[{P_WS}:{P_WS+1}], s[0:1], {K_WS}")
    a(f"s_load_dwordx8 s[36:43], s[0:1], {K_WG}")
    a(f"v_and_b32 v{VL}, 63, v0")
    a("v_lshrrev_b32 v22, 6, v0")
    a(f"v_lshrrev_b32 v{VQQ}, 4, v{VL}")
    a(f"v_and_b32 v{VT}, 15, v{VL}")
    a(f"v_readfirstlane_b32 s{S_WAVE}, v22")
    a(f"v_lshlrev_b32 v{VKVD}, 4, v{VL}")
    a(f"v_bfe_u32 v23, v{VL}, 1, 2")
    a(f"v_and_b32 v24, 1, v{VL}")
    a("v_lshrrev_b32 v25, 3, v0")
    a("v_lshlrev_b32 v27, 11, v23")
    a("v_lshl_add_u32 v27, v25, 5, v27")
    a("v_lshl_add_u32 v27, v24, 4, v27")
    a(f"s_lshr_b32 s{S_PB}, s2, 4")
    a(f"s_lshl_b32 s{S_PB}, s{S_PB}, 3")
    a(f"s_and_b32 s{T0}, s2, 7")
    a(f"s_add_u32 s{S_PB}, s{S_PB}, s{T0}")
    a(f"s_bfe_u32 s{S_ISV}, s2, 0x10003")
    a(f"s_lshl_b32 s{T0}, s{S_PB}, 4")
    a(f"s_add_u32 s{S_AO}, s{T0}, s{S_WAVE}")
    a(f"s_lshl_b32 s{T0}, s{S_AO}, 11")
    a(f"s_add_u32 s{T1}, s{T0}, {8*2048}")
    a(f"s_lshl_b32 s{T2}, s2, 13")
    a(f"s_and_b32 s{S_KH}, s2, 1")
    a(f"s_lshl_b32 s{S_RING}, s{S_WAVE}, 13")
    a(f"s_cmp_lt_u32 s{S_WAVE}, 4")
    a(f"s_mov_b32 s{T3}, 0x18000")
    a(f"s_cselect_b32 s{T3}, 0x10000, s{T3}")
    a(f"s_add_u32 s{S_CNT}, s{S_RING}, s{T3}")
    a("s_waitcnt lgkmcnt(0)")
    if STOP == "p0": a("s_branch KM_FIN")
    srd(a, SX, P_X, P_X + 1, 4 << 20)
    a(f"buffer_load_dwordx4 v[32:35], v{VKVD}, s[{SX}:{SX+3}], s{T0} offen")
    a(f"buffer_load_dwordx4 v[36:39], v{VKVD}, s[{SX}:{SX+3}], s{T0} offen offset:1024")
    a(f"buffer_load_dwordx4 v[40:43], v{VKVD}, s[{SX}:{SX+3}], s{T1} offen")
    a(f"buffer_load_dwordx4 v[44:47], v{VKVD}, s[{SX}:{SX+3}], s{T1} offen offset:1024")
    srd(a, SWD, 92, 93, 2 << 20)
    a("s_barrier")
    a(f"buffer_load_dwordx4 v[48:51], v27, s[{SWD}:{SWD+3}], s{T2} offen")
    if CODEPF:
        a(f"s_getpc_b64 s[{T0}:{T1}]")
        a.label("PF_BASE")
        a(f"s_lshr_b32 s{T3}, s2, 3")
        a(f"s_lshl_b32 s{T3}, s{T3}, 12")
        a("v_lshrrev_b32 v26, 3, v0")
        a("v_lshlrev_b32 v26, 6, v26")
        a(f"v_add_u32 v26, s{T3}, v26")
        a("v_min_u32 v26, KM_END - PF_BASE, v26")
        a(f"global_load_dword v18, v26, s[{T0}:{T1}]")
    a(f"s_cmp_eq_u32 s{S_ISV}, 0")
    a(f"s_cselect_b32 s{SWD}, s94, s96")
    a(f"s_cselect_b32 s{SWD+1}, s95, s97")
    a(f"s_mov_b32 s{SWD+2}, 65536")
    for h in range(2):
        a(f"s_add_u32 m0, s{S_CNT}, {h*4096}")
        a(f"s_add_u32 s{T0}, s{S_RING}, {h*4096}")
        for i in range(4):
            a(f"buffer_load_dwordx4 v{VKVD}, s[{SWD}:{SWD+3}], s{T0} offen offset:{i*1024} lds")
    a(f"s_add_u32 s{SFLAG}, s{P_WS}, {WS_FLAG}")
    a(f"s_addc_u32 s{SFLAG+1}, s{P_WS+1}, 0")
    a(f"s_load_dwordx2 s[{NONCE}:{NONCE+1}], s[{SFLAG}:{SFLAG+1}], {F_NONCE}")
    a(f"s_mov_b32 s{P_OUT}, s42")
    a(f"s_mov_b32 s{P_OUT+1}, s43")
    a(f"s_mov_b32 s{P_WO}, s98")
    a(f"s_mov_b32 s{P_WO+1}, s99")
    srd(a, SWD, 40, 41, 3584 * 2048)
    a(f"s_cmp_lt_u32 s{S_WAVE}, 4")
    a(f"s_cselect_b32 s{S_TW}, s36, s38")
    a(f"s_cselect_b32 s{S_TA}, s37, s39")
    a("v_lshrrev_b32 v28, 1, v25")
    a(f"v_lshlrev_b32 v{VQD}, 16, v28")
    a("v_and_b32 v28, 1, v25")
    a(f"v_lshl_add_u32 v{VQD}, v28, 10, v{VQD}")
    a(f"v_lshl_add_u32 v{VQD}, v23, 5, v{VQD}")
    a(f"v_lshl_add_u32 v{VQD}, v24, 4, v{VQD}")
    a(f"s_lshr_b32 s{T0}, s2, 3")
    a(f"s_lshl_b32 s{S_RP}, s{S_KH}, 2")
    a(f"s_and_b32 s{T1}, s{T0}, 3")
    a(f"s_add_u32 s{S_RP}, s{S_RP}, s{T1}")
    a(f"s_bfe_u32 s{S_CT}, s2, 0x20001")
    a(f"s_lshl_b32 s{S_G}, s{S_CT}, 2")
    a(f"s_lshl_b32 s{S_CT}, s{S_CT}, 3")
    a(f"s_lshr_b32 s{S_C2}, s{T0}, 2")
    a(f"s_add_u32 s{S_CT}, s{S_CT}, s{S_C2}")
    a(f"s_add_u32 s{S_G}, s{S_G}, s{T1}")
    a(f"s_lshr_b32 s{S_WM}, s{S_WAVE}, 2")
    a(f"s_and_b32 s{S_P}, s{S_WAVE}, 1")
    a(f"s_bfe_u32 s{S_BB}, s{S_WAVE}, 0x10001")
    a(f"s_and_b32 s{S_WN}, s{S_WAVE}, 3")
    a(f"s_lshl_b32 s{S_MX}, s{S_WAVE}, 11")
    a(f"v_lshrrev_b32 v23, 3, v{VL}")
    a(f"s_lshl_b32 s{T0}, s{S_WAVE}, 4")
    a(f"v_add_u32 v23, s{T0}, v23")
    a("v_lshlrev_b32 v23, 11, v23")
    a(f"v_and_b32 v24, 7, v{VL}")
    a(f"v_xor_b32 v24, v24, v{VQQ}")
    a(f"v_lshl_add_u32 v{VXD}, v24, 4, v23")
    a(f"v_xor_b32 v{VXD+1}, 64, v{VXD}")
    a(f"v_add_u32 v{VXD+1}, {8*2048 - 1024}, v{VXD+1}")
    a(f"s_lshl_b32 s{T0}, s{S_RP}, 19")
    srd(a, SX, P_X, P_X + 1, 512 << 10, add_lo=f"s{T0}")
    if TE >= 1: emit(a, p1_dma_x(0, 0) + p1_dma_x(1, 0)); vm.add(-1, 4)
    a(f"s_lshl_b32 s{S_MW}, s{S_BB}, 2")
    a(f"s_add_u32 s{S_MW}, s{S_MW}, s{S_P}")
    a(f"s_lshl_b32 s{S_MW}, s{S_MW}, 10")
    a(f"s_lshl_b32 s{T0}, s{S_WM}, 13")
    a(f"s_add_u32 s{S_MW}, s{S_MW}, s{T0}")
    a(f"s_add_u32 s{S_MW}, s{S_MW}, {WLDS}")
    a(f"s_lshl_b32 s{T0}, s{S_P}, 3")
    a(f"s_lshl_b32 s{T1}, s{S_BB}, 2")
    a(f"s_add_u32 s{T0}, s{T0}, s{T1}")
    a(f"v_add_u32 v22, s{T0}, v{VQQ}")
    a(f"s_lshl_b32 s{T0}, s{S_P}, 2")
    a(f"v_add_u32 v23, s{T0}, v{VQQ}")
    a("v_lshlrev_b32 v23, 1, v23")
    a(f"v_xor_b32 v23, v23, v{VT}")
    a("v_lshlrev_b32 v24, 4, v23")
    a("v_subrev_u32 v25, 192, v24")
    a("v_add_u32 v26, 32, v24")
    a("v_cmp_le_u32 vcc, 12, v23")
    a(f"s_and_b32 s{T0}, s{S_CT}, 1")
    a("s_nop 0")
    a("v_cndmask_b32 v25, v26, v25, vcc")
    a(f"s_cmp_eq_u32 s{T0}, 1")
    a(f"s_cselect_b64 s[{T2}:{T3}], -1, 0")
    a(f"v_cndmask_b32 v25, v24, v25, s[{T2}:{T3}]")
    a(f"s_mul_i32 s{T0}, s{S_CT}, 224")
    a(f"v_add_u32 v25, s{T0}, v25")
    a("v_mov_b32 v27, 7168")
    a("v_mad_u32_u24 v25, v22, v27, v25")
    a(f"s_lshl_b32 s{T0}, s{S_CT}, 6")
    a(f"s_lshl_b32 s{T1}, s{S_WM}, 5")
    a(f"s_add_u32 s{T0}, s{T0}, s{T1}")
    a("v_and_b32 v31, 16, v24")
    a(f"v_add_u32 v26, s{T0}, v31")
    a("v_lshl_add_u32 v26, v22, 11, v26")
    a(f"v_cmp_le_u32 s[{QMASK}:{QMASK+1}], 14, v23")
    a("v_mov_b32 v28, 2048")
    a("v_mov_b32 v22, s92")
    a("v_mov_b32 v23, s93")
    a(f"v_cndmask_b32 v25, v25, v26, s[{QMASK}:{QMASK+1}]")
    a(f"v_cndmask_b32 v27, v27, v28, s[{QMASK}:{QMASK+1}]")
    a(f"v_lshlrev_b32 v{VWS}, 5, v27")
    a("v_lshlrev_b32 v24, 4, v27")
    a(f"v_mov_b32 v{VWS+1}, 0")
    a(f"v_mov_b32 v28, s{S_TW}")
    a(f"v_mov_b32 v29, s{S_TA}")
    a(f"v_cndmask_b32 v28, v28, v22, s[{QMASK}:{QMASK+1}]")
    a(f"v_cndmask_b32 v29, v29, v23, s[{QMASK}:{QMASK+1}]")
    a(f"v_add_co_u32 v{VWA}, vcc, v25, v28")
    a("v_mov_b32 v25, 0")
    a("s_nop 0")
    a(f"v_addc_co_u32 v{VWA+1}, vcc, 0, v29, vcc")
    a(f"v_lshl_add_u64 {v(VWB,2)}, v[24:25], 0, {v(VWA,2)}")
    if TE >= 2:
        emit(a, p1_dma_w(0)); vm.add(-1, 2)
        emit(a, p1_dma_w(1)); vm.add(0, 2)
    a(f"s_lshl_b32 s{T0}, s{S_CT}, 16")
    a(f"s_lshl_b32 s{T1}, s{S_WM}, 10")
    a(f"s_add_u32 s{T0}, s{T0}, s{T1}")
    a(f"s_lshl_b32 s{T1}, s{S_P}, 8")
    a(f"s_add_u32 s{T0}, s{T0}, s{T1}")
    a(f"s_lshl_b32 s{T1}, s{S_BB}, 7")
    a(f"s_add_u32 s{T0}, s{T0}, s{T1}")
    a(f"s_add_u32 s{T0}, s{T0}, {WS_WQP + NS*2048}")
    a(f"s_add_u32 s{T0}, s{T0}, s{P_WS}")
    a(f"s_addc_u32 s{T1}, s{P_WS+1}, 0")
    a(f"v_lshl_add_u32 v28, v{VQQ}, 5, v31")
    a("v_mov_b32 v29, 0")
    a(f"v_lshl_add_u64 {v(VWP,2)}, v[28:29], 0, s[{T0}:{T1}]")
    srd(a, SWO, P_WS, P_WS + 1, 8 << 20)
    a(f"v_lshlrev_b32 v{VTW}, 8, v{VL}")
    a(f"s_lshl_b32 s{T0}, s{S_WAVE}, 4")
    a(f"s_add_u32 s{T0}, s{T0}, {TL}")
    a(f"v_add_u32 v{VTW}, s{T0}, v{VTW}")
    a(f"s_lshl_b32 s{S_AO}, s{S_AO}, 3")
    a(f"s_lshr_b32 s{S_CNT}, s2, 3")
    a(f"s_lshl_b32 s{S_CNT}, s{S_CNT}, 11")
    a(f"s_and_b32 s{T0}, s2, 7")
    a(f"s_lshl_b32 s{T0}, s{T0}, 7")
    a(f"s_add_u32 s{S_CNT}, s{S_CNT}, s{T0}")
    a(f"s_add_u32 s{S_CNT}, s{S_CNT}, {WS_WQP}")
    a(f"s_mov_b32 s{T3}, 0xffff0000")
    a(f"s_waitcnt vmcnt({9+4*TE+CODEPF})")
    nstamp(a, "xl")
    def ln(r):
        o = []
        I = 32 + 8 * r; X = 64 + 32 * r; C = X + 16; A_ = 52 + 6 * r
        M = A_ + 4
        def wsum(x, t):
            for mod in ("quad_perm:[1,0,3,2]", "quad_perm:[2,3,0,1]", "row_half_mirror", "row_mirror"):
                o.append("NOP2"); o.append(f"v_add_f32_dpp v{x}, v{x}, v{x} {mod} row_mask:0xf bank_mask:0xf")
            for sw in ("v_permlane16_swap_b32", "v_permlane32_swap_b32"):
                o.append(f"v_mov_b32 v{t}, v{x}"); o.append("NOP2"); o.append(f"{sw} v{x}, v{t}"); o.append(f"v_add_f32 v{x}, v{x}, v{t}")
        def rbf(x):
            o.append(f"v_cvt_pk_bf16_f32 v{x}, v{x}, v{x}"); o.append(f"v_and_b32 v{x}, s{T3}, v{x}")
        for k in range(8):
            o.append(f"v_lshlrev_b32 v{X+2*k}, 16, v{I+k}"); o.append(f"v_and_b32 v{X+2*k+1}, s{T3}, v{I+k}")
        o.append(f"v_pk_add_f32 {v(A_,2)}, {v(X,2)}, {v(X+2,2)}"); o.append(f"v_pk_add_f32 {v(A_+2,2)}, {v(X+4,2)}, {v(X+6,2)}")
        for k in (4, 6):
            o.append(f"v_pk_add_f32 {v(A_,2)}, {v(A_,2)}, {v(X+2*k,2)}"); o.append(f"v_pk_add_f32 {v(A_+2,2)}, {v(A_+2,2)}, {v(X+2*k+2,2)}")
        o.append(f"v_pk_add_f32 {v(A_,2)}, {v(A_,2)}, {v(A_+2,2)}"); o.append(f"v_add_f32 v{A_}, v{A_}, v{A_+1}")
        wsum(A_, A_ + 1)
        o.append(f"v_mul_f32 v{M}, 0xba800000, v{A_}")
        for k in range(8): o.append(f"v_pk_add_f32 {v(C+2*k,2)}, {v(X+2*k,2)}, {v(M,2)} op_sel_hi:[1,0]")
        o.append(f"v_pk_mul_f32 {v(A_,2)}, {v(C,2)}, {v(C,2)}"); o.append(f"v_pk_mul_f32 {v(A_+2,2)}, {v(C+2,2)}, {v(C+2,2)}")
        for k in range(2, 8):
            q = A_ + 2 * (k % 2); o.append(f"v_pk_fma_f32 {v(q,2)}, {v(C+2*k,2)}, {v(C+2*k,2)}, {v(q,2)}")
        o.append(f"v_pk_add_f32 {v(A_,2)}, {v(A_,2)}, {v(A_+2,2)}"); o.append(f"v_add_f32 v{A_}, v{A_}, v{A_+1}")
        rbf(M)
        wsum(A_, A_ + 1)
        for k in range(8): o.append(f"v_pk_add_f32 {v(C+2*k,2)}, {v(X+2*k,2)}, {v(M,2)} op_sel_hi:[1,0]")
        o.append(f"v_mul_f32 v{A_}, 0x3a800000, v{A_}"); rbf(A_)
        o.append(f"v_add_f32 v{A_}, 0x3727c5ac, v{A_}"); rbf(A_)
        o.append(f"v_sqrt_f32 v{A_}, v{A_}"); o.append("NOP1"); rbf(A_)
        o.append(f"v_rcp_f32 v{M+1}, v{A_}"); o.append("NOP1")
        for k in range(8): o.append(f"v_pk_mul_f32 {v(C+2*k,2)}, {v(C+2*k,2)}, {v(M,2)} op_sel:[0,1] op_sel_hi:[1,1]")
        for k in range(8): o.append(f"v_cvt_pk_bf16_f32 v{I+k}, v{C+2*k}, v{C+2*k+1}")
        return o
    def touches():
        a(f"s_and_b32 s{T0}, s{S_RP}, 3")
        a(f"v_mul_lo_u32 v96, v{VWS}, s{T0}")
        a("v_mov_b32 v97, 0")
        a(f"v_lshl_add_u64 v[98:99], v[96:97], 0, {v(VWA,2)}")
        a(f"v_lshl_add_u64 v[100:101], v[96:97], 0, {v(VWB,2)}")
        a("global_load_dword v18, v[98:99], off")
        a("global_load_dword v18, v[100:101], off")
        a("v_lshrrev_b32 v96, 4, v102")
        a("v_lshlrev_b32 v96, 11, v96")
        a(f"v_lshl_add_u32 v96, v{VT}, 7, v96")
        a(f"s_lshl_b32 s{T0}, s{S_C2}, 16")
        mk_ = (((1 << XL) - 1) << 1) * 0x10001
        a(f"s_mov_b32 exec_lo, {mk_}")
        a(f"s_mov_b32 exec_hi, {mk_}")
        a(f"buffer_load_dword v18, v96, s[{SX}:{SX+3}], s{T0} offen")
        a("s_mov_b64 exec, -1")
        vm.add(99, 3)
        if TLBW:
            a(f"v_lshlrev_b32 v96, {TLBS}, v{VL}")
            a(f"v_cmp_gt_u32 vcc, {1024*7168}, v96")
            a("s_and_b64 exec, exec, vcc")
            a(f"global_load_dword v18, v96, s[{TLBP}:{TLBP+1}]")
            a("s_mov_b64 exec, -1")
            vm.add(99, 1)
            if TLBW > 1:
                for r in (SWD, SACT, SWO):
                    a(f"buffer_load_dword v18, v96, s[{r}:{r+3}], 0 offen")
                vm.add(99, 3)
    for x0, x1 in zip(ln(0), ln(1)):
        if x0 == "NOP2": a("s_nop 0")
        elif x0 == "NOP1": pass
        else:
            a(x0); a(x1)
    nstamp(a, "ln")
    a("v_mov_b32 v102, v0")
    for r in range(2):
        a(f"ds_write_b128 v{VTW}, {v(32+8*r,4)} offset:{r*128}")
        a(f"ds_write_b128 v{VTW}, {v(36+8*r,4)} offset:{16384 + r*128}")
    a(f"s_waitcnt vmcnt({8+4*TE+CODEPF})")
    a(f"buffer_store_dwordx4 v[48:51], v{VQD}, s[{SWO}:{SWO+3}], s{S_CNT} offen sc1")
    a("s_mov_b64 exec, 1")
    a(f"buffer_store_dwordx2 v[56:57], v{VKVD}, s[{SWO}:{SWO+3}], s{S_AO} offen sc1")
    a(f"buffer_store_dwordx2 v[62:63], v{VKVD}, s[{SWO}:{SWO+3}], s{S_AO} offen offset:64 sc1")
    a("s_mov_b64 exec, -1")
    vm.add(99, 3)
    if TE < 1: emit(a, p1_dma_x(0, 0) + p1_dma_x(1, 0)); vm.add(-1, 4)
    if TE < 2:
        emit(a, p1_dma_w(0)); vm.add(-1, 2)
        emit(a, p1_dma_w(1)); vm.add(0, 2)
    if not TLATE: touches()
    p1_setup(a)
    a(f"s_lshr_b32 s{T0}, s{S_WAVE}, 1")
    a(f"s_lshl_b32 s{T1}, s{T0}, 13")
    a(f"s_add_u32 s{T1}, s{T1}, {TL}")
    a(f"v_add_u32 v{VFR}, s{T1}, v{VKVD}")
    a(f"s_lshl_b32 s{T0}, s{T0}, 14")
    a(f"s_lshl_b32 s{T1}, s{S_WM}, 15")
    a(f"s_add_u32 s{T0}, s{T0}, s{T1}")
    a(f"s_lshl_b32 s{T1}, s{S_P}, 5")
    a(f"s_add_u32 s{T1}, s{T1}, 0x10000")
    a(f"s_add_u32 s{T0}, s{T0}, s{T1}")
    a(f"v_lshrrev_b32 v{VTR}, 2, v{VT}")
    a(f"v_lshl_add_u32 v{VTR}, v{VQQ}, 3, v{VTR}")
    a(f"v_lshlrev_b32 v{VTR}, 6, v{VTR}")
    a(f"v_and_b32 v22, 3, v{VL}")
    a(f"v_lshl_add_u32 v{VTR}, v22, 3, v{VTR}")
    a(f"v_add_u32 v{VTR}, s{T0}, v{VTR}")
    a(f"v_lshrrev_b32 v{VEX}, 1, v{VL}")
    a(f"v_lshlrev_b32 v{VEX}, 6, v{VEX}")
    a(f"v_and_b32 v22, 1, v{VL}")
    a(f"v_lshl_add_u32 v{VEX}, v22, 4, v{VEX}")
    a(f"v_add_u32 v{VEX}, s{T0}, v{VEX}")
    a(f"s_lshr_b32 s{S_WDO}, s{S_PB}, 1")
    a(f"s_lshl_b32 s{S_WDO}, s{S_WDO}, 11")
    a(f"s_and_b32 s{T0}, s{S_PB}, 1")
    a(f"s_lshl_b32 s{T1}, s{T0}, 8")
    a(f"s_lshl_b32 s{T2}, s{S_P}, 3")
    a(f"s_add_u32 s{T1}, s{T1}, s{T2}")
    a(f"s_lshl_b32 s{T0}, s{T0}, 10")
    a(f"s_lshl_b32 s{T2}, s{S_P}, 8")
    a(f"s_add_u32 s{T0}, s{T0}, s{T2}")
    a(f"s_add_u32 s{T0}, s{T0}, 0x20000")
    a(f"s_cmp_eq_u32 s{S_ISV}, 0")
    a(f"s_cselect_b32 s{T0}, s{T1}, s{T0}")
    a(f"s_cselect_b64 vcc, -1, 0")
    a(f"s_add_u32 s{S_WDO}, s{S_WDO}, s{T0}")
    a(f"s_add_u32 s{S_WDO}, s{S_WDO}, 8192")
    a(f"v_lshlrev_b32 v22, 9, v{VQQ}")
    a(f"v_and_b32 v23, 512, v22")
    a(f"v_lshrrev_b32 v24, 1, v{VQQ}")
    a("v_lshl_add_u32 v23, v24, 3, v23")
    a("v_cndmask_b32 v22, v23, v22, vcc")
    a(f"v_lshl_add_u32 v{VKS}, v{VT}, 4, v22")
    srd(a, SACT, P_WS, P_WS + 1, 16 * ACT_NU * 8192, add_lo=WS_ACT)
    srd(a, SKV, P_WS, P_WS + 1, (256 << 10) + 32768, add_lo=WS_KV - 8192)
    srd(a, SWO, P_WO, P_WO + 1, 1024 * 2048)
    srd(a, SPART, P_WS, P_WS + 1, 16384, add_lo=WS_ST)
    a(f"s_waitcnt vmcnt({len(vm.q)}) lgkmcnt(0)")
    a(f"s_add_u32 s{NONCE}, s{NONCE}, 0x9e3779b9")
    a(f"s_add_u32 s{NONCE+1}, s{NONCE+1}, 0x85ebca6b")
    a("s_barrier")
    nstamp(a, "b1")
    for u in range(8):
        a(f"ds_read_b128 {v(32+4*u,4)}, v{VFR} offset:{u*1024}")
        for h in range(2):
            a(f"ds_read_b64_tr_b16 {v(64+4*u+2*h,2)}, v{VTR} offset:{u*2048 + h*256}")
    if TLATE: touches()
    a(f"s_cmp_lg_u32 s{S_ISV}, 0")
    a("s_cbranch_scc1 P0_V")
    for isv in range(2):
        if isv: a.label("P0_V")
        for u in range(8):
            a(f"s_waitcnt lgkmcnt({min(15, 3*(7-u))})")
            x = 32 + 4 * u; w = 64 + 4 * u; d = (20, 24)[u & 1]
            c = "0" if u < 2 else v(d, 4)
            ab = (x, w) if isv else (w, x)
            a(f"v_mfma_f32_16x16x32_bf16 {v(d,4)}, {v(ab[0],4)}, {v(ab[1],4)}, {c}")
        if not isv: a("s_branch P0_MD")
    a.label("P0_MD")
    a("s_nop 7")
    a("v_pk_add_f32 v[20:21], v[20:21], v[24:25]")
    a("v_pk_add_f32 v[22:23], v[22:23], v[26:27]")
    a(f"ds_write_b128 v{VEX}, v[20:23]")
    a(f"s_waitcnt vmcnt({vm.wait(-1)}) lgkmcnt(0)")
    a("s_barrier")

def p0_finish(a):
    a(f"s_cmp_gt_u32 s{S_WAVE}, 1")
    a("s_cbranch_scc1 P0_KVD")
    a("v_add_u32 v30, 0x10000, v28")
    a("ds_read_b128 v[24:27], v28 offset:16384")
    a("ds_read_b128 v[48:51], v30")
    a("ds_read_b128 v[52:55], v30 offset:16384")
    a("s_waitcnt lgkmcnt(0)")
    for h in (0, 2):
        a(f"v_pk_add_f32 {v(20+h,2)}, {v(20+h,2)}, {v(24+h,2)}")
        a(f"v_pk_add_f32 {v(48+h,2)}, {v(48+h,2)}, {v(52+h,2)}")
        a(f"v_pk_add_f32 {v(20+h,2)}, {v(20+h,2)}, {v(48+h,2)}")
    a("v_cvt_pk_bf16_f32 v20, v20, v21")
    a("v_cvt_pk_bf16_f32 v21, v22, v23")
    a(f"buffer_store_dwordx2 v[20:21], v29, s[{SKV}:{SKV+3}], s{S_WDO} offen sc1")
    a.label("P0_KVD")

def gen(a):
    kernel_head(a, NAME)
    a("s_cmp_ge_u32 s2, 256")
    a("s_cbranch_scc1 KM_END")
    stamp(a, 0)
    vm = VM()
    gen_p0(a, vm)
    nstamp(a, "fl")
    stamp(a, 1)
    for x in p1_reads(0): a(x)
    emit(a, p1_dma_x(0, 1)); vm.add(1, 2)
    p0_finish(a)
    vm.add(1)
    emit(a, p1_dma_x(0, 2)); vm.add(3, 2)
    a(f"s_lshl_b32 s{S_CNT}, s2, 3")
    a(f"s_add_u32 s{S_CNT}, s{S_CNT}, {F_KV}")
    a(f"s_lshl_b32 s{T0}, s{S_P}, 10")
    a(f"s_add_u32 s{T0}, s{T0}, {F_KV}")
    a(f"v_add_u32 v0, s{T0}, v{VKVD}")
    a(f"s_lshl_b32 s{S_AO}, s{S_RP}, 1")
    a(f"s_add_u32 s{S_AO}, s{S_AO}, s{S_WM}")
    a(f"s_lshl_b32 s{S_AO}, s{S_AO}, 10")
    for i in range(4): a(f"v_mov_b32 v{ONES+i}, 0x3f803f80")
    for i in range(8): a(f"v_mov_b32 v{CS+i}, 0")
    a(f"s_waitcnt vmcnt({vm.wait(0) - 1}) lgkmcnt(0)")
    a("s_barrier")
    nstamp(a, "p1s")
    a(f"s_cmp_lg_u32 s{S_WM}, 0")
    a("s_cbranch_scc1 P1_B")
    gen_p1(a, 0, vm)
    a("s_branch P1_END")
    a.label("P1_B")
    gen_p1(a, 1, vm)
    a.label("P1_END")
    stamp(a, 2)
    nstamp(a, "p1e")
    if STOP == "p1": a("s_branch KM_FIN")
    CSR = XF + 16
    for t in range(2):
        for st in range(2):
            a(f"ds_read_b128 {v(CSR+(st*2+t)*4,4)}, v{VWP+1} offset:{CSL + (t*512 + st*64 if CSV else t*8192 + st*1024)}")
    a(f"v_lshlrev_b32 v{VHO}, 9, v{VQQ}")
    a(f"v_lshl_add_u32 v{VHO}, v{VT}, 4, v{VHO}")
    a(f"v_add_u32 v{VHO+1}, 0x1000, v{VHO}")
    a(f"s_lshr_b32 s{T0}, s{S_CT}, 1")
    a(f"s_mul_i32 s{T0}, s{T0}, 7")
    a(f"s_and_b32 s{T1}, s{S_CT}, 1")
    a(f"s_lshl_b32 s{T2}, s{T1}, 2")
    a(f"s_add_u32 s{T2}, s{T2}, s{S_WN}")
    a(f"s_cmp_eq_u32 s{S_WN}, 3")
    a(f"s_cselect_b32 s{T2}, 3, s{T2}")
    a(f"s_add_u32 s{T0}, s{T0}, s{T2}")
    a(f"s_lshl_b32 s{T2}, s{S_RP}, 1")
    a(f"s_add_u32 s{T2}, s{T2}, s{S_WM}")
    a(f"s_mul_i32 s{T3}, s{T2}, {ACT_NU}")
    a(f"s_add_u32 s{T0}, s{T0}, s{T3}")
    a(f"s_lshl_b32 s{S_HO}, s{T0}, 13")
    a(f"s_lshl_b32 s{S_XO}, s{S_RP}, 8")
    a(f"s_lshl_b32 s{T3}, s{S_CT}, 3")
    a(f"s_add_u32 s{S_XO}, s{S_XO}, s{T3}")
    a(f"s_add_u32 s{S_XO}, s{S_XO}, {F_H}")
    a("s_waitcnt lgkmcnt(0)")
    for j in range(8): a(f"v_mul_f32 v{XF+32+j}, v{XF+2*j+1}, v{XF+2*j+1}")
    a(f"s_cmp_eq_u32 s{S_WN}, 3")
    a("s_cbranch_scc1 P1_EP3")
    def center(st, t, j):
        g = acc(st, t, j); c = CSR + (st * 2 + t) * 4
        for i in (0, 2): a(f"v_pk_fma_f32 {v(g+i,2)}, {v(c+i,2)}, {v(XF+2*j,2)}, {v(g+i,2)} op_sel_hi:[1,0,1]")
    def hpair(t, j):
        g = acc(0, t, j); u = acc(1, t, j); dst = HS + 4 * j + 2 * t
        r2 = XF + 32 + (j & ~1); sel = "op_sel:[0,1] op_sel_hi:[1,1]" if j & 1 else "op_sel_hi:[1,0]"
        center(0, t, j); center(1, t, j)
        for i in range(4): a(f"v_max_f32 v{g+i}, 0, v{g+i}")
        for i in (0, 2): a(f"v_pk_mul_f32 {v(u+i,2)}, {v(u+i,2)}, {v(r2,2)} {sel}")
        for i in (0, 2): a(f"v_pk_mul_f32 {v(g+i,2)}, {v(g+i,2)}, {v(u+i,2)}")
        for i in (2, 0): a(f"v_cvt_pk_bf16_f32 v{dst+i//2}, v{g+i}, v{g+i+1}")
    for j in range(8):
        hpair(1, j); hpair(0, j)
    a("s_branch P1_EPD")
    a.label("P1_EP3")
    a(f"s_lshl_b32 s{S_CNT}, s{S_WM}, 13")
    a(f"v_add_u32 v24, s{S_CNT}, v{VHO}")
    for j in range(8): a(f"v_mul_f32 v{XF+2*j+1}, {QSCALE}, v{XF+2*j+1}")
    for j in range(8):
        tmp = XF + 40 + 4 * (j & 3)
        for st in range(2):
            g = acc(st, 1, j)
            center(st, 1, j)
            for i in (0, 2): a(f"v_pk_mul_f32 {v(g+i,2)}, {v(g+i,2)}, {v(XF+2*j,2)} op_sel:[0,1] op_sel_hi:[1,1]")
            for i in (0, 2): a(f"v_cvt_pk_bf16_f32 v{tmp+2*st+i//2}, v{g+i}, v{g+i+1}")
        a(f"ds_write_b128 v24, {v(tmp,4)} offset:{QLDS + (j>>1)*2048 + (j&1)*256}")
    a(f"s_lshl_b32 s{T1}, s{T1}, 3")
    a(f"s_add_u32 s{S_HO}, s{S_HO}, s{T1}")
    for j in range(8): hpair(0, j)
    a.label("P1_EPD")
    srd(a, SPART, P_WS, P_WS + 1, 8 << 20, add_lo=WS_PART)
    a(f"s_lshl_b32 s{T3}, s{S_WAVE}, 10")
    a(f"v_add_u32 v{VPA}, s{T3}, v{VKVD}")
    a(f"v_lshlrev_b32 v3, 1, v{VQQ}")
    a(f"v_xor_b32 v3, v3, v{VT}")
    a("v_lshlrev_b32 v3, 4, v3")
    a(f"v_lshl_add_u32 v3, v{VQQ}, 11, v3")
    a(f"s_lshl_b32 s{T0}, s{S_WAVE}, 13")
    a(f"s_lshl_b32 s{T1}, s{S_C2}, 8")
    a(f"s_add_u32 s{T0}, s{T0}, s{T1}")
    a(f"s_lshl_b32 s{T1}, s{S_P}, 7")
    a(f"v_xor_b32 v{VPW}, s{T1}, v3")
    a(f"v_add_u32 v{VPW}, s{T0}, v{VPW}")
    a(f"s_mul_i32 s{T0}, s{S_G}, {ACT_NU}")
    a(f"s_mul_i32 s{T1}, s{S_KH}, 56")
    a(f"s_add_u32 s{T0}, s{T0}, s{T1}")
    a(f"s_lshl_b32 s{S_AO}, s{T0}, 13")
    a(f"s_lshl_b32 s{S_WDO}, s{T1}, 16")
    a(f"s_mov_b32 s{S_RING}, 0")
    a(f"v_lshlrev_b32 v{VTCH}, 6, v{VL}")
    a(f"s_lshr_b32 s{T0}, s2, 3")
    a(f"s_lshl_b32 s{T0}, s{T0}, 12")
    a(f"s_add_u32 s{S_TW}, s{S_WDO}, s{T0}")
    a(f"s_lshl_b32 s{T0}, s{S_C2}, 12")
    a(f"s_add_u32 s{S_TA}, s{S_AO}, s{T0}")
    a(f"v_lshrrev_b32 v25, 2, v{VL}")
    a(f"v_xor_b32 v25, v25, v{VQQ}")
    a("v_and_b32 v25, 1, v25")
    a(f"v_and_b32 v26, 3, v{VL}")
    a("v_or_b32 v25, v25, v26")
    a("v_cmp_eq_u32 vcc, 0, v25")
    a("v_mov_b32 v26, 0x3f803f80")
    a("v_mov_b32 v27, 0")
    a("s_waitcnt vmcnt(0) lgkmcnt(0)")
    a("s_barrier")
    a(f"ds_read_b128 {v(QF,4)}, v{VWP} offset:{QLDS}")
    a(f"ds_read_b128 {v(QF+4,4)}, v{VWP} offset:{QLDS+1024}")
    for b in range(2):
        for s_ in range(2):
            a(f"ds_read_b128 {v(KB+8*b+4*s_,4)}, v{VKVR} offset:{0x4000 + (2+b)*2048 + s_*1024}")
    for i in range(4): a(f"v_cndmask_b32 v{SEL+i}, v27, v26, vcc")
    for i in range(4): a(f"v_mov_b32 v{RS+i}, 0")
    for i in range(16): a(f"v_mov_b32 v{OA+i}, 0")
    a("s_waitcnt lgkmcnt(0)")
    a(mf32(SB, KB, QF, "0"))
    a(mf32(SB, KB + 4, QF + 4, v(SB, 16)))
    a("s_nop 11")
    a(f"v_max3_f32 v26, v{SB}, v{SB+1}, v{SB+2}")
    for i in range(3, 15, 2): a(f"v_max3_f32 v26, v26, v{SB+i}, v{SB+i+1}")
    a(f"v_max_f32 v26, v26, v{SB+15}")
    a("v_mov_b32 v27, v26")
    a("s_nop 1")
    a("v_permlane32_swap_b32 v26, v27")
    a("s_nop 0")
    a("v_max_f32 v26, v26, v27")
    for i in range(16): a(f"v_sub_f32 v{NM+i}, 0, v26")
    for i in range(16): a(f"v_sub_f32 v{SB+i}, v{SB+i}, v26")
    stamp(a, 3)
    def pollH():
        a(f"s_lshr_b32 s{T0}, s{S_G}, 1")
        a(f"s_lshl_b32 s{T0}, s{T0}, 8")
        a(f"s_lshl_b32 s{T1}, s{S_KH}, 7")
        a(f"s_add_u32 s{T0}, s{T0}, s{T1}")
        a(f"s_add_u32 s{T0}, s{T0}, {F_H}")
        poll_issue(a, T0, 16)
    att_epoch(a, 0, first=True, x2=h_store(0), x3=h_store(1))
    att_epoch(a, 1, wait=2, x2=h_store(2), x3=h_store(3))
    att_epoch(a, 2, wait=2, x2=h_store(4), x3=h_store(5))
    att_epoch(a, 3, wait=2, x2=h_store(6), x3=h_store(7))
    att_epoch(a, 4, wait=2)
    att_epoch(a, 5, post=lambda: wave0(a, lambda: flag_set(a, S_XO)), x1=touch_wo())
    att_epoch(a, 6, wait=1, x1=touch_w(20))
    att_epoch(a, 7, wait=1, post=lambda: wave0(a, pollH), x1=touch_w(12))
    att_epoch(a, 8, wait=1, post=lambda: wave0(a, lambda: poll_check(a)), x1=touch_w(4))
    att_epoch(a, 9, prefill=2, wait=1, x3=touch_a(6))
    att_epoch(a, 10, prefill=2, wait=5)
    att_epoch(a, 11, prefill=2, wait=4)
    att_epoch(a, 12, prefill=2, wait=4, x3=touch_a(0))
    att_epoch(a, 13, wait=5)
    att_epoch(a, 14)
    att_epoch(a, 15, last=True)
    a("s_waitcnt lgkmcnt(0)")
    a(mf32(OA, VB + 8, PB + 8, v(OA, 16)))
    a(mfrs(PB + 8))
    a(mf32(OA, VB + 12, PB + 12, v(OA, 16)))
    a(mfrs(PB + 12))
    a(f"s_add_u32 s{S_XO}, s{S_XO}, {F_O - F_H}")
    a(f"s_lshl_b32 s{T0}, s{S_RP}, 1")
    a(f"s_add_u32 s{T0}, s{T0}, s{S_WM}")
    a(f"s_mul_i32 s{T0}, s{T0}, {ACT_NU}")
    a(f"s_add_u32 s{T0}, s{T0}, s{S_CT}")
    a(f"s_add_u32 s{T0}, s{T0}, 112")
    a(f"s_lshl_b32 s{T0}, s{T0}, 13")
    a(f"s_lshl_b32 s{T1}, s{S_WN}, 11")
    a(f"s_add_u32 s{S_CNT}, s{T0}, s{T1}")
    a("s_nop 4")
    a(f"v_mul_f32 v26, 0, v{RS}")
    for i in range(16): a(f"v_fma_f32 v26, v{OA+i}, 0, v26")
    a("v_cmp_u_f32 vcc, v26, v26")
    a("s_cmp_lg_u64 vcc, 0")
    a("s_cbranch_scc1 P2_SLOW")
    a.label("P2_FIN")
    a(f"v_rcp_f32 v26, v{RS}")
    a("s_nop 0")
    for i in range(16): a(f"v_mul_f32 v{OA+i}, v{OA+i}, v26")
    for k, base in enumerate((0, 8, 4, 12)):
        a(f"v_cvt_pk_bf16_f32 v{PB+2*k}, v{OA+base}, v{OA+base+1}")
        a(f"v_cvt_pk_bf16_f32 v{PB+2*k+1}, v{OA+base+2}, v{OA+base+3}")
    a(f"buffer_store_dwordx4 {v(PB,4)}, v{VKVD}, s[{SACT}:{SACT+3}], s{S_CNT} offen sc1")
    a(f"buffer_store_dwordx4 {v(PB+4,4)}, v{VKVD}, s[{SACT}:{SACT+3}], s{S_CNT} offen offset:1024 sc1")
    stamp(a, 4)
    import mk3
    mk3.gen_p3(a)
    a.label("P2_SLOW")
    a(f"s_mov_b32 s{T0}, 8192")
    a(f"v_mov_b32 v27, 0xff800000")
    a(f"v_mov_b32 v{RS}, 0")
    for i in range(16): a(f"v_mov_b32 v{OA+i}, 0")
    a.label("P2_SL")
    a(f"s_add_u32 s{T1}, s{T0}, 0x20000")
    a(f"buffer_load_dwordx4 {v(KB,4)}, v{VKVD}, s[{SKV}:{SKV+3}], s{T0} offen")
    a(f"buffer_load_dwordx4 {v(KB+4,4)}, v{VKVD}, s[{SKV}:{SKV+3}], s{T0} offen offset:1024")
    a(f"buffer_load_dwordx4 {v(VB,4)}, v{VKVD}, s[{SKV}:{SKV+3}], s{T1} offen")
    a(f"buffer_load_dwordx4 {v(VB+4,4)}, v{VKVD}, s[{SKV}:{SKV+3}], s{T1} offen offset:1024")
    a("s_waitcnt vmcnt(0)")
    a(mf32(SB, KB, QF, "0"))
    a(mf32(SB, KB + 4, QF + 4, v(SB, 16)))
    a("s_nop 15")
    a(f"v_max3_f32 v26, v27, v{SB}, v{SB+1}")
    for i in range(2, 16, 2): a(f"v_max3_f32 v26, v26, v{SB+i}, v{SB+i+1}")
    a("v_mov_b32 v28, v26")
    a("s_nop 1")
    a("v_permlane32_swap_b32 v26, v28")
    a("s_nop 0")
    a("v_max_f32 v26, v26, v28")
    a("v_sub_f32 v28, v27, v26")
    a("v_exp_f32 v28, v28")
    a("v_mov_b32 v27, v26")
    for i in range(16): a(f"v_sub_f32 v{SB+i}, v{SB+i}, v26")
    for i in range(16): a(f"v_exp_f32 v{SB+i}, v{SB+i}")
    for i in range(16): a(f"v_mul_f32 v{OA+i}, v{OA+i}, v28")
    a(f"v_mul_f32 v{RS}, v{RS}, v28")
    for i in range(8): a(f"v_cvt_pk_bf16_f32 v{PB+i}, v{SB+2*i}, v{SB+2*i+1}")
    a("s_nop 1")
    a(mf32(OA, VB, PB, v(OA, 16)))
    a(mfrs(PB))
    a(mf32(OA, VB + 4, PB + 4, v(OA, 16)))
    a(mfrs(PB + 4))
    a("s_nop 15")
    a(f"s_add_u32 s{T0}, s{T0}, 2048")
    a(f"s_cmp_lt_u32 s{T0}, {8192 + 64*2048}")
    a("s_cbranch_scc1 P2_SL")
    a("s_branch P2_FIN")
    a.label("KM_FIN")
    if STAMPS: a("s_waitcnt vmcnt(0)")
    stamp(a, 7)
    stamp_flush(a, 0, 8, P_WS, S_WAVE)
    a.label("KM_END")
    a("s_endpgm")
    return dict(name=NAME, grid=256, block=512, lds=int(os.environ.get('X_LDS', 163840)), vgpr=256, sgpr=102)
```

```python
from asmlib import *
from mk import *
GA = 128
def ga(c, j): return GA + (c * 4 + j) * 4
def gb(p, j): return 32 + p * 32 + j * 4
def gw(p, c): return 48 + p * 32 + c * 4
BA, BW, BWO = 96, 99, 111
NSLOT = 10
VPO, VXA = 118, 120
PART, XR = 192, 224
NDOWN, NOUT = 56, 32
NT = NDOWN + NOUT

def g_reads(t):
    p = t & 1; slot = t % NSLOT; h = slot >> 2; o = (slot & 3) * 16384
    r = []
    if t >= NT: return r
    for c in range(4 if t < NDOWN else 2):
        for half in range(2):
            if t < NDOWN: r.append(f"ds_read_b64_tr_b16 {v(gw(p,c)+2*half,2)}, v{BW+3*c+h} offset:{o + 8192 + half*4096}")
            else: r.append(f"ds_read_b64_tr_b16 {v(gw(p,c)+2*half,2)}, v{BWO+3*c+h} offset:{o + 8192 + half*2048}")
    for j in range(4):
        r.append(f"ds_read_b128 {v(gb(p,j),4)}, v{BA+h} offset:{o + (j>>1)*2048 + (j&1)*256}")
    return r

def g_ustep(a, t, extra=()):
    p = t & 1
    nc = 4 if t < NDOWN else 2
    m = []
    for j in range(4):
        for c in (range(nc) if j % 2 == 0 else range(nc - 1, -1, -1)):
            m.append(f"v_mfma_f32_16x16x32_bf16 {v(ga(c,j),4)}, {v(gw(p,c),4)}, {v(gb(p,j),4)}, {v(ga(c,j),4) if t else 0}")
    rd = g_reads(t + 1)
    fill = [[] for _ in m]
    for i, x in enumerate(rd): fill[min(i, len(m) - 1)].append(x)
    for i, e in enumerate(extra): fill[len(m) - 1 - (i % len(m))] += list(e)
    hlf = len(m) // 2
    a("s_waitcnt lgkmcnt(2)")
    weave(a, m[:hlf], fill[:hlf])
    a(f"s_waitcnt lgkmcnt({sum(x.startswith('ds_read') for f in fill[:hlf] for x in f)})")
    weave(a, m[hlf:], fill[hlf:])

def l_ustep(a, kind):
    a(f"s_add_u32 m0, s{S_RING}, s{T3}")
    a(f"s_add_u32 s{S_RING}, s{S_RING}, 16384")
    a(f"buffer_load_dwordx4 v4, s[{SACT}:{SACT+3}], s{S_AO} offen lds")
    a(f"buffer_load_dwordx4 v4, s[{SACT}:{SACT+3}], s{S_AO} offen offset:1024 lds")
    if kind == "d":
        a("s_add_u32 m0, m0, 8192")
        a(f"s_cmp_lt_u32 s{S_RING}, {NSLOT*16384}")
        a(f"buffer_load_dwordx4 v5, s[{SWD}:{SWD+3}], s{S_WDO} offen lds")
        a(f"buffer_load_dwordx4 v6, s[{SWD}:{SWD+3}], s{S_WDO} offen offset:1024 lds")
    else:
        a(f"s_add_u32 m0, m0, s{T2}")
        a(f"s_cmp_lt_u32 s{S_RING}, {NSLOT*16384}")
        a(f"buffer_load_dwordx4 v7, s[{SWO}:{SWO+3}], s{S_WDO} offen lds")
    a(f"s_cselect_b32 s{S_RING}, s{S_RING}, 0")
    a(f"s_add_u32 s{S_AO}, s{S_AO}, 8192")
    a(f"s_add_u32 s{S_WDO}, s{S_WDO}, 65536")

def gen_p3(a):
    a(f"s_cmp_lg_u32 s{S_WM}, 0")
    a("s_cbranch_scc1 P3_L")
    a(f"s_lshr_b32 s{T0}, s{S_WN}, 1")
    a(f"s_lshl_b32 s{T0}, s{T0}, 12")
    a(f"v_lshlrev_b32 v22, 9, v{VQQ}")
    a(f"v_lshl_add_u32 v22, v{VT}, 4, v22")
    a(f"v_add_u32 v{BA}, s{T0}, v22")
    a(f"v_lshrrev_b32 v22, 2, v{VT}")
    a(f"v_lshl_add_u32 v22, v{VQQ}, 2, v22")
    a(f"s_lshl_b32 s{T0}, s{S_KH}, 2")
    a(f"s_lshl_b32 s{T1}, s{S_P}, 1")
    a(f"s_add_u32 s{T0}, s{T0}, s{T1}")
    a("v_and_b32 v23, 7, v22")
    a(f"v_xor_b32 v23, s{T0}, v23")
    a("v_lshlrev_b32 v23, 5, v23")
    a("v_lshl_add_u32 v23, v22, 8, v23")
    a(f"v_and_b32 v27, 3, v{VL}")
    a(f"v_lshl_add_u32 v{BW}, v27, 3, v23")
    for c in range(1, 4): a(f"v_xor_b32 v{BW+3*c}, {(c & 1) * 32 + (c >> 1) * 128}, v{BW}")
    for x in g_reads(0): a(x)
    for b in [BA] + [BW + 3 * c for c in range(4)]:
        a(f"v_add_u32 v{b+1}, 0x10000, v{b}")
        a(f"v_add_u32 v{b+2}, 0x20000, v{b}")
    a("v_bfe_u32 v23, v22, 1, 2")
    a(f"v_xor_b32 v23, s{T1}, v23")
    a("v_lshlrev_b32 v23, 5, v23")
    a("v_lshl_add_u32 v23, v22, 7, v23")
    a(f"v_lshl_add_u32 v{BWO}, v27, 3, v23")
    a(f"v_xor_b32 v{BWO+3}, 32, v{BWO}")
    for b in (BWO, BWO + 3):
        a(f"v_add_u32 v{b+1}, 0x10000, v{b}")
        a(f"v_add_u32 v{b+2}, 0x20000, v{b}")
    a(f"v_mov_b32 v{VPO}, v{VKVD}")
    a(f"v_add_u32 v{VPO+1}, 0x1000, v{VKVD}")
    a(f"v_lshlrev_b32 v26, 11, v{VT}")
    a(f"v_and_b32 v27, 1, v{VQQ}")
    a("v_lshl_add_u32 v26, v27, 5, v26")
    a(f"v_lshrrev_b32 v27, 1, v{VQQ}")
    a(f"v_lshl_add_u32 v{VXA}, v27, 4, v26")
    for j in range(1, 4): a(f"v_add_u32 v{VXA+j}, {j*32768}, v{VXA}")
    a(f"s_lshl_b32 s{S_AO}, s{S_G}, 18")
    a(f"s_lshr_b32 s{T0}, s{S_WN}, 1")
    a(f"s_lshl_b32 s{T0}, s{T0}, 17")
    a(f"s_add_u32 s{S_AO}, s{S_AO}, s{T0}")
    a(f"s_lshl_b32 s{T0}, s{S_C2}, 8")
    a(f"s_add_u32 s{S_AO}, s{S_AO}, s{T0}")
    a(f"s_lshl_b32 s{T0}, s{S_KH}, 7")
    a(f"s_add_u32 s{S_AO}, s{S_AO}, s{T0}")
    a(f"s_lshl_b32 s{T0}, s{S_P}, 6")
    a(f"s_add_u32 s{S_AO}, s{S_AO}, s{T0}")
    srd(a, SX, P_X, P_X + 1, 4 << 20)
    srd(a, SKV, P_OUT, P_OUT + 1, 4 << 20)
    a(f"s_lshl_b32 s{T0}, s{S_WN}, 13")
    a(f"s_lshl_b32 s{S_RING}, s2, 15")
    a(f"s_add_u32 s{S_RING}, s{S_RING}, s{T0}")
    a(f"s_xor_b32 s{S_WDO}, s{S_RING}, {1 << 15}")
    a(f"s_lshl_b32 s{S_KVO}, s2, 7")
    a(f"s_add_u32 s{S_KVO}, s{S_KVO}, {F_P}")
    a(f"s_xor_b32 s{S_MKV}, s{S_KVO}, {1 << 7}")
    for j in range(4):
        a(f"buffer_load_dwordx4 {v(XR+4*j,4)}, v{VXA+j}, s[{SX}:{SX+3}], s{S_AO} offen")
    def epoch(e, pre=None, x0=(), x1=()):
        a("s_barrier")
        nstamp(a, f"g{e}")
        if pre: pre()
        g_ustep(a, 2 * e, x0)
        g_ustep(a, 2 * e + 1, x1)
    def pollO():
        a(f"s_lshr_b32 s{T0}, s{S_G}, 1")
        a(f"s_lshl_b32 s{T0}, s{T0}, 8")
        a(f"s_add_u32 s{T0}, s{T0}, {F_O}")
        poll_issue(a, T0, 32)
    def chkO():
        a("s_waitcnt vmcnt(0)")
        poll_check(a)
    for e in range(28):
        epoch(e, pre={3: lambda: wave0(a, lambda: flag_set(a, S_XO)), 18: lambda: wave0(a, pollO), 20: lambda: wave0(a, chkO)}.get(e))
        if e == 2: a("s_waitcnt vmcnt(0)")
    stamp(a, 5)
    st = [[f"buffer_store_dwordx4 {v(ga(2,0)+4*q,4)}, v{VPO + q//4}, s[{SPART}:{SPART+3}], s{S_WDO} offen offset:{(q%4)*1024} sc1"] for q in range(8)]
    pl = [[f"buffer_load_dwordx4 {v(PART+4*q,4)}, v{VPO + q//4}, s[{SPART}:{SPART+3}], s{S_RING} offen offset:{(q%4)*1024} sc1"] for q in range(8)]
    def nonce_out():
        a(f"s_cmp_lg_u32 s2, 0")
        a("s_cbranch_scc1 P3_NN")
        a(f"s_movk_i32 s{T0}, {F_NONCE}")
        flag_set(a, T0)
        a.label("P3_NN")
    epoch(28, x1=st[:2]); epoch(29, x0=st[2:4], x1=st[4:6]); epoch(30, x0=st[6:])
    epoch(31); epoch(32)
    a("s_waitcnt vmcnt(0)")
    epoch(33, pre=lambda: wave0(a, lambda: (flag_set(a, S_MKV), nonce_out())))
    epoch(34); epoch(35)
    epoch(36, pre=lambda: wave0(a, lambda: poll_issue(a, S_KVO, 1))); epoch(37)
    epoch(38, pre=lambda: wave0(a, chkO))
    epoch(39, x0=pl[:2], x1=pl[2:4]); epoch(40, x0=pl[4:6], x1=pl[6:])
    for e in range(41, 44): epoch(e)
    stamp(a, 6)
    a("s_waitcnt vmcnt(0)")
    a(f"s_mov_b32 s{T0}, 0xffff0000")
    a("s_nop 7")
    for j in range(4):
        d0, d1 = ga(0, j), ga(1, j)
        for d, q in ((d0, j), (d1, 4 + j)):
            for i in (0, 2): a(f"v_pk_add_f32 {v(d+i,2)}, {v(d+i,2)}, {v(PART+4*q+i,2)}")
        xr = XR + 4 * j
        for k in range(4):
            a(f"v_lshlrev_b32 v{32+2*k}, 16, v{xr+k}")
            a(f"v_and_b32 v{33+2*k}, s{T0}, v{xr+k}")
        for i in range(4): a(f"v_permlane16_swap_b32 v{d0+i}, v{d1+i}")
        for k in range(4):
            d = (d0, d1)[k >> 1] + 2 * (k & 1)
            a(f"v_pk_add_f32 {v(d,2)}, {v(d,2)}, {v(32+2*k,2)}")
        for k in range(4):
            d = (d0, d1)[k >> 1] + 2 * (k & 1)
            a(f"v_cvt_pk_bf16_f32 v{xr+k}, v{d}, v{d+1}")
        a(f"buffer_store_dwordx4 {v(xr,4)}, v{VXA+j}, s[{SKV}:{SKV+3}], s{S_AO} offen")
    a("s_branch KM_FIN")
    a.label("P3_L")
    a(f"s_lshl_b32 s{T3}, s{S_WN}, 11")
    a(f"v_add_u32 v4, s{T3}, v{VKVD}")
    a(f"s_lshl_b32 s{T0}, s{S_WN}, 14")
    a(f"s_lshl_b32 s{T1}, s{S_C2}, 8")
    a(f"s_add_u32 s{T0}, s{T0}, s{T1}")
    a(f"v_add_u32 v5, s{T0}, v3")
    a("v_xor_b32 v6, 128, v5")
    a(f"v_add_u32 v6, {8192-1024}, v6")
    a(f"v_lshrrev_b32 v22, 3, v{VL}")
    a("v_lshlrev_b32 v22, 11, v22")
    a(f"v_lshlrev_b32 v23, 1, v{VQQ}")
    a(f"v_and_b32 v25, 7, v{VL}")
    a("v_xor_b32 v23, v23, v25")
    a("v_lshl_add_u32 v22, v23, 4, v22")
    a(f"s_lshl_b32 s{T1}, s{S_KH}, 7")
    a(f"s_add_u32 s{T0}, s{T0}, s{T1}")
    a(f"v_add_u32 v7, s{T0}, v22")
    a(f"s_lshl_b32 s{T2}, s{S_WN}, 10")
    a(f"s_sub_u32 s{T2}, 8192, s{T2}")
    def toO():
        a(f"s_mul_i32 s{S_AO}, s{S_G}, {ACT_NU}")
        a(f"s_add_u32 s{S_AO}, s{S_AO}, 112")
        a(f"s_lshl_b32 s{S_AO}, s{S_AO}, 13")
        a(f"s_mov_b32 s{S_WDO}, 0")
    def kind(t): return "d" if t < NDOWN else "o"
    cost = {"d": 4, "o": 3}
    def lep(e):
        ts = [t for t in (2 * e + 8, 2 * e + 9) if t < NT]
        young = [t for t in range(2 * e + 5, 2 * e + 10) if 8 <= t < NT]
        a("s_barrier")
        for t in ts:
            if t == NDOWN: toO()
            l_ustep(a, kind(t))
        n = sum(cost[kind(t)] for t in young)
        if e < 43: a(f"s_waitcnt vmcnt({n})")
    for e in range(4): lep(e)
    a(f"s_mov_b32 s{S_CNT}, 20")
    a.label("P3_LA")
    lep(4)
    a(f"s_sub_u32 s{S_CNT}, s{S_CNT}, 1")
    a(f"s_cmp_lg_u32 s{S_CNT}, 0")
    a(f"s_cbranch_scc1 P3_LA")
    for e in range(24, 44): lep(e)
    stamp(a, 5); stamp(a, 6)
    a("s_branch KM_FIN")
```

```python
from asmlib import *
import struct, math, os
NAME = "parallel_sum__grouped_kv_mqa__glu_gated_reglu__prompt_kernel"
QSCALE = struct.unpack("<I", struct.pack("<f", math.log2(math.e) / math.sqrt(32.0)))[0]
STOP = os.environ.get("STOP", "")
KVL = 131072
QLDS = 0
TLDS = 0
F_KV, F_H, F_O, F_NONCE, F_P = 8192, 12288, 16384, 24576, 32768
WS_ST = WS_XN
WLDS = 98304
KXL = 16384
STL = 32768
CSL = 16384
NS = int(os.environ.get('X_NS', 12))
SPIN_MAX = 1 << 21
P1MODE = int(os.environ.get('X_P1MODE', 1))
P1SHIFT = int(os.environ.get('X_P1SHIFT', 6))
P1PRIO = int(os.environ.get('X_P1PRIO', 0))
UNROLL = int(os.environ.get('X_UNROLL', 0))
NPRE = int(os.environ.get('X_NPRE', 1))
TLBW = int(os.environ.get('X_TLBW', 0))
TLBS = int(os.environ.get('X_TLBS', 21))
TLBP = 4
EARLY = int(os.environ.get('X_EARLY', 4))
NPRO = int(os.environ.get('X_NPRO', 4))
TE = int(os.environ.get('X_TE', 1))
TLATE = int(os.environ.get('X_TLATE', 1))
CODEPF = int(os.environ.get('X_CODEPF', 1))
PR1 = int(os.environ.get('X_PR1', 0))
PR2 = int(os.environ.get('X_PR2', 0))
PR3 = int(os.environ.get('X_PR3', 0))
NE = int(os.environ.get('X_NE', 4))
HSTEP = int(os.environ.get('X_HSTEP', 2))
XL = int(os.environ.get('X_XL', 3))
P1TOUCH = int(os.environ.get('X_P1T', 1))

S_WAVE = 3
S_TW, S_TA = 4, 5
P_WS = 6
NONCE = 8
QMASK = 10
SX = 12
SWD = 16
S_XO, S_AO, S_WDO, S_MX, S_MW, S_CNT = 20, 21, 22, 23, 24, 25
S_HO = 24
S_CT, S_RP, S_WM, S_P, S_BB, S_WN = 26, 27, 28, 29, 30, 31
T0, T1, T2, T3 = 32, 33, 34, 35
SACT, SKV = 36, 40
P_X, P_OUT, P_WO, S_ISV, S_PB = 44, 46, 48, 50, 51
S_G, S_C2, S_KH, S_KVO, S_MKV, S_RING = 52, 53, 54, 55, 56, 57
SFLAG = 58
SWO, SPART = 92, 96
VL, VXD, VWA, VWB, VWS, VXR, VWR, VWP, VQQ, VT = 1, 2, 4, 6, 8, 10, 12, 14, 16, 17
ONES, CS = 20, 24
VKVR, VKVD, VPA, VPW = 18, 19, 20, 21
HS, VHO, VWOD = 160, 4, 7
VXA, XR = 8, 224
VTCH, VDUM = 31, 30
VPL, VPD = 27, 28
ACC, XF, WF = 128, 64, 32
def acc(st, t, j): return ACC + ((st * 2 + t) * 8 + j) * 4
def xf(p, j): return XF + (p * 8 + j) * 4
def wf(p, st, t): return WF + (p * 4 + st * 2 + t) * 4
def emit(a, groups):
    for g in groups:
        for x in g: a(x)

def flag_set(a, off_sgpr):
    a(f"v_mov_b32 v22, s{off_sgpr}")
    a(f"v_mov_b32 v24, s{NONCE}")
    a(f"v_mov_b32 v25, s{NONCE+1}")
    a("s_mov_b64 exec, 1")
    a(f"global_store_dwordx2 v22, v[24:25], s[{SFLAG}:{SFLAG+1}] sc1")
    a("s_mov_b64 exec, -1")
def poll_load(): return f"global_load_dwordx2 {v(VPD,2)}, v{VPL}, s[{SFLAG}:{SFLAG+1}] sc1"
def poll_issue(a, off_sgpr, n):
    a(f"v_and_b32 v{VPL}, {n-1}, v{VL}")
    a(f"v_lshlrev_b32 v{VPL}, 3, v{VPL}")
    a(f"v_add_u32 v{VPL}, s{off_sgpr}, v{VPL}")
    a(poll_load())
_lab = [0]
def spin(a, cmps, loads, sleep=1):
    _lab[0] += 1
    n = _lab[0]
    a(f"s_mov_b32 s{T1}, {SPIN_MAX}")
    a.label(f"PL{n}")
    for x in cmps: a(x)
    a("s_cmp_eq_u64 vcc, -1")
    a(f"s_cbranch_scc1 PD{n}")
    a(f"s_sub_u32 s{T1}, s{T1}, 1")
    a(f"s_cbranch_scc1 PD{n}")
    a(f"s_sleep {sleep}")
    for x in loads: a(x)
    a("s_waitcnt vmcnt(0)")
    a(f"s_branch PL{n}")
    a.label(f"PD{n}")
def poll_check(a):
    spin(a, [f"v_cmp_eq_u64 vcc, s[{NONCE}:{NONCE+1}], {v(VPD,2)}"], [poll_load()])
def wave0(a, fn):
    _lab[0] += 1
    n = _lab[0]
    a(f"s_cmp_lg_u32 s{S_WAVE}, 0")
    a(f"s_cbranch_scc1 W0_{n}")
    fn()
    a.label(f"W0_{n}")

def p1_dma_x(h, tau):
    if os.environ.get("X_ROT"):
        return [[f"s_add_u32 s{S_XO}, s{S_ROT}, {tau*128}", f"s_and_b32 s{S_XO}, s{S_XO}, 2047", f"s_add_u32 m0, s{S_MX}, {(h*3 + tau%3)*16384}",
             f"s_or_b32 s{S_XO}, s{S_XO}, {h*128*2048}" if h else "s_nop 0",
             f"buffer_load_dwordx4 v{VXD}, s[{SX}:{SX+3}], s{S_XO} offen lds"],
            [f"buffer_load_dwordx4 v{VXD+1}, s[{SX}:{SX+3}], s{S_XO} offen offset:1024 lds"]]
    return [[f"s_add_u32 m0, s{S_MX}, {(h*3 + tau%3)*16384}", f"s_mov_b32 s{S_XO}, {h*128*2048 + tau*128}",
             f"buffer_load_dwordx4 v{VXD}, s[{SX}:{SX+3}], s{S_XO} offen lds"],
            [f"buffer_load_dwordx4 v{VXD+1}, s[{SX}:{SX+3}], s{S_XO} offen offset:1024 lds"]]
def p1_dma_w(k):
    slot = k % 4
    return [[f"s_add_u32 m0, s{S_MW}, {slot*16384}", "s_nop 0", f"global_load_lds_dwordx4 {v(VWA,2)}, off",
             f"s_add_u32 m0, s{S_MW}, {slot*16384+2048}",
             f"v_lshl_add_u64 {v(VWA,2)}, {v(VWS,2)}, 0, {v(VWA,2)}"],
            [f"global_load_lds_dwordx4 {v(VWB,2)}, off",
             f"v_lshl_add_u64 {v(VWB,2)}, {v(VWS,2)}, 0, {v(VWB,2)}"]]
def p1_reads(k):
    p = k & 1
    r = []
    for st in range(2):
        for t in range(2):
            for half in range(2):
                r.append(f"ds_read_b64_tr_b16 {v(wf(p,st,t)+2*half,2)}, v{VWR+t} offset:{(k%4)*16384 + st*8192 + half*4096}")
    for j in range(8):
        r.append(f"ds_read_b128 {v(xf(p,j),4)}, v{VXR+(k&1)} offset:{((k>>1)%3)*16384 + j*2048}")
    return r
def p1_mfma(p, first=False):
    m = []
    for j in range(8):
        order = [(0,0),(0,1),(1,0),(1,1)]
        if j & 1: order = order[::-1]
        for st, t in order:
            d = acc(st, t, j)
            m.append(f"v_mfma_f32_16x16x32_bf16 {v(d,4)}, {v(wf(p,st,t),4)}, {v(xf(p,j),4)}, {0 if first else v(d,4)}")
    return m
def cs_mfma(p, st, grp): return f"v_mfma_f32_16x16x32_bf16 {v(CS+4*st,4)}, {v(wf(p,st,grp),4)}, {v(ONES,4)}, {v(CS+4*st,4)}"
CSV = int(os.environ.get("X_CSV", 0))
def cs_valu(p, grp):
    o = []
    for st in range(2):
        for r in range(4):
            src = wf(p, st, grp) + r; t = 20 + 2 * (r & 1)
            o += [f"v_lshlrev_b32 v{t}, 16, v{src}", f"v_and_b32 v{t+1}, 0xffff0000, v{src}",
                  f"v_add_f32 v{CS+2*st}, v{CS+2*st}, v{t}", f"v_add_f32 v{CS+2*st+1}, v{CS+2*st+1}, v{t+1}"]
    return o
def add_cs(m, fill, p, grp):
    if not CSV:
        return m[:10] + [cs_mfma(p, 0, grp)] + m[10:20] + [cs_mfma(p, 1, grp)] + m[20:], fill
    fill = [list(f) for f in fill]
    while len(fill) < 32: fill.append([])
    order = sorted(range(32), key=lambda i: (len(fill[i]) > 0, i))
    vv = cs_valu(p, grp)
    slots = sorted([i for i in range(32) if not fill[i]] * 2 + [i for i in range(32) if fill[i]])
    empt = [i for i in range(32) if not fill[i]]
    rest = [i for i in range(32) if fill[i]]
    need = 32 - 2 * len(empt)
    pick = sorted(empt * 2 + rest[-need:] if need > 0 else (empt * 2)[:32])
    for i, x in zip(pick, vv): fill[i].append(x)
    return m, fill
def weave(a, m, fill):
    for i, ins in enumerate(m):
        a(ins)
        if i < len(fill):
            for x in fill[i]: a(x)
    emit(a, fill[len(m):])
class VM:
    def __init__(self): self.q = []
    def add(self, need, n=1): self.q += [need] * n
    def wait(self, b):
        last = max([i for i, x in enumerate(self.q) if x <= b], default=-1)
        return len(self.q) - 1 - last
S_XM, S_XT, S_WM0, S_DX, S_DW = S_TW, S_TA, S_RING, S_ISV, S_PB
def gen_p1(a, grp, vm0):
    vm = VM(); vm.q = list(vm0.q)
    LO, HI = NS - 3, 26
    LO += LO & 1
    if not os.environ.get('X_LOOP'): LO = HI = 99
    G = "AB"[grp]
    def dyn_entry(k):
        tau = k // 2 + 2
        a(f"s_add_u32 s{S_XM}, s{S_MX}, {(tau % 3) * 16384}")
        a(f"s_movk_i32 s{S_XT}, {tau * 128}")
        a(f"s_movk_i32 s{S_WM0}, {k % 4}")
        a(f"s_movk_i32 s{S_DX}, {(k // 2) % 3}")
        for i in range(2):
            a(f"v_add_u32 v{VXR+i}, {((k // 2) % 3) * 16384}, v{VXR+i}")
            a(f"v_add_u32 v{VWR+i}, {((k + 1) % 4) * 16384}, v{VWR+i}")
    def dyn_exit(k):
        for i in range(2):
            a(f"v_subrev_u32 v{VXR+i}, {((k // 2) % 3) * 16384}, v{VXR+i}")
            a(f"v_subrev_u32 v{VWR+i}, {((k + 1) % 4) * 16384}, v{VWR+i}")
    def dyn_step(p):
        fill = []
        if p == 0:
            fill.append([f"s_add_u32 m0, s{S_XM}, 49152", f"s_or_b32 s{S_XO}, s{S_XT}, {128*2048}",
                         f"buffer_load_dwordx4 v{VXD}, s[{SX}:{SX+3}], s{S_XO} offen lds"])
            fill.append([f"buffer_load_dwordx4 v{VXD+1}, s[{SX}:{SX+3}], s{S_XO} offen offset:1024 lds",
                         f"s_add_u32 s{S_XT}, s{S_XT}, 128", f"s_cmp_eq_u32 s{S_DX}, 0", f"s_movk_i32 s{T0}, 16384",
                         f"s_cselect_b32 s{T0}, {-32768 & 0xffffffff}, s{T0}", f"s_add_u32 s{S_XM}, s{S_XM}, s{T0}"])
        else:
            fill.append([f"s_mov_b32 m0, s{S_XM}", "s_nop 0", f"buffer_load_dwordx4 v{VXD}, s[{SX}:{SX+3}], s{S_XT} offen lds"])
            fill.append([f"buffer_load_dwordx4 v{VXD+1}, s[{SX}:{SX+3}], s{S_XT} offen offset:1024 lds"])
        fill.append([f"s_lshl_b32 s{T1}, s{S_WM0}, 14", f"s_add_u32 m0, s{S_MW}, s{T1}", f"s_add_u32 s{S_WM0}, s{S_WM0}, 1",
                     f"global_load_lds_dwordx4 {v(VWA,2)}, off", "s_add_u32 m0, m0, 2048",
                     f"v_lshl_add_u64 {v(VWA,2)}, {v(VWS,2)}, 0, {v(VWA,2)}"])
        fill.append([f"global_load_lds_dwordx4 {v(VWB,2)}, off", f"s_and_b32 s{S_WM0}, s{S_WM0}, 3",
                     f"v_lshl_add_u64 {v(VWB,2)}, {v(VWS,2)}, 0, {v(VWB,2)}"])
        q = p ^ 1
        rd = [[f"ds_read_b64_tr_b16 {v(wf(q,st,t)+2*half,2)}, v{VWR+t} offset:{st*8192 + half*4096}"] for st in range(2) for t in range(2) for half in range(2)]
        rd[-1] += [f"s_cmp_eq_u32 s{S_WM0}, 3", f"s_movk_i32 s{T0}, 16384", f"s_cselect_b32 s{T0}, {-49152 & 0xffffffff}, s{T0}",
                   f"v_add_u32 v{VWR}, s{T0}, v{VWR}", f"v_add_u32 v{VWR+1}, s{T0}, v{VWR+1}"]
        rd += [[f"ds_read_b128 {v(xf(q,j),4)}, v{VXR+q} offset:{j*2048}"] for j in range(8)]
        if p == 0:
            rd[-1] += [f"s_cmp_eq_u32 s{S_DX}, 2", f"s_movk_i32 s{T0}, 16384", f"s_cselect_b32 s{T0}, {-32768 & 0xffffffff}, s{T0}",
                       f"s_cselect_b32 s{S_DX}, -1, s{S_DX}", f"v_add_u32 v{VXR}, s{T0}, v{VXR}", f"v_add_u32 v{VXR+1}, s{T0}, v{VXR+1}",
                       f"s_add_u32 s{S_DX}, s{S_DX}, 1"]
        fill += rd
        if grp: fill = [[] for _ in range(P1SHIFT)] + fill
        m, fill = add_cs(p1_mfma(p), fill, p, grp)
        weave(a, m, fill)
        a("s_waitcnt vmcnt(8) lgkmcnt(0)")
        if p == 1:
            a(f"s_sub_u32 s{S_DW}, s{S_DW}, 1")
            a(f"s_cmp_lg_u32 s{S_DW}, 0")
        a("s_barrier")
    for s_ in range(32):
        p = s_ & 1
        h = (s_ + 1) & 1; tau = (s_ - 1 - h) // 2 + 3
        if LO <= s_ < HI:
            vm.add(2 * tau - 1, 2); vm.add(s_ + 3, 2)
            assert vm.wait(s_ + 1) == 8
            if s_ == LO:
                dyn_entry(LO)
                a(f"s_movk_i32 s{S_DW}, {(HI - LO) // 2}")
                a.raw(".p2align 6")
                a.label("P1_L" + G)
                dyn_step(0); dyn_step(1)
                a("s_cbranch_scc1 P1_L" + G)
                dyn_exit(HI)
            continue
        nstamp(a, f"s{s_}")
        fill = []
        if s_ == NS - 6:
            mark = len(vm.q)
            if not grp:
                fill.append([f"s_cmp_gt_u32 s{S_WAVE}, 1", "s_cbranch_scc1 P1_NP0", f"global_load_dwordx4 v[16:19], v0, s[{SFLAG}:{SFLAG+1}] sc1", "P1_NP0:"])
        if s_ == 1:
            if not grp:
                fill.append([f"s_cmp_lg_u32 s{S_WAVE}, 0", "s_cbranch_scc1 P1_NF", f"v_mov_b32 v16, s{NONCE}", f"v_mov_b32 v17, s{NONCE+1}", f"v_mov_b32 v18, s{S_CNT}",
                             "s_mov_b64 exec, 1", f"global_store_dwordx2 v18, v[16:17], s[{SFLAG}:{SFLAG+1}] sc1", "s_mov_b64 exec, -1", "P1_NF:"])
        if s_ == 0:
            fill += p1_dma_x(1, 1); vm.add(1, 2)
            fill += p1_dma_w(2); vm.add(1, 2)
            fill += p1_dma_w(3); vm.add(2, 2)
        if s_ + 4 == NS:
            fill.append([f"s_mov_b64 exec, s[{QMASK}:{QMASK+1}]", f"v_mov_b32 v{VWA}, v{VWP}", f"v_mov_b32 v{VWA+1}, v{VWP+1}",
                         f"v_mov_b32 v{VWS}, 512", f"v_lshl_add_u64 {v(VWB,2)}, {v(VWS,2)}, 0, {v(VWA,2)}", f"v_mov_b32 v{VWS}, 2048", "s_mov_b64 exec, -1"])
        if tau < 16:
            fill += p1_dma_x(h, tau); vm.add(2 * tau - 1, 2)
        if s_ + 4 < 32:
            fill += p1_dma_w(s_ + 4); vm.add(s_ + 3, 2)
        if s_ == 27:
            fill.append([f"v_lshlrev_b32 v{VKVD}, 4, v{VL}", f"s_lshr_b32 s{T0}, s2, 3", f"s_lshl_b32 s{T0}, s{T0}, 13", f"s_lshr_b32 s{T1}, s{S_MX}, 1", f"s_add_u32 s{T0}, s{T0}, s{T1}",
                         f"s_add_u32 s{T0}, s{T0}, 8192", f"buffer_load_dword v16, v{VKVD}, s[{SKV}:{SKV+3}], s{T0} offen"])
            vm.add(30, 1)
        if s_ == 29:
            fill.append([f"s_lshr_b32 s{T0}, s{S_MX}, 1", f"s_add_u32 m0, s{T0}, {STL}", "s_nop 0",
                         f"buffer_load_dwordx4 v{VKVD}, s[{SPART}:{SPART+3}], s{S_AO} offen lds"])
            vm.add(31, 1)
        if s_ == 30:
            fill.append([f"s_xor_b32 m0, s{S_MKV}, 0x4000", f"s_add_u32 s{T0}, s{S_KVO}, 8192",
                         f"buffer_load_dwordx4 v{VKVD}, s[{SKV}:{SKV+3}], s{T0} offen lds"])
            fill.append([f"buffer_load_dwordx4 v{VKVD}, s[{SKV}:{SKV+3}], s{T0} offen offset:1024 lds"])
            vm.add(99, 2)
        m = p1_mfma(p, s_ == 0)
        if s_ == 30:
            fill.append([f"v_lshlrev_b32 v{VKVD}, 4, v{VL}", f"v_lshrrev_b32 v{VQQ}, 4, v{VL}", f"v_and_b32 v{VT}, 15, v{VL}",
                         f"v_add_u32 v{VKVR}, {KVL}, v{VKVD}"])
            fill.append([f"v_lshlrev_b32 v0, 3, v{VT}", f"s_lshr_b32 s{T0}, s{S_MX}, 1", f"v_add_u32 v0, s{T0}, v0", f"v_add_u32 v{VWP}, s{S_MX}, v{VKVD}",
                         f"s_lshl_b32 s{T0}, s{S_WN}, 11", f"v_add_u32 v{VWP+1}, s{T0}, v{VKVD}"])
            if CSV:
                fill.append([f"s_lshl_b32 s{T0}, s{S_WAVE}, 7", f"v_lshlrev_b32 v28, 2, v{VT}", f"v_add_u32 v28, s{T0}, v28",
                             f"s_lshl_b32 s{T0}, s{S_WN}, 7", f"v_lshlrev_b32 v{VWP+1}, 4, v{VQQ}", f"v_add_u32 v{VWP+1}, s{T0}, v{VWP+1}"])
        if s_ < 31:
            fill += [[x] for x in p1_reads(s_ + 1)]
            if grp: fill = [[] for _ in range(P1SHIFT if len(fill) <= 26 else 0)] + fill
            m, fill = add_cs(m, fill, p, grp)
        elif CSV:
            vv = cs_valu(p, grp)
            fill = [vv[2*i:2*i+2] for i in range(16)]
            fill += [[f"v_add_f32 v{CS}, v{CS}, v{CS+1}", f"v_add_f32 v{CS+2}, v{CS+2}, v{CS+3}"]]
            for sw in ("v_permlane16_swap_b32", "v_permlane32_swap_b32"):
                fill += [[f"v_mov_b32 v{CS+1}, v{CS}", f"v_mov_b32 v{CS+3}, v{CS+2}"], ["s_nop 0", f"{sw} v{CS}, v{CS+1}", f"{sw} v{CS+2}, v{CS+3}"],
                         [f"v_add_f32 v{CS}, v{CS}, v{CS+1}", f"v_add_f32 v{CS+2}, v{CS+2}, v{CS+3}"]]
            fill += [[f"ds_write_b32 v28, v{CS} offset:{CSL}", f"ds_write_b32 v28, v{CS+2} offset:{CSL+64}"]]
            ex = kv_dma() + kv_dma() + [[f"buffer_load_dwordx2 {v(XF+2*j,2)}, v0, s[{SPART}:{SPART+3}], s{S_AO} offen offset:{j*128}"] for j in range(8)]
            for i, e in enumerate(ex): fill[i] = fill[i] + list(e)
        else:
            m = [cs_mfma(p, 0, grp), cs_mfma(p, 1, grp)] + m
            fill = [[f"s_mov_b32 m0, s{S_MKV}", "s_nop 0", f"buffer_load_dwordx4 v{VKVD}, s[{SKV}:{SKV+3}], s{S_KVO} offen lds"],
                    [f"buffer_load_dwordx4 v{VKVD}, s[{SKV}:{SKV+3}], s{S_KVO} offen offset:1024 lds", f"s_add_u32 s{S_KVO}, s{S_KVO}, 16384"]]
            fill += [[f"ds_read_b64 {v(XF+2*j,2)}, v0 offset:{STL + j*128}"] for j in range(8)] + [[], []]
            fill += [[f"ds_write_b128 v{VWP}, {v(CS+4*st,4)} offset:{CSL + st*1024}"] for st in range(2)]
        weave(a, m, fill)
        if s_ < 31:
            a(f"s_waitcnt vmcnt({vm.wait(s_ + 1)}) lgkmcnt(0)")
        else:
            a("s_waitcnt lgkmcnt(0)")
        if s_ == NS - 5 and not grp:
            n = f"s[{NONCE}:{NONCE+1}]"
            a(f"s_cmp_gt_u32 s{S_WAVE}, 1")
            a("s_cbranch_scc1 P1_NP1")
            a(f"s_waitcnt vmcnt({len(vm.q) - mark})")
            spin(a, [f"v_cmp_eq_u64 vcc, {n}, v[16:17]", f"v_cmp_eq_u64 s[{T2}:{T3}], {n}, v[18:19]", f"s_and_b64 vcc, vcc, s[{T2}:{T3}]"],
                 [f"global_load_dwordx4 v[16:19], v0, s[{SFLAG}:{SFLAG+1}] sc1"], sleep=8)
            a.label("P1_NP1")
        a("s_barrier")
def kv_dma():
    return [[f"s_mov_b32 m0, s{S_MKV}", f"s_xor_b32 s{S_MKV}, s{S_MKV}, 0x4000",
             f"buffer_load_dwordx4 v{VKVD}, s[{SKV}:{SKV+3}], s{S_KVO} offen lds"],
            [f"buffer_load_dwordx4 v{VKVD}, s[{SKV}:{SKV+3}], s{S_KVO} offen offset:1024 lds",
             f"s_add_u32 s{S_KVO}, s{S_KVO}, 8192"]]

QF, KB, VB, PB, SEL, RS, SB, OA, NM = 32, 40, 56, 72, 88, 92, 96, 128, 144
def mf32(d, x, y, c): return f"v_mfma_f32_32x32x16_bf16 {v(d,16)}, {v(x,4)}, {v(y,4)}, {c}"
def mfrs(p): return f"v_mfma_f32_16x16x32_bf16 {v(RS,4)}, {v(SEL,4)}, {v(p,4)}, {v(RS,4)}"
def att_slot(a, n, qk=True, pv=True, rd=True, pre=()):
    b = n & 1
    S = SB + 16 * b; S1 = SB + 16 * (b ^ 1)
    P = PB + 8 * b; P1 = PB + 8 * (b ^ 1)
    K1 = KB + 8 * (b ^ 1); V1 = VB + 8 * (b ^ 1)
    m = []
    if qk:
        m.append(mf32(S1, K1, QF, v(NM, 16)))
        m.append(mf32(S1, K1 + 4, QF + 4, v(S1, 16)))
    if pv:
        m += [mf32(OA, V1, P1, v(OA, 16)), mfrs(P1), mf32(OA, V1 + 4, P1 + 4, v(OA, 16)), mfrs(P1 + 4)]
    val = []
    for i in range(16):
        val.append(f"v_exp_f32 v{S+i}, v{S+i}")
        if i >= 2 and i % 2 == 0:
            val.append(f"v_cvt_pk_bf16_f32 v{P+i//2-1}, v{S+i-2}, v{S+i-1}")
    val.append("s_nop 0")
    val.append(f"v_cvt_pk_bf16_f32 v{P+7}, v{S+14}, v{S+15}")
    rds = []
    if rd:
        pos = (n & 3) * 2048
        rds = [f"ds_read_b128 {v(KB+8*b,4)}, v{VKVR} offset:{pos}",
               f"ds_read_b128 {v(KB+8*b+4,4)}, v{VKVR} offset:{pos+1024}",
               f"ds_read_b128 {v(VB+8*b,4)}, v{VKVR} offset:{8192+pos}",
               f"ds_read_b128 {v(VB+8*b+4,4)}, v{VKVR} offset:{8192+pos+1024}"]
    other = [list(g) for g in pre] + [[x] for x in rds]
    cuts = [0, 4, 9, 13, 16, 21][:len(m)]
    k = 0; oi = 0
    for i, x in enumerate(val):
        if k < len(m) and i == cuts[k]:
            a(m[k]); k += 1
            if oi < len(other):
                emit(a, [other[oi]]); oi += 1
        a(x)
        if i in (2, 6, 11) and oi < len(other) and len(other) > len(m):
            emit(a, [other[oi]]); oi += 1
    emit(a, other[oi:])
def prefill_dma():
    return [[f"s_add_u32 m0, s{S_RING}, s{T3}", "s_nop 0",
             f"buffer_load_dwordx4 v{VPA}, s[{SACT}:{SACT+3}], s{S_AO} offen lds",
             f"s_add_u32 s{S_AO}, s{S_AO}, 8192"],
            [f"s_add_u32 m0, m0, 8192", f"s_add_u32 s{S_RING}, s{S_RING}, 16384",
             f"buffer_load_dwordx4 v{VPW}, s[{SWD}:{SWD+3}], s{S_WDO} offen lds",
             f"s_add_u32 s{S_WDO}, s{S_WDO}, 65536"]]
def touch_w(n0):
    return [[f"s_add_u32 s{T0}, s{S_WAVE}, {n0}", f"s_lshl_b32 s{T0}, s{T0}, 17", f"s_add_u32 s{T0}, s{T0}, s{S_TW}",
             f"buffer_load_dword v{VDUM}, v{VTCH}, s[{SWD}:{SWD+3}], s{T0} offen"]]
def touch_a(m0):
    return [[f"s_add_u32 s{T0}, s{S_WAVE}, {m0}", f"s_lshl_b32 s{T0}, s{T0}, 15", f"s_add_u32 s{T0}, s{T0}, s{S_TA}",
             f"buffer_load_dword v{VDUM}, v{VTCH}, s[{SACT}:{SACT+3}], s{T0} offen"]]
def touch_wo():
    return [[f"s_lshl_b32 s{T0}, s2, 13", f"s_add_u32 s{T0}, s{T0}, s{T3}",
             f"buffer_load_dword v{VDUM}, v{VKVD}, s[{SWO}:{SWO+3}], s{T0} offen"]]
def h_store(j):
    off = (j >> 1) * 2048 + (j & 1) * 256
    tail = f"v{VHO + (off>>12)}, s[{SACT}:{SACT+3}], s{S_HO} offen offset:{off & 4095} sc1"
    return [[f"s_cmp_eq_u32 s{S_WN}, 3", f"s_cbranch_scc1 HS{j}A", f"buffer_store_dwordx4 {v(HS+4*j,4)}, {tail}",
             f"s_branch HS{j}B", f"HS{j}A:", f"buffer_store_dwordx2 {v(HS+4*j,2)}, {tail}", f"HS{j}B:"]]
def att_epoch(a, E, first=False, last=False, prefill=0, wait=0, post=None, pre_bar=None, x1=(), x2=(), x3=()):
    nstamp(a, f"e{E}a")
    a(f"s_waitcnt vmcnt({wait}) lgkmcnt(0)")
    if pre_bar: pre_bar()
    a("s_barrier")
    nstamp(a, f"e{E}c")
    if not first: a(f"v_xor_b32 v{VKVR}, 0x4000, v{VKVR}")
    if post: post()
    for i in range(4):
        pre = []
        if i == 0 and not last: pre += kv_dma()
        if i in (1, 2)[:prefill]: pre += prefill_dma()
        if i == 1: pre += list(x1)
        if i == 2: pre += list(x2)
        if i == 3: pre += list(x3)
        if i: a("s_waitcnt lgkmcnt(0)")
        att_slot(a, 4 * E + i, qk=not (last and i == 3), pv=not (first and i == 0), pre=pre)

def wave_sum(a, r, t):
    for mod in ("quad_perm:[1,0,3,2]", "quad_perm:[2,3,0,1]", "row_half_mirror", "row_mirror"):
        a("s_nop 1")
        a(f"v_add_f32_dpp v{r}, v{r}, v{r} {mod} row_mask:0xf bank_mask:0xf")
    for sw in ("v_permlane16_swap_b32", "v_permlane32_swap_b32"):
        a(f"v_mov_b32 v{t}, v{r}")
        a("s_nop 1")
        a(f"{sw} v{r}, v{t}")
        a(f"v_add_f32 v{r}, v{r}, v{t}")

def gen_p0(a, vm):
    VTR, VTW, VFR, VTA, VTB, VTX, VQS, VEX, VKS, VQD, VPF = 0, 20, 21, 22, 24, 26, 27, 28, 29, 30, 31
    A0, A1, A2, A3, A4, A5, A6, A7, TID = 100, 101, 102, 103, 104, 105, 106, 107, 108
    TL = 16384
    a(f"s_load_dwordx2 s[{P_X}:{P_X+1}], s[0:1], {K_X}")
    a(f"s_load_dwordx8 s[92:99], s[0:1], {K_WQ}")
    a(f"s_load_dwordx2 s[{P_WS}:{P_WS+1}], s[0:1], {K_WS}")
    a(f"s_load_dwordx8 s[36:43], s[0:1], {K_WG}")
    a(f"v_lshrrev_b32 v{A0}, 6, v0")
    a(f"v_and_b32 v{VL}, 63, v0")
    a(f"v_mov_b32 v{TID}, v0")
    a(f"v_readfirstlane_b32 s{S_WAVE}, v{A0}")
    a(f"v_lshlrev_b32 v{VKVD}, 4, v{VL}")
    a(f"s_lshr_b32 s{S_PB}, s2, 4")
    a(f"s_lshl_b32 s{S_PB}, s{S_PB}, 3")
    a(f"s_and_b32 s{T0}, s2, 7")
    a(f"s_add_u32 s{S_PB}, s{S_PB}, s{T0}")
    a(f"s_lshl_b32 s{T0}, s{S_PB}, 4")
    a(f"s_add_u32 s{S_AO}, s{T0}, s{S_WAVE}")
    a(f"s_lshl_b32 s{T0}, s{S_AO}, 11")
    a(f"s_add_u32 s{T1}, s{T0}, {8*2048}")
    a("s_waitcnt lgkmcnt(0)")
    if STOP == "p0": a("s_branch KM_FIN")
    srd(a, SX, P_X, P_X + 1, 4 << 20)
    a(f"buffer_load_dwordx4 v[32:35], v{VKVD}, s[{SX}:{SX+3}], s{T0} offen")
    a(f"buffer_load_dwordx4 v[36:39], v{VKVD}, s[{SX}:{SX+3}], s{T0} offen offset:1024")
    a(f"buffer_load_dwordx4 v[40:43], v{VKVD}, s[{SX}:{SX+3}], s{T1} offen")
    a(f"buffer_load_dwordx4 v[44:47], v{VKVD}, s[{SX}:{SX+3}], s{T1} offen offset:1024")
    nstamp(a, "xi")
    a(f"s_getpc_b64 s[{T2}:{T3}]")
    a.label("PF_BASE")
    a(f"s_lshr_b32 s{T0}, s2, 3")
    a(f"s_lshl_b32 s{T0}, s{T0}, 12")
    a(f"v_lshrrev_b32 v{VPF}, 3, v0")
    a(f"v_lshlrev_b32 v{VPF}, 6, v{VPF}")
    a(f"v_add_u32 v{VPF}, s{T0}, v{VPF}")
    a(f"v_min_u32 v{VPF}, KM_END - PF_BASE, v{VPF}")
    a(f"global_load_dword v18, v{VPF}, s[{T2}:{T3}]")
    a(f"s_add_u32 s{SFLAG}, s{P_WS}, {WS_FLAG}")
    a(f"s_addc_u32 s{SFLAG+1}, s{P_WS+1}, 0")
    a(f"s_load_dwordx2 s[{NONCE}:{NONCE+1}], s[{SFLAG}:{SFLAG+1}], {F_NONCE}")
    a(f"v_lshrrev_b32 v{VQQ}, 4, v{VL}")
    a(f"v_and_b32 v{VT}, 15, v{VL}")
    a(f"s_bfe_u32 s{S_ISV}, s2, 0x10003")
    a(f"s_and_b32 s{S_KH}, s2, 1")
    a(f"s_mov_b32 s{P_OUT}, s42")
    a(f"s_mov_b32 s{P_OUT+1}, s43")
    a(f"s_mov_b32 s{P_WO}, s98")
    a(f"s_mov_b32 s{P_WO+1}, s99")
    srd(a, SWD, 40, 41, 3584 * 2048)
    a(f"s_cmp_lt_u32 s{S_WAVE}, 4")
    a(f"s_cselect_b32 s{S_TW}, s36, s38")
    a(f"s_cselect_b32 s{S_TA}, s37, s39")
    srd(a, SACT, 92, 93, 2 << 20)
    a(f"s_cmp_eq_u32 s{S_ISV}, 0")
    a(f"s_cselect_b32 s{SKV}, s94, s96")
    a(f"s_cselect_b32 s{SKV+1}, s95, s97")
    a(f"s_mov_b32 s{SKV+2}, 65536")
    a(f"s_mov_b32 s{SKV+3}, 0x20000")
    srd(a, SPART, P_WS, P_WS + 1, 8 << 20)
    a(f"s_lshr_b32 s{T0}, s2, 3")
    a(f"s_lshl_b32 s{S_RP}, s{S_KH}, 2")
    a(f"s_and_b32 s{T1}, s{T0}, 3")
    a(f"s_add_u32 s{S_RP}, s{S_RP}, s{T1}")
    a(f"s_bfe_u32 s{S_CT}, s2, 0x20001")
    a(f"s_lshl_b32 s{S_G}, s{S_CT}, 2")
    a(f"s_lshl_b32 s{S_CT}, s{S_CT}, 3")
    a(f"s_lshr_b32 s{S_C2}, s{T0}, 2")
    a(f"s_add_u32 s{S_CT}, s{S_CT}, s{S_C2}")
    a(f"s_add_u32 s{S_G}, s{S_G}, s{T1}")
    a(f"s_lshr_b32 s{S_WM}, s{S_WAVE}, 2")
    a(f"s_and_b32 s{S_P}, s{S_WAVE}, 1")
    a(f"s_bfe_u32 s{S_BB}, s{S_WAVE}, 0x10001")
    a(f"s_and_b32 s{S_WN}, s{S_WAVE}, 3")
    a(f"s_lshl_b32 s{S_MX}, s{S_WAVE}, 11")
    a(f"v_bfe_u32 v{A0}, v{VL}, 1, 2")
    a(f"v_and_b32 v{A1}, 1, v{VL}")
    a(f"v_lshrrev_b32 v{A2}, 3, v{TID}")
    a(f"v_lshlrev_b32 v{VQS}, 11, v{A0}")
    a(f"v_lshl_add_u32 v{VQS}, v{A2}, 5, v{VQS}")
    a(f"v_lshl_add_u32 v{VQS}, v{A1}, 4, v{VQS}")
    a(f"v_lshrrev_b32 v{A3}, 1, v{A2}")
    a(f"v_lshlrev_b32 v{VQD}, 16, v{A3}")
    a(f"v_and_b32 v{A3}, 1, v{A2}")
    a(f"v_lshl_add_u32 v{VQD}, v{A3}, 10, v{VQD}")
    a(f"v_lshl_add_u32 v{VQD}, v{A0}, 5, v{VQD}")
    a(f"v_lshl_add_u32 v{VQD}, v{A1}, 4, v{VQD}")
    a(f"v_lshrrev_b32 v{VEX}, 1, v{VL}")
    a(f"v_lshlrev_b32 v{VEX}, 6, v{VEX}")
    a(f"v_lshl_add_u32 v{VEX}, v{A1}, 4, v{VEX}")
    a(f"v_and_b32 v{A0}, 7, v{A2}")
    a(f"s_lshl_b32 s{T0}, s{S_WAVE}, 4")
    a(f"v_add_u32 v{A0}, s{T0}, v{A0}")
    a(f"v_lshlrev_b32 v{A0}, 11, v{A0}")
    a(f"v_and_b32 v{A1}, 7, v{VL}")
    a(f"v_xor_b32 v{A1}, v{A1}, v{VQQ}")
    a(f"v_lshl_add_u32 v{VXD}, v{A1}, 4, v{A0}")
    a(f"v_xor_b32 v{VXD+1}, 64, v{VXD}")
    a(f"v_add_u32 v{VXD+1}, {8*2048 - 1024}, v{VXD+1}")
    a(f"s_add_u32 s{T0}, s{T0}, {TL}")
    a(f"v_lshlrev_b32 v{VTW}, 8, v{VL}")
    a(f"v_add_u32 v{VTW}, s{T0}, v{VTW}")
    a(f"s_lshl_b32 s{T0}, s{S_RP}, 19")
    srd(a, SX, P_X, P_X + 1, 512 << 10, add_lo=f"s{T0}")
    a(f"v_lshrrev_b32 v{VTX}, 4, v{TID}")
    a(f"v_lshlrev_b32 v{VTX}, 11, v{VTX}")
    a(f"v_lshl_add_u32 v{VTX}, v{VT}, 7, v{VTX}")
    a(f"s_lshl_b32 s{T0}, s{S_C2}, 16")
    a(f"v_add_u32 v{VTX}, s{T0}, v{VTX}")
    a(f"s_lshl_b32 s{S_MW}, s{S_BB}, 2")
    a(f"s_add_u32 s{S_MW}, s{S_MW}, s{S_P}")
    a(f"s_lshl_b32 s{S_MW}, s{S_MW}, 10")
    a(f"s_lshl_b32 s{T0}, s{S_WM}, 13")
    a(f"s_add_u32 s{S_MW}, s{S_MW}, s{T0}")
    a(f"s_add_u32 s{S_MW}, s{S_MW}, {WLDS}")
    a(f"s_lshl_b32 s{T0}, s{S_P}, 3")
    a(f"s_lshl_b32 s{T1}, s{S_BB}, 2")
    a(f"s_add_u32 s{T0}, s{T0}, s{T1}")
    a(f"v_add_u32 v{A0}, s{T0}, v{VQQ}")
    a(f"s_lshl_b32 s{T0}, s{S_P}, 2")
    a(f"v_add_u32 v{A1}, s{T0}, v{VQQ}")
    a(f"v_lshlrev_b32 v{A1}, 1, v{A1}")
    a(f"v_xor_b32 v{A1}, v{A1}, v{VT}")
    a(f"v_lshlrev_b32 v{A2}, 4, v{A1}")
    a(f"v_subrev_u32 v{A3}, 192, v{A2}")
    a(f"v_add_u32 v{A4}, 32, v{A2}")
    a(f"v_cmp_le_u32 vcc, 12, v{A1}")
    a(f"v_cmp_le_u32 s[{QMASK}:{QMASK+1}], 14, v{A1}")
    a(f"s_and_b32 s{T0}, s{S_CT}, 1")
    a(f"s_cmp_eq_u32 s{T0}, 1")
    a(f"v_cndmask_b32 v{A3}, v{A4}, v{A3}, vcc")
    a(f"s_cselect_b64 s[{T2}:{T3}], -1, 0")
    a(f"v_cndmask_b32 v{A3}, v{A2}, v{A3}, s[{T2}:{T3}]")
    a(f"s_mul_i32 s{T0}, s{S_CT}, 224")
    a(f"v_add_u32 v{A3}, s{T0}, v{A3}")
    a(f"v_mov_b32 v{A5}, 7168")
    a(f"v_mad_u32_u24 v{A3}, v{A0}, v{A5}, v{A3}")
    a(f"s_lshl_b32 s{T0}, s{S_CT}, 6")
    a(f"s_lshl_b32 s{T1}, s{S_WM}, 5")
    a(f"s_add_u32 s{T0}, s{T0}, s{T1}")
    a(f"v_and_b32 v{A2}, 16, v{A2}")
    a(f"v_add_u32 v{A4}, s{T0}, v{A2}")
    a(f"v_lshl_add_u32 v{A4}, v{A0}, 11, v{A4}")
    a(f"v_mov_b32 v{A0}, 2048")
    a(f"v_cndmask_b32 v{A3}, v{A3}, v{A4}, s[{QMASK}:{QMASK+1}]")
    a(f"v_cndmask_b32 v{A5}, v{A5}, v{A0}, s[{QMASK}:{QMASK+1}]")
    a(f"v_mov_b32 v{A0}, s92")
    a(f"v_mov_b32 v{A1}, s93")
    a(f"v_mov_b32 v{A6}, s{S_TW}")
    a(f"v_mov_b32 v{A7}, s{S_TA}")
    a(f"v_cndmask_b32 v{A6}, v{A6}, v{A0}, s[{QMASK}:{QMASK+1}]")
    a(f"v_cndmask_b32 v{A7}, v{A7}, v{A1}, s[{QMASK}:{QMASK+1}]")
    a(f"v_lshlrev_b32 v{VWS}, 5, v{A5}")
    a(f"v_mov_b32 v{VWS+1}, 0")
    a(f"v_add_co_u32 v{VWA}, vcc, v{A3}, v{A6}")
    a(f"v_lshlrev_b32 v{A4}, 4, v{A5}")
    a(f"v_mov_b32 v{A5}, 0")
    a(f"v_addc_co_u32 v{VWA+1}, vcc, 0, v{A7}, vcc")
    a(f"v_lshl_add_u64 {v(VWB,2)}, {v(A4,2)}, 0, {v(VWA,2)}")
    a(f"s_and_b32 s{T0}, s{S_RP}, 3")
    a(f"s_add_u32 s{T0}, s{T0}, 2")
    a(f"v_mul_lo_u32 v{A4}, v{VWS}, s{T0}")
    a(f"v_lshl_add_u64 {v(VTA,2)}, {v(A4,2)}, 0, {v(VWA,2)}")
    a(f"v_lshl_add_u64 {v(VTB,2)}, {v(A4,2)}, 0, {v(VWB,2)}")
    a(f"s_lshl_b32 s{T0}, s{S_CT}, 16")
    a(f"s_lshl_b32 s{T1}, s{S_WM}, 10")
    a(f"s_add_u32 s{T0}, s{T0}, s{T1}")
    a(f"s_lshl_b32 s{T1}, s{S_P}, 8")
    a(f"s_add_u32 s{T0}, s{T0}, s{T1}")
    a(f"s_lshl_b32 s{T1}, s{S_BB}, 7")
    a(f"s_add_u32 s{T0}, s{T0}, s{T1}")
    a(f"s_add_u32 s{T0}, s{T0}, {WS_WQP + NS*2048}")
    a(f"s_add_u32 s{T0}, s{T0}, s{P_WS}")
    a(f"s_addc_u32 s{T1}, s{P_WS+1}, 0")
    a(f"v_lshl_add_u32 v{A4}, v{VQQ}, 5, v{A2}")
    a(f"v_lshl_add_u64 {v(VWP,2)}, {v(A4,2)}, 0, s[{T0}:{T1}]")
    srd(a, SWO, P_WO, P_WO + 1, 1024 * 2048)
    a(f"v_lshrrev_b32 v{A0}, 1, v{VT}")
    a(f"v_xor_b32 v{A0}, v{A0}, v{VQQ}")
    a(f"v_lshlrev_b32 v{A0}, 4, v{A0}")
    a(f"v_lshl_add_u32 v{A0}, v{VT}, 7, v{A0}")
    a(f"s_mul_i32 s{T0}, s{S_WM}, 49152")
    a(f"v_add_u32 v{VXR}, s{T0}, v{A0}")
    a(f"v_xor_b32 v{VXR+1}, 64, v{VXR}")
    a(f"v_lshrrev_b32 v{A3}, 2, v{VT}")
    a(f"v_lshl_add_u32 v{A0}, v{VQQ}, 2, v{A3}")
    a(f"v_and_b32 v{A1}, 7, v{A0}")
    a(f"s_lshl_b32 s{T0}, s{S_WN}, 1")
    a(f"v_xor_b32 v{A1}, s{T0}, v{A1}")
    a(f"v_lshlrev_b32 v{A1}, 5, v{A1}")
    a(f"v_lshl_add_u32 v{A1}, v{A0}, 8, v{A1}")
    a(f"v_and_b32 v{A2}, 3, v{VL}")
    a(f"v_lshl_add_u32 v{A1}, v{A2}, 3, v{A1}")
    a(f"v_add_u32 v{VWR}, {WLDS}, v{A1}")
    a(f"v_xor_b32 v{VWR+1}, 32, v{VWR}")
    a(f"s_lshl_b32 s{S_KVO}, s{S_WN}, 11")
    a(f"s_cmp_eq_u32 s{S_WM}, 0")
    a(f"s_movk_i32 s{T0}, 4096")
    a(f"s_cselect_b32 s{T0}, s{T0}, 0x20000")
    a(f"s_add_u32 s{S_KVO}, s{S_KVO}, s{T0}")
    a(f"s_add_u32 s{S_MKV}, s{S_MX}, {KVL + 0x4000}")
    a(f"s_lshr_b32 s{T0}, s{S_WAVE}, 1")
    a(f"s_lshl_b32 s{T1}, s{T0}, 13")
    a(f"s_add_u32 s{T1}, s{T1}, {TL}")
    a(f"v_add_u32 v{VFR}, s{T1}, v{VKVD}")
    a(f"s_lshl_b32 s{T0}, s{T0}, 14")
    a(f"s_lshl_b32 s{T1}, s{S_WM}, 15")
    a(f"s_add_u32 s{T0}, s{T0}, s{T1}")
    a(f"s_lshl_b32 s{T1}, s{S_P}, 5")
    a(f"s_add_u32 s{T1}, s{T1}, 0x10000")
    a(f"s_add_u32 s{T0}, s{T0}, s{T1}")
    a(f"v_lshl_add_u32 v{VTR}, v{VQQ}, 3, v{A3}")
    a(f"v_lshlrev_b32 v{VTR}, 6, v{VTR}")
    a(f"v_lshl_add_u32 v{VTR}, v{A2}, 3, v{VTR}")
    a(f"v_add_u32 v{VTR}, s{T0}, v{VTR}")
    a(f"v_add_u32 v{VEX}, s{T0}, v{VEX}")
    a(f"s_lshr_b32 s{S_WDO}, s{S_PB}, 1")
    a(f"s_lshl_b32 s{S_WDO}, s{S_WDO}, 11")
    a(f"s_and_b32 s{T0}, s{S_PB}, 1")
    a(f"s_lshl_b32 s{T1}, s{T0}, 8")
    a(f"s_lshl_b32 s{T2}, s{S_P}, 3")
    a(f"s_add_u32 s{T1}, s{T1}, s{T2}")
    a(f"s_lshl_b32 s{T0}, s{T0}, 10")
    a(f"s_lshl_b32 s{T2}, s{S_P}, 8")
    a(f"s_add_u32 s{T0}, s{T0}, s{T2}")
    a(f"s_add_u32 s{T0}, s{T0}, 0x20000")
    a(f"s_cmp_eq_u32 s{S_ISV}, 0")
    a(f"s_cselect_b32 s{T0}, s{T1}, s{T0}")
    a(f"s_cselect_b64 vcc, -1, 0")
    a(f"s_add_u32 s{S_WDO}, s{S_WDO}, s{T0}")
    a(f"s_add_u32 s{S_WDO}, s{S_WDO}, 8192")
    a(f"v_lshlrev_b32 v{A0}, 9, v{VQQ}")
    a(f"v_and_b32 v{A1}, 512, v{A0}")
    a(f"v_lshrrev_b32 v{A2}, 1, v{VQQ}")
    a(f"v_lshl_add_u32 v{A1}, v{A2}, 3, v{A1}")
    a(f"v_cndmask_b32 v{A0}, v{A1}, v{A0}, vcc")
    a(f"v_lshl_add_u32 v{VKS}, v{VT}, 4, v{A0}")
    a(f"s_lshl_b32 s{S_AO}, s{S_AO}, 3")
    a(f"s_lshr_b32 s{S_CNT}, s2, 3")
    a(f"s_lshl_b32 s{S_CNT}, s{S_CNT}, 11")
    a(f"s_and_b32 s{T0}, s2, 7")
    a(f"s_lshl_b32 s{T0}, s{T0}, 7")
    a(f"s_add_u32 s{S_CNT}, s{S_CNT}, s{T0}")
    a(f"s_add_u32 s{S_CNT}, s{S_CNT}, {WS_WQP}")
    nstamp(a, "su")
    a(f"s_lshl_b32 s{S_RING}, s{S_WAVE}, 13")
    a(f"s_lshl_b32 s{T1}, s{S_WM}, 15")
    a(f"s_add_u32 s{T1}, s{T1}, 0x10000")
    a(f"s_add_u32 s{T1}, s{T1}, s{S_RING}")
    for h in range(2):
        a(f"s_add_u32 m0, s{T1}, {h*4096}")
        a(f"s_add_u32 s{T0}, s{S_RING}, {h*4096}")
        for i in range(4):
            a(f"buffer_load_dwordx4 v{VKVD}, s[{SKV}:{SKV+3}], s{T0} offen offset:{i*1024} lds")
    def tiles(lo, hi):
        if lo < 1 <= hi: emit(a, p1_dma_x(0, 0) + p1_dma_x(1, 0)); vm.add(-1, 4)
        if lo < 2 <= hi:
            emit(a, p1_dma_w(0)); vm.add(-1, 2)
            emit(a, p1_dma_w(1)); vm.add(0, 2)
    tiles(0, TE)
    a(f"s_lshl_b32 s{T2}, s2, 13")
    a(f"buffer_load_dwordx4 v[48:51], v{VQS}, s[{SACT}:{SACT+3}], s{T2} offen")
    vm.add(99, 1)
    a(f"s_mov_b32 s{T3}, 0xffff0000")
    a(f"s_waitcnt vmcnt({9 + len(vm.q)})")
    nstamp(a, "xl")
    def ln(r):
        o = []
        I = 32 + 8 * r; X = 64 + 32 * r; C = X + 16; A_ = 52 + 6 * r
        M = A_ + 4
        def wsum(x, t):
            for mod in ("quad_perm:[1,0,3,2]", "quad_perm:[2,3,0,1]", "row_half_mirror", "row_mirror"):
                o.append("NOP2"); o.append(f"v_add_f32_dpp v{x}, v{x}, v{x} {mod} row_mask:0xf bank_mask:0xf")
            for sw in ("v_permlane16_swap_b32", "v_permlane32_swap_b32"):
                o.append(f"v_mov_b32 v{t}, v{x}"); o.append("NOP2"); o.append(f"{sw} v{x}, v{t}"); o.append(f"v_add_f32 v{x}, v{x}, v{t}")
        def rbf(x):
            o.append(f"v_cvt_pk_bf16_f32 v{x}, v{x}, v{x}"); o.append(f"v_and_b32 v{x}, s{T3}, v{x}")
        for k in range(8):
            o.append(f"v_lshlrev_b32 v{X+2*k}, 16, v{I+k}"); o.append(f"v_and_b32 v{X+2*k+1}, s{T3}, v{I+k}")
        o.append(f"v_pk_add_f32 {v(A_,2)}, {v(X,2)}, {v(X+2,2)}"); o.append(f"v_pk_add_f32 {v(A_+2,2)}, {v(X+4,2)}, {v(X+6,2)}")
        for k in (4, 6):
            o.append(f"v_pk_add_f32 {v(A_,2)}, {v(A_,2)}, {v(X+2*k,2)}"); o.append(f"v_pk_add_f32 {v(A_+2,2)}, {v(A_+2,2)}, {v(X+2*k+2,2)}")
        o.append(f"v_pk_add_f32 {v(A_,2)}, {v(A_,2)}, {v(A_+2,2)}"); o.append(f"v_add_f32 v{A_}, v{A_}, v{A_+1}")
        wsum(A_, A_ + 1)
        o.append(f"v_mul_f32 v{M}, 0xba800000, v{A_}")
        for k in range(8): o.append(f"v_pk_add_f32 {v(C+2*k,2)}, {v(X+2*k,2)}, {v(M,2)} op_sel_hi:[1,0]")
        o.append(f"v_pk_mul_f32 {v(A_,2)}, {v(C,2)}, {v(C,2)}"); o.append(f"v_pk_mul_f32 {v(A_+2,2)}, {v(C+2,2)}, {v(C+2,2)}")
        for k in range(2, 8):
            q = A_ + 2 * (k % 2); o.append(f"v_pk_fma_f32 {v(q,2)}, {v(C+2*k,2)}, {v(C+2*k,2)}, {v(q,2)}")
        o.append(f"v_pk_add_f32 {v(A_,2)}, {v(A_,2)}, {v(A_+2,2)}"); o.append(f"v_add_f32 v{A_}, v{A_}, v{A_+1}")
        rbf(M)
        wsum(A_, A_ + 1)
        for k in range(8): o.append(f"v_pk_add_f32 {v(C+2*k,2)}, {v(X+2*k,2)}, {v(M,2)} op_sel_hi:[1,0]")
        o.append(f"v_mul_f32 v{A_}, 0x3a800000, v{A_}"); rbf(A_)
        o.append(f"v_add_f32 v{A_}, 0x3727c5ac, v{A_}"); rbf(A_)
        o.append(f"v_sqrt_f32 v{A_}, v{A_}"); o.append("NOP1"); rbf(A_)
        o.append(f"v_rcp_f32 v{M+1}, v{A_}"); o.append("NOP1")
        for k in range(8): o.append(f"v_pk_mul_f32 {v(C+2*k,2)}, {v(C+2*k,2)}, {v(M,2)} op_sel:[0,1] op_sel_hi:[1,1]")
        for k in range(8): o.append(f"v_cvt_pk_bf16_f32 v{I+k}, v{C+2*k}, v{C+2*k+1}")
        return o
    for x0, x1 in zip(ln(0), ln(1)):
        if x0 == "NOP2": a("s_nop 0")
        elif x0 == "NOP1": pass
        else:
            a(x0); a(x1)
    nstamp(a, "ln")
    for r in range(2):
        a(f"ds_write_b128 v{VTW}, {v(32+8*r,4)} offset:{r*128}")
        a(f"ds_write_b128 v{VTW}, {v(36+8*r,4)} offset:{16384 + r*128}")
    a("s_mov_b64 exec, 1")
    a(f"buffer_store_dwordx2 v[56:57], v{VKVD}, s[{SPART}:{SPART+3}], s{S_AO} offen sc1")
    a(f"buffer_store_dwordx2 v[62:63], v{VKVD}, s[{SPART}:{SPART+3}], s{S_AO} offen offset:64 sc1")
    a("s_mov_b64 exec, -1")
    vm.add(99, 2)
    q0 = len(vm.q)
    tiles(TE, 2)
    nstamp(a, "ti")
    srd(a, SACT, P_WS, P_WS + 1, 16 * ACT_NU * 8192, add_lo=WS_ACT)
    srd(a, SKV, P_WS, P_WS + 1, (256 << 10) + 32768, add_lo=WS_KV - 8192)
    a(f"s_waitcnt vmcnt({len(vm.q)}) lgkmcnt(0)")
    a(f"s_add_u32 s{NONCE}, s{NONCE}, 0x9e3779b9")
    a(f"s_add_u32 s{NONCE+1}, s{NONCE+1}, 0x85ebca6b")
    a("s_barrier")
    nstamp(a, "b1")
    for u in range(8):
        a(f"ds_read_b128 {v(64+4*u,4)}, v{VFR} offset:{u*1024}")
        for h in range(2):
            a(f"ds_read_b64_tr_b16 {v(96+4*u+2*h,2)}, v{VTR} offset:{u*2048 + h*256}")
    a(f"global_load_dword v18, {v(VTA,2)}, off")
    a(f"global_load_dword v18, {v(VTB,2)}, off")
    mk_ = (((1 << XL) - 1) << 1) * 0x10001
    a(f"s_mov_b32 exec_lo, {mk_}")
    a(f"s_mov_b32 exec_hi, {mk_}")
    a(f"buffer_load_dword v18, v{VTX}, s[{SX}:{SX+3}], 0 offen")
    a("s_mov_b64 exec, -1")
    vm.add(99, 3)
    a(f"s_waitcnt vmcnt({len(vm.q) - q0 + 2})")
    a(f"buffer_store_dwordx4 v[48:51], v{VQD}, s[{SPART}:{SPART+3}], s{S_CNT} offen sc1")
    vm.add(99, 1)
    a(f"s_cmp_lg_u32 s{S_ISV}, 0")
    a("s_cbranch_scc1 P0_V")
    for isv in range(2):
        if isv: a.label("P0_V")
        for u in range(8):
            a(f"s_waitcnt lgkmcnt({min(15, 3*(7-u))})")
            x = 64 + 4 * u; w = 96 + 4 * u; d = (20, 24)[u & 1]
            c = "0" if u < 2 else v(d, 4)
            ab = (x, w) if isv else (w, x)
            a(f"v_mfma_f32_16x16x32_bf16 {v(d,4)}, {v(ab[0],4)}, {v(ab[1],4)}, {c}")
        if not isv: a("s_branch P0_MD")
    a.label("P0_MD")
    srd(a, SPART, P_WS, P_WS + 1, 16384, add_lo=WS_ST)
    a("s_nop 3")
    a("v_pk_add_f32 v[20:21], v[20:21], v[24:25]")
    a("v_pk_add_f32 v[22:23], v[22:23], v[26:27]")
    a(f"ds_write_b128 v{VEX}, v[20:23]")
    a(f"s_waitcnt vmcnt({vm.wait(-1)}) lgkmcnt(0)")
    a("s_barrier")

def p0_finish(a):
    a(f"s_cmp_gt_u32 s{S_WAVE}, 1")
    a("s_cbranch_scc1 P0_KVD")
    a("v_add_u32 v30, 0x10000, v28")
    a("ds_read_b128 v[24:27], v28 offset:16384")
    a("ds_read_b128 v[48:51], v30")
    a("ds_read_b128 v[52:55], v30 offset:16384")
    a("s_waitcnt lgkmcnt(0)")
    for h in (0, 2):
        a(f"v_pk_add_f32 {v(20+h,2)}, {v(20+h,2)}, {v(24+h,2)}")
        a(f"v_pk_add_f32 {v(48+h,2)}, {v(48+h,2)}, {v(52+h,2)}")
        a(f"v_pk_add_f32 {v(20+h,2)}, {v(20+h,2)}, {v(48+h,2)}")
    a("v_cvt_pk_bf16_f32 v20, v20, v21")
    a("v_cvt_pk_bf16_f32 v21, v22, v23")
    a(f"buffer_store_dwordx2 v[20:21], v29, s[{SKV}:{SKV+3}], s{S_WDO} offen sc1")
    a.label("P0_KVD")

def gen(a):
    kernel_head(a, NAME)
    a("s_cmp_ge_u32 s2, 256")
    a("s_cbranch_scc1 KM_END")
    stamp(a, 0)
    vm = VM()
    gen_p0(a, vm)
    nstamp(a, "fl")
    stamp(a, 1)
    for x in p1_reads(0): a(x)
    emit(a, p1_dma_x(0, 1)); vm.add(1, 2)
    p0_finish(a)
    vm.add(1)
    emit(a, p1_dma_x(0, 2)); vm.add(3, 2)
    a(f"s_lshl_b32 s{S_CNT}, s2, 3")
    a(f"s_add_u32 s{S_CNT}, s{S_CNT}, {F_KV}")
    a(f"s_lshl_b32 s{T0}, s{S_P}, 10")
    a(f"s_add_u32 s{T0}, s{T0}, {F_KV}")
    a(f"v_add_u32 v0, s{T0}, v{VKVD}")
    a(f"s_lshl_b32 s{S_AO}, s{S_RP}, 1")
    a(f"s_add_u32 s{S_AO}, s{S_AO}, s{S_WM}")
    a(f"s_lshl_b32 s{S_AO}, s{S_AO}, 10")
    for i in range(4): a(f"v_mov_b32 v{ONES+i}, 0x3f803f80")
    for i in range(8): a(f"v_mov_b32 v{CS+i}, 0")
    a(f"s_waitcnt vmcnt({vm.wait(0) - 1}) lgkmcnt(0)")
    a("s_barrier")
    nstamp(a, "p1s")
    a(f"s_cmp_lg_u32 s{S_WM}, 0")
    a("s_cbranch_scc1 P1_B")
    if PR1 < 0: a(f"s_setprio {-PR1}")
    gen_p1(a, 0, vm)
    a("s_branch P1_END")
    a.label("P1_B")
    if PR1 > 0: a(f"s_setprio {PR1}")
    gen_p1(a, 1, vm)
    a.label("P1_END")
    if PR1: a("s_setprio 0")
    stamp(a, 2)
    nstamp(a, "p1e")
    if STOP == "p1": a("s_branch KM_FIN")
    CSR = XF + 16
    for t in range(2):
        for st in range(2):
            a(f"ds_read_b128 {v(CSR+(st*2+t)*4,4)}, v{VWP+1} offset:{CSL + (t*512 + st*64 if CSV else t*8192 + st*1024)}")
    a(f"v_lshlrev_b32 v{VHO}, 9, v{VQQ}")
    a(f"v_lshl_add_u32 v{VHO}, v{VT}, 4, v{VHO}")
    a(f"v_add_u32 v{VHO+1}, 0x1000, v{VHO}")
    a(f"s_lshr_b32 s{T0}, s{S_CT}, 1")
    a(f"s_mul_i32 s{T0}, s{T0}, 7")
    a(f"s_and_b32 s{T1}, s{S_CT}, 1")
    a(f"s_lshl_b32 s{T2}, s{T1}, 2")
    a(f"s_add_u32 s{T2}, s{T2}, s{S_WN}")
    a(f"s_cmp_eq_u32 s{S_WN}, 3")
    a(f"s_cselect_b32 s{T2}, 3, s{T2}")
    a(f"s_add_u32 s{T0}, s{T0}, s{T2}")
    a(f"s_lshl_b32 s{T2}, s{S_RP}, 1")
    a(f"s_add_u32 s{T2}, s{T2}, s{S_WM}")
    a(f"s_mul_i32 s{T3}, s{T2}, {ACT_NU}")
    a(f"s_add_u32 s{T0}, s{T0}, s{T3}")
    a(f"s_lshl_b32 s{S_HO}, s{T0}, 13")
    a(f"s_lshl_b32 s{S_XO}, s{S_RP}, 8")
    a(f"s_lshl_b32 s{T3}, s{S_CT}, 3")
    a(f"s_add_u32 s{S_XO}, s{S_XO}, s{T3}")
    a(f"s_add_u32 s{S_XO}, s{S_XO}, {F_H}")
    a("s_waitcnt lgkmcnt(0)")
    for j in range(8): a(f"v_mul_f32 v{XF+32+j}, v{XF+2*j+1}, v{XF+2*j+1}")
    a(f"s_cmp_eq_u32 s{S_WN}, 3")
    a("s_cbranch_scc1 P1_EP3")
    def center(st, t, j):
        g = acc(st, t, j); c = CSR + (st * 2 + t) * 4
        for i in (0, 2): a(f"v_pk_fma_f32 {v(g+i,2)}, {v(c+i,2)}, {v(XF+2*j,2)}, {v(g+i,2)} op_sel_hi:[1,0,1]")
    def hpair(t, j):
        g = acc(0, t, j); u = acc(1, t, j); dst = HS + 4 * j + 2 * t
        r2 = XF + 32 + (j & ~1); sel = "op_sel:[0,1] op_sel_hi:[1,1]" if j & 1 else "op_sel_hi:[1,0]"
        center(0, t, j); center(1, t, j)
        for i in range(4): a(f"v_max_f32 v{g+i}, 0, v{g+i}")
        for i in (0, 2): a(f"v_pk_mul_f32 {v(u+i,2)}, {v(u+i,2)}, {v(r2,2)} {sel}")
        for i in (0, 2): a(f"v_pk_mul_f32 {v(g+i,2)}, {v(g+i,2)}, {v(u+i,2)}")
        for i in (2, 0): a(f"v_cvt_pk_bf16_f32 v{dst+i//2}, v{g+i}, v{g+i+1}")
    def hst(j, n):
        off = (j >> 1) * 2048 + (j & 1) * 256
        a(f"buffer_store_dwordx{n} {v(HS+4*j,n)}, v{VHO + (off>>12)}, s[{SACT}:{SACT+3}], s{S_HO} offen offset:{off & 4095} sc1")
    for j in range(8):
        hpair(1, j); hpair(0, j)
        if j % HSTEP == 0 and j // HSTEP < NE: hst(j // HSTEP, 4)
    a("s_branch P1_EPD")
    a.label("P1_EP3")
    a(f"s_lshl_b32 s{S_CNT}, s{S_WM}, 13")
    a(f"v_add_u32 v24, s{S_CNT}, v{VHO}")
    for j in range(8): a(f"v_mul_f32 v{XF+2*j+1}, {QSCALE}, v{XF+2*j+1}")
    for j in range(8):
        tmp = XF + 40 + 4 * (j & 3)
        for st in range(2):
            g = acc(st, 1, j)
            center(st, 1, j)
            for i in (0, 2): a(f"v_pk_mul_f32 {v(g+i,2)}, {v(g+i,2)}, {v(XF+2*j,2)} op_sel:[0,1] op_sel_hi:[1,1]")
            for i in (0, 2): a(f"v_cvt_pk_bf16_f32 v{tmp+2*st+i//2}, v{g+i}, v{g+i+1}")
        a(f"ds_write_b128 v24, {v(tmp,4)} offset:{QLDS + (j>>1)*2048 + (j&1)*256}")
    a(f"s_lshl_b32 s{T1}, s{T1}, 3")
    a(f"s_add_u32 s{S_HO}, s{S_HO}, s{T1}")
    for j in range(8):
        hpair(0, j)
        if j % HSTEP == 0 and j // HSTEP < NE: hst(j // HSTEP, 2)
    a.label("P1_EPD")
    srd(a, SPART, P_WS, P_WS + 1, 8 << 20, add_lo=WS_PART)
    a(f"s_lshl_b32 s{T3}, s{S_WAVE}, 10")
    a(f"v_add_u32 v{VPA}, s{T3}, v{VKVD}")
    a(f"v_lshlrev_b32 v3, 1, v{VQQ}")
    a(f"v_xor_b32 v3, v3, v{VT}")
    a("v_lshlrev_b32 v3, 4, v3")
    a(f"v_lshl_add_u32 v3, v{VQQ}, 11, v3")
    a(f"s_lshl_b32 s{T0}, s{S_WAVE}, 13")
    a(f"s_lshl_b32 s{T1}, s{S_C2}, 8")
    a(f"s_add_u32 s{T0}, s{T0}, s{T1}")
    a(f"s_lshl_b32 s{T1}, s{S_P}, 7")
    a(f"v_xor_b32 v{VPW}, s{T1}, v3")
    a(f"v_add_u32 v{VPW}, s{T0}, v{VPW}")
    a(f"s_mul_i32 s{T0}, s{S_G}, {ACT_NU}")
    a(f"s_mul_i32 s{T1}, s{S_KH}, 56")
    a(f"s_add_u32 s{T0}, s{T0}, s{T1}")
    a(f"s_lshl_b32 s{S_AO}, s{T0}, 13")
    a(f"s_lshl_b32 s{S_WDO}, s{T1}, 16")
    a(f"s_mov_b32 s{S_RING}, 0")
    a(f"v_lshlrev_b32 v{VTCH}, 6, v{VL}")
    a(f"s_lshr_b32 s{T0}, s2, 3")
    a(f"s_lshl_b32 s{T0}, s{T0}, 12")
    a(f"s_add_u32 s{S_TW}, s{S_WDO}, s{T0}")
    a(f"s_lshl_b32 s{T0}, s{S_C2}, 12")
    a(f"s_add_u32 s{S_TA}, s{S_AO}, s{T0}")
    a(f"v_lshlrev_b32 v26, 11, v{VT}")
    a(f"v_and_b32 v27, 1, v{VQQ}")
    a("v_lshl_add_u32 v26, v27, 5, v26")
    a(f"v_lshrrev_b32 v27, 1, v{VQQ}")
    a(f"v_lshl_add_u32 v{VXA}, v27, 4, v26")
    for j in range(1, 4): a(f"v_add_u32 v{VXA+j}, {j*32768}, v{VXA}")
    a(f"s_lshl_b32 s{S_ISV}, s{S_G}, 18")
    a(f"s_lshl_b32 s{T0}, s{S_BB}, 17")
    a(f"s_add_u32 s{S_ISV}, s{S_ISV}, s{T0}")
    a(f"s_lshl_b32 s{T0}, s{S_C2}, 8")
    a(f"s_add_u32 s{S_ISV}, s{S_ISV}, s{T0}")
    a(f"s_lshl_b32 s{T0}, s{S_KH}, 7")
    a(f"s_add_u32 s{S_ISV}, s{S_ISV}, s{T0}")
    a(f"s_lshl_b32 s{T0}, s{S_P}, 6")
    a(f"s_add_u32 s{S_ISV}, s{S_ISV}, s{T0}")
    srd(a, SX, P_X, P_X + 1, 4 << 20)
    a(f"v_lshrrev_b32 v25, 2, v{VL}")
    a(f"v_xor_b32 v25, v25, v{VQQ}")
    a("v_and_b32 v25, 1, v25")
    a(f"v_and_b32 v26, 3, v{VL}")
    a("v_or_b32 v25, v25, v26")
    a("v_cmp_eq_u32 vcc, 0, v25")
    a("v_mov_b32 v26, 0x3f803f80")
    a("v_mov_b32 v27, 0")
    a(f"s_waitcnt vmcnt({NE}) lgkmcnt(0)")
    a("s_barrier")
    a(f"ds_read_b128 {v(QF,4)}, v{VWP} offset:{QLDS}")
    a(f"ds_read_b128 {v(QF+4,4)}, v{VWP} offset:{QLDS+1024}")
    for b in range(2):
        for s_ in range(2):
            a(f"ds_read_b128 {v(KB+8*b+4*s_,4)}, v{VKVR} offset:{0x4000 + (2+b)*2048 + s_*1024}")
    for i in range(4): a(f"v_cndmask_b32 v{SEL+i}, v27, v26, vcc")
    for i in range(4): a(f"v_mov_b32 v{RS+i}, 0")
    for i in range(16): a(f"v_mov_b32 v{OA+i}, 0")
    a("s_waitcnt lgkmcnt(0)")
    a(mf32(SB, KB, QF, "0"))
    a(mf32(SB, KB + 4, QF + 4, v(SB, 16)))
    a("s_nop 11")
    a(f"v_max3_f32 v26, v{SB}, v{SB+1}, v{SB+2}")
    for i in range(3, 15, 2): a(f"v_max3_f32 v26, v26, v{SB+i}, v{SB+i+1}")
    a(f"v_max_f32 v26, v26, v{SB+15}")
    a("v_mov_b32 v27, v26")
    a("s_nop 1")
    a("v_permlane32_swap_b32 v26, v27")
    a("s_nop 0")
    a("v_max_f32 v26, v26, v27")
    for i in range(16): a(f"v_sub_f32 v{NM+i}, 0, v26")
    for i in range(16): a(f"v_sub_f32 v{SB+i}, v{SB+i}, v26")
    stamp(a, 3)
    if PR2:
        a(f"s_cmp_{'lg' if PR2 > 0 else 'eq'}_u32 s{S_WM}, 0")
        a("s_cbranch_scc0 P2_NP")
        a(f"s_setprio {abs(PR2)}")
        a.label("P2_NP")
    def pollH():
        a(f"s_lshr_b32 s{T0}, s{S_G}, 1")
        a(f"s_lshl_b32 s{T0}, s{T0}, 8")
        a(f"s_lshl_b32 s{T1}, s{S_KH}, 7")
        a(f"s_add_u32 s{T0}, s{T0}, s{T1}")
        a(f"s_add_u32 s{T0}, s{T0}, {F_H}")
        poll_issue(a, T0, 16)
    rest = list(range(NE, 8)); prev = NE
    for E in range(4):
        mine, rest = rest[:2], rest[2:]
        att_epoch(a, E, first=(E == 0), wait=prev, x2=h_store(mine[0]) if mine else (), x3=h_store(mine[1]) if len(mine) > 1 else ())
        prev = len(mine)
    att_epoch(a, 4, wait=prev)
    att_epoch(a, 5, post=lambda: wave0(a, lambda: flag_set(a, S_XO)), x1=touch_wo())
    att_epoch(a, 6, wait=1, x1=touch_w(20))
    att_epoch(a, 7, wait=1, post=lambda: wave0(a, pollH), x1=touch_w(12))
    att_epoch(a, 8, wait=1, post=lambda: wave0(a, lambda: poll_check(a)), x1=touch_w(4))
    att_epoch(a, 9, prefill=2, wait=1, x3=touch_a(6))
    att_epoch(a, 10, prefill=2, wait=5)
    att_epoch(a, 11, prefill=2, wait=4)
    att_epoch(a, 12, prefill=2, wait=4, x3=touch_a(0))
    att_epoch(a, 13, wait=5)
    xl = [f"s_cmp_lg_u32 s{S_WM}, 0", "s_cbranch_scc1 P2_NX"] + [f"buffer_load_dwordx4 {v(XR+4*j,4)}, v{VXA+j}, s[{SX}:{SX+3}], s{S_ISV} offen" for j in range(4)] + ["P2_NX:"]
    att_epoch(a, 14, x1=[xl])
    att_epoch(a, 15, last=True)
    a("s_waitcnt lgkmcnt(0)")
    a(mf32(OA, VB + 8, PB + 8, v(OA, 16)))
    a(mfrs(PB + 8))
    a(mf32(OA, VB + 12, PB + 12, v(OA, 16)))
    a(mfrs(PB + 12))
    a(f"s_add_u32 s{S_XO}, s{S_XO}, {F_O - F_H}")
    a(f"s_lshl_b32 s{T0}, s{S_RP}, 1")
    a(f"s_add_u32 s{T0}, s{T0}, s{S_WM}")
    a(f"s_mul_i32 s{T0}, s{T0}, {ACT_NU}")
    a(f"s_add_u32 s{T0}, s{T0}, s{S_CT}")
    a(f"s_add_u32 s{T0}, s{T0}, 112")
    a(f"s_lshl_b32 s{T0}, s{T0}, 13")
    a(f"s_lshl_b32 s{T1}, s{S_WN}, 11")
    a(f"s_add_u32 s{S_CNT}, s{T0}, s{T1}")
    a("s_nop 4")
    a(f"v_mul_f32 v26, 0, v{RS}")
    for i in range(16): a(f"v_fma_f32 v26, v{OA+i}, 0, v26")
    a("v_cmp_u_f32 vcc, v26, v26")
    a("s_cmp_lg_u64 vcc, 0")
    a("s_cbranch_scc1 P2_SLOW")
    a.label("P2_FIN")
    a(f"v_rcp_f32 v26, v{RS}")
    a("s_nop 0")
    for i in range(16): a(f"v_mul_f32 v{OA+i}, v{OA+i}, v26")
    for k, base in enumerate((0, 8, 4, 12)):
        a(f"v_cvt_pk_bf16_f32 v{PB+2*k}, v{OA+base}, v{OA+base+1}")
        a(f"v_cvt_pk_bf16_f32 v{PB+2*k+1}, v{OA+base+2}, v{OA+base+3}")
    a(f"buffer_store_dwordx4 {v(PB,4)}, v{VKVD}, s[{SACT}:{SACT+3}], s{S_CNT} offen sc1")
    a(f"buffer_store_dwordx4 {v(PB+4,4)}, v{VKVD}, s[{SACT}:{SACT+3}], s{S_CNT} offen offset:1024 sc1")
    stamp(a, 4)
    if PR2: a("s_setprio 0")
    import mk3
    mk3.gen_p3(a)
    a.label("P2_SLOW")
    a(f"s_mov_b32 s{T0}, 8192")
    a(f"v_mov_b32 v27, 0xff800000")
    a(f"v_mov_b32 v{RS}, 0")
    for i in range(16): a(f"v_mov_b32 v{OA+i}, 0")
    a.label("P2_SL")
    a(f"s_add_u32 s{T1}, s{T0}, 0x20000")
    a(f"buffer_load_dwordx4 {v(KB,4)}, v{VKVD}, s[{SKV}:{SKV+3}], s{T0} offen")
    a(f"buffer_load_dwordx4 {v(KB+4,4)}, v{VKVD}, s[{SKV}:{SKV+3}], s{T0} offen offset:1024")
    a(f"buffer_load_dwordx4 {v(VB,4)}, v{VKVD}, s[{SKV}:{SKV+3}], s{T1} offen")
    a(f"buffer_load_dwordx4 {v(VB+4,4)}, v{VKVD}, s[{SKV}:{SKV+3}], s{T1} offen offset:1024")
    a("s_waitcnt vmcnt(0)")
    a(mf32(SB, KB, QF, "0"))
    a(mf32(SB, KB + 4, QF + 4, v(SB, 16)))
    a("s_nop 15")
    a(f"v_max3_f32 v26, v27, v{SB}, v{SB+1}")
    for i in range(2, 16, 2): a(f"v_max3_f32 v26, v26, v{SB+i}, v{SB+i+1}")
    a("v_mov_b32 v28, v26")
    a("s_nop 1")
    a("v_permlane32_swap_b32 v26, v28")
    a("s_nop 0")
    a("v_max_f32 v26, v26, v28")
    a("v_sub_f32 v28, v27, v26")
    a("v_exp_f32 v28, v28")
    a("v_mov_b32 v27, v26")
    for i in range(16): a(f"v_sub_f32 v{SB+i}, v{SB+i}, v26")
    for i in range(16): a(f"v_exp_f32 v{SB+i}, v{SB+i}")
    for i in range(16): a(f"v_mul_f32 v{OA+i}, v{OA+i}, v28")
    a(f"v_mul_f32 v{RS}, v{RS}, v28")
    for i in range(8): a(f"v_cvt_pk_bf16_f32 v{PB+i}, v{SB+2*i}, v{SB+2*i+1}")
    a("s_nop 1")
    a(mf32(OA, VB, PB, v(OA, 16)))
    a(mfrs(PB))
    a(mf32(OA, VB + 4, PB + 4, v(OA, 16)))
    a(mfrs(PB + 4))
    a("s_nop 15")
    a(f"s_add_u32 s{T0}, s{T0}, 2048")
    a(f"s_cmp_lt_u32 s{T0}, {8192 + 64*2048}")
    a("s_cbranch_scc1 P2_SL")
    a("s_branch P2_FIN")
    a.label("KM_FIN")
    if STAMPS: a("s_waitcnt vmcnt(0)")
    stamp(a, 7)
    stamp_flush(a, 0, 8, P_WS, S_WAVE)
    a.label("KM_END")
    a("s_endpgm")
    return dict(name=NAME, grid=256, block=512, lds=int(os.environ.get('X_LDS', 163840)), vgpr=256, sgpr=102)
```

```python
from asmlib import *
from mk import *
from mk import _lab
GA = 128
def ga(c, j): return GA + (c * 4 + j) * 4
def gb(p, j): return 32 + p * 32 + j * 4
def gw(p, c): return 48 + p * 32 + c * 4
BA, BW, BWO = 96, 99, 111
NSLOT = 10
PART = 192
NDOWN, NOUT = 56, 32
NT = NDOWN + NOUT

def plan():
    addr = {t: t * 16384 for t in range(8)}
    when = {}
    size = lambda t: 16384 if t < NDOWN else 12288
    t = 8; head = 8 * 16384
    for e in range(44):
        n = 0
        while t < NT and n < (2 if t < NDOWN else MAXO):
            h = head
            top = 163840
            if (h & 0xffff) + size(t) > 65536: h = (h + 65536) & ~0xffff
            if h + size(t) > top: h = 0
            live = [u for u in addr if u >= 2 * e]
            if any(h < addr[u] + size(u) and addr[u] < h + size(t) for u in live): break
            addr[t] = h; when[t] = e; head = h + size(t); t += 1; n += 1
    assert t == NT and all(when[u] < (u - 1) // 2 for u in when)
    return addr, when
MAXO = int(os.environ.get("X_MAXO", 3))
ADDR, WHEN = plan()

def g_reads(t):
    if t >= NT: return []
    p = t & 1; h = ADDR[t] >> 16; o = ADDR[t] & 0xffff
    r = []
    if t >= NT: return r
    for c in range(4 if t < NDOWN else 2):
        for half in range(2):
            if t < NDOWN: r.append(f"ds_read_b64_tr_b16 {v(gw(p,c)+2*half,2)}, v{BW+3*c+h} offset:{o + 8192 + half*4096}")
            else: r.append(f"ds_read_b64_tr_b16 {v(gw(p,c)+2*half,2)}, v{BWO+3*c+h} offset:{o + 8192 + half*2048}")
    for j in range(4):
        r.append(f"ds_read_b128 {v(gb(p,j),4)}, v{BA+h} offset:{o + (j>>1)*2048 + (j&1)*256}")
    return r

def g_ustep(a, t, extra=(), first_wait=2):
    p = t & 1
    nc = 4 if t < NDOWN else 2
    m = []
    for j in range(4):
        for c in (range(nc) if j % 2 == 0 else range(nc - 1, -1, -1)):
            m.append(f"v_mfma_f32_16x16x32_bf16 {v(ga(c,j),4)}, {v(gw(p,c),4)}, {v(gb(p,j),4)}, {v(ga(c,j),4) if t else 0}")
    rd = g_reads(t + 1)
    fill = [[] for _ in m]
    for i, x in enumerate(rd): fill[min(i, len(m) - 1)].append(x)
    for i, e in enumerate(extra): fill[len(m) - 1 - (i % len(m))] += list(e)
    hlf = len(m) // 2
    a(f"s_waitcnt lgkmcnt({first_wait})")
    weave(a, m[:hlf], fill[:hlf])
    a(f"s_waitcnt lgkmcnt({sum(x.startswith('ds_read') for f in fill[:hlf] for x in f)})")
    weave(a, m[hlf:], fill[hlf:])

def l_ustep(a, t, dyn=False):
    if dyn:
        a(f"s_add_u32 m0, s{S_RING}, s{T3}")
        a(f"s_add_u32 s{S_RING}, s{S_RING}, 16384")
    else:
        a(f"s_add_u32 m0, s{T3}, {ADDR[t]}")
        a("s_nop 0")
    a(f"buffer_load_dwordx4 v4, s[{SACT}:{SACT+3}], s{S_AO} offen lds")
    a(f"buffer_load_dwordx4 v4, s[{SACT}:{SACT+3}], s{S_AO} offen offset:1024 lds")
    if t < NDOWN:
        a("s_add_u32 m0, m0, 8192")
        a(f"s_cmp_lt_u32 s{S_RING}, {NSLOT*16384}")
        a(f"buffer_load_dwordx4 v5, s[{SWD}:{SWD+3}], s{S_WDO} offen lds")
        a(f"buffer_load_dwordx4 v6, s[{SWD}:{SWD+3}], s{S_WDO} offen offset:1024 lds")
        if dyn: a(f"s_cselect_b32 s{S_RING}, s{S_RING}, 0")
    else:
        a(f"s_add_u32 m0, m0, s{T2}")
        a("s_nop 0")
        a(f"buffer_load_dwordx4 v7, s[{SWO}:{SWO+3}], s{S_WDO} offen lds")
    a(f"s_add_u32 s{S_AO}, s{S_AO}, 8192")
    a(f"s_add_u32 s{S_WDO}, s{S_WDO}, 65536")

def gen_p3(a):
    a(f"s_cmp_lg_u32 s{S_WM}, 0")
    a("s_cbranch_scc1 P3_L")
    if PR3 > 0: a(f"s_setprio {PR3}")
    a(f"s_lshr_b32 s{T0}, s{S_WN}, 1")
    a(f"s_lshl_b32 s{T0}, s{T0}, 12")
    a(f"v_lshlrev_b32 v22, 9, v{VQQ}")
    a(f"v_lshl_add_u32 v22, v{VT}, 4, v22")
    a(f"v_add_u32 v{BA}, s{T0}, v22")
    a(f"v_lshrrev_b32 v22, 2, v{VT}")
    a(f"v_lshl_add_u32 v22, v{VQQ}, 2, v22")
    a(f"s_lshl_b32 s{T0}, s{S_KH}, 2")
    a(f"s_lshl_b32 s{T1}, s{S_P}, 1")
    a(f"s_add_u32 s{T0}, s{T0}, s{T1}")
    a("v_and_b32 v23, 7, v22")
    a(f"v_xor_b32 v23, s{T0}, v23")
    a("v_lshlrev_b32 v23, 5, v23")
    a("v_lshl_add_u32 v23, v22, 8, v23")
    a(f"v_and_b32 v27, 3, v{VL}")
    a(f"v_lshl_add_u32 v{BW}, v27, 3, v23")
    for c in range(1, 4): a(f"v_xor_b32 v{BW+3*c}, {(c & 1) * 32 + (c >> 1) * 128}, v{BW}")
    for x in g_reads(0): a(x)
    for b in [BA] + [BW + 3 * c for c in range(4)]:
        a(f"v_add_u32 v{b+1}, 0x10000, v{b}")
        a(f"v_add_u32 v{b+2}, 0x20000, v{b}")
    a("v_bfe_u32 v23, v22, 1, 2")
    a(f"v_xor_b32 v23, s{T1}, v23")
    a("v_lshlrev_b32 v23, 5, v23")
    a("v_lshl_add_u32 v23, v22, 7, v23")
    a(f"v_lshl_add_u32 v{BWO}, v27, 3, v23")
    a(f"v_xor_b32 v{BWO+3}, 32, v{BWO}")
    for b in (BWO, BWO + 3):
        a(f"v_add_u32 v{b+1}, 0x10000, v{b}")
        a(f"v_add_u32 v{b+2}, 0x20000, v{b}")
    a(f"s_mov_b32 s{S_AO}, s{S_ISV}")
    srd(a, SKV, P_OUT, P_OUT + 1, 4 << 20)
    a(f"s_lshl_b32 s{T0}, s{S_WN}, 12")
    a(f"s_lshl_b32 s{S_RING}, s2, 14")
    a(f"s_add_u32 s{S_RING}, s{S_RING}, s{T0}")
    a(f"s_xor_b32 s{S_WDO}, s{S_RING}, {1 << 14}")
    def epoch(e, pre=None, x0=(), x1=()):
        a("s_barrier")
        nstamp(a, f"g{e}")
        if pre: pre()
        g_ustep(a, 2 * e, x0)
        g_ustep(a, 2 * e + 1, x1)
    for e in range(28):
        epoch(e)
        if e == 2: a("s_waitcnt vmcnt(0)")
    stamp(a, 5)
    def pack(q):
        d = ga(2, 0) + 8 * q
        return [[f"v_cvt_pk_bf16_f32 v{d+i}, v{d+2*i}, v{d+2*i+1}" for i in range(4)]]
    def st(q): return [[f"buffer_store_dwordx4 {v(ga(2,0)+8*q,4)}, v{VKVD}, s[{SPART}:{SPART+3}], s{S_WDO} offen offset:{q*1024} sc1"]]
    def pl(q): return [[f"buffer_load_dwordx4 {v(PART+4*q,4)}, v{VKVD}, s[{SPART}:{SPART+3}], s{S_RING} offen offset:{q*1024} sc1"]]
    epoch(28, x1=pack(0) + pack(1)); epoch(29, x0=st(0) + pack(2), x1=st(1) + pack(3)); epoch(30, x0=st(2), x1=st(3))
    epoch(31); epoch(32)
    a("s_waitcnt vmcnt(0)")
    for e in range(33, 39): epoch(e)
    epoch(39, x0=pl(0), x1=pl(1)); epoch(40, x0=pl(2), x1=pl(3))
    for e in range(41, 44): epoch(e)
    stamp(a, 6)
    a(f"s_mov_b32 s{T0}, 0xffff0000")
    a("s_waitcnt vmcnt(0)")
    a("s_nop 6")
    for j in range(4):
        d0, d1 = ga(0, j), ga(1, j)
        for d, r in ((d0, PART + 2 * j), (d1, PART + 8 + 2 * j)):
            for i in range(2):
                a(f"v_lshlrev_b32 v{40+2*i}, 16, v{r+i}")
                a(f"v_and_b32 v{41+2*i}, s{T0}, v{r+i}")
            for i in range(2): a(f"v_pk_add_f32 {v(d+2*i,2)}, {v(d+2*i,2)}, {v(40+2*i,2)}")
        xr = XR + 4 * j
        for k in range(4):
            a(f"v_lshlrev_b32 v{32+2*k}, 16, v{xr+k}")
            a(f"v_and_b32 v{33+2*k}, s{T0}, v{xr+k}")
        for i in range(4): a(f"v_permlane16_swap_b32 v{d0+i}, v{d1+i}")
        for k in range(4):
            d = (d0, d1)[k >> 1] + 2 * (k & 1)
            a(f"v_pk_add_f32 {v(d,2)}, {v(d,2)}, {v(32+2*k,2)}")
        for k in range(4):
            d = (d0, d1)[k >> 1] + 2 * (k & 1)
            a(f"v_cvt_pk_bf16_f32 v{xr+k}, v{d}, v{d+1}")
        a(f"buffer_store_dwordx4 {v(xr,4)}, v{VXA+j}, s[{SKV}:{SKV+3}], s{S_AO} offen")
    a("s_branch KM_FIN")
    a.label("P3_L")
    if PR3 < 0: a(f"s_setprio {-PR3}")
    a(f"s_lshl_b32 s{T3}, s{S_WN}, 11")
    a(f"v_add_u32 v4, s{T3}, v{VKVD}")
    a(f"s_lshl_b32 s{T0}, s{S_WN}, 14")
    a(f"s_lshl_b32 s{T1}, s{S_C2}, 8")
    a(f"s_add_u32 s{T0}, s{T0}, s{T1}")
    a(f"v_add_u32 v5, s{T0}, v3")
    a("v_xor_b32 v6, 128, v5")
    a(f"v_add_u32 v6, {8192-1024}, v6")
    a(f"v_lshrrev_b32 v22, 3, v{VL}")
    a("v_lshlrev_b32 v22, 11, v22")
    a(f"v_lshlrev_b32 v23, 1, v{VQQ}")
    a(f"v_and_b32 v25, 7, v{VL}")
    a("v_xor_b32 v23, v23, v25")
    a("v_lshl_add_u32 v22, v23, 4, v22")
    a(f"s_lshl_b32 s{T1}, s{S_KH}, 7")
    a(f"s_add_u32 s{T0}, s{T0}, s{T1}")
    a(f"v_add_u32 v7, s{T0}, v22")
    a(f"s_lshl_b32 s{T2}, s{S_WN}, 10")
    a(f"s_sub_u32 s{T2}, 8192, s{T2}")
    def toO():
        a(f"s_mul_i32 s{S_AO}, s{S_G}, {ACT_NU}")
        a(f"s_add_u32 s{S_AO}, s{S_AO}, 112")
        a(f"s_lshl_b32 s{S_AO}, s{S_AO}, 13")
        a(f"s_mov_b32 s{S_WDO}, 0")
    a(f"s_lshl_b32 s{S_KVO}, s2, 7")
    a(f"s_add_u32 s{S_KVO}, s{S_KVO}, {F_P}")
    a(f"s_xor_b32 s{S_MKV}, s{S_KVO}, {1 << 7}")
    def wave4(fn):
        _lab[0] += 1
        a(f"s_cmp_lg_u32 s{S_WAVE}, 4")
        a(f"s_cbranch_scc1 W4_{_lab[0]}")
        n = _lab[0]
        fn()
        a.label(f"W4_{n}")
    def pollO():
        a(f"s_lshr_b32 s{T0}, s{S_G}, 1")
        a(f"s_lshl_b32 s{T0}, s{T0}, 8")
        a(f"s_add_u32 s{T0}, s{T0}, {F_O}")
        poll_issue(a, T0, 32)
    def nonce_out():
        a(f"s_cmp_lg_u32 s2, 0")
        a("s_cbranch_scc1 P3_NN")
        a(f"s_movk_i32 s{T0}, {F_NONCE}")
        flag_set(a, T0)
        a.label("P3_NN")
    vm = VM(); vm.add(3, 2)
    PE = 37
    def lep(e, dyn, emit_code=True):
        b = a if emit_code else A()
        b("s_barrier")
        if emit_code:
            if e == 3: wave4(lambda: flag_set(a, S_XO))
            if e == 20: wave4(pollO)
            if e == 33: wave4(lambda: (flag_set(a, S_MKV), nonce_out()))
            if e == PE: wave4(lambda: poll_issue(a, S_KVO, 1))
        mark = len(vm.q)
        for t in sorted(u for u in WHEN if WHEN[u] == e):
            if t == NDOWN: toO()
            l_ustep(b, t, dyn); vm.add((t - 1) // 2, 4 if t < NDOWN else 3)
        b(f"s_waitcnt vmcnt({vm.wait(e + 1)})")
        lep.marks[e] = mark
        if emit_code and e in (22, PE + 1):
            src = 20 if e == 22 else PE
            wave4(lambda: (a(f"s_waitcnt vmcnt({len(vm.q) - lep.marks[src]})"), poll_check(a)))
    lep.marks = {}
    assert all(ADDR[t] == (t % NSLOT) * 16384 and WHEN[t] == (t - 8) // 2 for t in range(8, NDOWN - 2))
    for e in range(4): lep(e, True)
    a(f"s_mov_b32 s{S_CNT}, 16")
    a.label("P3_LA")
    lep(4, True)
    a(f"s_sub_u32 s{S_CNT}, s{S_CNT}, 1")
    a(f"s_cmp_lg_u32 s{S_CNT}, 0")
    a(f"s_cbranch_scc1 P3_LA")
    for e in range(5, 20): lep(e, True, False)
    for e in range(20, 44): lep(e, False)
    stamp(a, 5); stamp(a, 6)
    a("s_branch KM_FIN")
```

```python
from asmlib import *
import struct, math, os
NAME = "parallel_sum__grouped_kv_mqa__glu_gated_reglu__prompt_kernel"
QSCALE = struct.unpack("<I", struct.pack("<f", math.log2(math.e) / math.sqrt(32.0)))[0]
STOP = os.environ.get("STOP", "")
KVL = 131072
QLDS = 0
TLDS = 0
F_KV, F_H, F_O, F_NONCE, F_P = 8192, 12288, 16384, 24576, 32768
WS_ST = WS_XN
WLDS = 98304
KXL = 16384
STL = 32768
CSL = 16384
NS = int(os.environ.get('X_NS', 12))
SPIN_MAX = 1 << 21
P1MODE = int(os.environ.get('X_P1MODE', 1))
P1SHIFT = int(os.environ.get('X_P1SHIFT', 6))
P1PRIO = int(os.environ.get('X_P1PRIO', 0))
UNROLL = int(os.environ.get('X_UNROLL', 0))
NPRE = int(os.environ.get('X_NPRE', 1))
TLBW = int(os.environ.get('X_TLBW', 0))
TLBS = int(os.environ.get('X_TLBS', 21))
TLBP = 4
EARLY = int(os.environ.get('X_EARLY', 4))
NPRO = int(os.environ.get('X_NPRO', 4))
TE = int(os.environ.get('X_TE', 1))
TLATE = int(os.environ.get('X_TLATE', 1))
CODEPF = int(os.environ.get('X_CODEPF', 1))
PR1 = int(os.environ.get('X_PR1', 0))
PR2 = int(os.environ.get('X_PR2', 0))
PR3 = int(os.environ.get('X_PR3', 0))
NE = int(os.environ.get('X_NE', 4))
HSTEP = int(os.environ.get('X_HSTEP', 2))
WPF = int(os.environ.get('X_WPF', 2))
WST = int(os.environ.get('X_WST', 4))
WOFF = int(os.environ.get('X_WOFF', 0))
XL = int(os.environ.get('X_XL', 3))
P1TOUCH = int(os.environ.get('X_P1T', 1))

S_WAVE = 3
S_TW, S_TA = 4, 5
P_WS = 6
NONCE = 8
QMASK = 10
SX = 12
SWD = 16
S_XO, S_AO, S_WDO, S_MX, S_MW, S_CNT = 20, 21, 22, 23, 24, 25
S_HO = 24
S_CT, S_RP, S_WM, S_P, S_BB, S_WN = 26, 27, 28, 29, 30, 31
T0, T1, T2, T3 = 32, 33, 34, 35
SACT, SKV = 36, 40
P_X, P_OUT, P_WO, S_ISV, S_PB = 44, 46, 48, 50, 51
S_G, S_C2, S_KH, S_KVO, S_MKV, S_RING = 52, 53, 54, 55, 56, 57
SFLAG = 58
SWO, SPART = 92, 96
VL, VXD, VWA, VWB, VWS, VXR, VWR, VWP, VQQ, VT = 1, 2, 4, 6, 8, 10, 12, 14, 16, 17
ONES, CS = 20, 24
VKVR, VKVD, VPA, VPW = 18, 19, 20, 21
HS, VHO, VWOD = 160, 4, 7
VXA, XR = 8, 224
VTCH, VDUM = 31, 30
VPL, VPD = 27, 28
ACC, XF, WF = 128, 64, 32
def acc(st, t, j): return ACC + ((st * 2 + t) * 8 + j) * 4
def xf(p, j): return XF + (p * 8 + j) * 4
def wf(p, st, t): return WF + (p * 4 + st * 2 + t) * 4
def emit(a, groups):
    for g in groups:
        for x in g: a(x)

def flag_set(a, off_sgpr):
    a(f"v_mov_b32 v22, s{off_sgpr}")
    a(f"v_mov_b32 v24, s{NONCE}")
    a(f"v_mov_b32 v25, s{NONCE+1}")
    a("s_mov_b64 exec, 1")
    a(f"global_store_dwordx2 v22, v[24:25], s[{SFLAG}:{SFLAG+1}] sc1")
    a("s_mov_b64 exec, -1")
def poll_load(): return f"global_load_dwordx2 {v(VPD,2)}, v{VPL}, s[{SFLAG}:{SFLAG+1}] sc1"
def poll_issue(a, off_sgpr, n):
    a(f"v_and_b32 v{VPL}, {n-1}, v{VL}")
    a(f"v_lshlrev_b32 v{VPL}, 3, v{VPL}")
    a(f"v_add_u32 v{VPL}, s{off_sgpr}, v{VPL}")
    a(poll_load())
_lab = [0]
def spin(a, cmps, loads, sleep=1):
    _lab[0] += 1
    n = _lab[0]
    a(f"s_mov_b32 s{T1}, {SPIN_MAX}")
    a.label(f"PL{n}")
    for x in cmps: a(x)
    a("s_cmp_eq_u64 vcc, -1")
    a(f"s_cbranch_scc1 PD{n}")
    a(f"s_sub_u32 s{T1}, s{T1}, 1")
    a(f"s_cbranch_scc1 PD{n}")
    a(f"s_sleep {sleep}")
    for x in loads: a(x)
    a("s_waitcnt vmcnt(0)")
    a(f"s_branch PL{n}")
    a.label(f"PD{n}")
def poll_check(a):
    spin(a, [f"v_cmp_eq_u64 vcc, s[{NONCE}:{NONCE+1}], {v(VPD,2)}"], [poll_load()])
def wave0(a, fn):
    _lab[0] += 1
    n = _lab[0]
    a(f"s_cmp_lg_u32 s{S_WAVE}, 0")
    a(f"s_cbranch_scc1 W0_{n}")
    fn()
    a.label(f"W0_{n}")

def p1_dma_x(h, tau):
    if os.environ.get("X_ROT"):
        return [[f"s_add_u32 s{S_XO}, s{S_ROT}, {tau*128}", f"s_and_b32 s{S_XO}, s{S_XO}, 2047", f"s_add_u32 m0, s{S_MX}, {(h*3 + tau%3)*16384}",
             f"s_or_b32 s{S_XO}, s{S_XO}, {h*128*2048}" if h else "s_nop 0",
             f"buffer_load_dwordx4 v{VXD}, s[{SX}:{SX+3}], s{S_XO} offen lds"],
            [f"buffer_load_dwordx4 v{VXD+1}, s[{SX}:{SX+3}], s{S_XO} offen offset:1024 lds"]]
    return [[f"s_add_u32 m0, s{S_MX}, {(h*3 + tau%3)*16384}", f"s_mov_b32 s{S_XO}, {h*128*2048 + tau*128}",
             f"buffer_load_dwordx4 v{VXD}, s[{SX}:{SX+3}], s{S_XO} offen lds"],
            [f"buffer_load_dwordx4 v{VXD+1}, s[{SX}:{SX+3}], s{S_XO} offen offset:1024 lds"]]
def p1_dma_w(k):
    slot = k % 4
    return [[f"s_add_u32 m0, s{S_MW}, {slot*16384}", "s_nop 0", f"global_load_lds_dwordx4 {v(VWA,2)}, off",
             f"s_add_u32 m0, s{S_MW}, {slot*16384+2048}",
             f"v_lshl_add_u64 {v(VWA,2)}, {v(VWS,2)}, 0, {v(VWA,2)}"],
            [f"global_load_lds_dwordx4 {v(VWB,2)}, off",
             f"v_lshl_add_u64 {v(VWB,2)}, {v(VWS,2)}, 0, {v(VWB,2)}"]]
def p1_reads(k):
    p = k & 1
    r = []
    for st in range(2):
        for t in range(2):
            for half in range(2):
                r.append(f"ds_read_b64_tr_b16 {v(wf(p,st,t)+2*half,2)}, v{VWR+t} offset:{(k%4)*16384 + st*8192 + half*4096}")
    for j in range(8):
        r.append(f"ds_read_b128 {v(xf(p,j),4)}, v{VXR+(k&1)} offset:{((k>>1)%3)*16384 + j*2048}")
    return r
def p1_mfma(p, first=False):
    m = []
    for j in range(8):
        order = [(0,0),(0,1),(1,0),(1,1)]
        if j & 1: order = order[::-1]
        for st, t in order:
            d = acc(st, t, j)
            m.append(f"v_mfma_f32_16x16x32_bf16 {v(d,4)}, {v(wf(p,st,t),4)}, {v(xf(p,j),4)}, {0 if first else v(d,4)}")
    return m
def cs_mfma(p, st, grp): return f"v_mfma_f32_16x16x32_bf16 {v(CS+4*st,4)}, {v(wf(p,st,grp),4)}, {v(ONES,4)}, {v(CS+4*st,4)}"
CSV = int(os.environ.get("X_CSV", 0))
def cs_valu(p, grp):
    o = []
    for st in range(2):
        for r in range(4):
            src = wf(p, st, grp) + r; t = 20 + 2 * (r & 1)
            o += [f"v_lshlrev_b32 v{t}, 16, v{src}", f"v_and_b32 v{t+1}, 0xffff0000, v{src}",
                  f"v_add_f32 v{CS+2*st}, v{CS+2*st}, v{t}", f"v_add_f32 v{CS+2*st+1}, v{CS+2*st+1}, v{t+1}"]
    return o
def add_cs(m, fill, p, grp):
    if not CSV:
        return m[:10] + [cs_mfma(p, 0, grp)] + m[10:20] + [cs_mfma(p, 1, grp)] + m[20:], fill
    fill = [list(f) for f in fill]
    while len(fill) < 32: fill.append([])
    order = sorted(range(32), key=lambda i: (len(fill[i]) > 0, i))
    vv = cs_valu(p, grp)
    slots = sorted([i for i in range(32) if not fill[i]] * 2 + [i for i in range(32) if fill[i]])
    empt = [i for i in range(32) if not fill[i]]
    rest = [i for i in range(32) if fill[i]]
    need = 32 - 2 * len(empt)
    pick = sorted(empt * 2 + rest[-need:] if need > 0 else (empt * 2)[:32])
    for i, x in zip(pick, vv): fill[i].append(x)
    return m, fill
def weave(a, m, fill):
    for i, ins in enumerate(m):
        a(ins)
        if i < len(fill):
            for x in fill[i]: a(x)
    emit(a, fill[len(m):])
class VM:
    def __init__(self): self.q = []
    def add(self, need, n=1): self.q += [need] * n
    def wait(self, b):
        last = max([i for i, x in enumerate(self.q) if x <= b], default=-1)
        return len(self.q) - 1 - last
S_XM, S_XT, S_WM0, S_DX, S_DW = S_TW, S_TA, S_RING, S_ISV, S_PB
def gen_p1(a, grp, vm0):
    vm = VM(); vm.q = list(vm0.q)
    LO, HI = NS - 3, 26
    LO += LO & 1
    if not os.environ.get('X_LOOP'): LO = HI = 99
    G = "AB"[grp]
    def dyn_entry(k):
        tau = k // 2 + 2
        a(f"s_add_u32 s{S_XM}, s{S_MX}, {(tau % 3) * 16384}")
        a(f"s_movk_i32 s{S_XT}, {tau * 128}")
        a(f"s_movk_i32 s{S_WM0}, {k % 4}")
        a(f"s_movk_i32 s{S_DX}, {(k // 2) % 3}")
        for i in range(2):
            a(f"v_add_u32 v{VXR+i}, {((k // 2) % 3) * 16384}, v{VXR+i}")
            a(f"v_add_u32 v{VWR+i}, {((k + 1) % 4) * 16384}, v{VWR+i}")
    def dyn_exit(k):
        for i in range(2):
            a(f"v_subrev_u32 v{VXR+i}, {((k // 2) % 3) * 16384}, v{VXR+i}")
            a(f"v_subrev_u32 v{VWR+i}, {((k + 1) % 4) * 16384}, v{VWR+i}")
    def dyn_step(p):
        fill = []
        if p == 0:
            fill.append([f"s_add_u32 m0, s{S_XM}, 49152", f"s_or_b32 s{S_XO}, s{S_XT}, {128*2048}",
                         f"buffer_load_dwordx4 v{VXD}, s[{SX}:{SX+3}], s{S_XO} offen lds"])
            fill.append([f"buffer_load_dwordx4 v{VXD+1}, s[{SX}:{SX+3}], s{S_XO} offen offset:1024 lds",
                         f"s_add_u32 s{S_XT}, s{S_XT}, 128", f"s_cmp_eq_u32 s{S_DX}, 0", f"s_movk_i32 s{T0}, 16384",
                         f"s_cselect_b32 s{T0}, {-32768 & 0xffffffff}, s{T0}", f"s_add_u32 s{S_XM}, s{S_XM}, s{T0}"])
        else:
            fill.append([f"s_mov_b32 m0, s{S_XM}", "s_nop 0", f"buffer_load_dwordx4 v{VXD}, s[{SX}:{SX+3}], s{S_XT} offen lds"])
            fill.append([f"buffer_load_dwordx4 v{VXD+1}, s[{SX}:{SX+3}], s{S_XT} offen offset:1024 lds"])
        fill.append([f"s_lshl_b32 s{T1}, s{S_WM0}, 14", f"s_add_u32 m0, s{S_MW}, s{T1}", f"s_add_u32 s{S_WM0}, s{S_WM0}, 1",
                     f"global_load_lds_dwordx4 {v(VWA,2)}, off", "s_add_u32 m0, m0, 2048",
                     f"v_lshl_add_u64 {v(VWA,2)}, {v(VWS,2)}, 0, {v(VWA,2)}"])
        fill.append([f"global_load_lds_dwordx4 {v(VWB,2)}, off", f"s_and_b32 s{S_WM0}, s{S_WM0}, 3",
                     f"v_lshl_add_u64 {v(VWB,2)}, {v(VWS,2)}, 0, {v(VWB,2)}"])
        q = p ^ 1
        rd = [[f"ds_read_b64_tr_b16 {v(wf(q,st,t)+2*half,2)}, v{VWR+t} offset:{st*8192 + half*4096}"] for st in range(2) for t in range(2) for half in range(2)]
        rd[-1] += [f"s_cmp_eq_u32 s{S_WM0}, 3", f"s_movk_i32 s{T0}, 16384", f"s_cselect_b32 s{T0}, {-49152 & 0xffffffff}, s{T0}",
                   f"v_add_u32 v{VWR}, s{T0}, v{VWR}", f"v_add_u32 v{VWR+1}, s{T0}, v{VWR+1}"]
        rd += [[f"ds_read_b128 {v(xf(q,j),4)}, v{VXR+q} offset:{j*2048}"] for j in range(8)]
        if p == 0:
            rd[-1] += [f"s_cmp_eq_u32 s{S_DX}, 2", f"s_movk_i32 s{T0}, 16384", f"s_cselect_b32 s{T0}, {-32768 & 0xffffffff}, s{T0}",
                       f"s_cselect_b32 s{S_DX}, -1, s{S_DX}", f"v_add_u32 v{VXR}, s{T0}, v{VXR}", f"v_add_u32 v{VXR+1}, s{T0}, v{VXR+1}",
                       f"s_add_u32 s{S_DX}, s{S_DX}, 1"]
        fill += rd
        if grp: fill = [[] for _ in range(P1SHIFT)] + fill
        m, fill = add_cs(p1_mfma(p), fill, p, grp)
        weave(a, m, fill)
        a("s_waitcnt vmcnt(8) lgkmcnt(0)")
        if p == 1:
            a(f"s_sub_u32 s{S_DW}, s{S_DW}, 1")
            a(f"s_cmp_lg_u32 s{S_DW}, 0")
        a("s_barrier")
    for s_ in range(32):
        p = s_ & 1
        h = (s_ + 1) & 1; tau = (s_ - 1 - h) // 2 + 3
        if LO <= s_ < HI:
            vm.add(2 * tau - 1, 2); vm.add(s_ + 3, 2)
            assert vm.wait(s_ + 1) == 8
            if s_ == LO:
                dyn_entry(LO)
                a(f"s_movk_i32 s{S_DW}, {(HI - LO) // 2}")
                a.raw(".p2align 6")
                a.label("P1_L" + G)
                dyn_step(0); dyn_step(1)
                a("s_cbranch_scc1 P1_L" + G)
                dyn_exit(HI)
            continue
        nstamp(a, f"s{s_}")
        fill = []
        if s_ == NS - 6:
            mark = len(vm.q)
            if not grp:
                fill.append([f"s_cmp_gt_u32 s{S_WAVE}, 1", "s_cbranch_scc1 P1_NP0", "v_mbcnt_lo_u32_b32 v16, -1, 0", "v_mbcnt_hi_u32_b32 v16, -1, v16", "v_lshlrev_b32 v16, 4, v16", f"v_add_u32 v16, s{S_PB}, v16", f"global_load_dwordx4 v[16:19], v16, s[{SFLAG}:{SFLAG+1}] sc1", "P1_NP0:"])
        if s_ == 1:
            if not grp:
                fill.append([f"s_cmp_lg_u32 s{S_WAVE}, 0", "s_cbranch_scc1 P1_NF", f"v_mov_b32 v16, s{NONCE}", f"v_mov_b32 v17, s{NONCE+1}", f"v_mov_b32 v18, s{S_CNT}",
                             "s_mov_b64 exec, 1", f"global_store_dwordx2 v18, v[16:17], s[{SFLAG}:{SFLAG+1}] sc1", "s_mov_b64 exec, -1", "P1_NF:"])
        if s_ == 0:
            fill += p1_dma_x(1, 1); vm.add(1, 2)
            fill += p1_dma_w(2); vm.add(1, 2)
            fill += p1_dma_w(3); vm.add(2, 2)
        if s_ + 4 == NS:
            fill.append([f"s_mov_b64 exec, s[{QMASK}:{QMASK+1}]", f"v_mov_b32 v{VWA}, v{VWP}", f"v_mov_b32 v{VWA+1}, v{VWP+1}",
                         f"v_mov_b32 v{VWS}, 512", f"v_lshl_add_u64 {v(VWB,2)}, {v(VWS,2)}, 0, {v(VWA,2)}", f"v_mov_b32 v{VWS}, 2048", "s_mov_b64 exec, -1"])
        if tau < 16:
            fill += p1_dma_x(h, tau); vm.add(2 * tau - 1, 2)
        if s_ + 4 < 32:
            fill += p1_dma_w(s_ + 4); vm.add(s_ + 3, 2)
        if WST and s_ % WST == WOFF and WPF + s_ // WST * (WST // 4) < 8:
            for _ in range(WST // 4):
                fill.append([f"s_add_u32 s{S_TW}, s{S_TW}, {128*7168}", f"s_addc_u32 s{S_TA}, s{S_TA}, 0", "s_mov_b64 exec, 0x7f",
                             f"global_load_dword v{VL}, v0, s[{S_TW}:{S_TA}]", "s_mov_b64 exec, -1"])
                vm.add(min(s_ + 4, 27), 1)
        if s_ == 27:
            fill.append([f"v_mbcnt_lo_u32_b32 v{VL}, -1, 0", f"v_mbcnt_hi_u32_b32 v{VL}, -1, v{VL}"])
            fill.append([f"v_lshlrev_b32 v{VKVD}, 4, v{VL}", f"s_lshr_b32 s{T0}, s2, 3", f"s_lshl_b32 s{T0}, s{T0}, 13", f"s_lshr_b32 s{T1}, s{S_MX}, 1", f"s_add_u32 s{T0}, s{T0}, s{T1}",
                         f"s_add_u32 s{T0}, s{T0}, 8192", f"buffer_load_dword v16, v{VKVD}, s[{SKV}:{SKV+3}], s{T0} offen"])
            vm.add(30, 1)
        if s_ == 29:
            fill.append([f"s_lshr_b32 s{T0}, s{S_MX}, 1", f"s_add_u32 m0, s{T0}, {STL}", "s_nop 0",
                         f"buffer_load_dwordx4 v{VKVD}, s[{SPART}:{SPART+3}], s{S_AO} offen lds"])
            vm.add(31, 1)
        if s_ == 30:
            fill.append([f"s_xor_b32 m0, s{S_MKV}, 0x4000", f"s_add_u32 s{T0}, s{S_KVO}, 8192",
                         f"buffer_load_dwordx4 v{VKVD}, s[{SKV}:{SKV+3}], s{T0} offen lds"])
            fill.append([f"buffer_load_dwordx4 v{VKVD}, s[{SKV}:{SKV+3}], s{T0} offen offset:1024 lds"])
            vm.add(99, 2)
        m = p1_mfma(p, s_ == 0)
        if s_ == 30:
            fill.append([f"v_lshlrev_b32 v{VKVD}, 4, v{VL}", f"v_lshrrev_b32 v{VQQ}, 4, v{VL}", f"v_and_b32 v{VT}, 15, v{VL}",
                         f"v_add_u32 v{VKVR}, {KVL}, v{VKVD}"])
            fill.append([f"v_lshlrev_b32 v0, 3, v{VT}", f"s_lshr_b32 s{T0}, s{S_MX}, 1", f"v_add_u32 v0, s{T0}, v0", f"v_add_u32 v{VWP}, s{S_MX}, v{VKVD}",
                         f"s_lshl_b32 s{T0}, s{S_WN}, 11", f"v_add_u32 v{VWP+1}, s{T0}, v{VKVD}"])
            if CSV:
                fill.append([f"s_lshl_b32 s{T0}, s{S_WAVE}, 7", f"v_lshlrev_b32 v28, 2, v{VT}", f"v_add_u32 v28, s{T0}, v28",
                             f"s_lshl_b32 s{T0}, s{S_WN}, 7", f"v_lshlrev_b32 v{VWP+1}, 4, v{VQQ}", f"v_add_u32 v{VWP+1}, s{T0}, v{VWP+1}"])
        if s_ < 31:
            fill += [[x] for x in p1_reads(s_ + 1)]
            if grp: fill = [[] for _ in range(P1SHIFT if len(fill) <= 26 else 0)] + fill
            m, fill = add_cs(m, fill, p, grp)
        elif CSV:
            vv = cs_valu(p, grp)
            fill = [vv[2*i:2*i+2] for i in range(16)]
            fill += [[f"v_add_f32 v{CS}, v{CS}, v{CS+1}", f"v_add_f32 v{CS+2}, v{CS+2}, v{CS+3}"]]
            for sw in ("v_permlane16_swap_b32", "v_permlane32_swap_b32"):
                fill += [[f"v_mov_b32 v{CS+1}, v{CS}", f"v_mov_b32 v{CS+3}, v{CS+2}"], ["s_nop 0", f"{sw} v{CS}, v{CS+1}", f"{sw} v{CS+2}, v{CS+3}"],
                         [f"v_add_f32 v{CS}, v{CS}, v{CS+1}", f"v_add_f32 v{CS+2}, v{CS+2}, v{CS+3}"]]
            fill += [[f"ds_write_b32 v28, v{CS} offset:{CSL}", f"ds_write_b32 v28, v{CS+2} offset:{CSL+64}"]]
            ex = kv_dma() + kv_dma() + [[f"buffer_load_dwordx2 {v(XF+2*j,2)}, v0, s[{SPART}:{SPART+3}], s{S_AO} offen offset:{j*128}"] for j in range(8)]
            for i, e in enumerate(ex): fill[i] = fill[i] + list(e)
        else:
            m = [cs_mfma(p, 0, grp), cs_mfma(p, 1, grp)] + m
            fill = [[f"s_mov_b32 m0, s{S_MKV}", "s_nop 0", f"buffer_load_dwordx4 v{VKVD}, s[{SKV}:{SKV+3}], s{S_KVO} offen lds"],
                    [f"buffer_load_dwordx4 v{VKVD}, s[{SKV}:{SKV+3}], s{S_KVO} offen offset:1024 lds", f"s_add_u32 s{S_KVO}, s{S_KVO}, 16384"]]
            fill += [[f"ds_read_b64 {v(XF+2*j,2)}, v0 offset:{STL + j*128}"] for j in range(8)] + [[], []]
            fill += [[f"ds_write_b128 v{VWP}, {v(CS+4*st,4)} offset:{CSL + st*1024}"] for st in range(2)]
        weave(a, m, fill)
        if s_ < 31:
            a(f"s_waitcnt vmcnt({vm.wait(s_ + 1)}) lgkmcnt(0)")
        else:
            a("s_waitcnt lgkmcnt(0)")
        if s_ == NS - 5 and not grp:
            n = f"s[{NONCE}:{NONCE+1}]"
            a(f"s_cmp_gt_u32 s{S_WAVE}, 1")
            a("s_cbranch_scc1 P1_NP1")
            a(f"s_waitcnt vmcnt({len(vm.q) - mark})")
            spin(a, [f"v_cmp_eq_u64 vcc, {n}, v[16:17]", f"v_cmp_eq_u64 s[{T2}:{T3}], {n}, v[18:19]", f"s_and_b64 vcc, vcc, s[{T2}:{T3}]"],
                 ["v_mbcnt_lo_u32_b32 v16, -1, 0", "v_mbcnt_hi_u32_b32 v16, -1, v16", "v_lshlrev_b32 v16, 4, v16", f"v_add_u32 v16, s{S_PB}, v16", f"global_load_dwordx4 v[16:19], v16, s[{SFLAG}:{SFLAG+1}] sc1"], sleep=8)
            a.label("P1_NP1")
        a("s_barrier")
def kv_dma():
    return [[f"s_mov_b32 m0, s{S_MKV}", f"s_xor_b32 s{S_MKV}, s{S_MKV}, 0x4000",
             f"buffer_load_dwordx4 v{VKVD}, s[{SKV}:{SKV+3}], s{S_KVO} offen lds"],
            [f"buffer_load_dwordx4 v{VKVD}, s[{SKV}:{SKV+3}], s{S_KVO} offen offset:1024 lds",
             f"s_add_u32 s{S_KVO}, s{S_KVO}, 8192"]]

QF, KB, VB, PB, SEL, RS, SB, OA, NM = 32, 40, 56, 72, 88, 92, 96, 128, 144
def mf32(d, x, y, c): return f"v_mfma_f32_32x32x16_bf16 {v(d,16)}, {v(x,4)}, {v(y,4)}, {c}"
def mfrs(p): return f"v_mfma_f32_16x16x32_bf16 {v(RS,4)}, {v(SEL,4)}, {v(p,4)}, {v(RS,4)}"
def att_slot(a, n, qk=True, pv=True, rd=True, pre=()):
    b = n & 1
    S = SB + 16 * b; S1 = SB + 16 * (b ^ 1)
    P = PB + 8 * b; P1 = PB + 8 * (b ^ 1)
    K1 = KB + 8 * (b ^ 1); V1 = VB + 8 * (b ^ 1)
    m = []
    if qk:
        m.append(mf32(S1, K1, QF, v(NM, 16)))
        m.append(mf32(S1, K1 + 4, QF + 4, v(S1, 16)))
    if pv:
        m += [mf32(OA, V1, P1, v(OA, 16)), mfrs(P1), mf32(OA, V1 + 4, P1 + 4, v(OA, 16)), mfrs(P1 + 4)]
    val = []
    for i in range(16):
        val.append(f"v_exp_f32 v{S+i}, v{S+i}")
        if i >= 2 and i % 2 == 0:
            val.append(f"v_cvt_pk_bf16_f32 v{P+i//2-1}, v{S+i-2}, v{S+i-1}")
    val.append("s_nop 0")
    val.append(f"v_cvt_pk_bf16_f32 v{P+7}, v{S+14}, v{S+15}")
    rds = []
    if rd:
        pos = (n & 3) * 2048
        rds = [f"ds_read_b128 {v(KB+8*b,4)}, v{VKVR} offset:{pos}",
               f"ds_read_b128 {v(KB+8*b+4,4)}, v{VKVR} offset:{pos+1024}",
               f"ds_read_b128 {v(VB+8*b,4)}, v{VKVR} offset:{8192+pos}",
               f"ds_read_b128 {v(VB+8*b+4,4)}, v{VKVR} offset:{8192+pos+1024}"]
    other = [list(g) for g in pre] + [[x] for x in rds]
    cuts = [0, 4, 9, 13, 16, 21][:len(m)]
    k = 0; oi = 0
    for i, x in enumerate(val):
        if k < len(m) and i == cuts[k]:
            a(m[k]); k += 1
            if oi < len(other):
                emit(a, [other[oi]]); oi += 1
        a(x)
        if i in (2, 6, 11) and oi < len(other) and len(other) > len(m):
            emit(a, [other[oi]]); oi += 1
    emit(a, other[oi:])
def prefill_dma():
    return [[f"s_add_u32 m0, s{S_RING}, s{T3}", "s_nop 0",
             f"buffer_load_dwordx4 v{VPA}, s[{SACT}:{SACT+3}], s{S_AO} offen lds",
             f"s_add_u32 s{S_AO}, s{S_AO}, 8192"],
            [f"s_add_u32 m0, m0, 8192", f"s_add_u32 s{S_RING}, s{S_RING}, 16384",
             f"buffer_load_dwordx4 v{VPW}, s[{SWD}:{SWD+3}], s{S_WDO} offen lds",
             f"s_add_u32 s{S_WDO}, s{S_WDO}, 65536"]]
def touch_w(n0):
    return [[f"s_add_u32 s{T0}, s{S_WAVE}, {n0}", f"s_lshl_b32 s{T0}, s{T0}, 17", f"s_add_u32 s{T0}, s{T0}, s{S_TW}",
             f"buffer_load_dword v{VDUM}, v{VTCH}, s[{SWD}:{SWD+3}], s{T0} offen"]]
def touch_a(m0):
    return [[f"s_add_u32 s{T0}, s{S_WAVE}, {m0}", f"s_lshl_b32 s{T0}, s{T0}, 15", f"s_add_u32 s{T0}, s{T0}, s{S_TA}",
             f"buffer_load_dword v{VDUM}, v{VTCH}, s[{SACT}:{SACT+3}], s{T0} offen"]]
def touch_wo():
    return [[f"s_lshl_b32 s{T0}, s2, 13", f"s_add_u32 s{T0}, s{T0}, s{T3}",
             f"buffer_load_dword v{VDUM}, v{VKVD}, s[{SWO}:{SWO+3}], s{T0} offen"]]
def h_store(j):
    off = (j >> 1) * 2048 + (j & 1) * 256
    tail = f"v{VHO + (off>>12)}, s[{SACT}:{SACT+3}], s{S_HO} offen offset:{off & 4095} sc1"
    return [[f"s_cmp_eq_u32 s{S_WN}, 3", f"s_cbranch_scc1 HS{j}A", f"buffer_store_dwordx4 {v(HS+4*j,4)}, {tail}",
             f"s_branch HS{j}B", f"HS{j}A:", f"buffer_store_dwordx2 {v(HS+4*j,2)}, {tail}", f"HS{j}B:"]]
def att_epoch(a, E, first=False, last=False, prefill=0, wait=0, post=None, pre_bar=None, x1=(), x2=(), x3=()):
    nstamp(a, f"e{E}a")
    a(f"s_waitcnt vmcnt({wait}) lgkmcnt(0)")
    if pre_bar: pre_bar()
    a("s_barrier")
    nstamp(a, f"e{E}c")
    if not first: a(f"v_xor_b32 v{VKVR}, 0x4000, v{VKVR}")
    if post: post()
    for i in range(4):
        pre = []
        if i == 0 and not last: pre += kv_dma()
        if i in (1, 2)[:prefill]: pre += prefill_dma()
        if i == 1: pre += list(x1)
        if i == 2: pre += list(x2)
        if i == 3: pre += list(x3)
        if i: a("s_waitcnt lgkmcnt(0)")
        att_slot(a, 4 * E + i, qk=not (last and i == 3), pv=not (first and i == 0), pre=pre)

def wave_sum(a, r, t):
    for mod in ("quad_perm:[1,0,3,2]", "quad_perm:[2,3,0,1]", "row_half_mirror", "row_mirror"):
        a("s_nop 1")
        a(f"v_add_f32_dpp v{r}, v{r}, v{r} {mod} row_mask:0xf bank_mask:0xf")
    for sw in ("v_permlane16_swap_b32", "v_permlane32_swap_b32"):
        a(f"v_mov_b32 v{t}, v{r}")
        a("s_nop 1")
        a(f"{sw} v{r}, v{t}")
        a(f"v_add_f32 v{r}, v{r}, v{t}")

def gen_p0(a, vm):
    VTR, VTW, VFR, VTA, VTB, VTX, VQS, VEX, VKS, VQD, VPF = 0, 20, 21, 22, 24, 26, 27, 28, 29, 30, 31
    A0, A1, A2, A3, A4, A5, A6, A7, TID = 100, 101, 102, 103, 104, 105, 106, 107, 108
    TL = 16384
    a(f"s_load_dwordx2 s[{P_X}:{P_X+1}], s[0:1], {K_X}")
    a(f"s_load_dwordx8 s[92:99], s[0:1], {K_WQ}")
    a(f"s_load_dwordx2 s[{P_WS}:{P_WS+1}], s[0:1], {K_WS}")
    a(f"s_load_dwordx8 s[36:43], s[0:1], {K_WG}")
    a(f"v_lshrrev_b32 v{A0}, 6, v0")
    a(f"v_and_b32 v{VL}, 63, v0")
    a(f"v_mov_b32 v{TID}, v0")
    a(f"v_readfirstlane_b32 s{S_WAVE}, v{A0}")
    a(f"v_lshlrev_b32 v{VKVD}, 4, v{VL}")
    a(f"s_lshr_b32 s{S_PB}, s2, 4")
    a(f"s_lshl_b32 s{S_PB}, s{S_PB}, 3")
    a(f"s_and_b32 s{T0}, s2, 7")
    a(f"s_add_u32 s{S_PB}, s{S_PB}, s{T0}")
    a(f"s_lshl_b32 s{T0}, s{S_PB}, 4")
    a(f"s_add_u32 s{S_AO}, s{T0}, s{S_WAVE}")
    a(f"s_lshl_b32 s{T0}, s{S_AO}, 11")
    a(f"s_add_u32 s{T1}, s{T0}, {8*2048}")
    a("s_waitcnt lgkmcnt(0)")
    if STOP == "p0": a("s_branch KM_FIN")
    srd(a, SX, P_X, P_X + 1, 4 << 20)
    a(f"buffer_load_dwordx4 v[32:35], v{VKVD}, s[{SX}:{SX+3}], s{T0} offen")
    a(f"buffer_load_dwordx4 v[36:39], v{VKVD}, s[{SX}:{SX+3}], s{T0} offen offset:1024")
    a(f"buffer_load_dwordx4 v[40:43], v{VKVD}, s[{SX}:{SX+3}], s{T1} offen")
    a(f"buffer_load_dwordx4 v[44:47], v{VKVD}, s[{SX}:{SX+3}], s{T1} offen offset:1024")
    nstamp(a, "xi")
    a(f"s_getpc_b64 s[{T2}:{T3}]")
    a.label("PF_BASE")
    a(f"s_lshr_b32 s{T0}, s2, 3")
    a(f"s_lshl_b32 s{T0}, s{T0}, 12")
    a(f"v_lshrrev_b32 v{VPF}, 3, v0")
    a(f"v_lshlrev_b32 v{VPF}, 6, v{VPF}")
    a(f"v_add_u32 v{VPF}, s{T0}, v{VPF}")
    a(f"v_min_u32 v{VPF}, KM_END - PF_BASE, v{VPF}")
    a(f"global_load_dword v18, v{VPF}, s[{T2}:{T3}]")
    a(f"s_add_u32 s{SFLAG}, s{P_WS}, {WS_FLAG}")
    a(f"s_addc_u32 s{SFLAG+1}, s{P_WS+1}, 0")
    a(f"s_load_dwordx2 s[{NONCE}:{NONCE+1}], s[{SFLAG}:{SFLAG+1}], {F_NONCE}")
    a(f"v_lshrrev_b32 v{VQQ}, 4, v{VL}")
    a(f"v_and_b32 v{VT}, 15, v{VL}")
    a(f"s_bfe_u32 s{S_ISV}, s2, 0x10003")
    a(f"s_and_b32 s{S_KH}, s2, 1")
    a(f"s_mov_b32 s{P_OUT}, s42")
    a(f"s_mov_b32 s{P_OUT+1}, s43")
    a(f"s_mov_b32 s{P_WO}, s98")
    a(f"s_mov_b32 s{P_WO+1}, s99")
    srd(a, SWD, 40, 41, 3584 * 2048)
    a(f"s_cmp_lt_u32 s{S_WAVE}, 4")
    a(f"s_cselect_b32 s{S_TW}, s36, s38")
    a(f"s_cselect_b32 s{S_TA}, s37, s39")
    if WPF:
        a(f"v_and_b32 v{A0}, 255, v0")
        a(f"v_min_u32 v{A0}, {28*WPF - 1}, v{A0}")
        a(f"v_lshlrev_b32 v{A0}, 7, v{A0}")
        a(f"s_mul_i32 s{T0}, s2, {3584*WPF}")
        a(f"v_add_u32 v{A0}, s{T0}, v{A0}")
        a(f"global_load_dword v18, v{A0}, s[{S_TW}:{S_TA}]")
    srd(a, SACT, 92, 93, 2 << 20)
    a(f"s_cmp_eq_u32 s{S_ISV}, 0")
    a(f"s_cselect_b32 s{SKV}, s94, s96")
    a(f"s_cselect_b32 s{SKV+1}, s95, s97")
    a(f"s_mov_b32 s{SKV+2}, 65536")
    a(f"s_mov_b32 s{SKV+3}, 0x20000")
    srd(a, SPART, P_WS, P_WS + 1, 8 << 20)
    a(f"s_lshr_b32 s{T0}, s2, 3")
    a(f"s_lshl_b32 s{S_RP}, s{S_KH}, 2")
    a(f"s_and_b32 s{T1}, s{T0}, 3")
    a(f"s_add_u32 s{S_RP}, s{S_RP}, s{T1}")
    a(f"s_bfe_u32 s{S_CT}, s2, 0x20001")
    a(f"s_lshl_b32 s{S_G}, s{S_CT}, 2")
    a(f"s_lshl_b32 s{S_CT}, s{S_CT}, 3")
    a(f"s_lshr_b32 s{S_C2}, s{T0}, 2")
    a(f"s_add_u32 s{S_CT}, s{S_CT}, s{S_C2}")
    a(f"s_add_u32 s{S_G}, s{S_G}, s{T1}")
    a(f"s_lshr_b32 s{S_WM}, s{S_WAVE}, 2")
    a(f"s_and_b32 s{S_P}, s{S_WAVE}, 1")
    a(f"s_bfe_u32 s{S_BB}, s{S_WAVE}, 0x10001")
    a(f"s_and_b32 s{S_WN}, s{S_WAVE}, 3")
    a(f"s_lshl_b32 s{S_MX}, s{S_WAVE}, 11")
    a(f"v_bfe_u32 v{A0}, v{VL}, 1, 2")
    a(f"v_and_b32 v{A1}, 1, v{VL}")
    a(f"v_lshrrev_b32 v{A2}, 3, v{TID}")
    a(f"v_lshlrev_b32 v{VQS}, 11, v{A0}")
    a(f"v_lshl_add_u32 v{VQS}, v{A2}, 5, v{VQS}")
    a(f"v_lshl_add_u32 v{VQS}, v{A1}, 4, v{VQS}")
    a(f"v_lshrrev_b32 v{A3}, 1, v{A2}")
    a(f"v_lshlrev_b32 v{VQD}, 16, v{A3}")
    a(f"v_and_b32 v{A3}, 1, v{A2}")
    a(f"v_lshl_add_u32 v{VQD}, v{A3}, 10, v{VQD}")
    a(f"v_lshl_add_u32 v{VQD}, v{A0}, 5, v{VQD}")
    a(f"v_lshl_add_u32 v{VQD}, v{A1}, 4, v{VQD}")
    a(f"v_lshrrev_b32 v{VEX}, 1, v{VL}")
    a(f"v_lshlrev_b32 v{VEX}, 6, v{VEX}")
    a(f"v_lshl_add_u32 v{VEX}, v{A1}, 4, v{VEX}")
    a(f"v_and_b32 v{A0}, 7, v{A2}")
    a(f"s_lshl_b32 s{T0}, s{S_WAVE}, 4")
    a(f"v_add_u32 v{A0}, s{T0}, v{A0}")
    a(f"v_lshlrev_b32 v{A0}, 11, v{A0}")
    a(f"v_and_b32 v{A1}, 7, v{VL}")
    a(f"v_xor_b32 v{A1}, v{A1}, v{VQQ}")
    a(f"v_lshl_add_u32 v{VXD}, v{A1}, 4, v{A0}")
    a(f"v_xor_b32 v{VXD+1}, 64, v{VXD}")
    a(f"v_add_u32 v{VXD+1}, {8*2048 - 1024}, v{VXD+1}")
    a(f"s_add_u32 s{T0}, s{T0}, {TL}")
    a(f"v_lshlrev_b32 v{VTW}, 8, v{VL}")
    a(f"v_add_u32 v{VTW}, s{T0}, v{VTW}")
    a(f"s_lshl_b32 s{T0}, s{S_RP}, 19")
    srd(a, SX, P_X, P_X + 1, 512 << 10, add_lo=f"s{T0}")
    a(f"v_lshrrev_b32 v{VTX}, 4, v{TID}")
    a(f"v_lshlrev_b32 v{VTX}, 11, v{VTX}")
    a(f"v_lshl_add_u32 v{VTX}, v{VT}, 7, v{VTX}")
    a(f"s_lshl_b32 s{T0}, s{S_C2}, 16")
    a(f"v_add_u32 v{VTX}, s{T0}, v{VTX}")
    a(f"s_lshl_b32 s{S_MW}, s{S_BB}, 2")
    a(f"s_add_u32 s{S_MW}, s{S_MW}, s{S_P}")
    a(f"s_lshl_b32 s{S_MW}, s{S_MW}, 10")
    a(f"s_lshl_b32 s{T0}, s{S_WM}, 13")
    a(f"s_add_u32 s{S_MW}, s{S_MW}, s{T0}")
    a(f"s_add_u32 s{S_MW}, s{S_MW}, {WLDS}")
    a(f"s_lshl_b32 s{T0}, s{S_P}, 3")
    a(f"s_lshl_b32 s{T1}, s{S_BB}, 2")
    a(f"s_add_u32 s{T0}, s{T0}, s{T1}")
    a(f"v_add_u32 v{A0}, s{T0}, v{VQQ}")
    a(f"s_lshl_b32 s{T0}, s{S_P}, 2")
    a(f"v_add_u32 v{A1}, s{T0}, v{VQQ}")
    a(f"v_lshlrev_b32 v{A1}, 1, v{A1}")
    a(f"v_xor_b32 v{A1}, v{A1}, v{VT}")
    a(f"v_lshlrev_b32 v{A2}, 4, v{A1}")
    a(f"v_subrev_u32 v{A3}, 192, v{A2}")
    a(f"v_add_u32 v{A4}, 32, v{A2}")
    a(f"v_cmp_le_u32 vcc, 12, v{A1}")
    a(f"v_cmp_le_u32 s[{QMASK}:{QMASK+1}], 14, v{A1}")
    a(f"s_and_b32 s{T0}, s{S_CT}, 1")
    a(f"s_cmp_eq_u32 s{T0}, 1")
    a(f"v_cndmask_b32 v{A3}, v{A4}, v{A3}, vcc")
    a(f"s_cselect_b64 s[{T2}:{T3}], -1, 0")
    a(f"v_cndmask_b32 v{A3}, v{A2}, v{A3}, s[{T2}:{T3}]")
    a(f"s_mul_i32 s{T0}, s{S_CT}, 224")
    if os.environ.get("X_ALIGN"):
        a(f"s_min_u32 s{T0}, s{S_CT}, 27"); a(f"s_lshl_b32 s{T0}, s{T0}, 8"); a(f"v_mov_b32 v{A3}, v{A2}")
    a(f"v_add_u32 v{A3}, s{T0}, v{A3}")
    a(f"v_mov_b32 v{A5}, 7168")
    a(f"v_mad_u32_u24 v{A3}, v{A0}, v{A5}, v{A3}")
    a(f"s_lshl_b32 s{T0}, s{S_CT}, 6")
    a(f"s_lshl_b32 s{T1}, s{S_WM}, 5")
    a(f"s_add_u32 s{T0}, s{T0}, s{T1}")
    a(f"v_and_b32 v{A2}, 16, v{A2}")
    a(f"v_add_u32 v{A4}, s{T0}, v{A2}")
    a(f"v_lshl_add_u32 v{A4}, v{A0}, 11, v{A4}")
    a(f"v_mov_b32 v{A0}, 2048")
    a(f"v_cndmask_b32 v{A3}, v{A3}, v{A4}, s[{QMASK}:{QMASK+1}]")
    a(f"v_cndmask_b32 v{A5}, v{A5}, v{A0}, s[{QMASK}:{QMASK+1}]")
    a(f"v_mov_b32 v{A0}, s92")
    a(f"v_mov_b32 v{A1}, s93")
    a(f"v_mov_b32 v{A6}, s{S_TW}")
    a(f"v_mov_b32 v{A7}, s{S_TA}")
    a(f"v_cndmask_b32 v{A6}, v{A6}, v{A0}, s[{QMASK}:{QMASK+1}]")
    a(f"v_cndmask_b32 v{A7}, v{A7}, v{A1}, s[{QMASK}:{QMASK+1}]")
    a(f"v_lshlrev_b32 v{VWS}, 5, v{A5}")
    a(f"v_mov_b32 v{VWS+1}, 0")
    a(f"v_add_co_u32 v{VWA}, vcc, v{A3}, v{A6}")
    a(f"v_lshlrev_b32 v{A4}, 4, v{A5}")
    a(f"v_mov_b32 v{A5}, 0")
    a(f"v_addc_co_u32 v{VWA+1}, vcc, 0, v{A7}, vcc")
    a(f"v_lshl_add_u64 {v(VWB,2)}, {v(A4,2)}, 0, {v(VWA,2)}")
    a(f"s_and_b32 s{T0}, s{S_RP}, 3")
    a(f"s_add_u32 s{T0}, s{T0}, 2")
    a(f"v_mul_lo_u32 v{A4}, v{VWS}, s{T0}")
    a(f"v_lshl_add_u64 {v(VTA,2)}, {v(A4,2)}, 0, {v(VWA,2)}")
    a(f"v_lshl_add_u64 {v(VTB,2)}, {v(A4,2)}, 0, {v(VWB,2)}")
    a(f"s_lshl_b32 s{T0}, s{S_CT}, 16")
    a(f"s_lshl_b32 s{T1}, s{S_WM}, 10")
    a(f"s_add_u32 s{T0}, s{T0}, s{T1}")
    a(f"s_lshl_b32 s{T1}, s{S_P}, 8")
    a(f"s_add_u32 s{T0}, s{T0}, s{T1}")
    a(f"s_lshl_b32 s{T1}, s{S_BB}, 7")
    a(f"s_add_u32 s{T0}, s{T0}, s{T1}")
    a(f"s_add_u32 s{T0}, s{T0}, {WS_WQP + NS*2048}")
    a(f"s_add_u32 s{T0}, s{T0}, s{P_WS}")
    a(f"s_addc_u32 s{T1}, s{P_WS+1}, 0")
    a(f"v_lshl_add_u32 v{A4}, v{VQQ}, 5, v{A2}")
    a(f"v_lshl_add_u64 {v(VWP,2)}, {v(A4,2)}, 0, s[{T0}:{T1}]")
    srd(a, SWO, P_WO, P_WO + 1, 1024 * 2048)
    a(f"v_lshrrev_b32 v{A0}, 1, v{VT}")
    a(f"v_xor_b32 v{A0}, v{A0}, v{VQQ}")
    a(f"v_lshlrev_b32 v{A0}, 4, v{A0}")
    a(f"v_lshl_add_u32 v{A0}, v{VT}, 7, v{A0}")
    a(f"s_mul_i32 s{T0}, s{S_WM}, 49152")
    a(f"v_add_u32 v{VXR}, s{T0}, v{A0}")
    a(f"v_xor_b32 v{VXR+1}, 64, v{VXR}")
    a(f"v_lshrrev_b32 v{A3}, 2, v{VT}")
    a(f"v_lshl_add_u32 v{A0}, v{VQQ}, 2, v{A3}")
    a(f"v_and_b32 v{A1}, 7, v{A0}")
    a(f"s_lshl_b32 s{T0}, s{S_WN}, 1")
    a(f"v_xor_b32 v{A1}, s{T0}, v{A1}")
    a(f"v_lshlrev_b32 v{A1}, 5, v{A1}")
    a(f"v_lshl_add_u32 v{A1}, v{A0}, 8, v{A1}")
    a(f"v_and_b32 v{A2}, 3, v{VL}")
    a(f"v_lshl_add_u32 v{A1}, v{A2}, 3, v{A1}")
    a(f"v_add_u32 v{VWR}, {WLDS}, v{A1}")
    a(f"v_xor_b32 v{VWR+1}, 32, v{VWR}")
    a(f"s_lshl_b32 s{S_KVO}, s{S_WN}, 11")
    a(f"s_cmp_eq_u32 s{S_WM}, 0")
    a(f"s_movk_i32 s{T0}, 4096")
    a(f"s_cselect_b32 s{T0}, s{T0}, 0x20000")
    a(f"s_add_u32 s{S_KVO}, s{S_KVO}, s{T0}")
    a(f"s_add_u32 s{S_MKV}, s{S_MX}, {KVL + 0x4000}")
    a(f"s_lshr_b32 s{T0}, s{S_WAVE}, 1")
    a(f"s_lshl_b32 s{T1}, s{T0}, 13")
    a(f"s_add_u32 s{T1}, s{T1}, {TL}")
    a(f"v_add_u32 v{VFR}, s{T1}, v{VKVD}")
    a(f"s_lshl_b32 s{T0}, s{T0}, 14")
    a(f"s_lshl_b32 s{T1}, s{S_WM}, 15")
    a(f"s_add_u32 s{T0}, s{T0}, s{T1}")
    a(f"s_lshl_b32 s{T1}, s{S_P}, 5")
    a(f"s_add_u32 s{T1}, s{T1}, 0x10000")
    a(f"s_add_u32 s{T0}, s{T0}, s{T1}")
    a(f"v_lshl_add_u32 v{VTR}, v{VQQ}, 3, v{A3}")
    a(f"v_lshlrev_b32 v{VTR}, 6, v{VTR}")
    a(f"v_lshl_add_u32 v{VTR}, v{A2}, 3, v{VTR}")
    a(f"v_add_u32 v{VTR}, s{T0}, v{VTR}")
    a(f"v_add_u32 v{VEX}, s{T0}, v{VEX}")
    a(f"s_lshr_b32 s{S_WDO}, s{S_PB}, 1")
    a(f"s_lshl_b32 s{S_WDO}, s{S_WDO}, 11")
    a(f"s_and_b32 s{T0}, s{S_PB}, 1")
    a(f"s_lshl_b32 s{T1}, s{T0}, 8")
    a(f"s_lshl_b32 s{T2}, s{S_P}, 3")
    a(f"s_add_u32 s{T1}, s{T1}, s{T2}")
    a(f"s_lshl_b32 s{T0}, s{T0}, 10")
    a(f"s_lshl_b32 s{T2}, s{S_P}, 8")
    a(f"s_add_u32 s{T0}, s{T0}, s{T2}")
    a(f"s_add_u32 s{T0}, s{T0}, 0x20000")
    a(f"s_cmp_eq_u32 s{S_ISV}, 0")
    a(f"s_cselect_b32 s{T0}, s{T1}, s{T0}")
    a(f"s_cselect_b64 vcc, -1, 0")
    a(f"s_add_u32 s{S_WDO}, s{S_WDO}, s{T0}")
    a(f"s_add_u32 s{S_WDO}, s{S_WDO}, 8192")
    a(f"v_lshlrev_b32 v{A0}, 9, v{VQQ}")
    a(f"v_and_b32 v{A1}, 512, v{A0}")
    a(f"v_lshrrev_b32 v{A2}, 1, v{VQQ}")
    a(f"v_lshl_add_u32 v{A1}, v{A2}, 3, v{A1}")
    a(f"v_cndmask_b32 v{A0}, v{A1}, v{A0}, vcc")
    a(f"v_lshl_add_u32 v{VKS}, v{VT}, 4, v{A0}")
    a(f"s_lshl_b32 s{S_AO}, s{S_AO}, 3")
    a(f"s_lshr_b32 s{S_CNT}, s2, 3")
    a(f"s_lshl_b32 s{S_CNT}, s{S_CNT}, 11")
    a(f"s_and_b32 s{T0}, s2, 7")
    a(f"s_lshl_b32 s{T0}, s{T0}, 7")
    a(f"s_add_u32 s{S_CNT}, s{S_CNT}, s{T0}")
    a(f"s_add_u32 s{S_CNT}, s{S_CNT}, {WS_WQP}")
    nstamp(a, "su")
    a(f"s_lshl_b32 s{S_RING}, s{S_WAVE}, 13")
    a(f"s_lshl_b32 s{T1}, s{S_WM}, 15")
    a(f"s_add_u32 s{T1}, s{T1}, 0x10000")
    a(f"s_add_u32 s{T1}, s{T1}, s{S_RING}")
    for h in range(2):
        a(f"s_add_u32 m0, s{T1}, {h*4096}")
        a(f"s_add_u32 s{T0}, s{S_RING}, {h*4096}")
        for i in range(4):
            a(f"buffer_load_dwordx4 v{VKVD}, s[{SKV}:{SKV+3}], s{T0} offen offset:{i*1024} lds")
    def tiles(lo, hi):
        if lo < 1 <= hi: emit(a, p1_dma_x(0, 0) + p1_dma_x(1, 0)); vm.add(-1, 4)
        if lo < 2 <= hi:
            emit(a, p1_dma_w(0)); vm.add(-1, 2)
            emit(a, p1_dma_w(1)); vm.add(0, 2)
    tiles(0, TE)
    a(f"s_lshl_b32 s{T2}, s2, 13")
    a(f"buffer_load_dwordx4 v[48:51], v{VQS}, s[{SACT}:{SACT+3}], s{T2} offen")
    vm.add(99, 1)
    a(f"s_mov_b32 s{T3}, 0xffff0000")
    a(f"s_waitcnt vmcnt({9 + (WPF > 0) + len(vm.q)})")
    nstamp(a, "xl")
    def ln(r):
        o = []
        I = 32 + 8 * r; X = 64 + 32 * r; C = X + 16; A_ = 52 + 6 * r
        M = A_ + 4
        def wsum(x, t):
            for mod in ("quad_perm:[1,0,3,2]", "quad_perm:[2,3,0,1]", "row_half_mirror", "row_mirror"):
                o.append("NOP2"); o.append(f"v_add_f32_dpp v{x}, v{x}, v{x} {mod} row_mask:0xf bank_mask:0xf")
            for sw in ("v_permlane16_swap_b32", "v_permlane32_swap_b32"):
                o.append(f"v_mov_b32 v{t}, v{x}"); o.append("NOP2"); o.append(f"{sw} v{x}, v{t}"); o.append(f"v_add_f32 v{x}, v{x}, v{t}")
        def rbf(x):
            o.append(f"v_cvt_pk_bf16_f32 v{x}, v{x}, v{x}"); o.append(f"v_and_b32 v{x}, s{T3}, v{x}")
        for k in range(8):
            o.append(f"v_lshlrev_b32 v{X+2*k}, 16, v{I+k}"); o.append(f"v_and_b32 v{X+2*k+1}, s{T3}, v{I+k}")
        o.append(f"v_pk_add_f32 {v(A_,2)}, {v(X,2)}, {v(X+2,2)}"); o.append(f"v_pk_add_f32 {v(A_+2,2)}, {v(X+4,2)}, {v(X+6,2)}")
        for k in (4, 6):
            o.append(f"v_pk_add_f32 {v(A_,2)}, {v(A_,2)}, {v(X+2*k,2)}"); o.append(f"v_pk_add_f32 {v(A_+2,2)}, {v(A_+2,2)}, {v(X+2*k+2,2)}")
        o.append(f"v_pk_add_f32 {v(A_,2)}, {v(A_,2)}, {v(A_+2,2)}"); o.append(f"v_add_f32 v{A_}, v{A_}, v{A_+1}")
        wsum(A_, A_ + 1)
        o.append(f"v_mul_f32 v{M}, 0xba800000, v{A_}")
        for k in range(8): o.append(f"v_pk_add_f32 {v(C+2*k,2)}, {v(X+2*k,2)}, {v(M,2)} op_sel_hi:[1,0]")
        o.append(f"v_pk_mul_f32 {v(A_,2)}, {v(C,2)}, {v(C,2)}"); o.append(f"v_pk_mul_f32 {v(A_+2,2)}, {v(C+2,2)}, {v(C+2,2)}")
        for k in range(2, 8):
            q = A_ + 2 * (k % 2); o.append(f"v_pk_fma_f32 {v(q,2)}, {v(C+2*k,2)}, {v(C+2*k,2)}, {v(q,2)}")
        o.append(f"v_pk_add_f32 {v(A_,2)}, {v(A_,2)}, {v(A_+2,2)}"); o.append(f"v_add_f32 v{A_}, v{A_}, v{A_+1}")
        rbf(M)
        wsum(A_, A_ + 1)
        for k in range(8): o.append(f"v_pk_add_f32 {v(C+2*k,2)}, {v(X+2*k,2)}, {v(M,2)} op_sel_hi:[1,0]")
        o.append(f"v_mul_f32 v{A_}, 0x3a800000, v{A_}"); rbf(A_)
        o.append(f"v_add_f32 v{A_}, 0x3727c5ac, v{A_}"); rbf(A_)
        o.append(f"v_sqrt_f32 v{A_}, v{A_}"); o.append("NOP1"); rbf(A_)
        o.append(f"v_rcp_f32 v{M+1}, v{A_}"); o.append("NOP1")
        for k in range(8): o.append(f"v_pk_mul_f32 {v(C+2*k,2)}, {v(C+2*k,2)}, {v(M,2)} op_sel:[0,1] op_sel_hi:[1,1]")
        for k in range(8): o.append(f"v_cvt_pk_bf16_f32 v{I+k}, v{C+2*k}, v{C+2*k+1}")
        return o
    for x0, x1 in zip(ln(0), ln(1)):
        if x0 == "NOP2": a("s_nop 0")
        elif x0 == "NOP1": pass
        else:
            a(x0); a(x1)
    nstamp(a, "ln")
    for r in range(2):
        a(f"ds_write_b128 v{VTW}, {v(32+8*r,4)} offset:{r*128}")
        a(f"ds_write_b128 v{VTW}, {v(36+8*r,4)} offset:{16384 + r*128}")
    a("s_mov_b64 exec, 1")
    a(f"buffer_store_dwordx2 v[56:57], v{VKVD}, s[{SPART}:{SPART+3}], s{S_AO} offen sc1")
    a(f"buffer_store_dwordx2 v[62:63], v{VKVD}, s[{SPART}:{SPART+3}], s{S_AO} offen offset:64 sc1")
    a("s_mov_b64 exec, -1")
    vm.add(99, 2)
    q0 = len(vm.q)
    tiles(TE, 2)
    nstamp(a, "ti")
    srd(a, SACT, P_WS, P_WS + 1, 16 * ACT_NU * 8192, add_lo=WS_ACT)
    srd(a, SKV, P_WS, P_WS + 1, (256 << 10) + 32768, add_lo=WS_KV - 8192)
    a(f"s_waitcnt vmcnt({len(vm.q)}) lgkmcnt(0)")
    a(f"s_add_u32 s{NONCE}, s{NONCE}, 0x9e3779b9")
    a(f"s_add_u32 s{NONCE+1}, s{NONCE+1}, 0x85ebca6b")
    a("s_barrier")
    nstamp(a, "b1")
    for u in range(8):
        a(f"ds_read_b128 {v(64+4*u,4)}, v{VFR} offset:{u*1024}")
        for h in range(2):
            a(f"ds_read_b64_tr_b16 {v(96+4*u+2*h,2)}, v{VTR} offset:{u*2048 + h*256}")
    a(f"global_load_dword v18, {v(VTA,2)}, off")
    a(f"global_load_dword v18, {v(VTB,2)}, off")
    mk_ = (((1 << XL) - 1) << 1) * 0x10001
    a(f"s_mov_b32 exec_lo, {mk_}")
    a(f"s_mov_b32 exec_hi, {mk_}")
    a(f"buffer_load_dword v18, v{VTX}, s[{SX}:{SX+3}], 0 offen")
    a("s_mov_b64 exec, -1")
    vm.add(99, 3)
    a(f"s_waitcnt vmcnt({len(vm.q) - q0 + 2})")
    a(f"buffer_store_dwordx4 v[48:51], v{VQD}, s[{SPART}:{SPART+3}], s{S_CNT} offen sc1")
    vm.add(99, 1)
    a(f"s_cmp_lg_u32 s{S_ISV}, 0")
    a("s_cbranch_scc1 P0_V")
    for isv in range(2):
        if isv: a.label("P0_V")
        for u in range(8):
            a(f"s_waitcnt lgkmcnt({min(15, 3*(7-u))})")
            x = 64 + 4 * u; w = 96 + 4 * u; d = (20, 24)[u & 1]
            c = "0" if u < 2 else v(d, 4)
            ab = (x, w) if isv else (w, x)
            a(f"v_mfma_f32_16x16x32_bf16 {v(d,4)}, {v(ab[0],4)}, {v(ab[1],4)}, {c}")
        if not isv: a("s_branch P0_MD")
    a.label("P0_MD")
    srd(a, SPART, P_WS, P_WS + 1, 16384, add_lo=WS_ST)
    a("s_nop 3")
    a("v_pk_add_f32 v[20:21], v[20:21], v[24:25]")
    a("v_pk_add_f32 v[22:23], v[22:23], v[26:27]")
    a(f"ds_write_b128 v{VEX}, v[20:23]")
    a(f"s_waitcnt vmcnt({vm.wait(-1)}) lgkmcnt(0)")
    a("s_barrier")

def p0_finish(a):
    a(f"s_cmp_gt_u32 s{S_WAVE}, 1")
    a("s_cbranch_scc1 P0_KVD")
    a("v_add_u32 v30, 0x10000, v28")
    a("ds_read_b128 v[24:27], v28 offset:16384")
    a("ds_read_b128 v[48:51], v30")
    a("ds_read_b128 v[52:55], v30 offset:16384")
    a("s_waitcnt lgkmcnt(0)")
    for h in (0, 2):
        a(f"v_pk_add_f32 {v(20+h,2)}, {v(20+h,2)}, {v(24+h,2)}")
        a(f"v_pk_add_f32 {v(48+h,2)}, {v(48+h,2)}, {v(52+h,2)}")
        a(f"v_pk_add_f32 {v(20+h,2)}, {v(20+h,2)}, {v(48+h,2)}")
    a("v_cvt_pk_bf16_f32 v20, v20, v21")
    a("v_cvt_pk_bf16_f32 v21, v22, v23")
    a(f"buffer_store_dwordx2 v[20:21], v29, s[{SKV}:{SKV+3}], s{S_WDO} offen sc1")
    a.label("P0_KVD")

def gen(a):
    kernel_head(a, NAME)
    a("s_cmp_ge_u32 s2, 256")
    a("s_cbranch_scc1 KM_END")
    stamp(a, 0)
    vm = VM()
    gen_p0(a, vm)
    nstamp(a, "fl")
    stamp(a, 1)
    for x in p1_reads(0): a(x)
    emit(a, p1_dma_x(0, 1)); vm.add(1, 2)
    p0_finish(a)
    vm.add(1)
    emit(a, p1_dma_x(0, 2)); vm.add(3, 2)
    a(f"s_lshl_b32 s{S_CNT}, s2, 3")
    a(f"s_add_u32 s{S_CNT}, s{S_CNT}, {F_KV}")
    a(f"s_lshl_b32 s{S_PB}, s{S_P}, 10")
    a(f"s_add_u32 s{S_PB}, s{S_PB}, {F_KV}")
    a(f"s_mul_i32 s{T0}, s{S_WN}, {7*128}")
    a(f"s_mul_i32 s{T1}, s2, 3584")
    a(f"s_add_u32 s{T0}, s{T0}, s{T1}")
    a(f"s_add_u32 s{T0}, s{T0}, {(WPF - 1) * 128 * 7168}")
    a(f"v_lshlrev_b32 v0, 3, v{VKVD}")
    a(f"v_add_u32 v0, s{T0}, v0")
    a(f"s_lshl_b32 s{S_AO}, s{S_RP}, 1")
    a(f"s_add_u32 s{S_AO}, s{S_AO}, s{S_WM}")
    a(f"s_lshl_b32 s{S_AO}, s{S_AO}, 10")
    for i in range(4): a(f"v_mov_b32 v{ONES+i}, 0x3f803f80")
    for i in range(8): a(f"v_mov_b32 v{CS+i}, 0")
    a(f"s_waitcnt vmcnt({vm.wait(0) - 1}) lgkmcnt(0)")
    a("s_barrier")
    nstamp(a, "p1s")
    a(f"s_cmp_lg_u32 s{S_WM}, 0")
    a("s_cbranch_scc1 P1_B")
    if PR1 < 0: a(f"s_setprio {-PR1}")
    gen_p1(a, 0, vm)
    a("s_branch P1_END")
    a.label("P1_B")
    if PR1 > 0: a(f"s_setprio {PR1}")
    gen_p1(a, 1, vm)
    a.label("P1_END")
    if PR1: a("s_setprio 0")
    stamp(a, 2)
    nstamp(a, "p1e")
    if STOP == "p1": a("s_branch KM_FIN")
    CSR = XF + 16
    for t in range(2):
        for st in range(2):
            a(f"ds_read_b128 {v(CSR+(st*2+t)*4,4)}, v{VWP+1} offset:{CSL + (t*512 + st*64 if CSV else t*8192 + st*1024)}")
    a(f"v_lshlrev_b32 v{VHO}, 9, v{VQQ}")
    a(f"v_lshl_add_u32 v{VHO}, v{VT}, 4, v{VHO}")
    a(f"v_add_u32 v{VHO+1}, 0x1000, v{VHO}")
    a(f"s_lshr_b32 s{T0}, s{S_CT}, 1")
    a(f"s_mul_i32 s{T0}, s{T0}, 7")
    a(f"s_and_b32 s{T1}, s{S_CT}, 1")
    a(f"s_lshl_b32 s{T2}, s{T1}, 2")
    a(f"s_add_u32 s{T2}, s{T2}, s{S_WN}")
    a(f"s_cmp_eq_u32 s{S_WN}, 3")
    a(f"s_cselect_b32 s{T2}, 3, s{T2}")
    a(f"s_add_u32 s{T0}, s{T0}, s{T2}")
    a(f"s_lshl_b32 s{T2}, s{S_RP}, 1")
    a(f"s_add_u32 s{T2}, s{T2}, s{S_WM}")
    a(f"s_mul_i32 s{T3}, s{T2}, {ACT_NU}")
    a(f"s_add_u32 s{T0}, s{T0}, s{T3}")
    a(f"s_lshl_b32 s{S_HO}, s{T0}, 13")
    a(f"s_lshl_b32 s{S_XO}, s{S_RP}, 8")
    a(f"s_lshl_b32 s{T3}, s{S_CT}, 3")
    a(f"s_add_u32 s{S_XO}, s{S_XO}, s{T3}")
    a(f"s_add_u32 s{S_XO}, s{S_XO}, {F_H}")
    a("s_waitcnt lgkmcnt(0)")
    for j in range(8): a(f"v_mul_f32 v{XF+32+j}, v{XF+2*j+1}, v{XF+2*j+1}")
    a(f"s_cmp_eq_u32 s{S_WN}, 3")
    a("s_cbranch_scc1 P1_EP3")
    def center(st, t, j):
        g = acc(st, t, j); c = CSR + (st * 2 + t) * 4
        for i in (0, 2): a(f"v_pk_fma_f32 {v(g+i,2)}, {v(c+i,2)}, {v(XF+2*j,2)}, {v(g+i,2)} op_sel_hi:[1,0,1]")
    def hpair(t, j):
        g = acc(0, t, j); u = acc(1, t, j); dst = HS + 4 * j + 2 * t
        r2 = XF + 32 + (j & ~1); sel = "op_sel:[0,1] op_sel_hi:[1,1]" if j & 1 else "op_sel_hi:[1,0]"
        center(0, t, j); center(1, t, j)
        for i in range(4): a(f"v_max_f32 v{g+i}, 0, v{g+i}")
        for i in (0, 2): a(f"v_pk_mul_f32 {v(u+i,2)}, {v(u+i,2)}, {v(r2,2)} {sel}")
        for i in (0, 2): a(f"v_pk_mul_f32 {v(g+i,2)}, {v(g+i,2)}, {v(u+i,2)}")
        for i in (2, 0): a(f"v_cvt_pk_bf16_f32 v{dst+i//2}, v{g+i}, v{g+i+1}")
    def hst(j, n):
        off = (j >> 1) * 2048 + (j & 1) * 256
        a(f"buffer_store_dwordx{n} {v(HS+4*j,n)}, v{VHO + (off>>12)}, s[{SACT}:{SACT+3}], s{S_HO} offen offset:{off & 4095} sc1")
    for j in range(8):
        hpair(1, j); hpair(0, j)
        if j % HSTEP == 0 and j // HSTEP < NE: hst(j // HSTEP, 4)
    a("s_branch P1_EPD")
    a.label("P1_EP3")
    a(f"s_lshl_b32 s{S_CNT}, s{S_WM}, 13")
    a(f"v_add_u32 v24, s{S_CNT}, v{VHO}")
    for j in range(8): a(f"v_mul_f32 v{XF+2*j+1}, {QSCALE}, v{XF+2*j+1}")
    for j in range(8):
        tmp = XF + 40 + 4 * (j & 3)
        for st in range(2):
            g = acc(st, 1, j)
            center(st, 1, j)
            for i in (0, 2): a(f"v_pk_mul_f32 {v(g+i,2)}, {v(g+i,2)}, {v(XF+2*j,2)} op_sel:[0,1] op_sel_hi:[1,1]")
            for i in (0, 2): a(f"v_cvt_pk_bf16_f32 v{tmp+2*st+i//2}, v{g+i}, v{g+i+1}")
        a(f"ds_write_b128 v24, {v(tmp,4)} offset:{QLDS + (j>>1)*2048 + (j&1)*256}")
    a(f"s_lshl_b32 s{T1}, s{T1}, 3")
    a(f"s_add_u32 s{S_HO}, s{S_HO}, s{T1}")
    for j in range(8):
        hpair(0, j)
        if j % HSTEP == 0 and j // HSTEP < NE: hst(j // HSTEP, 2)
    a.label("P1_EPD")
    srd(a, SPART, P_WS, P_WS + 1, 8 << 20, add_lo=WS_PART)
    a(f"s_lshl_b32 s{T3}, s{S_WAVE}, 10")
    a(f"v_add_u32 v{VPA}, s{T3}, v{VKVD}")
    a(f"v_lshlrev_b32 v3, 1, v{VQQ}")
    a(f"v_xor_b32 v3, v3, v{VT}")
    a("v_lshlrev_b32 v3, 4, v3")
    a(f"v_lshl_add_u32 v3, v{VQQ}, 11, v3")
    a(f"s_lshl_b32 s{T0}, s{S_WAVE}, 13")
    a(f"s_lshl_b32 s{T1}, s{S_C2}, 8")
    a(f"s_add_u32 s{T0}, s{T0}, s{T1}")
    a(f"s_lshl_b32 s{T1}, s{S_P}, 7")
    a(f"v_xor_b32 v{VPW}, s{T1}, v3")
    a(f"v_add_u32 v{VPW}, s{T0}, v{VPW}")
    a(f"s_mul_i32 s{T0}, s{S_G}, {ACT_NU}")
    a(f"s_mul_i32 s{T1}, s{S_KH}, 56")
    a(f"s_add_u32 s{T0}, s{T0}, s{T1}")
    a(f"s_lshl_b32 s{S_AO}, s{T0}, 13")
    a(f"s_lshl_b32 s{S_WDO}, s{T1}, 16")
    a(f"s_mov_b32 s{S_RING}, 0")
    a(f"v_lshlrev_b32 v{VTCH}, 6, v{VL}")
    a(f"s_lshr_b32 s{T0}, s2, 3")
    a(f"s_lshl_b32 s{T0}, s{T0}, 12")
    a(f"s_add_u32 s{S_TW}, s{S_WDO}, s{T0}")
    a(f"s_lshl_b32 s{T0}, s{S_C2}, 12")
    a(f"s_add_u32 s{S_TA}, s{S_AO}, s{T0}")
    a(f"v_lshlrev_b32 v26, 11, v{VT}")
    a(f"v_and_b32 v27, 1, v{VQQ}")
    a("v_lshl_add_u32 v26, v27, 5, v26")
    a(f"v_lshrrev_b32 v27, 1, v{VQQ}")
    a(f"v_lshl_add_u32 v{VXA}, v27, 4, v26")
    for j in range(1, 4): a(f"v_add_u32 v{VXA+j}, {j*32768}, v{VXA}")
    a(f"s_lshl_b32 s{S_ISV}, s{S_G}, 18")
    a(f"s_lshl_b32 s{T0}, s{S_BB}, 17")
    a(f"s_add_u32 s{S_ISV}, s{S_ISV}, s{T0}")
    a(f"s_lshl_b32 s{T0}, s{S_C2}, 8")
    a(f"s_add_u32 s{S_ISV}, s{S_ISV}, s{T0}")
    a(f"s_lshl_b32 s{T0}, s{S_KH}, 7")
    a(f"s_add_u32 s{S_ISV}, s{S_ISV}, s{T0}")
    a(f"s_lshl_b32 s{T0}, s{S_P}, 6")
    a(f"s_add_u32 s{S_ISV}, s{S_ISV}, s{T0}")
    srd(a, SX, P_X, P_X + 1, 4 << 20)
    a(f"v_lshrrev_b32 v25, 2, v{VL}")
    a(f"v_xor_b32 v25, v25, v{VQQ}")
    a("v_and_b32 v25, 1, v25")
    a(f"v_and_b32 v26, 3, v{VL}")
    a("v_or_b32 v25, v25, v26")
    a("v_cmp_eq_u32 vcc, 0, v25")
    a("v_mov_b32 v26, 0x3f803f80")
    a("v_mov_b32 v27, 0")
    a(f"s_waitcnt vmcnt({NE}) lgkmcnt(0)")
    a("s_barrier")
    a(f"ds_read_b128 {v(QF,4)}, v{VWP} offset:{QLDS}")
    a(f"ds_read_b128 {v(QF+4,4)}, v{VWP} offset:{QLDS+1024}")
    for b in range(2):
        for s_ in range(2):
            a(f"ds_read_b128 {v(KB+8*b+4*s_,4)}, v{VKVR} offset:{0x4000 + (2+b)*2048 + s_*1024}")
    for i in range(4): a(f"v_cndmask_b32 v{SEL+i}, v27, v26, vcc")
    for i in range(4): a(f"v_mov_b32 v{RS+i}, 0")
    for i in range(16): a(f"v_mov_b32 v{OA+i}, 0")
    a("s_waitcnt lgkmcnt(0)")
    a(mf32(SB, KB, QF, "0"))
    a(mf32(SB, KB + 4, QF + 4, v(SB, 16)))
    a("s_nop 11")
    a(f"v_max3_f32 v26, v{SB}, v{SB+1}, v{SB+2}")
    for i in range(3, 15, 2): a(f"v_max3_f32 v26, v26, v{SB+i}, v{SB+i+1}")
    a(f"v_max_f32 v26, v26, v{SB+15}")
    a("v_mov_b32 v27, v26")
    a("s_nop 1")
    a("v_permlane32_swap_b32 v26, v27")
    a("s_nop 0")
    a("v_max_f32 v26, v26, v27")
    for i in range(16): a(f"v_sub_f32 v{NM+i}, 0, v26")
    for i in range(16): a(f"v_sub_f32 v{SB+i}, v{SB+i}, v26")
    stamp(a, 3)
    if PR2:
        a(f"s_cmp_{'lg' if PR2 > 0 else 'eq'}_u32 s{S_WM}, 0")
        a("s_cbranch_scc0 P2_NP")
        a(f"s_setprio {abs(PR2)}")
        a.label("P2_NP")
    def pollH():
        a(f"s_lshr_b32 s{T0}, s{S_G}, 1")
        a(f"s_lshl_b32 s{T0}, s{T0}, 8")
        a(f"s_lshl_b32 s{T1}, s{S_KH}, 7")
        a(f"s_add_u32 s{T0}, s{T0}, s{T1}")
        a(f"s_add_u32 s{T0}, s{T0}, {F_H}")
        poll_issue(a, T0, 16)
    rest = list(range(NE, 8)); prev = NE
    for E in range(4):
        mine, rest = rest[:2], rest[2:]
        att_epoch(a, E, first=(E == 0), wait=prev, x2=h_store(mine[0]) if mine else (), x3=h_store(mine[1]) if len(mine) > 1 else ())
        prev = len(mine)
    att_epoch(a, 4, wait=prev)
    att_epoch(a, 5, post=lambda: wave0(a, lambda: flag_set(a, S_XO)), x1=touch_wo())
    att_epoch(a, 6, wait=1, x1=touch_w(20))
    att_epoch(a, 7, wait=1, post=lambda: wave0(a, pollH), x1=touch_w(12))
    att_epoch(a, 8, wait=1, post=lambda: wave0(a, lambda: poll_check(a)), x1=touch_w(4))
    att_epoch(a, 9, prefill=2, wait=1, x3=touch_a(6))
    att_epoch(a, 10, prefill=2, wait=5)
    att_epoch(a, 11, prefill=2, wait=4)
    att_epoch(a, 12, prefill=2, wait=4, x3=touch_a(0))
    att_epoch(a, 13, wait=5)
    xl = [f"s_cmp_lg_u32 s{S_WM}, 0", "s_cbranch_scc1 P2_NX"] + [f"buffer_load_dwordx4 {v(XR+4*j,4)}, v{VXA+j}, s[{SX}:{SX+3}], s{S_ISV} offen" for j in range(4)] + ["P2_NX:"]
    att_epoch(a, 14, x1=[xl])
    att_epoch(a, 15, last=True)
    a("s_waitcnt lgkmcnt(0)")
    a(mf32(OA, VB + 8, PB + 8, v(OA, 16)))
    a(mfrs(PB + 8))
    a(mf32(OA, VB + 12, PB + 12, v(OA, 16)))
    a(mfrs(PB + 12))
    a(f"s_add_u32 s{S_XO}, s{S_XO}, {F_O - F_H}")
    a(f"s_lshl_b32 s{T0}, s{S_RP}, 1")
    a(f"s_add_u32 s{T0}, s{T0}, s{S_WM}")
    a(f"s_mul_i32 s{T0}, s{T0}, {ACT_NU}")
    a(f"s_add_u32 s{T0}, s{T0}, s{S_CT}")
    a(f"s_add_u32 s{T0}, s{T0}, 112")
    a(f"s_lshl_b32 s{T0}, s{T0}, 13")
    a(f"s_lshl_b32 s{T1}, s{S_WN}, 11")
    a(f"s_add_u32 s{S_CNT}, s{T0}, s{T1}")
    a("s_nop 4")
    a(f"v_mul_f32 v26, 0, v{RS}")
    for i in range(16): a(f"v_fma_f32 v26, v{OA+i}, 0, v26")
    a("v_cmp_u_f32 vcc, v26, v26")
    a("s_cmp_lg_u64 vcc, 0")
    a("s_cbranch_scc1 P2_SLOW")
    a.label("P2_FIN")
    a(f"v_rcp_f32 v26, v{RS}")
    a("s_nop 0")
    for i in range(16): a(f"v_mul_f32 v{OA+i}, v{OA+i}, v26")
    for k, base in enumerate((0, 8, 4, 12)):
        a(f"v_cvt_pk_bf16_f32 v{PB+2*k}, v{OA+base}, v{OA+base+1}")
        a(f"v_cvt_pk_bf16_f32 v{PB+2*k+1}, v{OA+base+2}, v{OA+base+3}")
    a(f"buffer_store_dwordx4 {v(PB,4)}, v{VKVD}, s[{SACT}:{SACT+3}], s{S_CNT} offen sc1")
    a(f"buffer_store_dwordx4 {v(PB+4,4)}, v{VKVD}, s[{SACT}:{SACT+3}], s{S_CNT} offen offset:1024 sc1")
    stamp(a, 4)
    if PR2: a("s_setprio 0")
    import mk3
    mk3.gen_p3(a)
    a.label("P2_SLOW")
    a(f"s_mov_b32 s{T0}, 8192")
    a(f"v_mov_b32 v27, 0xff800000")
    a(f"v_mov_b32 v{RS}, 0")
    for i in range(16): a(f"v_mov_b32 v{OA+i}, 0")
    a.label("P2_SL")
    a(f"s_add_u32 s{T1}, s{T0}, 0x20000")
    a(f"buffer_load_dwordx4 {v(KB,4)}, v{VKVD}, s[{SKV}:{SKV+3}], s{T0} offen")
    a(f"buffer_load_dwordx4 {v(KB+4,4)}, v{VKVD}, s[{SKV}:{SKV+3}], s{T0} offen offset:1024")
    a(f"buffer_load_dwordx4 {v(VB,4)}, v{VKVD}, s[{SKV}:{SKV+3}], s{T1} offen")
    a(f"buffer_load_dwordx4 {v(VB+4,4)}, v{VKVD}, s[{SKV}:{SKV+3}], s{T1} offen offset:1024")
    a("s_waitcnt vmcnt(0)")
    a(mf32(SB, KB, QF, "0"))
    a(mf32(SB, KB + 4, QF + 4, v(SB, 16)))
    a("s_nop 15")
    a(f"v_max3_f32 v26, v27, v{SB}, v{SB+1}")
    for i in range(2, 16, 2): a(f"v_max3_f32 v26, v26, v{SB+i}, v{SB+i+1}")
    a("v_mov_b32 v28, v26")
    a("s_nop 1")
    a("v_permlane32_swap_b32 v26, v28")
    a("s_nop 0")
    a("v_max_f32 v26, v26, v28")
    a("v_sub_f32 v28, v27, v26")
    a("v_exp_f32 v28, v28")
    a("v_mov_b32 v27, v26")
    for i in range(16): a(f"v_sub_f32 v{SB+i}, v{SB+i}, v26")
    for i in range(16): a(f"v_exp_f32 v{SB+i}, v{SB+i}")
    for i in range(16): a(f"v_mul_f32 v{OA+i}, v{OA+i}, v28")
    a(f"v_mul_f32 v{RS}, v{RS}, v28")
    for i in range(8): a(f"v_cvt_pk_bf16_f32 v{PB+i}, v{SB+2*i}, v{SB+2*i+1}")
    a("s_nop 1")
    a(mf32(OA, VB, PB, v(OA, 16)))
    a(mfrs(PB))
    a(mf32(OA, VB + 4, PB + 4, v(OA, 16)))
    a(mfrs(PB + 4))
    a("s_nop 15")
    a(f"s_add_u32 s{T0}, s{T0}, 2048")
    a(f"s_cmp_lt_u32 s{T0}, {8192 + 64*2048}")
    a("s_cbranch_scc1 P2_SL")
    a("s_branch P2_FIN")
    a.label("KM_FIN")
    if STAMPS: a("s_waitcnt vmcnt(0)")
    stamp(a, 7)
    stamp_flush(a, 0, 8, P_WS, S_WAVE)
    a.label("KM_END")
    a("s_endpgm")
    return dict(name=NAME, grid=256, block=512, lds=int(os.environ.get('X_LDS', 163840)), vgpr=256, sgpr=102)
```

```python
from asmlib import *
from mk import *
from mk import _lab
GA = 128
def ga(c, j): return GA + (c * 4 + j) * 4
def gb(p, j): return 32 + p * 32 + j * 4
def gw(p, c): return 48 + p * 32 + c * 4
BA, BW, BWO = 96, 99, 111
NSLOT = 10
PART = 192
N1 = int(os.environ.get("X_N1", 6))
NFF = 56
NDOWN, NOUT = NFF + N1, 32 - 2 * N1
NT = NDOWN + NOUT
E0, NE3 = NDOWN // 2, NT // 2

def plan():
    addr = {t: t * 16384 for t in range(8)}
    when = {}
    size = lambda t: 16384 if t < NDOWN else 12288
    t = 8; head = 8 * 16384
    for e in range(NE3):
        n = 0
        while t < NT and n < (2 if t < NDOWN else MAXO):
            h = head
            top = 163840
            if (h & 0xffff) + size(t) > 65536: h = (h + 65536) & ~0xffff
            if h + size(t) > top: h = 0
            live = [u for u in addr if u >= 2 * e]
            if any(h < addr[u] + size(u) and addr[u] < h + size(t) for u in live): break
            addr[t] = h; when[t] = e; head = h + size(t); t += 1; n += 1
    assert t == NT and all(when[u] < (u - 1) // 2 for u in when)
    return addr, when
MAXO = int(os.environ.get("X_MAXO", 3))
ADDR, WHEN = plan()
EF = E0 + 4
PE = NE3 - int(os.environ.get('X_PE', 5))

def g_reads(t):
    if t >= NT: return []
    p = t & 1; h = ADDR[t] >> 16; o = ADDR[t] & 0xffff
    r = []
    if t >= NT: return r
    for c in range(4 if t < NDOWN else 2):
        for half in range(2):
            if t < NDOWN: r.append(f"ds_read_b64_tr_b16 {v(gw(p,c)+2*half,2)}, v{BW+3*c+h} offset:{o + 8192 + half*4096}")
            else: r.append(f"ds_read_b64_tr_b16 {v(gw(p,c)+2*half,2)}, v{BWO+3*c+h} offset:{o + 8192 + half*2048}")
    for j in range(4):
        r.append(f"ds_read_b128 {v(gb(p,j),4)}, v{BA+h} offset:{o + (j>>1)*2048 + (j&1)*256}")
    return r

def g_ustep(a, t, extra=(), first_wait=2):
    p = t & 1
    nc = 4 if t < NDOWN else 2
    m = []
    for j in range(4):
        for c in (range(nc) if j % 2 == 0 else range(nc - 1, -1, -1)):
            m.append(f"v_mfma_f32_16x16x32_bf16 {v(ga(c,j),4)}, {v(gw(p,c),4)}, {v(gb(p,j),4)}, {v(ga(c,j),4) if t else 0}")
    rd = g_reads(t + 1)
    fill = [[] for _ in m]
    for i, x in enumerate(rd): fill[min(i, len(m) - 1)].append(x)
    for i, e in enumerate(extra): fill[len(m) - 1 - (i % len(m))] += list(e)
    hlf = len(m) // 2
    a(f"s_waitcnt lgkmcnt({first_wait})")
    weave(a, m[:hlf], fill[:hlf])
    a(f"s_waitcnt lgkmcnt({sum(x.startswith('ds_read') for f in fill[:hlf] for x in f)})")
    weave(a, m[hlf:], fill[hlf:])

def l_ustep(a, t, dyn=False):
    if dyn:
        a(f"s_add_u32 m0, s{S_RING}, s{T3}")
        a(f"s_add_u32 s{S_RING}, s{S_RING}, 16384")
    else:
        a(f"s_add_u32 m0, s{T3}, {ADDR[t]}")
        a("s_nop 0")
    a(f"buffer_load_dwordx4 v4, s[{SACT}:{SACT+3}], s{S_AO} offen lds")
    a(f"buffer_load_dwordx4 v4, s[{SACT}:{SACT+3}], s{S_AO} offen offset:1024 lds")
    if t < NDOWN:
        a("s_add_u32 m0, m0, 8192")
        a(f"s_cmp_lt_u32 s{S_RING}, {NSLOT*16384}")
        r = SWD if t < NFF else SWO
        a(f"buffer_load_dwordx4 v5, s[{r}:{r+3}], s{S_WDO} offen lds")
        a(f"buffer_load_dwordx4 v6, s[{r}:{r+3}], s{S_WDO} offen offset:1024 lds")
        if dyn: a(f"s_cselect_b32 s{S_RING}, s{S_RING}, 0")
    else:
        a(f"s_add_u32 m0, m0, s{T2}")
        a("s_nop 0")
        a(f"buffer_load_dwordx4 v7, s[{SWO}:{SWO+3}], s{S_WDO} offen lds")
    a(f"s_add_u32 s{S_AO}, s{S_AO}, 8192")
    a(f"s_add_u32 s{S_WDO}, s{S_WDO}, 65536")

def gen_p3(a):
    a(f"s_cmp_lg_u32 s{S_WM}, 0")
    a("s_cbranch_scc1 P3_L")
    if PR3 > 0: a(f"s_setprio {PR3}")
    a(f"s_lshr_b32 s{T0}, s{S_WN}, 1")
    a(f"s_lshl_b32 s{T0}, s{T0}, 12")
    a(f"v_lshlrev_b32 v22, 9, v{VQQ}")
    a(f"v_lshl_add_u32 v22, v{VT}, 4, v22")
    a(f"v_add_u32 v{BA}, s{T0}, v22")
    a(f"v_lshrrev_b32 v22, 2, v{VT}")
    a(f"v_lshl_add_u32 v22, v{VQQ}, 2, v22")
    a(f"s_lshl_b32 s{T0}, s{S_KH}, 2")
    a(f"s_lshl_b32 s{T1}, s{S_P}, 1")
    a(f"s_add_u32 s{T0}, s{T0}, s{T1}")
    a("v_and_b32 v23, 7, v22")
    a(f"v_xor_b32 v23, s{T0}, v23")
    a("v_lshlrev_b32 v23, 5, v23")
    a("v_lshl_add_u32 v23, v22, 8, v23")
    a(f"v_and_b32 v27, 3, v{VL}")
    a(f"v_lshl_add_u32 v{BW}, v27, 3, v23")
    for c in range(1, 4): a(f"v_xor_b32 v{BW+3*c}, {(c & 1) * 32 + (c >> 1) * 128}, v{BW}")
    for x in g_reads(0): a(x)
    for b in [BA] + [BW + 3 * c for c in range(4)]:
        a(f"v_add_u32 v{b+1}, 0x10000, v{b}")
        a(f"v_add_u32 v{b+2}, 0x20000, v{b}")
    a("v_bfe_u32 v23, v22, 1, 2")
    a(f"v_xor_b32 v23, s{T1}, v23")
    a("v_lshlrev_b32 v23, 5, v23")
    a("v_lshl_add_u32 v23, v22, 7, v23")
    a(f"v_lshl_add_u32 v{BWO}, v27, 3, v23")
    a(f"v_xor_b32 v{BWO+3}, 32, v{BWO}")
    for b in (BWO, BWO + 3):
        a(f"v_add_u32 v{b+1}, 0x10000, v{b}")
        a(f"v_add_u32 v{b+2}, 0x20000, v{b}")
    a(f"s_mov_b32 s{S_AO}, s{S_ISV}")
    srd(a, SKV, P_OUT, P_OUT + 1, 4 << 20)
    a(f"s_lshl_b32 s{T0}, s{S_WN}, 12")
    a(f"s_lshl_b32 s{S_RING}, s2, 14")
    a(f"s_add_u32 s{S_RING}, s{S_RING}, s{T0}")
    a(f"s_xor_b32 s{S_WDO}, s{S_RING}, {1 << 14}")
    def epoch(e, pre=None, x0=(), x1=()):
        a("s_barrier")
        nstamp(a, f"g{e}")
        if pre: pre()
        g_ustep(a, 2 * e, x0)
        g_ustep(a, 2 * e + 1, x1)
    for e in range(E0):
        epoch(e)
        if e == 2: a("s_waitcnt vmcnt(0)")
    stamp(a, 5)
    def pack(q):
        d = ga(2, 0) + 8 * q
        return [[f"v_cvt_pk_bf16_f32 v{d+i}, v{d+2*i}, v{d+2*i+1}" for i in range(4)]]
    def st(q): return [[f"buffer_store_dwordx4 {v(ga(2,0)+8*q,4)}, v{VKVD}, s[{SPART}:{SPART+3}], s{S_WDO} offen offset:{q*1024} sc1"]]
    def pl(q): return [[f"buffer_load_dwordx4 {v(PART+4*q,4)}, v{VKVD}, s[{SPART}:{SPART+3}], s{S_RING} offen offset:{q*1024} sc1"]]
    epoch(E0, x1=st(0) + pack(1) + pack(0)); epoch(E0 + 1, x0=st(1) + pack(2), x1=st(2) + pack(3)); epoch(E0 + 2, x0=st(3))
    for e in range(E0 + 3, EF): epoch(e)
    a("s_waitcnt vmcnt(0)")
    for e in range(EF, PE + 2): epoch(e)
    epoch(PE + 2, x0=pl(0) + pl(1), x1=pl(2) + pl(3))
    for e in range(PE + 3, NE3): epoch(e)
    stamp(a, 6)
    a(f"s_mov_b32 s{T0}, 0xffff0000")
    a("s_waitcnt vmcnt(0)")
    a("s_nop 6")
    for j in range(4):
        d0, d1 = ga(0, j), ga(1, j)
        for d, r in ((d0, PART + 2 * j), (d1, PART + 8 + 2 * j)):
            for i in range(2):
                a(f"v_lshlrev_b32 v{40+2*i}, 16, v{r+i}")
                a(f"v_and_b32 v{41+2*i}, s{T0}, v{r+i}")
            for i in range(2): a(f"v_pk_add_f32 {v(d+2*i,2)}, {v(d+2*i,2)}, {v(40+2*i,2)}")
        xr = XR + 4 * j
        for k in range(4):
            a(f"v_lshlrev_b32 v{32+2*k}, 16, v{xr+k}")
            a(f"v_and_b32 v{33+2*k}, s{T0}, v{xr+k}")
        for i in range(4): a(f"v_permlane16_swap_b32 v{d0+i}, v{d1+i}")
        for k in range(4):
            d = (d0, d1)[k >> 1] + 2 * (k & 1)
            a(f"v_pk_add_f32 {v(d,2)}, {v(d,2)}, {v(32+2*k,2)}")
        for k in range(4):
            d = (d0, d1)[k >> 1] + 2 * (k & 1)
            a(f"v_cvt_pk_bf16_f32 v{xr+k}, v{d}, v{d+1}")
        a(f"buffer_store_dwordx4 {v(xr,4)}, v{VXA+j}, s[{SKV}:{SKV+3}], s{S_AO} offen")
    a("s_branch KM_FIN")
    a.label("P3_L")
    if PR3 < 0: a(f"s_setprio {-PR3}")
    a(f"s_lshl_b32 s{T3}, s{S_WN}, 11")
    a(f"v_add_u32 v4, s{T3}, v{VKVD}")
    a(f"s_lshl_b32 s{T0}, s{S_WN}, 14")
    a(f"s_lshl_b32 s{T1}, s{S_C2}, 8")
    a(f"s_add_u32 s{T0}, s{T0}, s{T1}")
    a(f"v_add_u32 v5, s{T0}, v3")
    a("v_xor_b32 v6, 128, v5")
    a(f"v_add_u32 v6, {8192-1024}, v6")
    a(f"v_lshrrev_b32 v22, 3, v{VL}")
    a("v_lshlrev_b32 v22, 11, v22")
    a(f"v_lshlrev_b32 v23, 1, v{VQQ}")
    a(f"v_and_b32 v25, 7, v{VL}")
    a("v_xor_b32 v23, v23, v25")
    a("v_lshl_add_u32 v22, v23, 4, v22")
    a(f"s_lshl_b32 s{T1}, s{S_KH}, 7")
    a(f"s_add_u32 s{T0}, s{T0}, s{T1}")
    a(f"v_add_u32 v7, s{T0}, v22")
    a(f"s_lshl_b32 s{T2}, s{S_WN}, 10")
    a(f"s_sub_u32 s{T2}, 8192, s{T2}")
    def toO(split):
        if split: a(f"s_mul_i32 s{S_WDO}, s{S_KH}, {N1}")
        else: a(f"s_mov_b32 s{S_WDO}, {2 * N1}")
        a(f"s_mul_i32 s{S_AO}, s{S_G}, {ACT_NU}")
        a(f"s_add_u32 s{S_AO}, s{S_AO}, 112")
        a(f"s_add_u32 s{S_AO}, s{S_AO}, s{S_WDO}")
        a(f"s_lshl_b32 s{S_AO}, s{S_AO}, 13")
        a(f"s_lshl_b32 s{S_WDO}, s{S_WDO}, 16")
    a(f"s_lshl_b32 s{S_KVO}, s2, 7")
    a(f"s_add_u32 s{S_KVO}, s{S_KVO}, {F_P}")
    a(f"s_xor_b32 s{S_MKV}, s{S_KVO}, {1 << 7}")
    def wave4(fn):
        _lab[0] += 1
        a(f"s_cmp_lg_u32 s{S_WAVE}, 4")
        a(f"s_cbranch_scc1 W4_{_lab[0]}")
        n = _lab[0]
        fn()
        a.label(f"W4_{n}")
    def pollO():
        a(f"s_lshr_b32 s{T0}, s{S_G}, 1")
        a(f"s_lshl_b32 s{T0}, s{T0}, 8")
        a(f"s_add_u32 s{T0}, s{T0}, {F_O}")
        poll_issue(a, T0, 32)
    def nonce_out():
        a(f"s_cmp_lg_u32 s2, 0")
        a("s_cbranch_scc1 P3_NN")
        a(f"s_movk_i32 s{T0}, {F_NONCE}")
        flag_set(a, T0)
        a.label("P3_NN")
    vm = VM(); vm.add(3, 2)
    def lep(e, dyn, emit_code=True):
        b = a if emit_code else A()
        b("s_barrier")
        if emit_code:
            if e == 3: wave4(lambda: flag_set(a, S_XO))
            if e == 20: wave4(pollO)
            if e == EF: wave4(lambda: (flag_set(a, S_MKV), nonce_out()))
            if e == PE: wave4(lambda: poll_issue(a, S_KVO, 1))
        mark = len(vm.q)
        for t in sorted(u for u in WHEN if WHEN[u] == e):
            if t == NFF and N1: toO(True)
            if t == NDOWN: toO(False)
            l_ustep(b, t, dyn); vm.add((t - 1) // 2, 4 if t < NDOWN else 3)
        b(f"s_waitcnt vmcnt({vm.wait(e + 1)})")
        lep.marks[e] = mark
        if emit_code and e in (22, PE + 1):
            src = 20 if e == 22 else PE
            wave4(lambda: (a(f"s_waitcnt vmcnt({len(vm.q) - lep.marks[src]})"), poll_check(a)))
    lep.marks = {}
    assert all(ADDR[t] == (t % NSLOT) * 16384 and WHEN[t] == (t - 8) // 2 for t in range(8, 50))
    for e in range(4): lep(e, True)
    a(f"s_mov_b32 s{S_CNT}, 16")
    a.label("P3_LA")
    lep(4, True)
    a(f"s_sub_u32 s{S_CNT}, s{S_CNT}, 1")
    a(f"s_cmp_lg_u32 s{S_CNT}, 0")
    a(f"s_cbranch_scc1 P3_LA")
    for e in range(5, 20): lep(e, True, False)
    for e in range(20, NE3): lep(e, False)
    stamp(a, 5); stamp(a, 6)
    a("s_branch KM_FIN")
```

```python
from asmlib import *
import struct, math, os
NAME = "parallel_sum__grouped_kv_mqa__glu_gated_reglu__prompt_kernel"
QSCALE = struct.unpack("<I", struct.pack("<f", math.log2(math.e) / math.sqrt(32.0)))[0]
STOP = os.environ.get("STOP", "")
KVL = 131072
QLDS = 0
TLDS = 0
F_KV, F_H, F_O, F_NONCE, F_P = 8192, 12288, 16384, 24576, 32768
WS_ST = WS_XN
WLDS = 98304
KXL = 16384
STL = 32768
CSL = 16384
NS = int(os.environ.get('X_NS', 12))
SPIN_MAX = 1 << 21
P1MODE = int(os.environ.get('X_P1MODE', 1))
P1SHIFT = int(os.environ.get('X_P1SHIFT', 6))
P1PRIO = int(os.environ.get('X_P1PRIO', 0))
UNROLL = int(os.environ.get('X_UNROLL', 0))
NPRE = int(os.environ.get('X_NPRE', 1))
TLBW = int(os.environ.get('X_TLBW', 0))
TLBS = int(os.environ.get('X_TLBS', 21))
TLBP = 4
EARLY = int(os.environ.get('X_EARLY', 4))
NPRO = int(os.environ.get('X_NPRO', 4))
TE = int(os.environ.get('X_TE', 1))
TLATE = int(os.environ.get('X_TLATE', 1))
CODEPF = int(os.environ.get('X_CODEPF', 1))
PR1 = int(os.environ.get('X_PR1', 0))
PR2 = int(os.environ.get('X_PR2', 0))
PR3 = int(os.environ.get('X_PR3', 0))
NE = int(os.environ.get('X_NE', 4))
HSTEP = int(os.environ.get('X_HSTEP', 2))
WPF = int(os.environ.get('X_WPF', 0))
WST = int(os.environ.get('X_WST', 0))
WOFF = int(os.environ.get('X_WOFF', 0))
FART = int(os.environ.get('X_FART', 1))
HL = int(os.environ.get('X_HL', 1))
XL = int(os.environ.get('X_XL', 3))
P1TOUCH = int(os.environ.get('X_P1T', 1))

S_WAVE = 3
S_TW, S_TA = 4, 5
P_WS = 6
NONCE = 8
QMASK = 10
SX = 12
SWD = 16
S_XO, S_AO, S_WDO, S_MX, S_MW, S_CNT = 20, 21, 22, 23, 24, 25
S_HO = 24
S_CT, S_RP, S_WM, S_P, S_BB, S_WN = 26, 27, 28, 29, 30, 31
T0, T1, T2, T3 = 32, 33, 34, 35
SACT, SKV = 36, 40
P_X, P_OUT, P_WO, S_ISV, S_PB = 44, 46, 48, 50, 51
S_G, S_C2, S_KH, S_KVO, S_MKV, S_RING = 52, 53, 54, 55, 56, 57
SFLAG = 58
SWO, SPART = 92, 96
VL, VXD, VWA, VWB, VWS, VXR, VWR, VWP, VQQ, VT = 1, 2, 4, 6, 8, 10, 12, 14, 16, 17
ONES, CS = 20, 24
VKVR, VKVD, VPA, VPW = 18, 19, 20, 21
HS, VHO, VWOD = 160, 4, 7
VXA, XR = 8, 224
VTCH, VDUM = 31, 30
VPL, VPD = 27, 28
ACC, XF, WF = 128, 64, 32
def acc(st, t, j): return ACC + ((st * 2 + t) * 8 + j) * 4
def xf(p, j): return XF + (p * 8 + j) * 4
def wf(p, st, t): return WF + (p * 4 + st * 2 + t) * 4
def emit(a, groups):
    for g in groups:
        for x in g: a(x)

def flag_set(a, off_sgpr):
    a(f"v_mov_b32 v22, s{off_sgpr}")
    a(f"v_mov_b32 v24, s{NONCE}")
    a(f"v_mov_b32 v25, s{NONCE+1}")
    a("s_mov_b64 exec, 1")
    a(f"global_store_dwordx2 v22, v[24:25], s[{SFLAG}:{SFLAG+1}] sc1")
    a("s_mov_b64 exec, -1")
def poll_load(): return f"global_load_dwordx2 {v(VPD,2)}, v{VPL}, s[{SFLAG}:{SFLAG+1}] sc1"
def poll_issue(a, off_sgpr, n):
    a(f"v_and_b32 v{VPL}, {n-1}, v{VL}")
    a(f"v_lshlrev_b32 v{VPL}, 3, v{VPL}")
    a(f"v_add_u32 v{VPL}, s{off_sgpr}, v{VPL}")
    a(poll_load())
_lab = [0]
def spin(a, cmps, loads, sleep=1):
    _lab[0] += 1
    n = _lab[0]
    a(f"s_mov_b32 s{T1}, {SPIN_MAX}")
    a.label(f"PL{n}")
    for x in cmps: a(x)
    a("s_cmp_eq_u64 vcc, -1")
    a(f"s_cbranch_scc1 PD{n}")
    a(f"s_sub_u32 s{T1}, s{T1}, 1")
    a(f"s_cbranch_scc1 PD{n}")
    a(f"s_sleep {sleep}")
    for x in loads: a(x)
    a("s_waitcnt vmcnt(0)")
    a(f"s_branch PL{n}")
    a.label(f"PD{n}")
def poll_check(a):
    spin(a, [f"v_cmp_eq_u64 vcc, s[{NONCE}:{NONCE+1}], {v(VPD,2)}"], [poll_load()])
def wave0(a, fn):
    _lab[0] += 1
    n = _lab[0]
    a(f"s_cmp_lg_u32 s{S_WAVE}, 0")
    a(f"s_cbranch_scc1 W0_{n}")
    fn()
    a.label(f"W0_{n}")

def p1_dma_x(h, tau):
    if os.environ.get("X_ROT"):
        return [[f"s_add_u32 s{S_XO}, s{S_ROT}, {tau*128}", f"s_and_b32 s{S_XO}, s{S_XO}, 2047", f"s_add_u32 m0, s{S_MX}, {(h*3 + tau%3)*16384}",
             f"s_or_b32 s{S_XO}, s{S_XO}, {h*128*2048}" if h else "s_nop 0",
             f"buffer_load_dwordx4 v{VXD}, s[{SX}:{SX+3}], s{S_XO} offen lds"],
            [f"buffer_load_dwordx4 v{VXD+1}, s[{SX}:{SX+3}], s{S_XO} offen offset:1024 lds"]]
    return [[f"s_add_u32 m0, s{S_MX}, {(h*3 + tau%3)*16384}", f"s_mov_b32 s{S_XO}, {h*128*2048 + tau*128}",
             f"buffer_load_dwordx4 v{VXD}, s[{SX}:{SX+3}], s{S_XO} offen lds"],
            [f"buffer_load_dwordx4 v{VXD+1}, s[{SX}:{SX+3}], s{S_XO} offen offset:1024 lds"]]
def p1_dma_w(k):
    slot = k % 4
    return [[f"s_add_u32 m0, s{S_MW}, {slot*16384}", "s_nop 0", f"global_load_lds_dwordx4 {v(VWA,2)}, off",
             f"s_add_u32 m0, s{S_MW}, {slot*16384+2048}",
             f"v_lshl_add_u64 {v(VWA,2)}, {v(VWS,2)}, 0, {v(VWA,2)}"],
            [f"global_load_lds_dwordx4 {v(VWB,2)}, off",
             f"v_lshl_add_u64 {v(VWB,2)}, {v(VWS,2)}, 0, {v(VWB,2)}"]]
def p1_reads(k):
    p = k & 1
    r = []
    for st in range(2):
        for t in range(2):
            for half in range(2):
                r.append(f"ds_read_b64_tr_b16 {v(wf(p,st,t)+2*half,2)}, v{VWR+t} offset:{(k%4)*16384 + st*8192 + half*4096}")
    for j in range(8):
        r.append(f"ds_read_b128 {v(xf(p,j),4)}, v{VXR+(k&1)} offset:{((k>>1)%3)*16384 + j*2048}")
    return r
def p1_mfma(p, first=False):
    m = []
    for j in range(8):
        order = [(0,0),(0,1),(1,0),(1,1)]
        if j & 1: order = order[::-1]
        for st, t in order:
            d = acc(st, t, j)
            m.append(f"v_mfma_f32_16x16x32_bf16 {v(d,4)}, {v(wf(p,st,t),4)}, {v(xf(p,j),4)}, {0 if first else v(d,4)}")
    return m
def cs_mfma(p, st, grp): return f"v_mfma_f32_16x16x32_bf16 {v(CS+4*st,4)}, {v(wf(p,st,grp),4)}, {v(ONES,4)}, {v(CS+4*st,4)}"
CSV = int(os.environ.get("X_CSV", 0))
def cs_valu(p, grp):
    o = []
    for st in range(2):
        for r in range(4):
            src = wf(p, st, grp) + r; t = 20 + 2 * (r & 1)
            o += [f"v_lshlrev_b32 v{t}, 16, v{src}", f"v_and_b32 v{t+1}, 0xffff0000, v{src}",
                  f"v_add_f32 v{CS+2*st}, v{CS+2*st}, v{t}", f"v_add_f32 v{CS+2*st+1}, v{CS+2*st+1}, v{t+1}"]
    return o
def add_cs(m, fill, p, grp):
    if not CSV:
        return m[:10] + [cs_mfma(p, 0, grp)] + m[10:20] + [cs_mfma(p, 1, grp)] + m[20:], fill
    fill = [list(f) for f in fill]
    while len(fill) < 32: fill.append([])
    order = sorted(range(32), key=lambda i: (len(fill[i]) > 0, i))
    vv = cs_valu(p, grp)
    slots = sorted([i for i in range(32) if not fill[i]] * 2 + [i for i in range(32) if fill[i]])
    empt = [i for i in range(32) if not fill[i]]
    rest = [i for i in range(32) if fill[i]]
    need = 32 - 2 * len(empt)
    pick = sorted(empt * 2 + rest[-need:] if need > 0 else (empt * 2)[:32])
    for i, x in zip(pick, vv): fill[i].append(x)
    return m, fill
def weave(a, m, fill):
    for i, ins in enumerate(m):
        a(ins)
        if i < len(fill):
            for x in fill[i]: a(x)
    emit(a, fill[len(m):])
class VM:
    def __init__(self): self.q = []
    def add(self, need, n=1): self.q += [need] * n
    def wait(self, b):
        last = max([i for i, x in enumerate(self.q) if x <= b], default=-1)
        return len(self.q) - 1 - last
S_XM, S_XT, S_WM0, S_DX, S_DW = S_TW, S_TA, S_RING, S_ISV, S_PB
def gen_p1(a, grp, vm0):
    vm = VM(); vm.q = list(vm0.q)
    LO, HI = NS - 3, 26
    LO += LO & 1
    if not os.environ.get('X_LOOP'): LO = HI = 99
    G = "AB"[grp]
    for _ in range(int(os.environ.get("X_SH1", 0))): a("s_nop 0")
    def dyn_entry(k):
        tau = k // 2 + 2
        a(f"s_add_u32 s{S_XM}, s{S_MX}, {(tau % 3) * 16384}")
        a(f"s_movk_i32 s{S_XT}, {tau * 128}")
        a(f"s_movk_i32 s{S_WM0}, {k % 4}")
        a(f"s_movk_i32 s{S_DX}, {(k // 2) % 3}")
        for i in range(2):
            a(f"v_add_u32 v{VXR+i}, {((k // 2) % 3) * 16384}, v{VXR+i}")
            a(f"v_add_u32 v{VWR+i}, {((k + 1) % 4) * 16384}, v{VWR+i}")
    def dyn_exit(k):
        for i in range(2):
            a(f"v_subrev_u32 v{VXR+i}, {((k // 2) % 3) * 16384}, v{VXR+i}")
            a(f"v_subrev_u32 v{VWR+i}, {((k + 1) % 4) * 16384}, v{VWR+i}")
    def dyn_step(p):
        fill = []
        if p == 0:
            fill.append([f"s_add_u32 m0, s{S_XM}, 49152", f"s_or_b32 s{S_XO}, s{S_XT}, {128*2048}",
                         f"buffer_load_dwordx4 v{VXD}, s[{SX}:{SX+3}], s{S_XO} offen lds"])
            fill.append([f"buffer_load_dwordx4 v{VXD+1}, s[{SX}:{SX+3}], s{S_XO} offen offset:1024 lds",
                         f"s_add_u32 s{S_XT}, s{S_XT}, 128", f"s_cmp_eq_u32 s{S_DX}, 0", f"s_movk_i32 s{T0}, 16384",
                         f"s_cselect_b32 s{T0}, {-32768 & 0xffffffff}, s{T0}", f"s_add_u32 s{S_XM}, s{S_XM}, s{T0}"])
        else:
            fill.append([f"s_mov_b32 m0, s{S_XM}", "s_nop 0", f"buffer_load_dwordx4 v{VXD}, s[{SX}:{SX+3}], s{S_XT} offen lds"])
            fill.append([f"buffer_load_dwordx4 v{VXD+1}, s[{SX}:{SX+3}], s{S_XT} offen offset:1024 lds"])
        fill.append([f"s_lshl_b32 s{T1}, s{S_WM0}, 14", f"s_add_u32 m0, s{S_MW}, s{T1}", f"s_add_u32 s{S_WM0}, s{S_WM0}, 1",
                     f"global_load_lds_dwordx4 {v(VWA,2)}, off", "s_add_u32 m0, m0, 2048",
                     f"v_lshl_add_u64 {v(VWA,2)}, {v(VWS,2)}, 0, {v(VWA,2)}"])
        fill.append([f"global_load_lds_dwordx4 {v(VWB,2)}, off", f"s_and_b32 s{S_WM0}, s{S_WM0}, 3",
                     f"v_lshl_add_u64 {v(VWB,2)}, {v(VWS,2)}, 0, {v(VWB,2)}"])
        q = p ^ 1
        rd = [[f"ds_read_b64_tr_b16 {v(wf(q,st,t)+2*half,2)}, v{VWR+t} offset:{st*8192 + half*4096}"] for st in range(2) for t in range(2) for half in range(2)]
        rd[-1] += [f"s_cmp_eq_u32 s{S_WM0}, 3", f"s_movk_i32 s{T0}, 16384", f"s_cselect_b32 s{T0}, {-49152 & 0xffffffff}, s{T0}",
                   f"v_add_u32 v{VWR}, s{T0}, v{VWR}", f"v_add_u32 v{VWR+1}, s{T0}, v{VWR+1}"]
        rd += [[f"ds_read_b128 {v(xf(q,j),4)}, v{VXR+q} offset:{j*2048}"] for j in range(8)]
        if p == 0:
            rd[-1] += [f"s_cmp_eq_u32 s{S_DX}, 2", f"s_movk_i32 s{T0}, 16384", f"s_cselect_b32 s{T0}, {-32768 & 0xffffffff}, s{T0}",
                       f"s_cselect_b32 s{S_DX}, -1, s{S_DX}", f"v_add_u32 v{VXR}, s{T0}, v{VXR}", f"v_add_u32 v{VXR+1}, s{T0}, v{VXR+1}",
                       f"s_add_u32 s{S_DX}, s{S_DX}, 1"]
        fill += rd
        if grp: fill = [[] for _ in range(P1SHIFT)] + fill
        m, fill = add_cs(p1_mfma(p), fill, p, grp)
        weave(a, m, fill)
        a("s_waitcnt vmcnt(8) lgkmcnt(0)")
        if p == 1:
            a(f"s_sub_u32 s{S_DW}, s{S_DW}, 1")
            a(f"s_cmp_lg_u32 s{S_DW}, 0")
        a("s_barrier")
    for s_ in range(32):
        p = s_ & 1
        h = (s_ + 1) & 1; tau = (s_ - 1 - h) // 2 + 3
        if LO <= s_ < HI:
            vm.add(2 * tau - 1, 2); vm.add(s_ + 3, 2)
            assert vm.wait(s_ + 1) == 8
            if s_ == LO:
                dyn_entry(LO)
                a(f"s_movk_i32 s{S_DW}, {(HI - LO) // 2}")
                a.raw(".p2align 6")
                a.label("P1_L" + G)
                dyn_step(0); dyn_step(1)
                a("s_cbranch_scc1 P1_L" + G)
                dyn_exit(HI)
            continue
        nstamp(a, f"s{s_}")
        fill = []
        if s_ == NS - 6:
            mark = len(vm.q)
            if not grp:
                fill.append([f"s_cmp_gt_u32 s{S_WAVE}, 1", "s_cbranch_scc1 P1_NP0", "v_mbcnt_lo_u32_b32 v16, -1, 0", "v_mbcnt_hi_u32_b32 v16, -1, v16", "v_lshlrev_b32 v16, 4, v16", f"v_add_u32 v16, s{S_PB}, v16", f"global_load_dwordx4 v[16:19], v16, s[{SFLAG}:{SFLAG+1}] sc1", "P1_NP0:"])
        if s_ == 1:
            if not grp:
                fill.append([f"s_cmp_lg_u32 s{S_WAVE}, 0", "s_cbranch_scc1 P1_NF", f"v_mov_b32 v16, s{NONCE}", f"v_mov_b32 v17, s{NONCE+1}", f"v_mov_b32 v18, s{S_CNT}",
                             "s_mov_b64 exec, 1", f"global_store_dwordx2 v18, v[16:17], s[{SFLAG}:{SFLAG+1}] sc1", "s_mov_b64 exec, -1", "P1_NF:"])
        if s_ == 0:
            fill += p1_dma_x(1, 1); vm.add(1, 2)
            fill += p1_dma_w(2); vm.add(1, 2)
            fill += p1_dma_w(3); vm.add(2, 2)
            fill += p1_dma_x(0, 2); vm.add(3, 2)
        if s_ + 4 == NS:
            fill.append([f"s_mov_b64 exec, s[{QMASK}:{QMASK+1}]", f"v_mov_b32 v{VWA}, v{VWP}", f"v_mov_b32 v{VWA+1}, v{VWP+1}",
                         f"v_mov_b32 v{VWS}, 512", f"v_lshl_add_u64 {v(VWB,2)}, {v(VWS,2)}, 0, {v(VWA,2)}", f"v_mov_b32 v{VWS}, 2048", "s_mov_b64 exec, -1"])
        if tau < 16:
            fill += p1_dma_x(h, tau); vm.add(2 * tau - 1, 2)
        if s_ + 4 < 32:
            fill += p1_dma_w(s_ + 4); vm.add(s_ + 3, 2)
        if WST and s_ % WST == WOFF and WPF + s_ // WST * (WST // 4) < 8:
            for _ in range(WST // 4):
                fill.append([f"s_add_u32 s{S_TW}, s{S_TW}, {128*7168}", f"s_addc_u32 s{S_TA}, s{S_TA}, 0", "s_mov_b64 exec, 0x7f",
                             f"global_load_dword v{VL}, v0, s[{S_TW}:{S_TA}]", "s_mov_b64 exec, -1"])
                vm.add(min(s_ + 4, 27), 1)
        if s_ == 27:
            fill.append([f"v_mbcnt_lo_u32_b32 v{VL}, -1, 0", f"v_mbcnt_hi_u32_b32 v{VL}, -1, v{VL}"])
            fill.append([f"v_lshlrev_b32 v{VKVD}, 4, v{VL}", f"s_lshr_b32 s{T0}, s2, 3", f"s_lshl_b32 s{T0}, s{T0}, 13", f"s_lshr_b32 s{T1}, s{S_MX}, 1", f"s_add_u32 s{T0}, s{T0}, s{T1}",
                         f"s_add_u32 s{T0}, s{T0}, 8192", f"buffer_load_dword v16, v{VKVD}, s[{SKV}:{SKV+3}], s{T0} offen"])
            vm.add(30, 1)
        if s_ == 29:
            fill.append([f"s_lshr_b32 s{T0}, s{S_MX}, 1", f"s_add_u32 m0, s{T0}, {STL}", "s_nop 0",
                         f"buffer_load_dwordx4 v{VKVD}, s[{SPART}:{SPART+3}], s{S_AO} offen lds"])
            vm.add(31, 1)
        if s_ == 30:
            fill.append([f"s_xor_b32 m0, s{S_MKV}, 0x4000", f"s_add_u32 s{T0}, s{S_KVO}, 8192",
                         f"buffer_load_dwordx4 v{VKVD}, s[{SKV}:{SKV+3}], s{T0} offen lds"])
            fill.append([f"buffer_load_dwordx4 v{VKVD}, s[{SKV}:{SKV+3}], s{T0} offen offset:1024 lds"])
            vm.add(99, 2)
        m = p1_mfma(p, s_ == 0)
        if s_ == 30:
            fill.append([f"v_lshlrev_b32 v{VKVD}, 4, v{VL}", f"v_lshrrev_b32 v{VQQ}, 4, v{VL}", f"v_and_b32 v{VT}, 15, v{VL}",
                         f"v_add_u32 v{VKVR}, {KVL}, v{VKVD}"])
            fill.append([f"v_lshlrev_b32 v0, 3, v{VT}", f"s_lshr_b32 s{T0}, s{S_MX}, 1", f"v_add_u32 v0, s{T0}, v0", f"v_add_u32 v{VWP}, s{S_MX}, v{VKVD}",
                         f"s_lshl_b32 s{T0}, s{S_WN}, 11", f"v_add_u32 v{VWP+1}, s{T0}, v{VKVD}"])
            if CSV:
                fill.append([f"s_lshl_b32 s{T0}, s{S_WAVE}, 7", f"v_lshlrev_b32 v28, 2, v{VT}", f"v_add_u32 v28, s{T0}, v28",
                             f"s_lshl_b32 s{T0}, s{S_WN}, 7", f"v_lshlrev_b32 v{VWP+1}, 4, v{VQQ}", f"v_add_u32 v{VWP+1}, s{T0}, v{VWP+1}"])
        if s_ < 31:
            fill += [[x] for x in p1_reads(s_ + 1)]
            if grp: fill = [[] for _ in range(P1SHIFT if len(fill) <= 26 else 0)] + fill
            m, fill = add_cs(m, fill, p, grp)
        elif CSV:
            vv = cs_valu(p, grp)
            fill = [vv[2*i:2*i+2] for i in range(16)]
            fill += [[f"v_add_f32 v{CS}, v{CS}, v{CS+1}", f"v_add_f32 v{CS+2}, v{CS+2}, v{CS+3}"]]
            for sw in ("v_permlane16_swap_b32", "v_permlane32_swap_b32"):
                fill += [[f"v_mov_b32 v{CS+1}, v{CS}", f"v_mov_b32 v{CS+3}, v{CS+2}"], ["s_nop 0", f"{sw} v{CS}, v{CS+1}", f"{sw} v{CS+2}, v{CS+3}"],
                         [f"v_add_f32 v{CS}, v{CS}, v{CS+1}", f"v_add_f32 v{CS+2}, v{CS+2}, v{CS+3}"]]
            fill += [[f"ds_write_b32 v28, v{CS} offset:{CSL}", f"ds_write_b32 v28, v{CS+2} offset:{CSL+64}"]]
            ex = kv_dma() + kv_dma() + [[f"buffer_load_dwordx2 {v(XF+2*j,2)}, v0, s[{SPART}:{SPART+3}], s{S_AO} offen offset:{j*128}"] for j in range(8)]
            for i, e in enumerate(ex): fill[i] = fill[i] + list(e)
        else:
            m = [cs_mfma(p, 0, grp), cs_mfma(p, 1, grp)] + m
            fill = [[f"s_mov_b32 m0, s{S_MKV}", "s_nop 0", f"buffer_load_dwordx4 v{VKVD}, s[{SKV}:{SKV+3}], s{S_KVO} offen lds"],
                    [f"buffer_load_dwordx4 v{VKVD}, s[{SKV}:{SKV+3}], s{S_KVO} offen offset:1024 lds", f"s_add_u32 s{S_KVO}, s{S_KVO}, 16384"]]
            fill += [[f"ds_read_b64 {v(XF+2*j,2)}, v0 offset:{STL + j*128}"] for j in range(8)] + [[], []]
            fill += [[f"ds_write_b128 v{VWP}, {v(CS+4*st,4)} offset:{CSL + st*1024}"] for st in range(2)]
        weave(a, m, fill)
        if s_ < 31:
            a(f"s_waitcnt vmcnt({vm.wait(s_ + 1)}) lgkmcnt(0)")
        else:
            a("s_waitcnt lgkmcnt(0)")
        if s_ == NS - 5 and not grp:
            n = f"s[{NONCE}:{NONCE+1}]"
            a(f"s_cmp_gt_u32 s{S_WAVE}, 1")
            a("s_cbranch_scc1 P1_NP1")
            a(f"s_waitcnt vmcnt({len(vm.q) - mark})")
            spin(a, [f"v_cmp_eq_u64 vcc, {n}, v[16:17]", f"v_cmp_eq_u64 s[{T2}:{T3}], {n}, v[18:19]", f"s_and_b64 vcc, vcc, s[{T2}:{T3}]"],
                 ["v_mbcnt_lo_u32_b32 v16, -1, 0", "v_mbcnt_hi_u32_b32 v16, -1, v16", "v_lshlrev_b32 v16, 4, v16", f"v_add_u32 v16, s{S_PB}, v16", f"global_load_dwordx4 v[16:19], v16, s[{SFLAG}:{SFLAG+1}] sc1"], sleep=8)
            a.label("P1_NP1")
        a("s_barrier")
def kv_dma():
    return [[f"s_mov_b32 m0, s{S_MKV}", f"s_xor_b32 s{S_MKV}, s{S_MKV}, 0x4000",
             f"buffer_load_dwordx4 v{VKVD}, s[{SKV}:{SKV+3}], s{S_KVO} offen lds"],
            [f"buffer_load_dwordx4 v{VKVD}, s[{SKV}:{SKV+3}], s{S_KVO} offen offset:1024 lds",
             f"s_add_u32 s{S_KVO}, s{S_KVO}, 8192"]]

QF, KB, VB, PB, SEL, RS, SB, OA, NM = 32, 40, 56, 72, 88, 92, 96, 128, 144
def mf32(d, x, y, c): return f"v_mfma_f32_32x32x16_bf16 {v(d,16)}, {v(x,4)}, {v(y,4)}, {c}"
def mfrs(p): return f"v_mfma_f32_16x16x32_bf16 {v(RS,4)}, {v(SEL,4)}, {v(p,4)}, {v(RS,4)}"
LAG = int(os.environ.get('X_LAG', 1))
CUTS = eval(os.environ.get('X_CUTS', '[0, 4, 9, 13, 16, 21]'))
def att_slot(a, n, qk=True, pv=True, rd=True, pre=()):
    b = n & 1
    S = SB + 16 * b; S1 = SB + 16 * (b ^ 1)
    P = PB + 8 * b; P1 = PB + 8 * (b ^ 1)
    K1 = KB + 8 * (b ^ 1); V1 = VB + 8 * (b ^ 1)
    m = []
    if qk:
        m.append(mf32(S1, K1, QF, v(NM, 16)))
        m.append(mf32(S1, K1 + 4, QF + 4, v(S1, 16)))
    if pv:
        m += [mf32(OA, V1, P1, v(OA, 16)), mfrs(P1), mf32(OA, V1 + 4, P1 + 4, v(OA, 16)), mfrs(P1 + 4)]
    val = []
    for i in range(16):
        val.append(f"v_exp_f32 v{S+i}, v{S+i}")
        k = i - LAG
        if k >= 1 and k % 2 == 1:
            val.append(f"v_cvt_pk_bf16_f32 v{P+k//2}, v{S+k-1}, v{S+k}")
    if LAG == 1: val.append("s_nop 0")
    for k in range(16 - LAG, 16):
        if k % 2 == 1: val.append(f"v_cvt_pk_bf16_f32 v{P+k//2}, v{S+k-1}, v{S+k}")
    rds = []
    if rd:
        pos = (n & 3) * 2048
        rds = [f"ds_read_b128 {v(KB+8*b,4)}, v{VKVR} offset:{pos}",
               f"ds_read_b128 {v(KB+8*b+4,4)}, v{VKVR} offset:{pos+1024}",
               f"ds_read_b128 {v(VB+8*b,4)}, v{VKVR} offset:{8192+pos}",
               f"ds_read_b128 {v(VB+8*b+4,4)}, v{VKVR} offset:{8192+pos+1024}"]
    other = [list(g) for g in pre] + [[x] for x in rds]
    cuts = CUTS[:len(m)]
    k = 0; oi = 0
    for i, x in enumerate(val):
        if k < len(m) and i == cuts[k]:
            a(m[k]); k += 1
            if oi < len(other):
                emit(a, [other[oi]]); oi += 1
        a(x)
        if i in (2, 6, 11) and oi < len(other) and len(other) > len(m):
            emit(a, [other[oi]]); oi += 1
    emit(a, other[oi:])
def prefill_dma():
    return [[f"s_add_u32 m0, s{S_RING}, s{T3}", "s_nop 0",
             f"buffer_load_dwordx4 v{VPA}, s[{SACT}:{SACT+3}], s{S_AO} offen lds",
             f"s_add_u32 s{S_AO}, s{S_AO}, 8192"],
            [f"s_add_u32 m0, m0, 8192", f"s_add_u32 s{S_RING}, s{S_RING}, 16384",
             f"buffer_load_dwordx4 v{VPW}, s[{SWD}:{SWD+3}], s{S_WDO} offen lds",
             f"s_add_u32 s{S_WDO}, s{S_WDO}, 65536"]]
def touch_w(n0):
    return [[f"s_add_u32 s{T0}, s{S_WAVE}, {n0}", f"s_lshl_b32 s{T0}, s{T0}, 17", f"s_add_u32 s{T0}, s{T0}, s{S_TW}",
             f"buffer_load_dword v{VDUM}, v{VTCH}, s[{SWD}:{SWD+3}], s{T0} offen"]]
def touch_a(m0):
    return [[f"s_add_u32 s{T0}, s{S_WAVE}, {m0}", f"s_lshl_b32 s{T0}, s{T0}, 15", f"s_add_u32 s{T0}, s{T0}, s{S_TA}",
             f"buffer_load_dword v{VDUM}, v{VTCH}, s[{SACT}:{SACT+3}], s{T0} offen"]]
def touch_wo():
    return [[f"s_lshl_b32 s{T0}, s2, 13", f"s_add_u32 s{T0}, s{T0}, s{T3}",
             f"buffer_load_dword v{VDUM}, v{VKVD}, s[{SWO}:{SWO+3}], s{T0} offen"]]
def h_store(j):
    off = (j >> 1) * 2048 + (j & 1) * 256
    tail = f"v{VHO + (off>>12)}, s[{SACT}:{SACT+3}], s{S_HO} offen offset:{off & 4095} sc1"
    return [[f"s_cmp_eq_u32 s{S_WN}, 3", f"s_cbranch_scc1 HS{j}A", f"buffer_store_dwordx4 {v(HS+4*j,4)}, {tail}",
             f"s_branch HS{j}B", f"HS{j}A:", f"buffer_store_dwordx2 {v(HS+4*j,2)}, {tail}", f"HS{j}B:"]]
def att_epoch(a, E, first=False, last=False, prefill=0, wait=0, post=None, pre_bar=None, x1=(), x2=(), x3=()):
    nstamp(a, f"e{E}a")
    a(f"s_waitcnt vmcnt({wait}) lgkmcnt(0)")
    if pre_bar: pre_bar()
    a("s_barrier")
    nstamp(a, f"e{E}c")
    if not first: a(f"v_xor_b32 v{VKVR}, 0x4000, v{VKVR}")
    if post: post()
    for i in range(4):
        pre = []
        if i == 0 and not last: pre += kv_dma()
        if i in (1, 2)[:prefill]: pre += prefill_dma()
        if i == 1: pre += list(x1)
        if i == 2: pre += list(x2)
        if i == 3: pre += list(x3)
        if i: a("s_waitcnt lgkmcnt(0)")
        att_slot(a, 4 * E + i, qk=not (last and i == 3), pv=not (first and i == 0), pre=pre)

def wave_sum(a, r, t):
    for mod in ("quad_perm:[1,0,3,2]", "quad_perm:[2,3,0,1]", "row_half_mirror", "row_mirror"):
        a("s_nop 1")
        a(f"v_add_f32_dpp v{r}, v{r}, v{r} {mod} row_mask:0xf bank_mask:0xf")
    for sw in ("v_permlane16_swap_b32", "v_permlane32_swap_b32"):
        a(f"v_mov_b32 v{t}, v{r}")
        a("s_nop 1")
        a(f"{sw} v{r}, v{t}")
        a(f"v_add_f32 v{r}, v{r}, v{t}")

def gen_p0(a, vm):
    VTR, VTW, VFR, VTA, VTB, VTX, VQS, VEX, VKS, VQD, VPF = 0, 20, 21, 22, 24, 26, 27, 28, 29, 30, 31
    SV = 29
    A0, A1, A2, A3, A4, A5, A6, A7, TID = 100, 101, 102, 103, 104, 105, 106, 107, 108
    TL = 16384
    a(f"s_load_dwordx2 s[{P_X}:{P_X+1}], s[0:1], {K_X}")
    a(f"s_load_dwordx8 s[92:99], s[0:1], {K_WQ}")
    a(f"s_load_dwordx2 s[{P_WS}:{P_WS+1}], s[0:1], {K_WS}")
    a(f"s_load_dwordx8 s[36:43], s[0:1], {K_WG}")
    a(f"v_lshrrev_b32 v{A0}, 6, v0")
    a(f"v_and_b32 v{VL}, 63, v0")
    a(f"v_mov_b32 v{TID}, v0")
    a(f"v_readfirstlane_b32 s{S_WAVE}, v{A0}")
    a(f"v_lshlrev_b32 v{VKVD}, 4, v{VL}")
    a(f"s_lshr_b32 s{S_PB}, s2, 4")
    a(f"s_lshl_b32 s{S_PB}, s{S_PB}, 3")
    a(f"s_and_b32 s{T0}, s2, 7")
    a(f"s_add_u32 s{S_PB}, s{S_PB}, s{T0}")
    a(f"s_lshl_b32 s{T0}, s{S_PB}, 4")
    a(f"s_add_u32 s{S_AO}, s{T0}, s{S_WAVE}")
    a(f"s_lshl_b32 s{T0}, s{S_AO}, 11")
    a(f"s_add_u32 s{T1}, s{T0}, {8*2048}")
    a("s_waitcnt lgkmcnt(0)")
    if STOP == "p0": a("s_branch KM_FIN")
    srd(a, SX, P_X, P_X + 1, 4 << 20)
    a(f"buffer_load_dwordx4 v[32:35], v{VKVD}, s[{SX}:{SX+3}], s{T0} offen")
    a(f"buffer_load_dwordx4 v[36:39], v{VKVD}, s[{SX}:{SX+3}], s{T0} offen offset:1024")
    a(f"buffer_load_dwordx4 v[40:43], v{VKVD}, s[{SX}:{SX+3}], s{T1} offen")
    a(f"buffer_load_dwordx4 v[44:47], v{VKVD}, s[{SX}:{SX+3}], s{T1} offen offset:1024")
    nstamp(a, "xi")
    a(f"s_getpc_b64 s[{T2}:{T3}]")
    a.label("PF_BASE")
    a(f"s_lshr_b32 s{T0}, s2, 3")
    a(f"s_lshl_b32 s{T0}, s{T0}, 12")
    a(f"v_lshrrev_b32 v{VPF}, 3, v0")
    a(f"v_lshlrev_b32 v{VPF}, 6, v{VPF}")
    a(f"v_add_u32 v{VPF}, s{T0}, v{VPF}")
    a(f"v_min_u32 v{VPF}, KM_END - PF_BASE, v{VPF}")
    a(f"global_load_dword v18, v{VPF}, s[{T2}:{T3}]")
    a(f"s_add_u32 s{SFLAG}, s{P_WS}, {WS_FLAG}")
    a(f"s_addc_u32 s{SFLAG+1}, s{P_WS+1}, 0")
    a(f"s_load_dwordx2 s[{NONCE}:{NONCE+1}], s[{SFLAG}:{SFLAG+1}], {F_NONCE}")
    a(f"v_lshrrev_b32 v{VQQ}, 4, v{VL}")
    a(f"v_and_b32 v{VT}, 15, v{VL}")
    a(f"s_bfe_u32 s{S_ISV}, s2, 0x10003")
    a(f"s_and_b32 s{S_KH}, s2, 1")
    a(f"s_mov_b32 s{P_OUT}, s42")
    a(f"s_mov_b32 s{P_OUT+1}, s43")
    a(f"s_mov_b32 s{P_WO}, s98")
    a(f"s_mov_b32 s{P_WO+1}, s99")
    srd(a, SWD, 40, 41, 3584 * 2048)
    a(f"s_cmp_lt_u32 s{S_WAVE}, 4")
    a(f"s_cselect_b32 s{S_TW}, s36, s38")
    a(f"s_cselect_b32 s{S_TA}, s37, s39")
    if WPF:
        a(f"v_and_b32 v{A0}, 255, v0")
        a(f"v_min_u32 v{A0}, {28*WPF - 1}, v{A0}")
        a(f"v_lshlrev_b32 v{A0}, 7, v{A0}")
        a(f"s_mul_i32 s{T0}, s2, {3584*WPF}")
        a(f"v_add_u32 v{A0}, s{T0}, v{A0}")
        a(f"global_load_dword v18, v{A0}, s[{S_TW}:{S_TA}]")
    srd(a, SACT, 92, 93, 2 << 20)
    a(f"s_cmp_eq_u32 s{S_ISV}, 0")
    a(f"s_cselect_b32 s{SKV}, s94, s96")
    a(f"s_cselect_b32 s{SKV+1}, s95, s97")
    a(f"s_mov_b32 s{SKV+2}, 65536")
    a(f"s_mov_b32 s{SKV+3}, 0x20000")
    srd(a, SPART, P_WS, P_WS + 1, 8 << 20)
    a(f"s_lshr_b32 s{T0}, s2, 3")
    a(f"s_lshl_b32 s{S_RP}, s{S_KH}, 2")
    a(f"s_and_b32 s{T1}, s{T0}, 3")
    a(f"s_add_u32 s{S_RP}, s{S_RP}, s{T1}")
    a(f"s_bfe_u32 s{S_CT}, s2, 0x20001")
    a(f"s_lshl_b32 s{S_G}, s{S_CT}, 2")
    a(f"s_lshl_b32 s{S_CT}, s{S_CT}, 3")
    a(f"s_lshr_b32 s{S_C2}, s{T0}, 2")
    a(f"s_add_u32 s{S_CT}, s{S_CT}, s{S_C2}")
    a(f"s_add_u32 s{S_G}, s{S_G}, s{T1}")
    a(f"s_lshr_b32 s{S_WM}, s{S_WAVE}, 2")
    a(f"s_and_b32 s{S_P}, s{S_WAVE}, 1")
    a(f"s_bfe_u32 s{S_BB}, s{S_WAVE}, 0x10001")
    a(f"s_and_b32 s{S_WN}, s{S_WAVE}, 3")
    a(f"s_lshl_b32 s{S_MX}, s{S_WAVE}, 11")
    a(f"s_lshl_b32 s{S_RING}, s{S_WAVE}, 13")
    a(f"s_lshl_b32 s{T1}, s{S_WM}, 15")
    a(f"s_add_u32 s{T1}, s{T1}, 0x10000")
    a(f"s_add_u32 s{T1}, s{T1}, s{S_RING}")
    for h in range(2):
        a(f"s_add_u32 m0, s{T1}, {h*4096}")
        a(f"s_add_u32 s{T0}, s{S_RING}, {h*4096}")
        for i in range(4):
            a(f"buffer_load_dwordx4 v{VKVD}, s[{SKV}:{SKV+3}], s{T0} offen offset:{i*1024} lds")
    a(f"v_lshrrev_b32 v{A2}, 3, v{TID}")
    a(f"v_and_b32 v{A0}, 7, v{A2}")
    a(f"s_lshl_b32 s{T0}, s{S_WAVE}, 4")
    a(f"v_add_u32 v{A0}, s{T0}, v{A0}")
    a(f"v_lshlrev_b32 v{A0}, 11, v{A0}")
    a(f"v_and_b32 v{A1}, 7, v{VL}")
    a(f"v_xor_b32 v{A1}, v{A1}, v{VQQ}")
    a(f"v_lshl_add_u32 v{VXD}, v{A1}, 4, v{A0}")
    a(f"v_xor_b32 v{VXD+1}, 64, v{VXD}")
    a(f"v_add_u32 v{VXD+1}, {8*2048 - 1024}, v{VXD+1}")
    a(f"s_add_u32 s{T0}, s{T0}, {TL}")
    a(f"v_lshlrev_b32 v{VTW}, 8, v{VL}")
    a(f"v_add_u32 v{VTW}, s{T0}, v{VTW}")
    a(f"s_lshl_b32 s{T0}, s{S_RP}, 19")
    srd(a, SX, P_X, P_X + 1, 512 << 10, add_lo=f"s{T0}")
    if TE >= 1: emit(a, p1_dma_x(0, 0) + p1_dma_x(1, 0)); vm.add(-1, 4)
    a(f"v_lshrrev_b32 v{VTX}, 4, v{TID}")
    a(f"v_lshlrev_b32 v{VTX}, 11, v{VTX}")
    a(f"v_lshl_add_u32 v{VTX}, v{VT}, 7, v{VTX}")
    a(f"s_lshl_b32 s{T0}, s{S_C2}, 16")
    a(f"v_add_u32 v{VTX}, s{T0}, v{VTX}")
    a(f"s_lshl_b32 s{S_MW}, s{S_BB}, 2")
    a(f"s_add_u32 s{S_MW}, s{S_MW}, s{S_P}")
    a(f"s_lshl_b32 s{S_MW}, s{S_MW}, 10")
    a(f"s_lshl_b32 s{T0}, s{S_WM}, 13")
    a(f"s_add_u32 s{S_MW}, s{S_MW}, s{T0}")
    a(f"s_add_u32 s{S_MW}, s{S_MW}, {WLDS}")
    a(f"s_lshl_b32 s{T0}, s{S_P}, 3")
    a(f"s_lshl_b32 s{T1}, s{S_BB}, 2")
    a(f"s_add_u32 s{T0}, s{T0}, s{T1}")
    a(f"v_add_u32 v{A0}, s{T0}, v{VQQ}")
    a(f"s_lshl_b32 s{T0}, s{S_P}, 2")
    a(f"v_add_u32 v{A1}, s{T0}, v{VQQ}")
    a(f"v_lshlrev_b32 v{A1}, 1, v{A1}")
    a(f"v_xor_b32 v{A1}, v{A1}, v{VT}")
    a(f"v_lshlrev_b32 v{A2}, 4, v{A1}")
    a(f"v_subrev_u32 v{A3}, 192, v{A2}")
    a(f"v_add_u32 v{A4}, 32, v{A2}")
    a(f"v_cmp_le_u32 vcc, 12, v{A1}")
    a(f"v_cmp_le_u32 s[{QMASK}:{QMASK+1}], 14, v{A1}")
    a(f"s_and_b32 s{T0}, s{S_CT}, 1")
    a(f"s_cmp_eq_u32 s{T0}, 1")
    a(f"v_cndmask_b32 v{A3}, v{A4}, v{A3}, vcc")
    a(f"s_cselect_b64 s[{T2}:{T3}], -1, 0")
    a(f"v_cndmask_b32 v{A3}, v{A2}, v{A3}, s[{T2}:{T3}]")
    a(f"s_mul_i32 s{T0}, s{S_CT}, 224")
    if os.environ.get("X_ALIGN"):
        a(f"s_min_u32 s{T0}, s{S_CT}, 27"); a(f"s_lshl_b32 s{T0}, s{T0}, 8"); a(f"v_mov_b32 v{A3}, v{A2}")
    a(f"v_add_u32 v{A3}, s{T0}, v{A3}")
    a(f"v_mov_b32 v{A5}, 7168")
    a(f"v_mad_u32_u24 v{A3}, v{A0}, v{A5}, v{A3}")
    a(f"s_lshl_b32 s{T0}, s{S_CT}, 6")
    a(f"s_lshl_b32 s{T1}, s{S_WM}, 5")
    a(f"s_add_u32 s{T0}, s{T0}, s{T1}")
    a(f"v_and_b32 v{A2}, 16, v{A2}")
    a(f"v_add_u32 v{A4}, s{T0}, v{A2}")
    a(f"v_lshl_add_u32 v{A4}, v{A0}, 11, v{A4}")
    a(f"v_mov_b32 v{A0}, 2048")
    a(f"v_cndmask_b32 v{A3}, v{A3}, v{A4}, s[{QMASK}:{QMASK+1}]")
    a(f"v_cndmask_b32 v{A5}, v{A5}, v{A0}, s[{QMASK}:{QMASK+1}]")
    a(f"v_mov_b32 v{A0}, s92")
    a(f"v_mov_b32 v{A1}, s93")
    a(f"v_mov_b32 v{A6}, s{S_TW}")
    a(f"v_mov_b32 v{A7}, s{S_TA}")
    a(f"v_cndmask_b32 v{A6}, v{A6}, v{A0}, s[{QMASK}:{QMASK+1}]")
    a(f"v_cndmask_b32 v{A7}, v{A7}, v{A1}, s[{QMASK}:{QMASK+1}]")
    a(f"v_lshlrev_b32 v{VWS}, 5, v{A5}")
    a(f"v_mov_b32 v{VWS+1}, 0")
    a(f"v_add_co_u32 v{VWA}, vcc, v{A3}, v{A6}")
    a(f"v_lshlrev_b32 v{A4}, 4, v{A5}")
    a(f"v_mov_b32 v{A5}, 0")
    a(f"v_addc_co_u32 v{VWA+1}, vcc, 0, v{A7}, vcc")
    a(f"v_lshl_add_u64 {v(VWB,2)}, {v(A4,2)}, 0, {v(VWA,2)}")
    a(f"s_and_b32 s{T0}, s{S_RP}, 3")
    a(f"s_add_u32 s{T0}, s{T0}, 2")
    a(f"v_mov_b32 v{SV}, v{A2}")
    a(f"v_mul_lo_u32 v{A4}, v{VWS}, s{T0}")
    a(f"v_lshl_add_u64 {v(VTA,2)}, {v(A4,2)}, 0, {v(VWA,2)}")
    a(f"v_lshl_add_u64 {v(VTB,2)}, {v(A4,2)}, 0, {v(VWB,2)}")
    nstamp(a, "su")
    def tiles(lo, hi):
        if lo < 1 <= hi: emit(a, p1_dma_x(0, 0) + p1_dma_x(1, 0)); vm.add(-1, 4)
        if lo < 2 <= hi:
            emit(a, p1_dma_w(0)); vm.add(-1, 2)
            emit(a, p1_dma_w(1)); vm.add(0, 2)
    if TE >= 2:
        emit(a, p1_dma_w(0)); vm.add(-1, 2)
        emit(a, p1_dma_w(1)); vm.add(0, 2)
    a(f"v_bfe_u32 v{A0}, v{VL}, 1, 2")
    a(f"v_and_b32 v{A1}, 1, v{VL}")
    a(f"v_lshrrev_b32 v{A2}, 3, v{TID}")
    a(f"v_lshlrev_b32 v{VQS}, 11, v{A0}")
    a(f"v_lshl_add_u32 v{VQS}, v{A2}, 5, v{VQS}")
    a(f"v_lshl_add_u32 v{VQS}, v{A1}, 4, v{VQS}")
    a(f"v_lshrrev_b32 v{A3}, 1, v{A2}")
    a(f"v_lshlrev_b32 v{VQD}, 16, v{A3}")
    a(f"v_and_b32 v{A3}, 1, v{A2}")
    a(f"v_lshl_add_u32 v{VQD}, v{A3}, 10, v{VQD}")
    a(f"v_lshl_add_u32 v{VQD}, v{A0}, 5, v{VQD}")
    a(f"v_lshl_add_u32 v{VQD}, v{A1}, 4, v{VQD}")
    a(f"s_lshl_b32 s{T2}, s2, 13")
    a(f"buffer_load_dwordx4 v[48:51], v{VQS}, s[{SACT}:{SACT+3}], s{T2} offen")
    vm.add(99, 1)
    a(f"s_lshl_b32 s{S_AO}, s{S_AO}, 3")
    a(f"s_mov_b32 s{T3}, 0xffff0000")
    a(f"s_waitcnt vmcnt({9 + (WPF > 0) + len(vm.q)})")
    nstamp(a, "xl")
    def ln(r):
        o = []
        I = 32 + 8 * r; X = 64 + 32 * r; C = X + 16; A_ = 52 + 6 * r
        M = A_ + 4
        def wsum(x, t):
            for mod in ("quad_perm:[1,0,3,2]", "quad_perm:[2,3,0,1]", "row_half_mirror", "row_mirror"):
                o.append("NOP2"); o.append(f"v_add_f32_dpp v{x}, v{x}, v{x} {mod} row_mask:0xf bank_mask:0xf")
            for sw in ("v_permlane16_swap_b32", "v_permlane32_swap_b32"):
                o.append(f"v_mov_b32 v{t}, v{x}"); o.append("NOP2"); o.append(f"{sw} v{x}, v{t}"); o.append(f"v_add_f32 v{x}, v{x}, v{t}")
        def rbf(x):
            o.append(f"v_cvt_pk_bf16_f32 v{x}, v{x}, v{x}"); o.append(f"v_and_b32 v{x}, s{T3}, v{x}")
        for k in range(8):
            o.append(f"v_lshlrev_b32 v{X+2*k}, 16, v{I+k}"); o.append(f"v_and_b32 v{X+2*k+1}, s{T3}, v{I+k}")
        o.append(f"v_pk_add_f32 {v(A_,2)}, {v(X,2)}, {v(X+2,2)}"); o.append(f"v_pk_add_f32 {v(A_+2,2)}, {v(X+4,2)}, {v(X+6,2)}")
        for k in (4, 6):
            o.append(f"v_pk_add_f32 {v(A_,2)}, {v(A_,2)}, {v(X+2*k,2)}"); o.append(f"v_pk_add_f32 {v(A_+2,2)}, {v(A_+2,2)}, {v(X+2*k+2,2)}")
        o.append(f"v_pk_add_f32 {v(A_,2)}, {v(A_,2)}, {v(A_+2,2)}"); o.append(f"v_add_f32 v{A_}, v{A_}, v{A_+1}")
        wsum(A_, A_ + 1)
        o.append(f"v_mul_f32 v{M}, 0xba800000, v{A_}")
        for k in range(8): o.append(f"v_pk_add_f32 {v(C+2*k,2)}, {v(X+2*k,2)}, {v(M,2)} op_sel_hi:[1,0]")
        o.append(f"v_pk_mul_f32 {v(A_,2)}, {v(C,2)}, {v(C,2)}"); o.append(f"v_pk_mul_f32 {v(A_+2,2)}, {v(C+2,2)}, {v(C+2,2)}")
        for k in range(2, 8):
            q = A_ + 2 * (k % 2); o.append(f"v_pk_fma_f32 {v(q,2)}, {v(C+2*k,2)}, {v(C+2*k,2)}, {v(q,2)}")
        o.append(f"v_pk_add_f32 {v(A_,2)}, {v(A_,2)}, {v(A_+2,2)}"); o.append(f"v_add_f32 v{A_}, v{A_}, v{A_+1}")
        rbf(M)
        wsum(A_, A_ + 1)
        for k in range(8): o.append(f"v_pk_add_f32 {v(C+2*k,2)}, {v(X+2*k,2)}, {v(M,2)} op_sel_hi:[1,0]")
        o.append(f"v_mul_f32 v{A_}, 0x3a800000, v{A_}"); rbf(A_)
        o.append(f"v_add_f32 v{A_}, 0x3727c5ac, v{A_}"); rbf(A_)
        o.append(f"v_sqrt_f32 v{A_}, v{A_}"); o.append("NOP1"); rbf(A_)
        o.append(f"v_rcp_f32 v{M+1}, v{A_}"); o.append("NOP1")
        for k in range(8): o.append(f"v_pk_mul_f32 {v(C+2*k,2)}, {v(C+2*k,2)}, {v(M,2)} op_sel:[0,1] op_sel_hi:[1,1]")
        for k in range(8): o.append(f"v_cvt_pk_bf16_f32 v{I+k}, v{C+2*k}, v{C+2*k+1}")
        return o
    for x0, x1 in zip(ln(0), ln(1)):
        if x0 == "NOP2": a("s_nop 0")
        elif x0 == "NOP1": pass
        else:
            a(x0); a(x1)
    nstamp(a, "ln")
    for r in range(2):
        a(f"ds_write_b128 v{VTW}, {v(32+8*r,4)} offset:{r*128}")
        a(f"ds_write_b128 v{VTW}, {v(36+8*r,4)} offset:{16384 + r*128}")
    a("s_mov_b64 exec, 1")
    a(f"buffer_store_dwordx2 v[56:57], v{VKVD}, s[{SPART}:{SPART+3}], s{S_AO} offen sc1")
    a(f"buffer_store_dwordx2 v[62:63], v{VKVD}, s[{SPART}:{SPART+3}], s{S_AO} offen offset:64 sc1")
    a("s_mov_b64 exec, -1")
    vm.add(99, 2)
    q0 = len(vm.q)
    tiles(TE, 2)
    nstamp(a, "ti")
    a(f"v_and_b32 v{A1}, 1, v{VL}")
    a(f"v_mov_b32 v{A2}, v{SV}")
    a(f"v_mov_b32 v{A5}, 0")
    a(f"v_lshrrev_b32 v{VEX}, 1, v{VL}")
    a(f"v_lshlrev_b32 v{VEX}, 6, v{VEX}")
    a(f"v_lshl_add_u32 v{VEX}, v{A1}, 4, v{VEX}")
    a(f"s_lshl_b32 s{T0}, s{S_CT}, 16")
    a(f"s_lshl_b32 s{T1}, s{S_WM}, 10")
    a(f"s_add_u32 s{T0}, s{T0}, s{T1}")
    a(f"s_lshl_b32 s{T1}, s{S_P}, 8")
    a(f"s_add_u32 s{T0}, s{T0}, s{T1}")
    a(f"s_lshl_b32 s{T1}, s{S_BB}, 7")
    a(f"s_add_u32 s{T0}, s{T0}, s{T1}")
    a(f"s_add_u32 s{T0}, s{T0}, {WS_WQP + NS*2048}")
    a(f"s_add_u32 s{T0}, s{T0}, s{P_WS}")
    a(f"s_addc_u32 s{T1}, s{P_WS+1}, 0")
    a(f"v_lshl_add_u32 v{A4}, v{VQQ}, 5, v{A2}")
    a(f"v_lshl_add_u64 {v(VWP,2)}, {v(A4,2)}, 0, s[{T0}:{T1}]")
    srd(a, SWO, P_WO, P_WO + 1, 1024 * 2048)
    a(f"v_lshrrev_b32 v{A0}, 1, v{VT}")
    a(f"v_xor_b32 v{A0}, v{A0}, v{VQQ}")
    a(f"v_lshlrev_b32 v{A0}, 4, v{A0}")
    a(f"v_lshl_add_u32 v{A0}, v{VT}, 7, v{A0}")
    a(f"s_mul_i32 s{T0}, s{S_WM}, 49152")
    a(f"v_add_u32 v{VXR}, s{T0}, v{A0}")
    a(f"v_xor_b32 v{VXR+1}, 64, v{VXR}")
    a(f"v_lshrrev_b32 v{A3}, 2, v{VT}")
    a(f"v_lshl_add_u32 v{A0}, v{VQQ}, 2, v{A3}")
    a(f"v_and_b32 v{A1}, 7, v{A0}")
    a(f"s_lshl_b32 s{T0}, s{S_WN}, 1")
    a(f"v_xor_b32 v{A1}, s{T0}, v{A1}")
    a(f"v_lshlrev_b32 v{A1}, 5, v{A1}")
    a(f"v_lshl_add_u32 v{A1}, v{A0}, 8, v{A1}")
    a(f"v_and_b32 v{A2}, 3, v{VL}")
    a(f"v_lshl_add_u32 v{A1}, v{A2}, 3, v{A1}")
    a(f"v_add_u32 v{VWR}, {WLDS}, v{A1}")
    a(f"v_xor_b32 v{VWR+1}, 32, v{VWR}")
    a(f"s_lshl_b32 s{S_KVO}, s{S_WN}, 11")
    a(f"s_cmp_eq_u32 s{S_WM}, 0")
    a(f"s_movk_i32 s{T0}, 4096")
    a(f"s_cselect_b32 s{T0}, s{T0}, 0x20000")
    a(f"s_add_u32 s{S_KVO}, s{S_KVO}, s{T0}")
    a(f"s_add_u32 s{S_MKV}, s{S_MX}, {KVL + 0x4000}")
    a(f"s_lshr_b32 s{T0}, s{S_WAVE}, 1")
    a(f"s_lshl_b32 s{T1}, s{T0}, 13")
    a(f"s_add_u32 s{T1}, s{T1}, {TL}")
    a(f"v_add_u32 v{VFR}, s{T1}, v{VKVD}")
    a(f"s_lshl_b32 s{T0}, s{T0}, 14")
    a(f"s_lshl_b32 s{T1}, s{S_WM}, 15")
    a(f"s_add_u32 s{T0}, s{T0}, s{T1}")
    a(f"s_lshl_b32 s{T1}, s{S_P}, 5")
    a(f"s_add_u32 s{T1}, s{T1}, 0x10000")
    a(f"s_add_u32 s{T0}, s{T0}, s{T1}")
    a(f"v_lshl_add_u32 v{VTR}, v{VQQ}, 3, v{A3}")
    a(f"v_lshlrev_b32 v{VTR}, 6, v{VTR}")
    a(f"v_lshl_add_u32 v{VTR}, v{A2}, 3, v{VTR}")
    a(f"v_add_u32 v{VTR}, s{T0}, v{VTR}")
    a(f"v_add_u32 v{VEX}, s{T0}, v{VEX}")
    a(f"s_lshr_b32 s{S_WDO}, s{S_PB}, 1")
    a(f"s_lshl_b32 s{S_WDO}, s{S_WDO}, 11")
    a(f"s_and_b32 s{T0}, s{S_PB}, 1")
    a(f"s_lshl_b32 s{T1}, s{T0}, 8")
    a(f"s_lshl_b32 s{T2}, s{S_P}, 3")
    a(f"s_add_u32 s{T1}, s{T1}, s{T2}")
    a(f"s_lshl_b32 s{T0}, s{T0}, 10")
    a(f"s_lshl_b32 s{T2}, s{S_P}, 8")
    a(f"s_add_u32 s{T0}, s{T0}, s{T2}")
    a(f"s_add_u32 s{T0}, s{T0}, 0x20000")
    a(f"s_cmp_eq_u32 s{S_ISV}, 0")
    a(f"s_cselect_b32 s{T0}, s{T1}, s{T0}")
    a(f"s_cselect_b64 vcc, -1, 0")
    a(f"s_add_u32 s{S_WDO}, s{S_WDO}, s{T0}")
    a(f"s_add_u32 s{S_WDO}, s{S_WDO}, 8192")
    a(f"v_lshlrev_b32 v{A0}, 9, v{VQQ}")
    a(f"v_and_b32 v{A1}, 512, v{A0}")
    a(f"v_lshrrev_b32 v{A2}, 1, v{VQQ}")
    a(f"v_lshl_add_u32 v{A1}, v{A2}, 3, v{A1}")
    a(f"v_cndmask_b32 v{A0}, v{A1}, v{A0}, vcc")
    a(f"v_lshl_add_u32 v{VKS}, v{VT}, 4, v{A0}")
    a(f"s_lshr_b32 s{S_CNT}, s2, 3")
    a(f"s_lshl_b32 s{S_CNT}, s{S_CNT}, 11")
    a(f"s_and_b32 s{T0}, s2, 7")
    a(f"s_lshl_b32 s{T0}, s{T0}, 7")
    a(f"s_add_u32 s{S_CNT}, s{S_CNT}, s{T0}")
    a(f"s_add_u32 s{S_CNT}, s{S_CNT}, {WS_WQP}")
    srd(a, SACT, P_WS, P_WS + 1, 16 * ACT_NU * 8192, add_lo=WS_ACT)
    srd(a, SKV, P_WS, P_WS + 1, (256 << 10) + 32768, add_lo=WS_KV - 8192)
    a(f"s_waitcnt vmcnt({len(vm.q)}) lgkmcnt(0)")
    a(f"s_add_u32 s{NONCE}, s{NONCE}, 0x9e3779b9")
    a(f"s_add_u32 s{NONCE+1}, s{NONCE+1}, 0x85ebca6b")
    a("s_barrier")
    nstamp(a, "b1")
    for u in range(8):
        a(f"ds_read_b128 {v(64+4*u,4)}, v{VFR} offset:{u*1024}")
        for h in range(2):
            a(f"ds_read_b64_tr_b16 {v(96+4*u+2*h,2)}, v{VTR} offset:{u*2048 + h*256}")
    a(f"global_load_dword v18, {v(VTA,2)}, off")
    a(f"global_load_dword v18, {v(VTB,2)}, off")
    mk_ = (((1 << XL) - 1) << 1) * 0x10001
    a(f"s_mov_b32 exec_lo, {mk_}")
    a(f"s_mov_b32 exec_hi, {mk_}")
    a(f"buffer_load_dword v18, v{VTX}, s[{SX}:{SX+3}], 0 offen")
    a("s_mov_b64 exec, -1")
    vm.add(99, 3)
    a(f"s_waitcnt vmcnt({len(vm.q) - q0 + 2})")
    a(f"buffer_store_dwordx4 v[48:51], v{VQD}, s[{SPART}:{SPART+3}], s{S_CNT} offen sc1")
    vm.add(99, 1)
    a(f"s_cmp_lg_u32 s{S_ISV}, 0")
    a("s_cbranch_scc1 P0_V")
    for isv in range(2):
        if isv: a.label("P0_V")
        for u in range(8):
            a(f"s_waitcnt lgkmcnt({min(15, 3*(7-u))})")
            x = 64 + 4 * u; w = 96 + 4 * u; d = (20, 24)[u & 1]
            c = "0" if u < 2 else v(d, 4)
            ab = (x, w) if isv else (w, x)
            a(f"v_mfma_f32_16x16x32_bf16 {v(d,4)}, {v(ab[0],4)}, {v(ab[1],4)}, {c}")
        if not isv: a("s_branch P0_MD")
    a.label("P0_MD")
    srd(a, SPART, P_WS, P_WS + 1, 16384, add_lo=WS_ST)
    a("s_nop 3")
    a("v_pk_add_f32 v[20:21], v[20:21], v[24:25]")
    a("v_pk_add_f32 v[22:23], v[22:23], v[26:27]")
    a(f"ds_write_b128 v{VEX}, v[20:23]")
    a(f"s_waitcnt vmcnt({vm.wait(-1)}) lgkmcnt(0)")
    a("s_barrier")

def p0_finish(a):
    a(f"s_cmp_gt_u32 s{S_WAVE}, 1")
    a("s_cbranch_scc1 P0_KVD")
    a("v_add_u32 v30, 0x10000, v28")
    a("ds_read_b128 v[24:27], v28 offset:16384")
    a("ds_read_b128 v[48:51], v30")
    a("ds_read_b128 v[52:55], v30 offset:16384")
    a("s_waitcnt lgkmcnt(0)")
    for h in (0, 2):
        a(f"v_pk_add_f32 {v(20+h,2)}, {v(20+h,2)}, {v(24+h,2)}")
        a(f"v_pk_add_f32 {v(48+h,2)}, {v(48+h,2)}, {v(52+h,2)}")
        a(f"v_pk_add_f32 {v(20+h,2)}, {v(20+h,2)}, {v(48+h,2)}")
    a("v_cvt_pk_bf16_f32 v20, v20, v21")
    a("v_cvt_pk_bf16_f32 v21, v22, v23")
    a(f"buffer_store_dwordx2 v[20:21], v29, s[{SKV}:{SKV+3}], s{S_WDO} offen sc1")
    a.label("P0_KVD")

def gen(a):
    kernel_head(a, NAME)
    a("s_cmp_ge_u32 s2, 256")
    a("s_cbranch_scc1 KM_END")
    stamp(a, 0)
    vm = VM()
    gen_p0(a, vm)
    nstamp(a, "fl")
    stamp(a, 1)
    for x in p1_reads(0): a(x)
    emit(a, p1_dma_x(0, 1)); vm.add(1, 2)
    p0_finish(a)
    vm.add(1)
    a(f"s_lshl_b32 s{S_CNT}, s2, 3")
    a(f"s_add_u32 s{S_CNT}, s{S_CNT}, {F_KV}")
    a(f"s_lshl_b32 s{S_PB}, s{S_P}, 10")
    a(f"s_add_u32 s{S_PB}, s{S_PB}, {F_KV}")
    a(f"s_mul_i32 s{T0}, s{S_WN}, {7*128}")
    a(f"s_mul_i32 s{T1}, s2, 3584")
    a(f"s_add_u32 s{T0}, s{T0}, s{T1}")
    a(f"s_add_u32 s{T0}, s{T0}, {max(WPF - 1, 0) * 128 * 7168}")
    a(f"v_lshlrev_b32 v0, 3, v{VKVD}")
    a(f"v_add_u32 v0, s{T0}, v0")
    a(f"s_lshl_b32 s{S_AO}, s{S_RP}, 1")
    a(f"s_add_u32 s{S_AO}, s{S_AO}, s{S_WM}")
    a(f"s_lshl_b32 s{S_AO}, s{S_AO}, 10")
    for i in range(4): a(f"v_mov_b32 v{ONES+i}, 0x3f803f80")
    for i in range(8): a(f"v_mov_b32 v{CS+i}, 0")
    a(f"s_waitcnt vmcnt({vm.wait(0) - 1}) lgkmcnt(0)")
    a("s_barrier")
    nstamp(a, "p1s")
    a(f"s_cmp_lg_u32 s{S_WM}, 0")
    a("s_cbranch_scc1 P1_B")
    if PR1 < 0: a(f"s_setprio {-PR1}")
    gen_p1(a, 0, vm)
    a("s_branch P1_END")
    a.label("P1_B")
    if PR1 > 0: a(f"s_setprio {PR1}")
    gen_p1(a, 1, vm)
    a.label("P1_END")
    if PR1: a("s_setprio 0")
    stamp(a, 2)
    nstamp(a, "p1e")
    if STOP == "p1": a("s_branch KM_FIN")
    for _ in range(int(os.environ.get("X_SHE", 0))): a("s_nop 0")
    CSR = XF + 16
    for t in range(2):
        for st in range(2):
            a(f"ds_read_b128 {v(CSR+(st*2+t)*4,4)}, v{VWP+1} offset:{CSL + (t*512 + st*64 if CSV else t*8192 + st*1024)}")
    a(f"v_lshlrev_b32 v{VHO}, 9, v{VQQ}")
    a(f"v_lshl_add_u32 v{VHO}, v{VT}, 4, v{VHO}")
    a(f"v_add_u32 v{VHO+1}, 0x1000, v{VHO}")
    a(f"s_lshr_b32 s{T0}, s{S_CT}, 1")
    a(f"s_mul_i32 s{T0}, s{T0}, 7")
    a(f"s_and_b32 s{T1}, s{S_CT}, 1")
    a(f"s_lshl_b32 s{T2}, s{T1}, 2")
    a(f"s_add_u32 s{T2}, s{T2}, s{S_WN}")
    a(f"s_cmp_eq_u32 s{S_WN}, 3")
    a(f"s_cselect_b32 s{T2}, 3, s{T2}")
    a(f"s_add_u32 s{T0}, s{T0}, s{T2}")
    a(f"s_lshl_b32 s{T2}, s{S_RP}, 1")
    a(f"s_add_u32 s{T2}, s{T2}, s{S_WM}")
    a(f"s_mul_i32 s{T3}, s{T2}, {ACT_NU}")
    a(f"s_add_u32 s{T0}, s{T0}, s{T3}")
    a(f"s_lshl_b32 s{S_HO}, s{T0}, 13")
    a(f"s_lshl_b32 s{S_XO}, s{S_RP}, 8")
    a(f"s_lshl_b32 s{T3}, s{S_CT}, 3")
    a(f"s_add_u32 s{S_XO}, s{S_XO}, s{T3}")
    a(f"s_add_u32 s{S_XO}, s{S_XO}, {F_H}")
    a("s_waitcnt lgkmcnt(0)")
    for j in range(8): a(f"v_mul_f32 v{XF+32+j}, v{XF+2*j+1}, v{XF+2*j+1}")
    a(f"s_cmp_eq_u32 s{S_WN}, 3")
    a("s_cbranch_scc1 P1_EP3")
    def center(st, t, j):
        g = acc(st, t, j); c = CSR + (st * 2 + t) * 4
        for i in (0, 2): a(f"v_pk_fma_f32 {v(g+i,2)}, {v(c+i,2)}, {v(XF+2*j,2)}, {v(g+i,2)} op_sel_hi:[1,0,1]")
    def hpair(t, j):
        g = acc(0, t, j); u = acc(1, t, j); dst = HS + 4 * j + 2 * t
        r2 = XF + 32 + (j & ~1); sel = "op_sel:[0,1] op_sel_hi:[1,1]" if j & 1 else "op_sel_hi:[1,0]"
        center(0, t, j); center(1, t, j)
        for i in range(4): a(f"v_max_f32 v{g+i}, 0, v{g+i}")
        for i in (0, 2): a(f"v_pk_mul_f32 {v(u+i,2)}, {v(u+i,2)}, {v(r2,2)} {sel}")
        for i in (0, 2): a(f"v_pk_mul_f32 {v(g+i,2)}, {v(g+i,2)}, {v(u+i,2)}")
        for i in (2, 0): a(f"v_cvt_pk_bf16_f32 v{dst+i//2}, v{g+i}, v{g+i+1}")
    def hst(j, n):
        off = (j >> 1) * 2048 + (j & 1) * 256
        a(f"buffer_store_dwordx{n} {v(HS+4*j,n)}, v{VHO + (off>>12)}, s[{SACT}:{SACT+3}], s{S_HO} offen offset:{off & 4095} sc1")
    for j in range(8):
        hpair(1, j); hpair(0, j)
        if j % HSTEP == 0 and j // HSTEP < NE: hst(j // HSTEP, 4)
    a("s_branch P1_EPD")
    a.label("P1_EP3")
    a(f"s_lshl_b32 s{S_CNT}, s{S_WM}, 13")
    a(f"v_add_u32 v24, s{S_CNT}, v{VHO}")
    for j in range(8): a(f"v_mul_f32 v{XF+2*j+1}, {QSCALE}, v{XF+2*j+1}")
    for j in range(8):
        tmp = XF + 40 + 4 * (j & 3)
        for st in range(2):
            g = acc(st, 1, j)
            center(st, 1, j)
            for i in (0, 2): a(f"v_pk_mul_f32 {v(g+i,2)}, {v(g+i,2)}, {v(XF+2*j,2)} op_sel:[0,1] op_sel_hi:[1,1]")
            for i in (0, 2): a(f"v_cvt_pk_bf16_f32 v{tmp+2*st+i//2}, v{g+i}, v{g+i+1}")
        a(f"ds_write_b128 v24, {v(tmp,4)} offset:{QLDS + (j>>1)*2048 + (j&1)*256}")
    a(f"s_lshl_b32 s{T1}, s{T1}, 3")
    a(f"s_add_u32 s{S_HO}, s{S_HO}, s{T1}")
    for j in range(8):
        hpair(0, j)
        if j % HSTEP == 0 and j // HSTEP < NE: hst(j // HSTEP, 2)
    a.label("P1_EPD")
    srd(a, SPART, P_WS, P_WS + 1, 8 << 20, add_lo=WS_PART)
    a(f"s_lshl_b32 s{T3}, s{S_WAVE}, 10")
    a(f"v_add_u32 v{VPA}, s{T3}, v{VKVD}")
    a(f"v_lshlrev_b32 v3, 1, v{VQQ}")
    a(f"v_xor_b32 v3, v3, v{VT}")
    a("v_lshlrev_b32 v3, 4, v3")
    a(f"v_lshl_add_u32 v3, v{VQQ}, 11, v3")
    a(f"s_lshl_b32 s{T0}, s{S_WAVE}, 13")
    a(f"s_lshl_b32 s{T1}, s{S_C2}, 8")
    a(f"s_add_u32 s{T0}, s{T0}, s{T1}")
    a(f"s_lshl_b32 s{T1}, s{S_P}, 7")
    a(f"v_xor_b32 v{VPW}, s{T1}, v3")
    a(f"v_add_u32 v{VPW}, s{T0}, v{VPW}")
    a(f"s_mul_i32 s{T0}, s{S_G}, {ACT_NU}")
    a(f"s_mul_i32 s{T1}, s{S_KH}, 56")
    a(f"s_add_u32 s{T0}, s{T0}, s{T1}")
    a(f"s_lshl_b32 s{S_AO}, s{T0}, 13")
    a(f"s_lshl_b32 s{S_WDO}, s{T1}, 16")
    a(f"s_mov_b32 s{S_RING}, 0")
    a(f"v_lshlrev_b32 v{VTCH}, 6, v{VL}")
    a(f"s_lshr_b32 s{T0}, s2, 3")
    a(f"s_lshl_b32 s{T0}, s{T0}, 12")
    a(f"s_add_u32 s{S_TW}, s{S_WDO}, s{T0}")
    a(f"s_lshl_b32 s{T0}, s{S_C2}, 12")
    a(f"s_add_u32 s{S_TA}, s{S_AO}, s{T0}")
    a(f"v_lshlrev_b32 v26, 11, v{VT}")
    a(f"v_and_b32 v27, 1, v{VQQ}")
    a("v_lshl_add_u32 v26, v27, 5, v26")
    a(f"v_lshrrev_b32 v27, 1, v{VQQ}")
    a(f"v_lshl_add_u32 v{VXA}, v27, 4, v26")
    for j in range(1, 4): a(f"v_add_u32 v{VXA+j}, {j*32768}, v{VXA}")
    a(f"s_lshl_b32 s{S_ISV}, s{S_G}, 18")
    a(f"s_lshl_b32 s{T0}, s{S_BB}, 17")
    a(f"s_add_u32 s{S_ISV}, s{S_ISV}, s{T0}")
    a(f"s_lshl_b32 s{T0}, s{S_C2}, 8")
    a(f"s_add_u32 s{S_ISV}, s{S_ISV}, s{T0}")
    a(f"s_lshl_b32 s{T0}, s{S_KH}, 7")
    a(f"s_add_u32 s{S_ISV}, s{S_ISV}, s{T0}")
    a(f"s_lshl_b32 s{T0}, s{S_P}, 6")
    a(f"s_add_u32 s{S_ISV}, s{S_ISV}, s{T0}")
    srd(a, SX, P_X, P_X + 1, 4 << 20)
    a(f"v_lshrrev_b32 v25, 2, v{VL}")
    a(f"v_xor_b32 v25, v25, v{VQQ}")
    a("v_and_b32 v25, 1, v25")
    a(f"v_and_b32 v26, 3, v{VL}")
    a("v_or_b32 v25, v25, v26")
    a("v_cmp_eq_u32 vcc, 0, v25")
    a("v_mov_b32 v26, 0x3f803f80")
    a("v_mov_b32 v27, 0")
    a(f"s_waitcnt vmcnt({NE}) lgkmcnt(0)")
    a("s_barrier")
    a(f"ds_read_b128 {v(QF,4)}, v{VWP} offset:{QLDS}")
    a(f"ds_read_b128 {v(QF+4,4)}, v{VWP} offset:{QLDS+1024}")
    for b in range(2):
        for s_ in range(2):
            a(f"ds_read_b128 {v(KB+8*b+4*s_,4)}, v{VKVR} offset:{0x4000 + (2+b)*2048 + s_*1024}")
    for i in range(4): a(f"v_cndmask_b32 v{SEL+i}, v27, v26, vcc")
    for i in range(4): a(f"v_mov_b32 v{RS+i}, 0")
    for i in range(16): a(f"v_mov_b32 v{OA+i}, 0")
    a("s_waitcnt lgkmcnt(0)")
    a(mf32(SB, KB, QF, "0"))
    a(mf32(SB, KB + 4, QF + 4, v(SB, 16)))
    a("s_nop 11")
    a(f"v_max3_f32 v26, v{SB}, v{SB+1}, v{SB+2}")
    for i in range(3, 15, 2): a(f"v_max3_f32 v26, v26, v{SB+i}, v{SB+i+1}")
    a(f"v_max_f32 v26, v26, v{SB+15}")
    a("v_mov_b32 v27, v26")
    a("s_nop 1")
    a("v_permlane32_swap_b32 v26, v27")
    a("s_nop 0")
    a("v_max_f32 v26, v26, v27")
    for i in range(16): a(f"v_sub_f32 v{NM+i}, 0, v26")
    for i in range(16): a(f"v_sub_f32 v{SB+i}, v{SB+i}, v26")
    stamp(a, 3)
    if PR2:
        a(f"s_cmp_{'lg' if PR2 > 0 else 'eq'}_u32 s{S_WM}, 0")
        a("s_cbranch_scc0 P2_NP")
        a(f"s_setprio {abs(PR2)}")
        a.label("P2_NP")
    def pollH():
        a(f"s_lshr_b32 s{T0}, s{S_G}, 1")
        a(f"s_lshl_b32 s{T0}, s{T0}, 8")
        a(f"s_lshl_b32 s{T1}, s{S_KH}, 7")
        a(f"s_add_u32 s{T0}, s{T0}, s{T1}")
        a(f"s_add_u32 s{T0}, s{T0}, {F_H}")
        poll_issue(a, T0, 16)
    for _ in range(int(os.environ.get("X_SH2", 0))): a("s_nop 0")
    rest = list(range(NE, 8)); prev = NE
    for E in range(4):
        mine, rest = rest[:2], rest[2:]
        att_epoch(a, E, first=(E == 0), wait=prev, x2=h_store(mine[0]) if mine else (), x3=h_store(mine[1]) if len(mine) > 1 else ())
        prev = len(mine)
    att_epoch(a, 4, wait=prev)
    att_epoch(a, 5, post=lambda: wave0(a, lambda: flag_set(a, S_XO)), x1=touch_wo() if FART else ())
    att_epoch(a, 6, wait=int(FART > 0), x1=touch_w(20) if FART else ())
    xl = [f"s_cmp_lg_u32 s{S_WM}, 0", "s_cbranch_scc1 P2_NX"] + [f"buffer_load_dwordx4 {v(XR+4*j,4)}, v{VXA+j}, s[{SX}:{SX+3}], s{S_ISV} offen" for j in range(4)] + ["P2_NX:"]
    if HL == 0:
        att_epoch(a, 7, wait=int(FART > 0), post=lambda: wave0(a, pollH), x1=touch_w(12))
        att_epoch(a, 8, wait=1, post=lambda: wave0(a, lambda: poll_check(a)), x1=touch_w(4))
        att_epoch(a, 9, prefill=2, wait=1, x3=touch_a(6))
        att_epoch(a, 10, prefill=2, wait=5)
        att_epoch(a, 11, prefill=2, wait=4)
        att_epoch(a, 12, prefill=2, wait=4, x3=touch_a(0))
        att_epoch(a, 13, wait=5)
        att_epoch(a, 14, x1=[xl])
    else:
        att_epoch(a, 7, wait=int(FART > 0), x1=touch_w(12))
        att_epoch(a, 8, wait=1, x1=[xl])
        att_epoch(a, 9, post=lambda: wave0(a, pollH), x1=touch_w(4))
        att_epoch(a, 10, wait=1, post=lambda: wave0(a, lambda: poll_check(a)))
        att_epoch(a, 11, prefill=2, x3=touch_a(6))
        att_epoch(a, 12, prefill=2, wait=5, x3=touch_a(0))
        att_epoch(a, 13, prefill=2, wait=5)
        att_epoch(a, 14, prefill=2, wait=4)
    att_epoch(a, 15, last=True)
    a("s_waitcnt lgkmcnt(0)")
    a(mf32(OA, VB + 8, PB + 8, v(OA, 16)))
    a(mfrs(PB + 8))
    a(mf32(OA, VB + 12, PB + 12, v(OA, 16)))
    a(mfrs(PB + 12))
    a(f"s_add_u32 s{S_XO}, s{S_XO}, {F_O - F_H}")
    a(f"s_lshl_b32 s{T0}, s{S_RP}, 1")
    a(f"s_add_u32 s{T0}, s{T0}, s{S_WM}")
    a(f"s_mul_i32 s{T0}, s{T0}, {ACT_NU}")
    a(f"s_add_u32 s{T0}, s{T0}, s{S_CT}")
    a(f"s_add_u32 s{T0}, s{T0}, 112")
    a(f"s_lshl_b32 s{T0}, s{T0}, 13")
    a(f"s_lshl_b32 s{T1}, s{S_WN}, 11")
    a(f"s_add_u32 s{S_CNT}, s{T0}, s{T1}")
    a("s_nop 4")
    a(f"v_mul_f32 v26, 0, v{RS}")
    for i in range(16): a(f"v_fma_f32 v26, v{OA+i}, 0, v26")
    a("v_cmp_u_f32 vcc, v26, v26")
    a("s_cmp_lg_u64 vcc, 0")
    a("s_cbranch_scc1 P2_SLOW")
    a.label("P2_FIN")
    a(f"v_rcp_f32 v26, v{RS}")
    a("s_nop 0")
    for i in range(16): a(f"v_mul_f32 v{OA+i}, v{OA+i}, v26")
    for k, base in enumerate((0, 8, 4, 12)):
        a(f"v_cvt_pk_bf16_f32 v{PB+2*k}, v{OA+base}, v{OA+base+1}")
        a(f"v_cvt_pk_bf16_f32 v{PB+2*k+1}, v{OA+base+2}, v{OA+base+3}")
    a(f"buffer_store_dwordx4 {v(PB,4)}, v{VKVD}, s[{SACT}:{SACT+3}], s{S_CNT} offen sc1")
    a(f"buffer_store_dwordx4 {v(PB+4,4)}, v{VKVD}, s[{SACT}:{SACT+3}], s{S_CNT} offen offset:1024 sc1")
    stamp(a, 4)
    if PR2: a("s_setprio 0")
    import mk3
    mk3.gen_p3(a)
    a.label("P2_SLOW")
    a(f"s_mov_b32 s{T0}, 8192")
    a(f"v_mov_b32 v27, 0xff800000")
    a(f"v_mov_b32 v{RS}, 0")
    for i in range(16): a(f"v_mov_b32 v{OA+i}, 0")
    a.label("P2_SL")
    a(f"s_add_u32 s{T1}, s{T0}, 0x20000")
    a(f"buffer_load_dwordx4 {v(KB,4)}, v{VKVD}, s[{SKV}:{SKV+3}], s{T0} offen")
    a(f"buffer_load_dwordx4 {v(KB+4,4)}, v{VKVD}, s[{SKV}:{SKV+3}], s{T0} offen offset:1024")
    a(f"buffer_load_dwordx4 {v(VB,4)}, v{VKVD}, s[{SKV}:{SKV+3}], s{T1} offen")
    a(f"buffer_load_dwordx4 {v(VB+4,4)}, v{VKVD}, s[{SKV}:{SKV+3}], s{T1} offen offset:1024")
    a("s_waitcnt vmcnt(0)")
    a(mf32(SB, KB, QF, "0"))
    a(mf32(SB, KB + 4, QF + 4, v(SB, 16)))
    a("s_nop 15")
    a(f"v_max3_f32 v26, v27, v{SB}, v{SB+1}")
    for i in range(2, 16, 2): a(f"v_max3_f32 v26, v26, v{SB+i}, v{SB+i+1}")
    a("v_mov_b32 v28, v26")
    a("s_nop 1")
    a("v_permlane32_swap_b32 v26, v28")
    a("s_nop 0")
    a("v_max_f32 v26, v26, v28")
    a("v_sub_f32 v28, v27, v26")
    a("v_exp_f32 v28, v28")
    a("v_mov_b32 v27, v26")
    for i in range(16): a(f"v_sub_f32 v{SB+i}, v{SB+i}, v26")
    for i in range(16): a(f"v_exp_f32 v{SB+i}, v{SB+i}")
    for i in range(16): a(f"v_mul_f32 v{OA+i}, v{OA+i}, v28")
    a(f"v_mul_f32 v{RS}, v{RS}, v28")
    for i in range(8): a(f"v_cvt_pk_bf16_f32 v{PB+i}, v{SB+2*i}, v{SB+2*i+1}")
    a("s_nop 1")
    a(mf32(OA, VB, PB, v(OA, 16)))
    a(mfrs(PB))
    a(mf32(OA, VB + 4, PB + 4, v(OA, 16)))
    a(mfrs(PB + 4))
    a("s_nop 15")
    a(f"s_add_u32 s{T0}, s{T0}, 2048")
    a(f"s_cmp_lt_u32 s{T0}, {8192 + 64*2048}")
    a("s_cbranch_scc1 P2_SL")
    a("s_branch P2_FIN")
    a.label("KM_FIN")
    if STAMPS: a("s_waitcnt vmcnt(0)")
    stamp(a, 7)
    stamp_flush(a, 0, 8, P_WS, S_WAVE)
    a.label("KM_END")
    a("s_endpgm")
    return dict(name=NAME, grid=256, block=512, lds=int(os.environ.get('X_LDS', 163840)), vgpr=256, sgpr=102)
```

```python
from asmlib import *
from mk import *
from mk import _lab
GA = 128
def ga(c, j): return GA + (c * 4 + j) * 4
def gb(p, j): return 32 + p * 32 + j * 4
def gw(p, c): return 48 + p * 32 + c * 4
BA, BW, BWO = 96, 99, 111
NSLOT = 10
PART = 192
NA = int(os.environ.get("X_NA", 10))
NB = int(os.environ.get("X_NB", 2))
NFF = 56
NOUT = 32 - NA - NB
MAXO = int(os.environ.get("X_MAXO", 3))
def configure(kh):
    global NDOWN, NT, E0, NE3, ADDR, WHEN, EF, PE, KHV
    KHV = kh
    NDOWN = NFF + (NA, NB)[kh]
    NT = NDOWN + NOUT
    E0, NE3 = NDOWN // 2, NT // 2
    ADDR, WHEN = plan()
    EF = E0 + 4
    PE = NE3 - int(os.environ.get('X_PE', 5))

def plan():
    addr = {t: t * 16384 for t in range(8)}
    when = {}
    size = lambda t: 16384 if t < NDOWN else 12288
    t = 8; head = 8 * 16384
    for e in range(NE3):
        n = 0
        while t < NT and n < (2 if t < NDOWN else MAXO):
            h = head
            top = 163840
            if (h & 0xffff) + size(t) > 65536: h = (h + 65536) & ~0xffff
            if h + size(t) > top: h = 0
            live = [u for u in addr if u >= 2 * e]
            if any(h < addr[u] + size(u) and addr[u] < h + size(t) for u in live): break
            addr[t] = h; when[t] = e; head = h + size(t); t += 1; n += 1
    assert t == NT and all(when[u] < (u - 1) // 2 for u in when)
    return addr, when

def g_reads(t):
    if t >= NT: return []
    p = t & 1; h = ADDR[t] >> 16; o = ADDR[t] & 0xffff
    r = []
    if t >= NT: return r
    for c in range(4 if t < NDOWN else 2):
        for half in range(2):
            if t < NDOWN: r.append(f"ds_read_b64_tr_b16 {v(gw(p,c)+2*half,2)}, v{BW+3*c+h} offset:{o + 8192 + half*4096}")
            else: r.append(f"ds_read_b64_tr_b16 {v(gw(p,c)+2*half,2)}, v{BWO+3*c+h} offset:{o + 8192 + half*2048}")
    for j in range(4):
        r.append(f"ds_read_b128 {v(gb(p,j),4)}, v{BA+h} offset:{o + (j>>1)*2048 + (j&1)*256}")
    return r

def g_ustep(a, t, extra=(), first_wait=2):
    p = t & 1
    nc = 4 if t < NDOWN else 2
    m = []
    for j in range(4):
        for c in (range(nc) if j % 2 == 0 else range(nc - 1, -1, -1)):
            m.append(f"v_mfma_f32_16x16x32_bf16 {v(ga(c,j),4)}, {v(gw(p,c),4)}, {v(gb(p,j),4)}, {v(ga(c,j),4) if t else 0}")
    rd = g_reads(t + 1)
    fill = [[] for _ in m]
    for i, x in enumerate(rd): fill[min(i, len(m) - 1)].append(x)
    for i, e in enumerate(extra): fill[len(m) - 1 - (i % len(m))] += list(e)
    hlf = len(m) // 2
    a(f"s_waitcnt lgkmcnt({first_wait})")
    weave(a, m[:hlf], fill[:hlf])
    a(f"s_waitcnt lgkmcnt({sum(x.startswith('ds_read') for f in fill[:hlf] for x in f)})")
    weave(a, m[hlf:], fill[hlf:])

def l_ustep(a, t, dyn=False):
    if dyn:
        a(f"s_add_u32 m0, s{S_RING}, s{T3}")
        a(f"s_add_u32 s{S_RING}, s{S_RING}, 16384")
    else:
        a(f"s_add_u32 m0, s{T3}, {ADDR[t]}")
        a("s_nop 0")
    a(f"buffer_load_dwordx4 v4, s[{SACT}:{SACT+3}], s{S_AO} offen lds")
    a(f"buffer_load_dwordx4 v4, s[{SACT}:{SACT+3}], s{S_AO} offen offset:1024 lds")
    if t < NDOWN:
        a("s_add_u32 m0, m0, 8192")
        a(f"s_cmp_lt_u32 s{S_RING}, {NSLOT*16384}")
        r = SWD if t < NFF else SWO
        a(f"buffer_load_dwordx4 v5, s[{r}:{r+3}], s{S_WDO} offen lds")
        a(f"buffer_load_dwordx4 v6, s[{r}:{r+3}], s{S_WDO} offen offset:1024 lds")
        if dyn: a(f"s_cselect_b32 s{S_RING}, s{S_RING}, 0")
    else:
        a(f"s_add_u32 m0, m0, s{T2}")
        a("s_nop 0")
        a(f"buffer_load_dwordx4 v7, s[{SWO}:{SWO+3}], s{S_WDO} offen lds")
    a(f"s_add_u32 s{S_AO}, s{S_AO}, 8192")
    a(f"s_add_u32 s{S_WDO}, s{S_WDO}, 65536")

def gen_p3(a):
    configure(0)
    a(f"s_cmp_lg_u32 s{S_WM}, 0")
    a("s_cbranch_scc1 P3_L")
    if PR3 > 0: a(f"s_setprio {PR3}")
    a(f"s_lshr_b32 s{T0}, s{S_WN}, 1")
    a(f"s_lshl_b32 s{T0}, s{T0}, 12")
    a(f"v_lshlrev_b32 v22, 9, v{VQQ}")
    a(f"v_lshl_add_u32 v22, v{VT}, 4, v22")
    a(f"v_add_u32 v{BA}, s{T0}, v22")
    a(f"v_lshrrev_b32 v22, 2, v{VT}")
    a(f"v_lshl_add_u32 v22, v{VQQ}, 2, v22")
    a(f"s_lshl_b32 s{T0}, s{S_KH}, 2")
    a(f"s_lshl_b32 s{T1}, s{S_P}, 1")
    a(f"s_add_u32 s{T0}, s{T0}, s{T1}")
    a("v_and_b32 v23, 7, v22")
    a(f"v_xor_b32 v23, s{T0}, v23")
    a("v_lshlrev_b32 v23, 5, v23")
    a("v_lshl_add_u32 v23, v22, 8, v23")
    a(f"v_and_b32 v27, 3, v{VL}")
    a(f"v_lshl_add_u32 v{BW}, v27, 3, v23")
    for c in range(1, 4): a(f"v_xor_b32 v{BW+3*c}, {(c & 1) * 32 + (c >> 1) * 128}, v{BW}")
    for x in g_reads(0): a(x)
    for b in [BA] + [BW + 3 * c for c in range(4)]:
        a(f"v_add_u32 v{b+1}, 0x10000, v{b}")
        a(f"v_add_u32 v{b+2}, 0x20000, v{b}")
    a("v_bfe_u32 v23, v22, 1, 2")
    a(f"v_xor_b32 v23, s{T1}, v23")
    a("v_lshlrev_b32 v23, 5, v23")
    a("v_lshl_add_u32 v23, v22, 7, v23")
    a(f"v_lshl_add_u32 v{BWO}, v27, 3, v23")
    a(f"v_xor_b32 v{BWO+3}, 32, v{BWO}")
    for b in (BWO, BWO + 3):
        a(f"v_add_u32 v{b+1}, 0x10000, v{b}")
        a(f"v_add_u32 v{b+2}, 0x20000, v{b}")
    a(f"s_mov_b32 s{S_AO}, s{S_ISV}")
    srd(a, SKV, P_OUT, P_OUT + 1, 4 << 20)
    a(f"s_lshl_b32 s{T0}, s{S_WN}, 12")
    a(f"s_lshl_b32 s{S_RING}, s2, 14")
    a(f"s_add_u32 s{S_RING}, s{S_RING}, s{T0}")
    a(f"s_xor_b32 s{S_WDO}, s{S_RING}, {1 << 14}")
    for _ in range(int(os.environ.get("X_SH3", 0))): a("s_nop 0")
    def epoch(e, pre=None, x0=(), x1=()):
        a("s_barrier")
        nstamp(a, f"g{e}")
        if pre: pre()
        g_ustep(a, 2 * e, x0)
        g_ustep(a, 2 * e + 1, x1)
    ESPL = 20
    for e in range(ESPL):
        epoch(e)
        if e == 2: a("s_waitcnt vmcnt(0)")
    a(f"s_cmp_lg_u32 s{S_KH}, 0")
    a("s_cbranch_scc1 P3_G1")
    for kh in range(2):
        configure(kh)
        if kh: a.label("P3_G1")
        for e in range(ESPL, E0): epoch(e)
        stamp(a, 5)
        def pack(q):
            d = ga(2, 0) + 8 * q
            return [[f"v_cvt_pk_bf16_f32 v{d+i}, v{d+2*i}, v{d+2*i+1}" for i in range(4)]]
        def st(q): return [[f"buffer_store_dwordx4 {v(ga(2,0)+8*q,4)}, v{VKVD}, s[{SPART}:{SPART+3}], s{S_WDO} offen offset:{q*1024} sc1"]]
        def pl(q): return [[f"buffer_load_dwordx4 {v(PART+4*q,4)}, v{VKVD}, s[{SPART}:{SPART+3}], s{S_RING} offen offset:{q*1024} sc1"]]
        epoch(E0, x1=st(0) + pack(1) + pack(0)); epoch(E0 + 1, x0=st(1) + pack(2), x1=st(2) + pack(3)); epoch(E0 + 2, x0=st(3))
        for e in range(E0 + 3, EF): epoch(e)
        a("s_waitcnt vmcnt(0)")
        for e in range(EF, PE + 2): epoch(e)
        epoch(PE + 2, x0=pl(0) + pl(1), x1=pl(2) + pl(3))
        for e in range(PE + 3, NE3): epoch(e)
        stamp(a, 6)
        if not kh: a("s_branch P3_GE")
    a.label("P3_GE")
    a(f"s_mov_b32 s{T0}, 0xffff0000")
    a("s_waitcnt vmcnt(0)")
    a("s_nop 6")
    for j in range(4):
        d0, d1 = ga(0, j), ga(1, j)
        for d, r in ((d0, PART + 2 * j), (d1, PART + 8 + 2 * j)):
            for i in range(2):
                a(f"v_lshlrev_b32 v{40+2*i}, 16, v{r+i}")
                a(f"v_and_b32 v{41+2*i}, s{T0}, v{r+i}")
            for i in range(2): a(f"v_pk_add_f32 {v(d+2*i,2)}, {v(d+2*i,2)}, {v(40+2*i,2)}")
        xr = XR + 4 * j
        for k in range(4):
            a(f"v_lshlrev_b32 v{32+2*k}, 16, v{xr+k}")
            a(f"v_and_b32 v{33+2*k}, s{T0}, v{xr+k}")
        for i in range(4): a(f"v_permlane16_swap_b32 v{d0+i}, v{d1+i}")
        for k in range(4):
            d = (d0, d1)[k >> 1] + 2 * (k & 1)
            a(f"v_pk_add_f32 {v(d,2)}, {v(d,2)}, {v(32+2*k,2)}")
        for k in range(4):
            d = (d0, d1)[k >> 1] + 2 * (k & 1)
            a(f"v_cvt_pk_bf16_f32 v{xr+k}, v{d}, v{d+1}")
        a(f"buffer_store_dwordx4 {v(xr,4)}, v{VXA+j}, s[{SKV}:{SKV+3}], s{S_AO} offen")
    a("s_branch KM_FIN")
    a.label("P3_L")
    if PR3 < 0: a(f"s_setprio {-PR3}")
    a(f"s_lshl_b32 s{T3}, s{S_WN}, 11")
    a(f"v_add_u32 v4, s{T3}, v{VKVD}")
    a(f"s_lshl_b32 s{T0}, s{S_WN}, 14")
    a(f"s_lshl_b32 s{T1}, s{S_C2}, 8")
    a(f"s_add_u32 s{T0}, s{T0}, s{T1}")
    a(f"v_add_u32 v5, s{T0}, v3")
    a("v_xor_b32 v6, 128, v5")
    a(f"v_add_u32 v6, {8192-1024}, v6")
    a(f"v_lshrrev_b32 v22, 3, v{VL}")
    a("v_lshlrev_b32 v22, 11, v22")
    a(f"v_lshlrev_b32 v23, 1, v{VQQ}")
    a(f"v_and_b32 v25, 7, v{VL}")
    a("v_xor_b32 v23, v23, v25")
    a("v_lshl_add_u32 v22, v23, 4, v22")
    a(f"s_lshl_b32 s{T1}, s{S_KH}, 7")
    a(f"s_add_u32 s{T0}, s{T0}, s{T1}")
    a(f"v_add_u32 v7, s{T0}, v22")
    a(f"s_lshl_b32 s{T2}, s{S_WN}, 10")
    a(f"s_sub_u32 s{T2}, 8192, s{T2}")
    def toO(split):
        a(f"s_mov_b32 s{S_WDO}, {(0, NA)[KHV] if split else NA + NB}")
        a(f"s_mul_i32 s{S_AO}, s{S_G}, {ACT_NU}")
        a(f"s_add_u32 s{S_AO}, s{S_AO}, 112")
        a(f"s_add_u32 s{S_AO}, s{S_AO}, s{S_WDO}")
        a(f"s_lshl_b32 s{S_AO}, s{S_AO}, 13")
        a(f"s_lshl_b32 s{S_WDO}, s{S_WDO}, 16")
    a(f"s_lshl_b32 s{S_KVO}, s2, 7")
    a(f"s_add_u32 s{S_KVO}, s{S_KVO}, {F_P}")
    a(f"s_xor_b32 s{S_MKV}, s{S_KVO}, {1 << 7}")
    def wave4(fn):
        _lab[0] += 1
        a(f"s_cmp_lg_u32 s{S_WAVE}, 4")
        a(f"s_cbranch_scc1 W4_{_lab[0]}")
        n = _lab[0]
        fn()
        a.label(f"W4_{n}")
    def pollO():
        a(f"s_lshr_b32 s{T0}, s{S_G}, 1")
        a(f"s_lshl_b32 s{T0}, s{T0}, 8")
        a(f"s_add_u32 s{T0}, s{T0}, {F_O}")
        poll_issue(a, T0, 32)
    def nonce_out():
        a(f"s_cmp_lg_u32 s2, 0")
        a(f"s_cbranch_scc1 P3_NN{KHV}")
        a(f"s_movk_i32 s{T0}, {F_NONCE}")
        flag_set(a, T0)
        a.label(f"P3_NN{KHV}")
    configure(0)
    vm = VM(); vm.add(3, 2)
    def lep(e, dyn, emit_code=True):
        b = a if emit_code else A()
        b("s_barrier")
        if emit_code:
            if e == 3: wave4(lambda: flag_set(a, S_XO))
            if e == 20: wave4(pollO)
            if e == EF: wave4(lambda: (flag_set(a, S_MKV), nonce_out()))
            if e == PE: wave4(lambda: poll_issue(a, S_KVO, 1))
        mark = len(vm.q)
        for t in sorted(u for u in WHEN if WHEN[u] == e):
            if t == NFF and NDOWN > NFF: toO(True)
            if t == NDOWN: toO(False)
            l_ustep(b, t, dyn); vm.add((t - 1) // 2, 4 if t < NDOWN else 3)
        b(f"s_waitcnt vmcnt({vm.wait(e + 1)})")
        lep.marks[e] = mark
        if emit_code and e in (22, PE + 1):
            src = 20 if e == 22 else PE
            wave4(lambda: (a(f"s_waitcnt vmcnt({len(vm.q) - lep.marks[src]})"), poll_check(a)))
    lep.marks = {}
    assert all(ADDR[t] == (t % NSLOT) * 16384 and WHEN[t] == (t - 8) // 2 for t in range(8, 50))
    for e in range(4): lep(e, True)
    a(f"s_mov_b32 s{S_CNT}, 16")
    a.label("P3_LA")
    lep(4, True)
    a(f"s_sub_u32 s{S_CNT}, s{S_CNT}, 1")
    a(f"s_cmp_lg_u32 s{S_CNT}, 0")
    a(f"s_cbranch_scc1 P3_LA")
    for e in range(5, 20): lep(e, True, False)
    q20 = list(vm.q)
    a(f"s_cmp_lg_u32 s{S_KH}, 0")
    a("s_cbranch_scc1 P3_L1")
    for kh in range(2):
        configure(kh)
        vm.q = list(q20)
        if kh: a.label("P3_L1")
        for e in range(20, NE3): lep(e, False)
        if not kh: a("s_branch P3_LE")
    a.label("P3_LE")
    stamp(a, 5); stamp(a, 6)
    a("s_branch KM_FIN")
```

```python
from asmlib import *
import struct, math, os
NAME = "parallel_sum__grouped_kv_mqa__glu_gated_reglu__prompt_kernel"
QSCALE = struct.unpack("<I", struct.pack("<f", math.log2(math.e) / math.sqrt(32.0)))[0]
STOP = os.environ.get("STOP", "")
KVL = 131072
QLDS = 0
TLDS = 0
F_KV, F_H, F_O, F_NONCE, F_P = 8192, 12288, 16384, 24576, 32768
WS_ST = WS_XN
WLDS = 98304
KXL = 16384
STL = 32768
CSL = 16384
NS = int(os.environ.get('X_NS', 12))
SPIN_MAX = 1 << 21
P1MODE = int(os.environ.get('X_P1MODE', 1))
P1SHIFT = int(os.environ.get('X_P1SHIFT', 6))
P1PRIO = int(os.environ.get('X_P1PRIO', 0))
UNROLL = int(os.environ.get('X_UNROLL', 0))
NPRE = int(os.environ.get('X_NPRE', 1))
TLBW = int(os.environ.get('X_TLBW', 0))
TLBS = int(os.environ.get('X_TLBS', 21))
TLBP = 4
EARLY = int(os.environ.get('X_EARLY', 4))
NPRO = int(os.environ.get('X_NPRO', 4))
TE = int(os.environ.get('X_TE', 1))
TLATE = int(os.environ.get('X_TLATE', 1))
CODEPF = int(os.environ.get('X_CODEPF', 1))
PR1 = int(os.environ.get('X_PR1', 0))
PR2 = int(os.environ.get('X_PR2', 0))
PR3 = int(os.environ.get('X_PR3', 0))
NE = int(os.environ.get('X_NE', 4))
HSTEP = int(os.environ.get('X_HSTEP', 2))
WPF = int(os.environ.get('X_WPF', 0))
WST = int(os.environ.get('X_WST', 0))
WOFF = int(os.environ.get('X_WOFF', 0))
FART = int(os.environ.get('X_FART', 1))
HL = int(os.environ.get('X_HL', 1))
XL = int(os.environ.get('X_XL', 3))
P1TOUCH = int(os.environ.get('X_P1T', 1))

S_WAVE = 3
S_TW, S_TA = 4, 5
P_WS = 6
NONCE = 8
QMASK = 10
SX = 12
SWD = 16
S_XO, S_AO, S_WDO, S_MX, S_MW, S_CNT = 20, 21, 22, 23, 24, 25
S_HO = 24
S_CT, S_RP, S_WM, S_P, S_BB, S_WN = 26, 27, 28, 29, 30, 31
T0, T1, T2, T3 = 32, 33, 34, 35
SACT, SKV = 36, 40
P_X, P_OUT, P_WO, S_ISV, S_PB = 44, 46, 48, 50, 51
S_G, S_C2, S_KH, S_KVO, S_MKV, S_RING = 52, 53, 54, 55, 56, 57
SFLAG = 58
SWO, SPART = 92, 96
VL, VXD, VWA, VWB, VWS, VXR, VWR, VWP, VQQ, VT = 1, 2, 4, 6, 8, 10, 12, 14, 16, 17
ONES, CS = 20, 24
VKVR, VKVD, VPA, VPW = 18, 19, 20, 21
HS, VHO, VWOD = 160, 4, 7
VXA, XR = 8, 224
VTCH, VDUM = 31, 30
VPL, VPD = 27, 28
ACC, XF, WF = 128, 64, 32
def acc(st, t, j): return ACC + ((st * 2 + t) * 8 + j) * 4
def xf(p, j): return XF + (p * 8 + j) * 4
def wf(p, st, t): return WF + (p * 4 + st * 2 + t) * 4
def emit(a, groups):
    for g in groups:
        for x in g: a(x)

def flag_set(a, off_sgpr):
    a(f"v_mov_b32 v22, s{off_sgpr}")
    a(f"v_mov_b32 v24, s{NONCE}")
    a(f"v_mov_b32 v25, s{NONCE+1}")
    a("s_mov_b64 exec, 1")
    a(f"global_store_dwordx2 v22, v[24:25], s[{SFLAG}:{SFLAG+1}] sc1")
    a("s_mov_b64 exec, -1")
def poll_load(): return f"global_load_dwordx2 {v(VPD,2)}, v{VPL}, s[{SFLAG}:{SFLAG+1}] sc1"
def poll_issue(a, off_sgpr, n):
    a(f"v_and_b32 v{VPL}, {n-1}, v{VL}")
    a(f"v_lshlrev_b32 v{VPL}, 3, v{VPL}")
    a(f"v_add_u32 v{VPL}, s{off_sgpr}, v{VPL}")
    a(poll_load())
_lab = [0]
def spin(a, cmps, loads, sleep=1):
    _lab[0] += 1
    n = _lab[0]
    a(f"s_mov_b32 s{T1}, {SPIN_MAX}")
    a.label(f"PL{n}")
    for x in cmps: a(x)
    a("s_cmp_eq_u64 vcc, -1")
    a(f"s_cbranch_scc1 PD{n}")
    a(f"s_sub_u32 s{T1}, s{T1}, 1")
    a(f"s_cbranch_scc1 PD{n}")
    a(f"s_sleep {sleep}")
    for x in loads: a(x)
    a("s_waitcnt vmcnt(0)")
    a(f"s_branch PL{n}")
    a.label(f"PD{n}")
def poll_check(a):
    spin(a, [f"v_cmp_eq_u64 vcc, s[{NONCE}:{NONCE+1}], {v(VPD,2)}"], [poll_load()])
def wave0(a, fn):
    _lab[0] += 1
    n = _lab[0]
    a(f"s_cmp_lg_u32 s{S_WAVE}, 0")
    a(f"s_cbranch_scc1 W0_{n}")
    fn()
    a.label(f"W0_{n}")

def p1_dma_x(h, tau):
    if os.environ.get("X_ROT"):
        return [[f"s_add_u32 s{S_XO}, s{S_ROT}, {tau*128}", f"s_and_b32 s{S_XO}, s{S_XO}, 2047", f"s_add_u32 m0, s{S_MX}, {(h*3 + tau%3)*16384}",
             f"s_or_b32 s{S_XO}, s{S_XO}, {h*128*2048}" if h else "s_nop 0",
             f"buffer_load_dwordx4 v{VXD}, s[{SX}:{SX+3}], s{S_XO} offen lds"],
            [f"buffer_load_dwordx4 v{VXD+1}, s[{SX}:{SX+3}], s{S_XO} offen offset:1024 lds"]]
    return [[f"s_add_u32 m0, s{S_MX}, {(h*3 + tau%3)*16384}", f"s_mov_b32 s{S_XO}, {h*128*2048 + tau*128}",
             f"buffer_load_dwordx4 v{VXD}, s[{SX}:{SX+3}], s{S_XO} offen lds"],
            [f"buffer_load_dwordx4 v{VXD+1}, s[{SX}:{SX+3}], s{S_XO} offen offset:1024 lds"]]
def p1_dma_w(k):
    slot = k % 4
    return [[f"s_add_u32 m0, s{S_MW}, {slot*16384}", "s_nop 0", f"global_load_lds_dwordx4 {v(VWA,2)}, off",
             f"s_add_u32 m0, s{S_MW}, {slot*16384+2048}",
             f"v_lshl_add_u64 {v(VWA,2)}, {v(VWS,2)}, 0, {v(VWA,2)}"],
            [f"global_load_lds_dwordx4 {v(VWB,2)}, off",
             f"v_lshl_add_u64 {v(VWB,2)}, {v(VWS,2)}, 0, {v(VWB,2)}"]]
def p1_reads(k):
    p = k & 1
    r = []
    for st in range(2):
        for t in range(2):
            for half in range(2):
                r.append(f"ds_read_b64_tr_b16 {v(wf(p,st,t)+2*half,2)}, v{VWR+t} offset:{(k%4)*16384 + st*8192 + half*4096}")
    for j in range(8):
        r.append(f"ds_read_b128 {v(xf(p,j),4)}, v{VXR+(k&1)} offset:{((k>>1)%3)*16384 + j*2048}")
    return r
def p1_mfma(p, first=False):
    m = []
    for j in range(8):
        order = [(0,0),(0,1),(1,0),(1,1)]
        if j & 1: order = order[::-1]
        for st, t in order:
            d = acc(st, t, j)
            m.append(f"v_mfma_f32_16x16x32_bf16 {v(d,4)}, {v(wf(p,st,t),4)}, {v(xf(p,j),4)}, {0 if first else v(d,4)}")
    return m
def cs_mfma(p, st, grp): return f"v_mfma_f32_16x16x32_bf16 {v(CS+4*st,4)}, {v(wf(p,st,grp),4)}, {v(ONES,4)}, {v(CS+4*st,4)}"
CSV = int(os.environ.get("X_CSV", 0))
def cs_valu(p, grp):
    o = []
    for st in range(2):
        for r in range(4):
            src = wf(p, st, grp) + r; t = 20 + 2 * (r & 1)
            o += [f"v_lshlrev_b32 v{t}, 16, v{src}", f"v_and_b32 v{t+1}, 0xffff0000, v{src}",
                  f"v_add_f32 v{CS+2*st}, v{CS+2*st}, v{t}", f"v_add_f32 v{CS+2*st+1}, v{CS+2*st+1}, v{t+1}"]
    return o
def add_cs(m, fill, p, grp):
    if not CSV:
        return m[:10] + [cs_mfma(p, 0, grp)] + m[10:20] + [cs_mfma(p, 1, grp)] + m[20:], fill
    fill = [list(f) for f in fill]
    while len(fill) < 32: fill.append([])
    order = sorted(range(32), key=lambda i: (len(fill[i]) > 0, i))
    vv = cs_valu(p, grp)
    slots = sorted([i for i in range(32) if not fill[i]] * 2 + [i for i in range(32) if fill[i]])
    empt = [i for i in range(32) if not fill[i]]
    rest = [i for i in range(32) if fill[i]]
    need = 32 - 2 * len(empt)
    pick = sorted(empt * 2 + rest[-need:] if need > 0 else (empt * 2)[:32])
    for i, x in zip(pick, vv): fill[i].append(x)
    return m, fill
def weave(a, m, fill):
    for i, ins in enumerate(m):
        a(ins)
        if i < len(fill):
            for x in fill[i]: a(x)
    emit(a, fill[len(m):])
class VM:
    def __init__(self): self.q = []
    def add(self, need, n=1): self.q += [need] * n
    def wait(self, b):
        last = max([i for i, x in enumerate(self.q) if x <= b], default=-1)
        return len(self.q) - 1 - last
S_XM, S_XT, S_WM0, S_DX, S_DW = S_TW, S_TA, S_RING, S_ISV, S_PB
def gen_p1(a, grp, vm0):
    vm = VM(); vm.q = list(vm0.q)
    LO, HI = NS - 3, 26
    LO += LO & 1
    if not os.environ.get('X_LOOP'): LO = HI = 99
    G = "AB"[grp]
    for _ in range(int(os.environ.get("X_SH1", 0))): a("s_nop 0")
    def dyn_entry(k):
        tau = k // 2 + 2
        a(f"s_add_u32 s{S_XM}, s{S_MX}, {(tau % 3) * 16384}")
        a(f"s_movk_i32 s{S_XT}, {tau * 128}")
        a(f"s_movk_i32 s{S_WM0}, {k % 4}")
        a(f"s_movk_i32 s{S_DX}, {(k // 2) % 3}")
        for i in range(2):
            a(f"v_add_u32 v{VXR+i}, {((k // 2) % 3) * 16384}, v{VXR+i}")
            a(f"v_add_u32 v{VWR+i}, {((k + 1) % 4) * 16384}, v{VWR+i}")
    def dyn_exit(k):
        for i in range(2):
            a(f"v_subrev_u32 v{VXR+i}, {((k // 2) % 3) * 16384}, v{VXR+i}")
            a(f"v_subrev_u32 v{VWR+i}, {((k + 1) % 4) * 16384}, v{VWR+i}")
    def dyn_step(p):
        fill = []
        if p == 0:
            fill.append([f"s_add_u32 m0, s{S_XM}, 49152", f"s_or_b32 s{S_XO}, s{S_XT}, {128*2048}",
                         f"buffer_load_dwordx4 v{VXD}, s[{SX}:{SX+3}], s{S_XO} offen lds"])
            fill.append([f"buffer_load_dwordx4 v{VXD+1}, s[{SX}:{SX+3}], s{S_XO} offen offset:1024 lds",
                         f"s_add_u32 s{S_XT}, s{S_XT}, 128", f"s_cmp_eq_u32 s{S_DX}, 0", f"s_movk_i32 s{T0}, 16384",
                         f"s_cselect_b32 s{T0}, {-32768 & 0xffffffff}, s{T0}", f"s_add_u32 s{S_XM}, s{S_XM}, s{T0}"])
        else:
            fill.append([f"s_mov_b32 m0, s{S_XM}", "s_nop 0", f"buffer_load_dwordx4 v{VXD}, s[{SX}:{SX+3}], s{S_XT} offen lds"])
            fill.append([f"buffer_load_dwordx4 v{VXD+1}, s[{SX}:{SX+3}], s{S_XT} offen offset:1024 lds"])
        fill.append([f"s_lshl_b32 s{T1}, s{S_WM0}, 14", f"s_add_u32 m0, s{S_MW}, s{T1}", f"s_add_u32 s{S_WM0}, s{S_WM0}, 1",
                     f"global_load_lds_dwordx4 {v(VWA,2)}, off", "s_add_u32 m0, m0, 2048",
                     f"v_lshl_add_u64 {v(VWA,2)}, {v(VWS,2)}, 0, {v(VWA,2)}"])
        fill.append([f"global_load_lds_dwordx4 {v(VWB,2)}, off", f"s_and_b32 s{S_WM0}, s{S_WM0}, 3",
                     f"v_lshl_add_u64 {v(VWB,2)}, {v(VWS,2)}, 0, {v(VWB,2)}"])
        q = p ^ 1
        rd = [[f"ds_read_b64_tr_b16 {v(wf(q,st,t)+2*half,2)}, v{VWR+t} offset:{st*8192 + half*4096}"] for st in range(2) for t in range(2) for half in range(2)]
        rd[-1] += [f"s_cmp_eq_u32 s{S_WM0}, 3", f"s_movk_i32 s{T0}, 16384", f"s_cselect_b32 s{T0}, {-49152 & 0xffffffff}, s{T0}",
                   f"v_add_u32 v{VWR}, s{T0}, v{VWR}", f"v_add_u32 v{VWR+1}, s{T0}, v{VWR+1}"]
        rd += [[f"ds_read_b128 {v(xf(q,j),4)}, v{VXR+q} offset:{j*2048}"] for j in range(8)]
        if p == 0:
            rd[-1] += [f"s_cmp_eq_u32 s{S_DX}, 2", f"s_movk_i32 s{T0}, 16384", f"s_cselect_b32 s{T0}, {-32768 & 0xffffffff}, s{T0}",
                       f"s_cselect_b32 s{S_DX}, -1, s{S_DX}", f"v_add_u32 v{VXR}, s{T0}, v{VXR}", f"v_add_u32 v{VXR+1}, s{T0}, v{VXR+1}",
                       f"s_add_u32 s{S_DX}, s{S_DX}, 1"]
        fill += rd
        if grp: fill = [[] for _ in range(P1SHIFT)] + fill
        m, fill = add_cs(p1_mfma(p), fill, p, grp)
        weave(a, m, fill)
        a("s_waitcnt vmcnt(8) lgkmcnt(0)")
        if p == 1:
            a(f"s_sub_u32 s{S_DW}, s{S_DW}, 1")
            a(f"s_cmp_lg_u32 s{S_DW}, 0")
        a("s_barrier")
    for s_ in range(32):
        p = s_ & 1
        h = (s_ + 1) & 1; tau = (s_ - 1 - h) // 2 + 3
        if LO <= s_ < HI:
            vm.add(2 * tau - 1, 2); vm.add(s_ + 3, 2)
            assert vm.wait(s_ + 1) == 8
            if s_ == LO:
                dyn_entry(LO)
                a(f"s_movk_i32 s{S_DW}, {(HI - LO) // 2}")
                a.raw(".p2align 6")
                a.label("P1_L" + G)
                dyn_step(0); dyn_step(1)
                a("s_cbranch_scc1 P1_L" + G)
                dyn_exit(HI)
            continue
        nstamp(a, f"s{s_}")
        fill = []
        if s_ == NS - 6:
            mark = len(vm.q)
            if not grp:
                fill.append([f"s_cmp_gt_u32 s{S_WAVE}, 1", "s_cbranch_scc1 P1_NP0", "v_mbcnt_lo_u32_b32 v16, -1, 0", "v_mbcnt_hi_u32_b32 v16, -1, v16", "v_lshlrev_b32 v16, 4, v16", f"v_add_u32 v16, s{S_PB}, v16", f"global_load_dwordx4 v[16:19], v16, s[{SFLAG}:{SFLAG+1}] sc1", "P1_NP0:"])
        if s_ == 1:
            if not grp:
                fill.append([f"s_cmp_lg_u32 s{S_WAVE}, 0", "s_cbranch_scc1 P1_NF", f"v_mov_b32 v16, s{NONCE}", f"v_mov_b32 v17, s{NONCE+1}", f"v_mov_b32 v18, s{S_CNT}",
                             "s_mov_b64 exec, 1", f"global_store_dwordx2 v18, v[16:17], s[{SFLAG}:{SFLAG+1}] sc1", "s_mov_b64 exec, -1", "P1_NF:"])
        if s_ == 0:
            fill += p1_dma_x(1, 1); vm.add(1, 2)
            fill += p1_dma_w(2); vm.add(1, 2)
            fill += p1_dma_w(3); vm.add(2, 2)
            fill += p1_dma_x(0, 2); vm.add(3, 2)
        if s_ + 4 == NS:
            fill.append([f"s_mov_b64 exec, s[{QMASK}:{QMASK+1}]", f"v_mov_b32 v{VWA}, v{VWP}", f"v_mov_b32 v{VWA+1}, v{VWP+1}",
                         f"v_mov_b32 v{VWS}, 512", f"v_lshl_add_u64 {v(VWB,2)}, {v(VWS,2)}, 0, {v(VWA,2)}", f"v_mov_b32 v{VWS}, 2048", "s_mov_b64 exec, -1"])
        if tau < 16:
            fill += p1_dma_x(h, tau); vm.add(2 * tau - 1, 2)
        if s_ + 4 < 32:
            fill += p1_dma_w(s_ + 4); vm.add(s_ + 3, 2)
        if WST and s_ % WST == WOFF and WPF + s_ // WST * (WST // 4) < 8:
            for _ in range(WST // 4):
                fill.append([f"s_add_u32 s{S_TW}, s{S_TW}, {128*7168}", f"s_addc_u32 s{S_TA}, s{S_TA}, 0", "s_mov_b64 exec, 0x7f",
                             f"global_load_dword v{VL}, v0, s[{S_TW}:{S_TA}]", "s_mov_b64 exec, -1"])
                vm.add(min(s_ + 4, 27), 1)
        if s_ == 27:
            fill.append([f"v_mbcnt_lo_u32_b32 v{VL}, -1, 0", f"v_mbcnt_hi_u32_b32 v{VL}, -1, v{VL}"])
            fill.append([f"v_lshlrev_b32 v{VKVD}, 4, v{VL}", f"s_lshr_b32 s{T0}, s2, 3", f"s_lshl_b32 s{T0}, s{T0}, 13", f"s_lshr_b32 s{T1}, s{S_MX}, 1", f"s_add_u32 s{T0}, s{T0}, s{T1}",
                         f"s_add_u32 s{T0}, s{T0}, 8192", f"buffer_load_dword v16, v{VKVD}, s[{SKV}:{SKV+3}], s{T0} offen"])
            vm.add(30, 1)
        if s_ == 29:
            fill.append([f"s_lshr_b32 s{T0}, s{S_MX}, 1", f"s_add_u32 m0, s{T0}, {STL}", "s_nop 0",
                         f"buffer_load_dwordx4 v{VKVD}, s[{SPART}:{SPART+3}], s{S_AO} offen lds"])
            vm.add(31, 1)
        if s_ == 30:
            fill.append([f"s_xor_b32 m0, s{S_MKV}, 0x4000", f"s_add_u32 s{T0}, s{S_KVO}, 8192",
                         f"buffer_load_dwordx4 v{VKVD}, s[{SKV}:{SKV+3}], s{T0} offen lds"])
            fill.append([f"buffer_load_dwordx4 v{VKVD}, s[{SKV}:{SKV+3}], s{T0} offen offset:1024 lds"])
            vm.add(99, 2)
        m = p1_mfma(p, s_ == 0)
        if s_ == 30:
            fill.append([f"v_lshlrev_b32 v{VKVD}, 4, v{VL}", f"v_lshrrev_b32 v{VQQ}, 4, v{VL}", f"v_and_b32 v{VT}, 15, v{VL}",
                         f"v_add_u32 v{VKVR}, {KVL}, v{VKVD}"])
            fill.append([f"v_lshlrev_b32 v0, 3, v{VT}", f"s_lshr_b32 s{T0}, s{S_MX}, 1", f"v_add_u32 v0, s{T0}, v0", f"v_add_u32 v{VWP}, s{S_MX}, v{VKVD}",
                         f"s_lshl_b32 s{T0}, s{S_WN}, 11", f"v_add_u32 v{VWP+1}, s{T0}, v{VKVD}"])
            if CSV:
                fill.append([f"s_lshl_b32 s{T0}, s{S_WAVE}, 7", f"v_lshlrev_b32 v28, 2, v{VT}", f"v_add_u32 v28, s{T0}, v28",
                             f"s_lshl_b32 s{T0}, s{S_WN}, 7", f"v_lshlrev_b32 v{VWP+1}, 4, v{VQQ}", f"v_add_u32 v{VWP+1}, s{T0}, v{VWP+1}"])
        if s_ < 31:
            fill += [[x] for x in p1_reads(s_ + 1)]
            if grp: fill = [[] for _ in range(P1SHIFT if len(fill) <= 26 else 0)] + fill
            m, fill = add_cs(m, fill, p, grp)
        elif CSV:
            vv = cs_valu(p, grp)
            fill = [vv[2*i:2*i+2] for i in range(16)]
            fill += [[f"v_add_f32 v{CS}, v{CS}, v{CS+1}", f"v_add_f32 v{CS+2}, v{CS+2}, v{CS+3}"]]
            for sw in ("v_permlane16_swap_b32", "v_permlane32_swap_b32"):
                fill += [[f"v_mov_b32 v{CS+1}, v{CS}", f"v_mov_b32 v{CS+3}, v{CS+2}"], ["s_nop 0", f"{sw} v{CS}, v{CS+1}", f"{sw} v{CS+2}, v{CS+3}"],
                         [f"v_add_f32 v{CS}, v{CS}, v{CS+1}", f"v_add_f32 v{CS+2}, v{CS+2}, v{CS+3}"]]
            fill += [[f"ds_write_b32 v28, v{CS} offset:{CSL}", f"ds_write_b32 v28, v{CS+2} offset:{CSL+64}"]]
            ex = [[f"s_mov_b32 m0, s{S_MKV}", "s_nop 0", f"buffer_load_dwordx4 v{VKVD}, s[{SKV}:{SKV+3}], s{S_KVO} offen lds"],
                  [f"buffer_load_dwordx4 v{VKVD}, s[{SKV}:{SKV+3}], s{S_KVO} offen offset:1024 lds", f"s_add_u32 s{S_KVO}, s{S_KVO}, 16384"]]
            ex += [[f"ds_read_b64 {v(XF+2*j,2)}, v0 offset:{STL + j*128}"] for j in range(8)]
            for i, e in enumerate(ex): fill[i] = fill[i] + list(e)
        else:
            m = [cs_mfma(p, 0, grp), cs_mfma(p, 1, grp)] + m
            fill = [[f"s_mov_b32 m0, s{S_MKV}", "s_nop 0", f"buffer_load_dwordx4 v{VKVD}, s[{SKV}:{SKV+3}], s{S_KVO} offen lds"],
                    [f"buffer_load_dwordx4 v{VKVD}, s[{SKV}:{SKV+3}], s{S_KVO} offen offset:1024 lds", f"s_add_u32 s{S_KVO}, s{S_KVO}, 16384"]]
            fill += [[f"ds_read_b64 {v(XF+2*j,2)}, v0 offset:{STL + j*128}"] for j in range(8)] + [[], []]
            fill += [[f"ds_write_b128 v{VWP}, {v(CS+4*st,4)} offset:{CSL + st*1024}"] for st in range(2)]
        weave(a, m, fill)
        if s_ < 31:
            a(f"s_waitcnt vmcnt({vm.wait(s_ + 1)}) lgkmcnt(0)")
        else:
            a("s_waitcnt lgkmcnt(0)")
        if s_ == NS - 5 and not grp:
            n = f"s[{NONCE}:{NONCE+1}]"
            a(f"s_cmp_gt_u32 s{S_WAVE}, 1")
            a("s_cbranch_scc1 P1_NP1")
            a(f"s_waitcnt vmcnt({len(vm.q) - mark})")
            spin(a, [f"v_cmp_eq_u64 vcc, {n}, v[16:17]", f"v_cmp_eq_u64 s[{T2}:{T3}], {n}, v[18:19]", f"s_and_b64 vcc, vcc, s[{T2}:{T3}]"],
                 ["v_mbcnt_lo_u32_b32 v16, -1, 0", "v_mbcnt_hi_u32_b32 v16, -1, v16", "v_lshlrev_b32 v16, 4, v16", f"v_add_u32 v16, s{S_PB}, v16", f"global_load_dwordx4 v[16:19], v16, s[{SFLAG}:{SFLAG+1}] sc1"], sleep=8)
            a.label("P1_NP1")
        a("s_barrier")
def kv_dma():
    return [[f"s_mov_b32 m0, s{S_MKV}", f"s_xor_b32 s{S_MKV}, s{S_MKV}, 0x4000",
             f"buffer_load_dwordx4 v{VKVD}, s[{SKV}:{SKV+3}], s{S_KVO} offen lds"],
            [f"buffer_load_dwordx4 v{VKVD}, s[{SKV}:{SKV+3}], s{S_KVO} offen offset:1024 lds",
             f"s_add_u32 s{S_KVO}, s{S_KVO}, 8192"]]

QF, KB, VB, PB, SEL, RS, SB, OA, NM = 32, 40, 56, 72, 88, 92, 96, 128, 144
def mf32(d, x, y, c): return f"v_mfma_f32_32x32x16_bf16 {v(d,16)}, {v(x,4)}, {v(y,4)}, {c}"
def mfrs(p): return f"v_mfma_f32_16x16x32_bf16 {v(RS,4)}, {v(SEL,4)}, {v(p,4)}, {v(RS,4)}"
LAG = int(os.environ.get('X_LAG', 1))
CUTS = eval(os.environ.get('X_CUTS', '[0, 4, 9, 13, 16, 21]'))
def att_slot(a, n, qk=True, pv=True, rd=True, pre=()):
    b = n & 1
    S = SB + 16 * b; S1 = SB + 16 * (b ^ 1)
    P = PB + 8 * b; P1 = PB + 8 * (b ^ 1)
    K1 = KB + 8 * (b ^ 1); V1 = VB + 8 * (b ^ 1)
    m = []
    if qk:
        m.append(mf32(S1, K1, QF, v(NM, 16)))
        m.append(mf32(S1, K1 + 4, QF + 4, v(S1, 16)))
    if pv:
        m += [mf32(OA, V1, P1, v(OA, 16)), mfrs(P1), mf32(OA, V1 + 4, P1 + 4, v(OA, 16)), mfrs(P1 + 4)]
    val = []
    for i in range(16):
        val.append(f"v_exp_f32 v{S+i}, v{S+i}")
        k = i - LAG
        if k >= 1 and k % 2 == 1:
            val.append(f"v_cvt_pk_bf16_f32 v{P+k//2}, v{S+k-1}, v{S+k}")
    if LAG == 1: val.append("s_nop 0")
    for k in range(16 - LAG, 16):
        if k % 2 == 1: val.append(f"v_cvt_pk_bf16_f32 v{P+k//2}, v{S+k-1}, v{S+k}")
    rds = []
    if rd:
        pos = (n & 3) * 2048
        rds = [f"ds_read_b128 {v(KB+8*b,4)}, v{VKVR} offset:{pos}",
               f"ds_read_b128 {v(KB+8*b+4,4)}, v{VKVR} offset:{pos+1024}",
               f"ds_read_b128 {v(VB+8*b,4)}, v{VKVR} offset:{8192+pos}",
               f"ds_read_b128 {v(VB+8*b+4,4)}, v{VKVR} offset:{8192+pos+1024}"]
    other = [list(g) for g in pre] + [[x] for x in rds]
    cuts = CUTS[:len(m)]
    k = 0; oi = 0
    for i, x in enumerate(val):
        if k < len(m) and i == cuts[k]:
            a(m[k]); k += 1
            if oi < len(other):
                emit(a, [other[oi]]); oi += 1
        a(x)
        if i in (2, 6, 11) and oi < len(other) and len(other) > len(m):
            emit(a, [other[oi]]); oi += 1
    emit(a, other[oi:])
def prefill_dma():
    return [[f"s_add_u32 m0, s{S_RING}, s{T3}", "s_nop 0",
             f"buffer_load_dwordx4 v{VPA}, s[{SACT}:{SACT+3}], s{S_AO} offen lds",
             f"s_add_u32 s{S_AO}, s{S_AO}, 8192"],
            [f"s_add_u32 m0, m0, 8192", f"s_add_u32 s{S_RING}, s{S_RING}, 16384",
             f"buffer_load_dwordx4 v{VPW}, s[{SWD}:{SWD+3}], s{S_WDO} offen lds",
             f"s_add_u32 s{S_WDO}, s{S_WDO}, 65536"]]
def touch_w(n0):
    return [[f"s_add_u32 s{T0}, s{S_WAVE}, {n0}", f"s_lshl_b32 s{T0}, s{T0}, 17", f"s_add_u32 s{T0}, s{T0}, s{S_TW}",
             f"buffer_load_dword v{VDUM}, v{VTCH}, s[{SWD}:{SWD+3}], s{T0} offen"]]
def touch_a(m0):
    return [[f"s_add_u32 s{T0}, s{S_WAVE}, {m0}", f"s_lshl_b32 s{T0}, s{T0}, 15", f"s_add_u32 s{T0}, s{T0}, s{S_TA}",
             f"buffer_load_dword v{VDUM}, v{VTCH}, s[{SACT}:{SACT+3}], s{T0} offen"]]
def touch_wo():
    return [[f"s_lshl_b32 s{T0}, s2, 13", f"s_add_u32 s{T0}, s{T0}, s{T3}",
             f"buffer_load_dword v{VDUM}, v{VKVD}, s[{SWO}:{SWO+3}], s{T0} offen"]]
STASH = int(os.environ.get("X_STASH", 0)); WRG = 160; STH0 = 12
def wo_stash(i0, n):
    if not STASH: return []
    g = [f"s_cmp_eq_u32 s{S_WM}, 0", f"s_cbranch_scc1 WS{i0}"]
    for i in range(i0, i0 + n):
        g += [f"s_mov_b32 s{T0}, {(STH0 + i)*65536}", f"buffer_load_dwordx4 {v(WRG+4*i,4)}, v12, s[{SWO}:{SWO+3}], s{T0} offen"]
    return [g + [f"WS{i0}:"]]
def h_store(j):
    off = (j >> 1) * 2048 + (j & 1) * 256
    tail = f"v{VHO + (off>>12)}, s[{SACT}:{SACT+3}], s{S_HO} offen offset:{off & 4095} sc1"
    return [[f"s_cmp_eq_u32 s{S_WN}, 3", f"s_cbranch_scc1 HS{j}A", f"buffer_store_dwordx4 {v(HS+4*j,4)}, {tail}",
             f"s_branch HS{j}B", f"HS{j}A:", f"buffer_store_dwordx2 {v(HS+4*j,2)}, {tail}", f"HS{j}B:"]]
def att_epoch(a, E, first=False, last=False, prefill=0, wait=0, post=None, pre_bar=None, x1=(), x2=(), x3=()):
    nstamp(a, f"e{E}a")
    a(f"s_waitcnt vmcnt({wait}) lgkmcnt(0)")
    if pre_bar: pre_bar()
    a("s_barrier")
    nstamp(a, f"e{E}c")
    if not first: a(f"v_xor_b32 v{VKVR}, 0x4000, v{VKVR}")
    if post: post()
    for i in range(4):
        pre = []
        if i == 0 and not last: pre += kv_dma()
        if i in (1, 2)[:prefill]: pre += prefill_dma()
        if i == 1: pre += list(x1)
        if i == 2: pre += list(x2)
        if i == 3: pre += list(x3)
        if i: a("s_waitcnt lgkmcnt(0)")
        att_slot(a, 4 * E + i, qk=not (last and i == 3), pv=not (first and i == 0), pre=pre)

def wave_sum(a, r, t):
    for mod in ("quad_perm:[1,0,3,2]", "quad_perm:[2,3,0,1]", "row_half_mirror", "row_mirror"):
        a("s_nop 1")
        a(f"v_add_f32_dpp v{r}, v{r}, v{r} {mod} row_mask:0xf bank_mask:0xf")
    for sw in ("v_permlane16_swap_b32", "v_permlane32_swap_b32"):
        a(f"v_mov_b32 v{t}, v{r}")
        a("s_nop 1")
        a(f"{sw} v{r}, v{t}")
        a(f"v_add_f32 v{r}, v{r}, v{t}")

def gen_p0(a, vm):
    VTR, VTW, VFR, VTA, VTB, VTX, VQS, VEX, VKS, VQD, VPF = 0, 20, 21, 22, 24, 26, 27, 28, 29, 30, 31
    SV = 29
    A0, A1, A2, A3, A4, A5, A6, A7, TID = 100, 101, 102, 103, 104, 105, 106, 107, 108
    TL = 16384
    a(f"s_load_dwordx2 s[{P_X}:{P_X+1}], s[0:1], {K_X}")
    a(f"s_load_dwordx8 s[92:99], s[0:1], {K_WQ}")
    a(f"s_load_dwordx2 s[{P_WS}:{P_WS+1}], s[0:1], {K_WS}")
    a(f"s_load_dwordx8 s[36:43], s[0:1], {K_WG}")
    a(f"v_lshrrev_b32 v{A0}, 6, v0")
    a(f"v_and_b32 v{VL}, 63, v0")
    a(f"v_mov_b32 v{TID}, v0")
    a(f"v_readfirstlane_b32 s{S_WAVE}, v{A0}")
    a(f"v_lshlrev_b32 v{VKVD}, 4, v{VL}")
    a(f"s_lshr_b32 s{S_PB}, s2, 4")
    a(f"s_lshl_b32 s{S_PB}, s{S_PB}, 3")
    a(f"s_and_b32 s{T0}, s2, 7")
    a(f"s_add_u32 s{S_PB}, s{S_PB}, s{T0}")
    a(f"s_lshl_b32 s{T0}, s{S_PB}, 4")
    a(f"s_add_u32 s{S_AO}, s{T0}, s{S_WAVE}")
    a(f"s_lshl_b32 s{T0}, s{S_AO}, 11")
    a(f"s_add_u32 s{T1}, s{T0}, {8*2048}")
    a("s_waitcnt lgkmcnt(0)")
    if STOP == "p0": a("s_branch KM_FIN")
    srd(a, SX, P_X, P_X + 1, 4 << 20)
    a(f"buffer_load_dwordx4 v[32:35], v{VKVD}, s[{SX}:{SX+3}], s{T0} offen")
    a(f"buffer_load_dwordx4 v[36:39], v{VKVD}, s[{SX}:{SX+3}], s{T0} offen offset:1024")
    a(f"buffer_load_dwordx4 v[40:43], v{VKVD}, s[{SX}:{SX+3}], s{T1} offen")
    a(f"buffer_load_dwordx4 v[44:47], v{VKVD}, s[{SX}:{SX+3}], s{T1} offen offset:1024")
    nstamp(a, "xi")
    a(f"s_getpc_b64 s[{T2}:{T3}]")
    a.label("PF_BASE")
    a(f"s_lshr_b32 s{T0}, s2, 3")
    a(f"s_lshl_b32 s{T0}, s{T0}, 12")
    a(f"v_lshrrev_b32 v{VPF}, 3, v0")
    a(f"v_lshlrev_b32 v{VPF}, 6, v{VPF}")
    a(f"v_add_u32 v{VPF}, s{T0}, v{VPF}")
    a(f"v_min_u32 v{VPF}, KM_END - PF_BASE, v{VPF}")
    a(f"global_load_dword v18, v{VPF}, s[{T2}:{T3}]")
    a(f"s_add_u32 s{SFLAG}, s{P_WS}, {WS_FLAG}")
    a(f"s_addc_u32 s{SFLAG+1}, s{P_WS+1}, 0")
    a(f"s_load_dwordx2 s[{NONCE}:{NONCE+1}], s[{SFLAG}:{SFLAG+1}], {F_NONCE}")
    a(f"v_lshrrev_b32 v{VQQ}, 4, v{VL}")
    a(f"v_and_b32 v{VT}, 15, v{VL}")
    a(f"s_bfe_u32 s{S_ISV}, s2, 0x10003")
    a(f"s_and_b32 s{S_KH}, s2, 1")
    a(f"s_mov_b32 s{P_OUT}, s42")
    a(f"s_mov_b32 s{P_OUT+1}, s43")
    a(f"s_mov_b32 s{P_WO}, s98")
    a(f"s_mov_b32 s{P_WO+1}, s99")
    srd(a, SWD, 40, 41, 3584 * 2048)
    a(f"s_cmp_lt_u32 s{S_WAVE}, 4")
    a(f"s_cselect_b32 s{S_TW}, s36, s38")
    a(f"s_cselect_b32 s{S_TA}, s37, s39")
    if WPF:
        a(f"v_and_b32 v{A0}, 255, v0")
        a(f"v_min_u32 v{A0}, {28*WPF - 1}, v{A0}")
        a(f"v_lshlrev_b32 v{A0}, 7, v{A0}")
        a(f"s_mul_i32 s{T0}, s2, {3584*WPF}")
        a(f"v_add_u32 v{A0}, s{T0}, v{A0}")
        a(f"global_load_dword v18, v{A0}, s[{S_TW}:{S_TA}]")
    srd(a, SACT, 92, 93, 2 << 20)
    a(f"s_cmp_eq_u32 s{S_ISV}, 0")
    a(f"s_cselect_b32 s{SKV}, s94, s96")
    a(f"s_cselect_b32 s{SKV+1}, s95, s97")
    a(f"s_mov_b32 s{SKV+2}, 65536")
    a(f"s_mov_b32 s{SKV+3}, 0x20000")
    srd(a, SPART, P_WS, P_WS + 1, 8 << 20)
    a(f"s_lshr_b32 s{T0}, s2, 3")
    a(f"s_lshl_b32 s{S_RP}, s{S_KH}, 2")
    a(f"s_and_b32 s{T1}, s{T0}, 3")
    a(f"s_add_u32 s{S_RP}, s{S_RP}, s{T1}")
    a(f"s_bfe_u32 s{S_CT}, s2, 0x20001")
    a(f"s_lshl_b32 s{S_G}, s{S_CT}, 2")
    a(f"s_lshl_b32 s{S_CT}, s{S_CT}, 3")
    a(f"s_lshr_b32 s{S_C2}, s{T0}, 2")
    a(f"s_add_u32 s{S_CT}, s{S_CT}, s{S_C2}")
    a(f"s_add_u32 s{S_G}, s{S_G}, s{T1}")
    a(f"s_lshr_b32 s{S_WM}, s{S_WAVE}, 2")
    a(f"s_and_b32 s{S_P}, s{S_WAVE}, 1")
    a(f"s_bfe_u32 s{S_BB}, s{S_WAVE}, 0x10001")
    a(f"s_and_b32 s{S_WN}, s{S_WAVE}, 3")
    a(f"s_lshl_b32 s{S_MX}, s{S_WAVE}, 11")
    a(f"s_lshl_b32 s{S_RING}, s{S_WAVE}, 13")
    a(f"s_lshl_b32 s{T1}, s{S_WM}, 15")
    a(f"s_add_u32 s{T1}, s{T1}, 0x10000")
    a(f"s_add_u32 s{T1}, s{T1}, s{S_RING}")
    for h in range(2):
        a(f"s_add_u32 m0, s{T1}, {h*4096}")
        a(f"s_add_u32 s{T0}, s{S_RING}, {h*4096}")
        for i in range(4):
            a(f"buffer_load_dwordx4 v{VKVD}, s[{SKV}:{SKV+3}], s{T0} offen offset:{i*1024} lds")
    a(f"v_lshrrev_b32 v{A2}, 3, v{TID}")
    a(f"v_and_b32 v{A0}, 7, v{A2}")
    a(f"s_lshl_b32 s{T0}, s{S_WAVE}, 4")
    a(f"v_add_u32 v{A0}, s{T0}, v{A0}")
    a(f"v_lshlrev_b32 v{A0}, 11, v{A0}")
    a(f"v_and_b32 v{A1}, 7, v{VL}")
    a(f"v_xor_b32 v{A1}, v{A1}, v{VQQ}")
    a(f"v_lshl_add_u32 v{VXD}, v{A1}, 4, v{A0}")
    a(f"v_xor_b32 v{VXD+1}, 64, v{VXD}")
    a(f"v_add_u32 v{VXD+1}, {8*2048 - 1024}, v{VXD+1}")
    a(f"s_add_u32 s{T0}, s{T0}, {TL}")
    a(f"v_lshlrev_b32 v{VTW}, 8, v{VL}")
    a(f"v_add_u32 v{VTW}, s{T0}, v{VTW}")
    a(f"s_lshl_b32 s{T0}, s{S_RP}, 19")
    srd(a, SX, P_X, P_X + 1, 512 << 10, add_lo=f"s{T0}")
    if TE >= 1: emit(a, p1_dma_x(0, 0) + p1_dma_x(1, 0)); vm.add(-1, 4)
    a(f"v_lshrrev_b32 v{VTX}, 4, v{TID}")
    a(f"v_lshlrev_b32 v{VTX}, 11, v{VTX}")
    a(f"v_lshl_add_u32 v{VTX}, v{VT}, 7, v{VTX}")
    a(f"s_lshl_b32 s{T0}, s{S_C2}, 16")
    a(f"v_add_u32 v{VTX}, s{T0}, v{VTX}")
    a(f"s_lshl_b32 s{S_MW}, s{S_BB}, 2")
    a(f"s_add_u32 s{S_MW}, s{S_MW}, s{S_P}")
    a(f"s_lshl_b32 s{S_MW}, s{S_MW}, 10")
    a(f"s_lshl_b32 s{T0}, s{S_WM}, 13")
    a(f"s_add_u32 s{S_MW}, s{S_MW}, s{T0}")
    a(f"s_add_u32 s{S_MW}, s{S_MW}, {WLDS}")
    a(f"s_lshl_b32 s{T0}, s{S_P}, 3")
    a(f"s_lshl_b32 s{T1}, s{S_BB}, 2")
    a(f"s_add_u32 s{T0}, s{T0}, s{T1}")
    a(f"v_add_u32 v{A0}, s{T0}, v{VQQ}")
    a(f"s_lshl_b32 s{T0}, s{S_P}, 2")
    a(f"v_add_u32 v{A1}, s{T0}, v{VQQ}")
    a(f"v_lshlrev_b32 v{A1}, 1, v{A1}")
    a(f"v_xor_b32 v{A1}, v{A1}, v{VT}")
    a(f"v_lshlrev_b32 v{A2}, 4, v{A1}")
    a(f"v_subrev_u32 v{A3}, 192, v{A2}")
    a(f"v_add_u32 v{A4}, 32, v{A2}")
    a(f"v_cmp_le_u32 vcc, 12, v{A1}")
    a(f"v_cmp_le_u32 s[{QMASK}:{QMASK+1}], 14, v{A1}")
    a(f"s_and_b32 s{T0}, s{S_CT}, 1")
    a(f"s_cmp_eq_u32 s{T0}, 1")
    a(f"v_cndmask_b32 v{A3}, v{A4}, v{A3}, vcc")
    a(f"s_cselect_b64 s[{T2}:{T3}], -1, 0")
    a(f"v_cndmask_b32 v{A3}, v{A2}, v{A3}, s[{T2}:{T3}]")
    a(f"s_mul_i32 s{T0}, s{S_CT}, 224")
    if os.environ.get("X_ALIGN"):
        a(f"s_min_u32 s{T0}, s{S_CT}, 27"); a(f"s_lshl_b32 s{T0}, s{T0}, 8"); a(f"v_mov_b32 v{A3}, v{A2}")
    a(f"v_add_u32 v{A3}, s{T0}, v{A3}")
    a(f"v_mov_b32 v{A5}, 7168")
    a(f"v_mad_u32_u24 v{A3}, v{A0}, v{A5}, v{A3}")
    a(f"s_lshl_b32 s{T0}, s{S_CT}, 6")
    a(f"s_lshl_b32 s{T1}, s{S_WM}, 5")
    a(f"s_add_u32 s{T0}, s{T0}, s{T1}")
    a(f"v_and_b32 v{A2}, 16, v{A2}")
    a(f"v_add_u32 v{A4}, s{T0}, v{A2}")
    a(f"v_lshl_add_u32 v{A4}, v{A0}, 11, v{A4}")
    a(f"v_mov_b32 v{A0}, 2048")
    a(f"v_cndmask_b32 v{A3}, v{A3}, v{A4}, s[{QMASK}:{QMASK+1}]")
    a(f"v_cndmask_b32 v{A5}, v{A5}, v{A0}, s[{QMASK}:{QMASK+1}]")
    a(f"v_mov_b32 v{A0}, s92")
    a(f"v_mov_b32 v{A1}, s93")
    a(f"v_mov_b32 v{A6}, s{S_TW}")
    a(f"v_mov_b32 v{A7}, s{S_TA}")
    a(f"v_cndmask_b32 v{A6}, v{A6}, v{A0}, s[{QMASK}:{QMASK+1}]")
    a(f"v_cndmask_b32 v{A7}, v{A7}, v{A1}, s[{QMASK}:{QMASK+1}]")
    a(f"v_lshlrev_b32 v{VWS}, 5, v{A5}")
    a(f"v_mov_b32 v{VWS+1}, 0")
    a(f"v_add_co_u32 v{VWA}, vcc, v{A3}, v{A6}")
    a(f"v_lshlrev_b32 v{A4}, 4, v{A5}")
    a(f"v_mov_b32 v{A5}, 0")
    a(f"v_addc_co_u32 v{VWA+1}, vcc, 0, v{A7}, vcc")
    a(f"v_lshl_add_u64 {v(VWB,2)}, {v(A4,2)}, 0, {v(VWA,2)}")
    a(f"s_and_b32 s{T0}, s{S_RP}, 3")
    a(f"s_add_u32 s{T0}, s{T0}, 2")
    a(f"v_mov_b32 v{SV}, v{A2}")
    a(f"v_mul_lo_u32 v{A4}, v{VWS}, s{T0}")
    a(f"v_lshl_add_u64 {v(VTA,2)}, {v(A4,2)}, 0, {v(VWA,2)}")
    a(f"v_lshl_add_u64 {v(VTB,2)}, {v(A4,2)}, 0, {v(VWB,2)}")
    nstamp(a, "su")
    def tiles(lo, hi):
        if lo < 1 <= hi: emit(a, p1_dma_x(0, 0) + p1_dma_x(1, 0)); vm.add(-1, 4)
        if lo < 2 <= hi:
            emit(a, p1_dma_w(0)); vm.add(-1, 2)
            emit(a, p1_dma_w(1)); vm.add(0, 2)
    if TE >= 2:
        emit(a, p1_dma_w(0)); vm.add(-1, 2)
        emit(a, p1_dma_w(1)); vm.add(0, 2)
    a(f"v_bfe_u32 v{A0}, v{VL}, 1, 2")
    a(f"v_and_b32 v{A1}, 1, v{VL}")
    a(f"v_lshrrev_b32 v{A2}, 3, v{TID}")
    a(f"v_lshlrev_b32 v{VQS}, 11, v{A0}")
    a(f"v_lshl_add_u32 v{VQS}, v{A2}, 5, v{VQS}")
    a(f"v_lshl_add_u32 v{VQS}, v{A1}, 4, v{VQS}")
    a(f"v_lshrrev_b32 v{A3}, 1, v{A2}")
    a(f"v_lshlrev_b32 v{VQD}, 16, v{A3}")
    a(f"v_and_b32 v{A3}, 1, v{A2}")
    a(f"v_lshl_add_u32 v{VQD}, v{A3}, 10, v{VQD}")
    a(f"v_lshl_add_u32 v{VQD}, v{A0}, 5, v{VQD}")
    a(f"v_lshl_add_u32 v{VQD}, v{A1}, 4, v{VQD}")
    a(f"s_lshl_b32 s{T2}, s2, 13")
    a(f"buffer_load_dwordx4 v[48:51], v{VQS}, s[{SACT}:{SACT+3}], s{T2} offen")
    vm.add(99, 1)
    a(f"s_lshl_b32 s{S_AO}, s{S_AO}, 3")
    a(f"s_mov_b32 s{T3}, 0xffff0000")
    a(f"s_waitcnt vmcnt({9 + (WPF > 0) + len(vm.q)})")
    nstamp(a, "xl")
    def ln(r):
        o = []
        I = 32 + 8 * r; X = 64 + 32 * r; C = X + 16; A_ = 52 + 6 * r
        M = A_ + 4
        def wsum(x, t):
            for mod in ("quad_perm:[1,0,3,2]", "quad_perm:[2,3,0,1]", "row_half_mirror", "row_mirror"):
                o.append("NOP2"); o.append(f"v_add_f32_dpp v{x}, v{x}, v{x} {mod} row_mask:0xf bank_mask:0xf")
            for sw in ("v_permlane16_swap_b32", "v_permlane32_swap_b32"):
                o.append(f"v_mov_b32 v{t}, v{x}"); o.append("NOP2"); o.append(f"{sw} v{x}, v{t}"); o.append(f"v_add_f32 v{x}, v{x}, v{t}")
        def rbf(x):
            o.append(f"v_cvt_pk_bf16_f32 v{x}, v{x}, v{x}"); o.append(f"v_and_b32 v{x}, s{T3}, v{x}")
        for k in range(8):
            o.append(f"v_lshlrev_b32 v{X+2*k}, 16, v{I+k}"); o.append(f"v_and_b32 v{X+2*k+1}, s{T3}, v{I+k}")
        o.append(f"v_pk_add_f32 {v(A_,2)}, {v(X,2)}, {v(X+2,2)}"); o.append(f"v_pk_add_f32 {v(A_+2,2)}, {v(X+4,2)}, {v(X+6,2)}")
        for k in (4, 6):
            o.append(f"v_pk_add_f32 {v(A_,2)}, {v(A_,2)}, {v(X+2*k,2)}"); o.append(f"v_pk_add_f32 {v(A_+2,2)}, {v(A_+2,2)}, {v(X+2*k+2,2)}")
        o.append(f"v_pk_add_f32 {v(A_,2)}, {v(A_,2)}, {v(A_+2,2)}"); o.append(f"v_add_f32 v{A_}, v{A_}, v{A_+1}")
        wsum(A_, A_ + 1)
        o.append(f"v_mul_f32 v{M}, 0xba800000, v{A_}")
        for k in range(8): o.append(f"v_pk_add_f32 {v(C+2*k,2)}, {v(X+2*k,2)}, {v(M,2)} op_sel_hi:[1,0]")
        o.append(f"v_pk_mul_f32 {v(A_,2)}, {v(C,2)}, {v(C,2)}"); o.append(f"v_pk_mul_f32 {v(A_+2,2)}, {v(C+2,2)}, {v(C+2,2)}")
        for k in range(2, 8):
            q = A_ + 2 * (k % 2); o.append(f"v_pk_fma_f32 {v(q,2)}, {v(C+2*k,2)}, {v(C+2*k,2)}, {v(q,2)}")
        o.append(f"v_pk_add_f32 {v(A_,2)}, {v(A_,2)}, {v(A_+2,2)}"); o.append(f"v_add_f32 v{A_}, v{A_}, v{A_+1}")
        rbf(M)
        wsum(A_, A_ + 1)
        for k in range(8): o.append(f"v_pk_add_f32 {v(C+2*k,2)}, {v(X+2*k,2)}, {v(M,2)} op_sel_hi:[1,0]")
        o.append(f"v_mul_f32 v{A_}, 0x3a800000, v{A_}"); rbf(A_)
        o.append(f"v_add_f32 v{A_}, 0x3727c5ac, v{A_}"); rbf(A_)
        o.append(f"v_sqrt_f32 v{A_}, v{A_}"); o.append("NOP1"); rbf(A_)
        o.append(f"v_rcp_f32 v{M+1}, v{A_}"); o.append("NOP1")
        for k in range(8): o.append(f"v_pk_mul_f32 {v(C+2*k,2)}, {v(C+2*k,2)}, {v(M,2)} op_sel:[0,1] op_sel_hi:[1,1]")
        for k in range(8): o.append(f"v_cvt_pk_bf16_f32 v{I+k}, v{C+2*k}, v{C+2*k+1}")
        return o
    for x0, x1 in zip(ln(0), ln(1)):
        if x0 == "NOP2": a("s_nop 0")
        elif x0 == "NOP1": pass
        else:
            a(x0); a(x1)
    nstamp(a, "ln")
    for r in range(2):
        a(f"ds_write_b128 v{VTW}, {v(32+8*r,4)} offset:{r*128}")
        a(f"ds_write_b128 v{VTW}, {v(36+8*r,4)} offset:{16384 + r*128}")
    a("s_mov_b64 exec, 1")
    a(f"buffer_store_dwordx2 v[56:57], v{VKVD}, s[{SPART}:{SPART+3}], s{S_AO} offen sc1")
    a(f"buffer_store_dwordx2 v[62:63], v{VKVD}, s[{SPART}:{SPART+3}], s{S_AO} offen offset:64 sc1")
    a("s_mov_b64 exec, -1")
    vm.add(99, 2)
    q0 = len(vm.q)
    tiles(TE, 2)
    nstamp(a, "ti")
    a(f"v_and_b32 v{A1}, 1, v{VL}")
    a(f"v_mov_b32 v{A2}, v{SV}")
    a(f"v_mov_b32 v{A5}, 0")
    a(f"v_lshrrev_b32 v{VEX}, 1, v{VL}")
    a(f"v_lshlrev_b32 v{VEX}, 6, v{VEX}")
    a(f"v_lshl_add_u32 v{VEX}, v{A1}, 4, v{VEX}")
    a(f"s_lshl_b32 s{T0}, s{S_CT}, 16")
    a(f"s_lshl_b32 s{T1}, s{S_WM}, 10")
    a(f"s_add_u32 s{T0}, s{T0}, s{T1}")
    a(f"s_lshl_b32 s{T1}, s{S_P}, 8")
    a(f"s_add_u32 s{T0}, s{T0}, s{T1}")
    a(f"s_lshl_b32 s{T1}, s{S_BB}, 7")
    a(f"s_add_u32 s{T0}, s{T0}, s{T1}")
    a(f"s_add_u32 s{T0}, s{T0}, {WS_WQP + NS*2048}")
    a(f"s_add_u32 s{T0}, s{T0}, s{P_WS}")
    a(f"s_addc_u32 s{T1}, s{P_WS+1}, 0")
    a(f"v_lshl_add_u32 v{A4}, v{VQQ}, 5, v{A2}")
    a(f"v_lshl_add_u64 {v(VWP,2)}, {v(A4,2)}, 0, s[{T0}:{T1}]")
    srd(a, SWO, P_WO, P_WO + 1, 1024 * 2048)
    a(f"v_lshrrev_b32 v{A0}, 1, v{VT}")
    a(f"v_xor_b32 v{A0}, v{A0}, v{VQQ}")
    a(f"v_lshlrev_b32 v{A0}, 4, v{A0}")
    a(f"v_lshl_add_u32 v{A0}, v{VT}, 7, v{A0}")
    a(f"s_mul_i32 s{T0}, s{S_WM}, 49152")
    a(f"v_add_u32 v{VXR}, s{T0}, v{A0}")
    a(f"v_xor_b32 v{VXR+1}, 64, v{VXR}")
    a(f"v_lshrrev_b32 v{A3}, 2, v{VT}")
    a(f"v_lshl_add_u32 v{A0}, v{VQQ}, 2, v{A3}")
    a(f"v_and_b32 v{A1}, 7, v{A0}")
    a(f"s_lshl_b32 s{T0}, s{S_WN}, 1")
    a(f"v_xor_b32 v{A1}, s{T0}, v{A1}")
    a(f"v_lshlrev_b32 v{A1}, 5, v{A1}")
    a(f"v_lshl_add_u32 v{A1}, v{A0}, 8, v{A1}")
    a(f"v_and_b32 v{A2}, 3, v{VL}")
    a(f"v_lshl_add_u32 v{A1}, v{A2}, 3, v{A1}")
    a(f"v_add_u32 v{VWR}, {WLDS}, v{A1}")
    a(f"v_xor_b32 v{VWR+1}, 32, v{VWR}")
    a(f"s_lshl_b32 s{S_KVO}, s{S_WN}, 11")
    a(f"s_cmp_eq_u32 s{S_WM}, 0")
    a(f"s_movk_i32 s{T0}, 4096")
    a(f"s_cselect_b32 s{T0}, s{T0}, 0x20000")
    a(f"s_add_u32 s{S_KVO}, s{S_KVO}, s{T0}")
    a(f"s_add_u32 s{S_MKV}, s{S_MX}, {KVL + 0x4000}")
    a(f"s_lshr_b32 s{T0}, s{S_WAVE}, 1")
    a(f"s_lshl_b32 s{T1}, s{T0}, 13")
    a(f"s_add_u32 s{T1}, s{T1}, {TL}")
    a(f"v_add_u32 v{VFR}, s{T1}, v{VKVD}")
    a(f"s_lshl_b32 s{T0}, s{T0}, 14")
    a(f"s_lshl_b32 s{T1}, s{S_WM}, 15")
    a(f"s_add_u32 s{T0}, s{T0}, s{T1}")
    a(f"s_lshl_b32 s{T1}, s{S_P}, 5")
    a(f"s_add_u32 s{T1}, s{T1}, 0x10000")
    a(f"s_add_u32 s{T0}, s{T0}, s{T1}")
    a(f"v_lshl_add_u32 v{VTR}, v{VQQ}, 3, v{A3}")
    a(f"v_lshlrev_b32 v{VTR}, 6, v{VTR}")
    a(f"v_lshl_add_u32 v{VTR}, v{A2}, 3, v{VTR}")
    a(f"v_add_u32 v{VTR}, s{T0}, v{VTR}")
    a(f"v_add_u32 v{VEX}, s{T0}, v{VEX}")
    a(f"s_lshr_b32 s{S_WDO}, s{S_PB}, 1")
    a(f"s_lshl_b32 s{S_WDO}, s{S_WDO}, 11")
    a(f"s_and_b32 s{T0}, s{S_PB}, 1")
    a(f"s_lshl_b32 s{T1}, s{T0}, 8")
    a(f"s_lshl_b32 s{T2}, s{S_P}, 3")
    a(f"s_add_u32 s{T1}, s{T1}, s{T2}")
    a(f"s_lshl_b32 s{T0}, s{T0}, 10")
    a(f"s_lshl_b32 s{T2}, s{S_P}, 8")
    a(f"s_add_u32 s{T0}, s{T0}, s{T2}")
    a(f"s_add_u32 s{T0}, s{T0}, 0x20000")
    a(f"s_cmp_eq_u32 s{S_ISV}, 0")
    a(f"s_cselect_b32 s{T0}, s{T1}, s{T0}")
    a(f"s_cselect_b64 vcc, -1, 0")
    a(f"s_add_u32 s{S_WDO}, s{S_WDO}, s{T0}")
    a(f"s_add_u32 s{S_WDO}, s{S_WDO}, 8192")
    a(f"v_lshlrev_b32 v{A0}, 9, v{VQQ}")
    a(f"v_and_b32 v{A1}, 512, v{A0}")
    a(f"v_lshrrev_b32 v{A2}, 1, v{VQQ}")
    a(f"v_lshl_add_u32 v{A1}, v{A2}, 3, v{A1}")
    a(f"v_cndmask_b32 v{A0}, v{A1}, v{A0}, vcc")
    a(f"v_lshl_add_u32 v{VKS}, v{VT}, 4, v{A0}")
    a(f"s_lshr_b32 s{S_CNT}, s2, 3")
    a(f"s_lshl_b32 s{S_CNT}, s{S_CNT}, 11")
    a(f"s_and_b32 s{T0}, s2, 7")
    a(f"s_lshl_b32 s{T0}, s{T0}, 7")
    a(f"s_add_u32 s{S_CNT}, s{S_CNT}, s{T0}")
    a(f"s_add_u32 s{S_CNT}, s{S_CNT}, {WS_WQP}")
    srd(a, SACT, P_WS, P_WS + 1, 16 * ACT_NU * 8192, add_lo=WS_ACT)
    srd(a, SKV, P_WS, P_WS + 1, (256 << 10) + 32768, add_lo=WS_KV - 8192)
    a(f"s_waitcnt vmcnt({len(vm.q)}) lgkmcnt(0)")
    a(f"s_add_u32 s{NONCE}, s{NONCE}, 0x9e3779b9")
    a(f"s_add_u32 s{NONCE+1}, s{NONCE+1}, 0x85ebca6b")
    a("s_barrier")
    nstamp(a, "b1")
    for u in range(8):
        a(f"ds_read_b128 {v(64+4*u,4)}, v{VFR} offset:{u*1024}")
        for h in range(2):
            a(f"ds_read_b64_tr_b16 {v(96+4*u+2*h,2)}, v{VTR} offset:{u*2048 + h*256}")
    a(f"global_load_dword v18, {v(VTA,2)}, off")
    a(f"global_load_dword v18, {v(VTB,2)}, off")
    mk_ = (((1 << XL) - 1) << 1) * 0x10001
    a(f"s_mov_b32 exec_lo, {mk_}")
    a(f"s_mov_b32 exec_hi, {mk_}")
    a(f"buffer_load_dword v18, v{VTX}, s[{SX}:{SX+3}], 0 offen")
    a("s_mov_b64 exec, -1")
    vm.add(99, 3)
    a(f"s_waitcnt vmcnt({len(vm.q) - q0 + 2})")
    a(f"buffer_store_dwordx4 v[48:51], v{VQD}, s[{SPART}:{SPART+3}], s{S_CNT} offen sc1")
    vm.add(99, 1)
    a(f"s_cmp_lg_u32 s{S_ISV}, 0")
    a("s_cbranch_scc1 P0_V")
    for isv in range(2):
        if isv: a.label("P0_V")
        for u in range(8):
            a(f"s_waitcnt lgkmcnt({min(15, 3*(7-u))})")
            x = 64 + 4 * u; w = 96 + 4 * u; d = (20, 24)[u & 1]
            c = "0" if u < 2 else v(d, 4)
            ab = (x, w) if isv else (w, x)
            a(f"v_mfma_f32_16x16x32_bf16 {v(d,4)}, {v(ab[0],4)}, {v(ab[1],4)}, {c}")
        if not isv: a("s_branch P0_MD")
    a.label("P0_MD")
    srd(a, SPART, P_WS, P_WS + 1, 16384, add_lo=WS_ST)
    a("s_nop 3")
    a("v_pk_add_f32 v[20:21], v[20:21], v[24:25]")
    a("v_pk_add_f32 v[22:23], v[22:23], v[26:27]")
    a(f"ds_write_b128 v{VEX}, v[20:23]")
    a(f"s_waitcnt vmcnt({vm.wait(-1)}) lgkmcnt(0)")
    a("s_barrier")

def p0_finish(a):
    a(f"s_cmp_gt_u32 s{S_WAVE}, 1")
    a("s_cbranch_scc1 P0_KVD")
    a("v_add_u32 v30, 0x10000, v28")
    a("ds_read_b128 v[24:27], v28 offset:16384")
    a("ds_read_b128 v[48:51], v30")
    a("ds_read_b128 v[52:55], v30 offset:16384")
    a("s_waitcnt lgkmcnt(0)")
    for h in (0, 2):
        a(f"v_pk_add_f32 {v(20+h,2)}, {v(20+h,2)}, {v(24+h,2)}")
        a(f"v_pk_add_f32 {v(48+h,2)}, {v(48+h,2)}, {v(52+h,2)}")
        a(f"v_pk_add_f32 {v(20+h,2)}, {v(20+h,2)}, {v(48+h,2)}")
    a("v_cvt_pk_bf16_f32 v20, v20, v21")
    a("v_cvt_pk_bf16_f32 v21, v22, v23")
    a(f"buffer_store_dwordx2 v[20:21], v29, s[{SKV}:{SKV+3}], s{S_WDO} offen sc1")
    a.label("P0_KVD")

def gen(a):
    kernel_head(a, NAME)
    a("s_cmp_ge_u32 s2, 256")
    a("s_cbranch_scc1 KM_END")
    stamp(a, 0)
    vm = VM()
    gen_p0(a, vm)
    nstamp(a, "fl")
    stamp(a, 1)
    for x in p1_reads(0): a(x)
    emit(a, p1_dma_x(0, 1)); vm.add(1, 2)
    p0_finish(a)
    vm.add(1)
    a(f"s_lshl_b32 s{S_CNT}, s2, 3")
    a(f"s_add_u32 s{S_CNT}, s{S_CNT}, {F_KV}")
    a(f"s_lshl_b32 s{S_PB}, s{S_P}, 10")
    a(f"s_add_u32 s{S_PB}, s{S_PB}, {F_KV}")
    a(f"s_mul_i32 s{T0}, s{S_WN}, {7*128}")
    a(f"s_mul_i32 s{T1}, s2, 3584")
    a(f"s_add_u32 s{T0}, s{T0}, s{T1}")
    a(f"s_add_u32 s{T0}, s{T0}, {max(WPF - 1, 0) * 128 * 7168}")
    a(f"v_lshlrev_b32 v0, 3, v{VKVD}")
    a(f"v_add_u32 v0, s{T0}, v0")
    a(f"s_lshl_b32 s{S_AO}, s{S_RP}, 1")
    a(f"s_add_u32 s{S_AO}, s{S_AO}, s{S_WM}")
    a(f"s_lshl_b32 s{S_AO}, s{S_AO}, 10")
    for i in range(4): a(f"v_mov_b32 v{ONES+i}, 0x3f803f80")
    for i in range(8): a(f"v_mov_b32 v{CS+i}, 0")
    a(f"s_waitcnt vmcnt({vm.wait(0) - 1}) lgkmcnt(0)")
    a("s_barrier")
    nstamp(a, "p1s")
    a(f"s_cmp_lg_u32 s{S_WM}, 0")
    a("s_cbranch_scc1 P1_B")
    if PR1 < 0: a(f"s_setprio {-PR1}")
    gen_p1(a, 0, vm)
    a("s_branch P1_END")
    a.label("P1_B")
    if PR1 > 0: a(f"s_setprio {PR1}")
    gen_p1(a, 1, vm)
    a.label("P1_END")
    if PR1: a("s_setprio 0")
    stamp(a, 2)
    nstamp(a, "p1e")
    if STOP == "p1": a("s_branch KM_FIN")
    for _ in range(int(os.environ.get("X_SHE", 0))): a("s_nop 0")
    CSR = XF + 16
    for t in range(2):
        for st in range(2):
            a(f"ds_read_b128 {v(CSR+(st*2+t)*4,4)}, v{VWP+1} offset:{CSL + (t*512 + st*64 if CSV else t*8192 + st*1024)}")
    a(f"v_lshlrev_b32 v{VHO}, 9, v{VQQ}")
    a(f"v_lshl_add_u32 v{VHO}, v{VT}, 4, v{VHO}")
    a(f"v_add_u32 v{VHO+1}, 0x1000, v{VHO}")
    a(f"s_lshr_b32 s{T0}, s{S_CT}, 1")
    a(f"s_mul_i32 s{T0}, s{T0}, 7")
    a(f"s_and_b32 s{T1}, s{S_CT}, 1")
    a(f"s_lshl_b32 s{T2}, s{T1}, 2")
    a(f"s_add_u32 s{T2}, s{T2}, s{S_WN}")
    a(f"s_cmp_eq_u32 s{S_WN}, 3")
    a(f"s_cselect_b32 s{T2}, 3, s{T2}")
    a(f"s_add_u32 s{T0}, s{T0}, s{T2}")
    a(f"s_lshl_b32 s{T2}, s{S_RP}, 1")
    a(f"s_add_u32 s{T2}, s{T2}, s{S_WM}")
    a(f"s_mul_i32 s{T3}, s{T2}, {ACT_NU}")
    a(f"s_add_u32 s{T0}, s{T0}, s{T3}")
    a(f"s_lshl_b32 s{S_HO}, s{T0}, 13")
    a(f"s_lshl_b32 s{S_XO}, s{S_RP}, 8")
    a(f"s_lshl_b32 s{T3}, s{S_CT}, 3")
    a(f"s_add_u32 s{S_XO}, s{S_XO}, s{T3}")
    a(f"s_add_u32 s{S_XO}, s{S_XO}, {F_H}")
    a("s_waitcnt lgkmcnt(0)")
    for j in range(8): a(f"v_mul_f32 v{XF+32+j}, v{XF+2*j+1}, v{XF+2*j+1}")
    a(f"s_cmp_eq_u32 s{S_WN}, 3")
    a("s_cbranch_scc1 P1_EP3")
    def center(st, t, j):
        g = acc(st, t, j); c = CSR + (st * 2 + t) * 4
        for i in (0, 2): a(f"v_pk_fma_f32 {v(g+i,2)}, {v(c+i,2)}, {v(XF+2*j,2)}, {v(g+i,2)} op_sel_hi:[1,0,1]")
    def hpair(t, j):
        g = acc(0, t, j); u = acc(1, t, j); dst = HS + 4 * j + 2 * t
        r2 = XF + 32 + (j & ~1); sel = "op_sel:[0,1] op_sel_hi:[1,1]" if j & 1 else "op_sel_hi:[1,0]"
        center(0, t, j); center(1, t, j)
        for i in range(4): a(f"v_max_f32 v{g+i}, 0, v{g+i}")
        for i in (0, 2): a(f"v_pk_mul_f32 {v(u+i,2)}, {v(u+i,2)}, {v(r2,2)} {sel}")
        for i in (0, 2): a(f"v_pk_mul_f32 {v(g+i,2)}, {v(g+i,2)}, {v(u+i,2)}")
        for i in (2, 0): a(f"v_cvt_pk_bf16_f32 v{dst+i//2}, v{g+i}, v{g+i+1}")
    def hst(j, n):
        off = (j >> 1) * 2048 + (j & 1) * 256
        a(f"buffer_store_dwordx{n} {v(HS+4*j,n)}, v{VHO + (off>>12)}, s[{SACT}:{SACT+3}], s{S_HO} offen offset:{off & 4095} sc1")
    for j in range(8):
        hpair(1, j); hpair(0, j)
        if j % HSTEP == 0 and j // HSTEP < NE: hst(j // HSTEP, 4)
    a("s_branch P1_EPD")
    a.label("P1_EP3")
    a(f"s_lshl_b32 s{S_CNT}, s{S_WM}, 13")
    a(f"v_add_u32 v24, s{S_CNT}, v{VHO}")
    for j in range(8): a(f"v_mul_f32 v{XF+2*j+1}, {QSCALE}, v{XF+2*j+1}")
    for j in range(8):
        tmp = XF + 40 + 4 * (j & 3)
        for st in range(2):
            g = acc(st, 1, j)
            center(st, 1, j)
            for i in (0, 2): a(f"v_pk_mul_f32 {v(g+i,2)}, {v(g+i,2)}, {v(XF+2*j,2)} op_sel:[0,1] op_sel_hi:[1,1]")
            for i in (0, 2): a(f"v_cvt_pk_bf16_f32 v{tmp+2*st+i//2}, v{g+i}, v{g+i+1}")
        a(f"ds_write_b128 v24, {v(tmp,4)} offset:{QLDS + (j>>1)*2048 + (j&1)*256}")
    a(f"s_lshl_b32 s{T1}, s{T1}, 3")
    a(f"s_add_u32 s{S_HO}, s{S_HO}, s{T1}")
    for j in range(8):
        hpair(0, j)
        if j % HSTEP == 0 and j // HSTEP < NE: hst(j // HSTEP, 2)
    a.label("P1_EPD")
    srd(a, SPART, P_WS, P_WS + 1, 8 << 20, add_lo=WS_PART)
    a(f"s_lshl_b32 s{T3}, s{S_WAVE}, 10")
    a(f"v_add_u32 v{VPA}, s{T3}, v{VKVD}")
    a(f"v_lshlrev_b32 v3, 1, v{VQQ}")
    a(f"v_xor_b32 v3, v3, v{VT}")
    a("v_lshlrev_b32 v3, 4, v3")
    a(f"v_lshl_add_u32 v3, v{VQQ}, 11, v3")
    a(f"s_lshl_b32 s{T0}, s{S_WAVE}, 13")
    a(f"s_lshl_b32 s{T1}, s{S_C2}, 8")
    a(f"s_add_u32 s{T0}, s{T0}, s{T1}")
    a(f"s_lshl_b32 s{T1}, s{S_P}, 7")
    a(f"v_xor_b32 v{VPW}, s{T1}, v3")
    a(f"v_add_u32 v{VPW}, s{T0}, v{VPW}")
    a(f"s_mul_i32 s{T0}, s{S_G}, {ACT_NU}")
    a(f"s_mul_i32 s{T1}, s{S_KH}, 56")
    a(f"s_add_u32 s{T0}, s{T0}, s{T1}")
    a(f"s_lshl_b32 s{S_AO}, s{T0}, 13")
    a(f"s_lshl_b32 s{S_WDO}, s{T1}, 16")
    a(f"s_mov_b32 s{S_RING}, 0")
    a(f"v_lshlrev_b32 v{VTCH}, 6, v{VL}")
    a(f"s_lshr_b32 s{T0}, s2, 3")
    a(f"s_lshl_b32 s{T0}, s{T0}, 12")
    a(f"s_add_u32 s{S_TW}, s{S_WDO}, s{T0}")
    a(f"s_lshl_b32 s{T0}, s{S_C2}, 12")
    a(f"s_add_u32 s{S_TA}, s{S_AO}, s{T0}")
    a(f"v_lshlrev_b32 v26, 11, v{VT}")
    a(f"v_and_b32 v27, 1, v{VQQ}")
    a("v_lshl_add_u32 v26, v27, 5, v26")
    a(f"v_lshrrev_b32 v27, 1, v{VQQ}")
    a(f"v_lshl_add_u32 v{VXA}, v27, 4, v26")
    for j in range(1, 4): a(f"v_add_u32 v{VXA+j}, {j*32768}, v{VXA}")
    a(f"s_lshl_b32 s{S_ISV}, s{S_G}, 18")
    a(f"s_lshl_b32 s{T0}, s{S_BB}, 17")
    a(f"s_add_u32 s{S_ISV}, s{S_ISV}, s{T0}")
    a(f"s_lshl_b32 s{T0}, s{S_C2}, 8")
    a(f"s_add_u32 s{S_ISV}, s{S_ISV}, s{T0}")
    a(f"s_lshl_b32 s{T0}, s{S_KH}, 7")
    a(f"s_add_u32 s{S_ISV}, s{S_ISV}, s{T0}")
    a(f"s_lshl_b32 s{T0}, s{S_P}, 6")
    a(f"s_add_u32 s{S_ISV}, s{S_ISV}, s{T0}")
    srd(a, SX, P_X, P_X + 1, 4 << 20)
    if STASH:
        a(f"v_lshrrev_b32 v22, 3, v{VL}")
        a("v_lshlrev_b32 v22, 11, v22")
        a(f"v_lshlrev_b32 v23, 1, v{VQQ}")
        a(f"v_and_b32 v25, 7, v{VL}")
        a("v_xor_b32 v23, v23, v25")
        a("v_lshl_add_u32 v22, v23, 4, v22")
        a(f"s_lshl_b32 s{T0}, s{S_WN}, 14")
        a(f"s_lshl_b32 s{T1}, s{S_C2}, 8")
        a(f"s_add_u32 s{T0}, s{T0}, s{T1}")
        a(f"s_lshl_b32 s{T1}, s{S_KH}, 7")
        a(f"s_add_u32 s{T0}, s{T0}, s{T1}")
        a(f"v_add_u32 v12, s{T0}, v22")
    a(f"v_lshrrev_b32 v25, 2, v{VL}")
    a(f"v_xor_b32 v25, v25, v{VQQ}")
    a("v_and_b32 v25, 1, v25")
    a(f"v_and_b32 v26, 3, v{VL}")
    a("v_or_b32 v25, v25, v26")
    a("v_cmp_eq_u32 vcc, 0, v25")
    a("v_mov_b32 v26, 0x3f803f80")
    a("v_mov_b32 v27, 0")
    a(f"s_waitcnt vmcnt({NE}) lgkmcnt(0)")
    a("s_barrier")
    a(f"ds_read_b128 {v(QF,4)}, v{VWP} offset:{QLDS}")
    a(f"ds_read_b128 {v(QF+4,4)}, v{VWP} offset:{QLDS+1024}")
    for b in range(2):
        for s_ in range(2):
            a(f"ds_read_b128 {v(KB+8*b+4*s_,4)}, v{VKVR} offset:{0x4000 + (2+b)*2048 + s_*1024}")
    for i in range(4): a(f"v_cndmask_b32 v{SEL+i}, v27, v26, vcc")
    for i in range(4): a(f"v_mov_b32 v{RS+i}, 0")
    for i in range(16): a(f"v_mov_b32 v{OA+i}, 0")
    a("s_waitcnt lgkmcnt(0)")
    a(mf32(SB, KB, QF, "0"))
    a(mf32(SB, KB + 4, QF + 4, v(SB, 16)))
    a("s_nop 11")
    a(f"v_max3_f32 v26, v{SB}, v{SB+1}, v{SB+2}")
    for i in range(3, 15, 2): a(f"v_max3_f32 v26, v26, v{SB+i}, v{SB+i+1}")
    a(f"v_max_f32 v26, v26, v{SB+15}")
    a("v_mov_b32 v27, v26")
    a("s_nop 1")
    a("v_permlane32_swap_b32 v26, v27")
    a("s_nop 0")
    a("v_max_f32 v26, v26, v27")
    for i in range(16): a(f"v_sub_f32 v{NM+i}, 0, v26")
    for i in range(16): a(f"v_sub_f32 v{SB+i}, v{SB+i}, v26")
    stamp(a, 3)
    if PR2:
        a(f"s_cmp_{'lg' if PR2 > 0 else 'eq'}_u32 s{S_WM}, 0")
        a("s_cbranch_scc0 P2_NP")
        a(f"s_setprio {abs(PR2)}")
        a.label("P2_NP")
    def pollH():
        a(f"s_lshr_b32 s{T0}, s{S_G}, 1")
        a(f"s_lshl_b32 s{T0}, s{T0}, 8")
        a(f"s_lshl_b32 s{T1}, s{S_KH}, 7")
        a(f"s_add_u32 s{T0}, s{T0}, s{T1}")
        a(f"s_add_u32 s{T0}, s{T0}, {F_H}")
        poll_issue(a, T0, 16)
    for _ in range(int(os.environ.get("X_SH2", 0))): a("s_nop 0")
    rest = list(range(NE, 8)); prev = NE
    for E in range(4):
        mine, rest = rest[:2], rest[2:]
        att_epoch(a, E, first=(E == 0), wait=prev, x1=wo_stash(5 * (E - 2), 5) if E >= 2 else (), x2=h_store(mine[0]) if mine else (), x3=h_store(mine[1]) if len(mine) > 1 else ())
        prev = len(mine)
    att_epoch(a, 4, wait=prev, x1=wo_stash(10, 5))
    att_epoch(a, 5, post=lambda: wave0(a, lambda: flag_set(a, S_XO)), x1=touch_wo() if FART else ())
    att_epoch(a, 6, wait=int(FART > 0), x1=touch_w(20) if FART else ())
    xl = [f"s_cmp_lg_u32 s{S_WM}, 0", "s_cbranch_scc1 P2_NX"] + [f"buffer_load_dwordx4 {v(XR+4*j,4)}, v{VXA+j}, s[{SX}:{SX+3}], s{S_ISV} offen" for j in range(4)] + ["P2_NX:"]
    if HL == 0:
        att_epoch(a, 7, wait=int(FART > 0), post=lambda: wave0(a, pollH), x1=touch_w(12))
        att_epoch(a, 8, wait=1, post=lambda: wave0(a, lambda: poll_check(a)), x1=touch_w(4))
        att_epoch(a, 9, prefill=2, wait=1, x3=touch_a(6))
        att_epoch(a, 10, prefill=2, wait=5)
        att_epoch(a, 11, prefill=2, wait=4)
        att_epoch(a, 12, prefill=2, wait=4, x3=touch_a(0))
        att_epoch(a, 13, wait=5)
        att_epoch(a, 14, x1=[xl])
    else:
        att_epoch(a, 7, wait=int(FART > 0), x1=touch_w(12))
        att_epoch(a, 8, wait=1, x1=[xl] + wo_stash(15, 5))
        att_epoch(a, 9, post=lambda: wave0(a, pollH), x1=touch_w(4))
        att_epoch(a, 10, wait=1, post=lambda: wave0(a, lambda: poll_check(a)))
        att_epoch(a, 11, prefill=2, x3=touch_a(6))
        att_epoch(a, 12, prefill=2, wait=5, x3=touch_a(0))
        att_epoch(a, 13, prefill=2, wait=5)
        att_epoch(a, 14, prefill=2, wait=4)
    att_epoch(a, 15, last=True)
    a("s_waitcnt lgkmcnt(0)")
    a(mf32(OA, VB + 8, PB + 8, v(OA, 16)))
    a(mfrs(PB + 8))
    a(mf32(OA, VB + 12, PB + 12, v(OA, 16)))
    a(mfrs(PB + 12))
    a(f"s_add_u32 s{S_XO}, s{S_XO}, {F_O - F_H}")
    a(f"s_lshl_b32 s{T0}, s{S_RP}, 1")
    a(f"s_add_u32 s{T0}, s{T0}, s{S_WM}")
    a(f"s_mul_i32 s{T0}, s{T0}, {ACT_NU}")
    a(f"s_add_u32 s{T0}, s{T0}, s{S_CT}")
    a(f"s_add_u32 s{T0}, s{T0}, 112")
    a(f"s_lshl_b32 s{T0}, s{T0}, 13")
    a(f"s_lshl_b32 s{T1}, s{S_WN}, 11")
    a(f"s_add_u32 s{S_CNT}, s{T0}, s{T1}")
    a("s_nop 4")
    a(f"v_mul_f32 v26, 0, v{RS}")
    for i in range(16): a(f"v_fma_f32 v26, v{OA+i}, 0, v26")
    a("v_cmp_u_f32 vcc, v26, v26")
    a("s_cmp_lg_u64 vcc, 0")
    a("s_cbranch_scc1 P2_SLOW")
    a.label("P2_FIN")
    a(f"v_rcp_f32 v26, v{RS}")
    a("s_nop 0")
    for i in range(16): a(f"v_mul_f32 v{OA+i}, v{OA+i}, v26")
    for k, base in enumerate((0, 8, 4, 12)):
        a(f"v_cvt_pk_bf16_f32 v{PB+2*k}, v{OA+base}, v{OA+base+1}")
        a(f"v_cvt_pk_bf16_f32 v{PB+2*k+1}, v{OA+base+2}, v{OA+base+3}")
    a(f"buffer_store_dwordx4 {v(PB,4)}, v{VKVD}, s[{SACT}:{SACT+3}], s{S_CNT} offen sc1")
    a(f"buffer_store_dwordx4 {v(PB+4,4)}, v{VKVD}, s[{SACT}:{SACT+3}], s{S_CNT} offen offset:1024 sc1")
    stamp(a, 4)
    if PR2: a("s_setprio 0")
    import mk3
    mk3.gen_p3(a)
    a.label("P2_SLOW")
    a(f"s_mov_b32 s{T0}, 8192")
    a(f"v_mov_b32 v27, 0xff800000")
    a(f"v_mov_b32 v{RS}, 0")
    for i in range(16): a(f"v_mov_b32 v{OA+i}, 0")
    a.label("P2_SL")
    a(f"s_add_u32 s{T1}, s{T0}, 0x20000")
    a(f"buffer_load_dwordx4 {v(KB,4)}, v{VKVD}, s[{SKV}:{SKV+3}], s{T0} offen sc1")
    a(f"buffer_load_dwordx4 {v(KB+4,4)}, v{VKVD}, s[{SKV}:{SKV+3}], s{T0} offen offset:1024 sc1")
    a(f"buffer_load_dwordx4 {v(VB,4)}, v{VKVD}, s[{SKV}:{SKV+3}], s{T1} offen sc1")
    a(f"buffer_load_dwordx4 {v(VB+4,4)}, v{VKVD}, s[{SKV}:{SKV+3}], s{T1} offen offset:1024 sc1")
    a("s_waitcnt vmcnt(0)")
    a(mf32(SB, KB, QF, "0"))
    a(mf32(SB, KB + 4, QF + 4, v(SB, 16)))
    a("s_nop 15")
    a(f"v_max3_f32 v26, v27, v{SB}, v{SB+1}")
    for i in range(2, 16, 2): a(f"v_max3_f32 v26, v26, v{SB+i}, v{SB+i+1}")
    a("v_mov_b32 v28, v26")
    a("s_nop 1")
    a("v_permlane32_swap_b32 v26, v28")
    a("s_nop 0")
    a("v_max_f32 v26, v26, v28")
    a("v_sub_f32 v28, v27, v26")
    a("v_exp_f32 v28, v28")
    a("v_mov_b32 v27, v26")
    for i in range(16): a(f"v_sub_f32 v{SB+i}, v{SB+i}, v26")
    for i in range(16): a(f"v_exp_f32 v{SB+i}, v{SB+i}")
    for i in range(16): a(f"v_mul_f32 v{OA+i}, v{OA+i}, v28")
    a(f"v_mul_f32 v{RS}, v{RS}, v28")
    for i in range(8): a(f"v_cvt_pk_bf16_f32 v{PB+i}, v{SB+2*i}, v{SB+2*i+1}")
    a("s_nop 1")
    a(mf32(OA, VB, PB, v(OA, 16)))
    a(mfrs(PB))
    a(mf32(OA, VB + 4, PB + 4, v(OA, 16)))
    a(mfrs(PB + 4))
    a("s_nop 15")
    a(f"s_add_u32 s{T0}, s{T0}, 2048")
    a(f"s_cmp_lt_u32 s{T0}, {8192 + 64*2048}")
    a("s_cbranch_scc1 P2_SL")
    a("s_branch P2_FIN")
    a.label("KM_FIN")
    if STAMPS: a("s_waitcnt vmcnt(0)")
    stamp(a, 7)
    stamp_flush(a, 0, 8, P_WS, S_WAVE)
    a.label("KM_END")
    a("s_endpgm")
    return dict(name=NAME, grid=256, block=512, lds=int(os.environ.get('X_LDS', 163840)), vgpr=256, sgpr=102)
```

```python
from asmlib import *
from mk import *
from mk import _lab
GA = 128
def ga(c, j): return GA + (c * 4 + j) * 4
def gb(p, j): return 32 + p * 32 + j * 4
def gw(p, c): return 48 + p * 32 + c * 4
BA, BW, BWO = 96, 99, 111
NSLOT = 10
PART = 192
NA = int(os.environ.get("X_NA", 0))
NB = int(os.environ.get("X_NB", 12))
NFF = 56
NOUT = 32 - NA - NB
MAXO = int(os.environ.get("X_MAXO", 3))
def configure(kh):
    global NDOWN, NT, E0, NE3, ADDR, WHEN, EF, PE, KHV
    KHV = kh
    NDOWN = NFF + (NA, NB)[kh]
    NT = NDOWN + NOUT
    E0, NE3 = NDOWN // 2, NT // 2
    ADDR, WHEN = plan()
    EF = E0 + 4
    PE = NE3 - int(os.environ.get('X_PE', 5))

def plan():
    addr = {t: t * 16384 for t in range(8)}
    when = {}
    size = lambda t: 16384 if t < NDOWN else 12288
    t = 8; head = 8 * 16384
    for e in range(NE3):
        n = 0
        while t < NT and n < (2 if t < NDOWN else MAXO):
            h = head
            top = 163840
            if (h & 0xffff) + size(t) > 65536: h = (h + 65536) & ~0xffff
            if h + size(t) > top: h = 0
            live = [u for u in addr if u >= 2 * e]
            if any(h < addr[u] + size(u) and addr[u] < h + size(t) for u in live): break
            addr[t] = h; when[t] = e; head = h + size(t); t += 1; n += 1
    assert t == NT and all(when[u] < (u - 1) // 2 for u in when)
    return addr, when

def g_reads(t):
    if t >= NT: return []
    p = t & 1; h = ADDR[t] >> 16; o = ADDR[t] & 0xffff
    r = []
    if t >= NT: return r
    for c in range(4 if t < NDOWN else 2):
        for half in range(2):
            if t < NDOWN: r.append(f"ds_read_b64_tr_b16 {v(gw(p,c)+2*half,2)}, v{BW+3*c+h} offset:{o + 8192 + half*4096}")
            else: r.append(f"ds_read_b64_tr_b16 {v(gw(p,c)+2*half,2)}, v{BWO+3*c+h} offset:{o + 8192 + half*2048}")
    for j in range(4):
        r.append(f"ds_read_b128 {v(gb(p,j),4)}, v{BA+h} offset:{o + (j>>1)*2048 + (j&1)*256}")
    return r

def g_ustep(a, t, extra=(), first_wait=2):
    p = t & 1
    nc = 4 if t < NDOWN else 2
    m = []
    for j in range(4):
        for c in (range(nc) if j % 2 == 0 else range(nc - 1, -1, -1)):
            m.append(f"v_mfma_f32_16x16x32_bf16 {v(ga(c,j),4)}, {v(gw(p,c),4)}, {v(gb(p,j),4)}, {v(ga(c,j),4) if t else 0}")
    rd = g_reads(t + 1)
    fill = [[] for _ in m]
    for i, x in enumerate(rd): fill[min(i, len(m) - 1)].append(x)
    for i, e in enumerate(extra): fill[len(m) - 1 - (i % len(m))] += list(e)
    hlf = len(m) // 2
    a(f"s_waitcnt lgkmcnt({first_wait})")
    weave(a, m[:hlf], fill[:hlf])
    a(f"s_waitcnt lgkmcnt({sum(x.startswith('ds_read') for f in fill[:hlf] for x in f)})")
    weave(a, m[hlf:], fill[hlf:])

def l_ustep(a, t, dyn=False):
    if dyn:
        a(f"s_add_u32 m0, s{S_RING}, s{T3}")
        a(f"s_add_u32 s{S_RING}, s{S_RING}, 16384")
    else:
        a(f"s_add_u32 m0, s{T3}, {ADDR[t]}")
        a("s_nop 0")
    a(f"buffer_load_dwordx4 v4, s[{SACT}:{SACT+3}], s{S_AO} offen lds")
    a(f"buffer_load_dwordx4 v4, s[{SACT}:{SACT+3}], s{S_AO} offen offset:1024 lds")
    if t < NDOWN:
        a("s_add_u32 m0, m0, 8192")
        a(f"s_cmp_lt_u32 s{S_RING}, {NSLOT*16384}")
        r = SWD if t < NFF else SWO
        a(f"buffer_load_dwordx4 v5, s[{r}:{r+3}], s{S_WDO} offen lds")
        a(f"buffer_load_dwordx4 v6, s[{r}:{r+3}], s{S_WDO} offen offset:1024 lds")
        if dyn: a(f"s_cselect_b32 s{S_RING}, s{S_RING}, 0")
    elif not STASH:
        a(f"s_add_u32 m0, m0, s{T2}")
        a("s_nop 0")
        a(f"buffer_load_dwordx4 v7, s[{SWO}:{SWO+3}], s{S_WDO} offen lds")
    a(f"s_add_u32 s{S_AO}, s{S_AO}, 8192")
    a(f"s_add_u32 s{S_WDO}, s{S_WDO}, 65536")

def gen_p3(a):
    configure(0)
    a(f"s_cmp_lg_u32 s{S_WM}, 0")
    a("s_cbranch_scc1 P3_L")
    if PR3 > 0: a(f"s_setprio {PR3}")
    a(f"s_lshr_b32 s{T0}, s{S_WN}, 1")
    a(f"s_lshl_b32 s{T0}, s{T0}, 12")
    a(f"v_lshlrev_b32 v22, 9, v{VQQ}")
    a(f"v_lshl_add_u32 v22, v{VT}, 4, v22")
    a(f"v_add_u32 v{BA}, s{T0}, v22")
    a(f"v_lshrrev_b32 v22, 2, v{VT}")
    a(f"v_lshl_add_u32 v22, v{VQQ}, 2, v22")
    a(f"s_lshl_b32 s{T0}, s{S_KH}, 2")
    a(f"s_lshl_b32 s{T1}, s{S_P}, 1")
    a(f"s_add_u32 s{T0}, s{T0}, s{T1}")
    a("v_and_b32 v23, 7, v22")
    a(f"v_xor_b32 v23, s{T0}, v23")
    a("v_lshlrev_b32 v23, 5, v23")
    a("v_lshl_add_u32 v23, v22, 8, v23")
    a(f"v_and_b32 v27, 3, v{VL}")
    a(f"v_lshl_add_u32 v{BW}, v27, 3, v23")
    for c in range(1, 4): a(f"v_xor_b32 v{BW+3*c}, {(c & 1) * 32 + (c >> 1) * 128}, v{BW}")
    for x in g_reads(0): a(x)
    for b in [BA] + [BW + 3 * c for c in range(4)]:
        a(f"v_add_u32 v{b+1}, 0x10000, v{b}")
        a(f"v_add_u32 v{b+2}, 0x20000, v{b}")
    a("v_bfe_u32 v23, v22, 1, 2")
    a(f"v_xor_b32 v23, s{T1}, v23")
    a("v_lshlrev_b32 v23, 5, v23")
    a("v_lshl_add_u32 v23, v22, 7, v23")
    a(f"v_lshl_add_u32 v{BWO}, v27, 3, v23")
    a(f"v_xor_b32 v{BWO+3}, 32, v{BWO}")
    for b in (BWO, BWO + 3):
        a(f"v_add_u32 v{b+1}, 0x10000, v{b}")
        a(f"v_add_u32 v{b+2}, 0x20000, v{b}")
    a(f"s_mov_b32 s{S_AO}, s{S_ISV}")
    srd(a, SKV, P_OUT, P_OUT + 1, 4 << 20)
    a(f"s_lshl_b32 s{T0}, s{S_WN}, 12")
    a(f"s_lshl_b32 s{S_RING}, s2, 14")
    a(f"s_add_u32 s{S_RING}, s{S_RING}, s{T0}")
    a(f"s_xor_b32 s{S_WDO}, s{S_RING}, {1 << 14}")
    for _ in range(int(os.environ.get("X_SH3", 0))): a("s_nop 0")
    def epoch(e, pre=None, x0=(), x1=()):
        a("s_barrier")
        nstamp(a, f"g{e}")
        if pre: pre()
        g_ustep(a, 2 * e, x0)
        g_ustep(a, 2 * e + 1, x1)
    ESPL = 20
    for e in range(ESPL):
        epoch(e)
        if e == 2: a("s_waitcnt vmcnt(0)")
    a(f"s_cmp_lg_u32 s{S_KH}, 0")
    a("s_cbranch_scc1 P3_G1")
    for kh in range(2):
        configure(kh)
        if kh: a.label("P3_G1")
        for e in range(ESPL, E0): epoch(e)
        stamp(a, 5)
        def pack(q):
            d = ga(2, 0) + 8 * q
            return [[f"v_cvt_pk_bf16_f32 v{d+i}, v{d+2*i}, v{d+2*i+1}" for i in range(4)]]
        def st(q): return [[f"buffer_store_dwordx4 {v(ga(2,0)+8*q,4)}, v{VKVD}, s[{SPART}:{SPART+3}], s{S_WDO} offen offset:{q*1024} sc1"]]
        def pl(q): return [[f"buffer_load_dwordx4 {v(PART+4*q,4)}, v{VKVD}, s[{SPART}:{SPART+3}], s{S_RING} offen offset:{q*1024} sc1"]]
        epoch(E0, x1=st(0) + pack(1) + pack(0)); epoch(E0 + 1, x0=st(1) + pack(2), x1=st(2) + pack(3)); epoch(E0 + 2, x0=st(3))
        for e in range(E0 + 3, EF): epoch(e)
        a("s_waitcnt vmcnt(0)")
        for e in range(EF, PE + 2): epoch(e)
        epoch(PE + 2, x0=pl(0) + pl(1), x1=pl(2) + pl(3))
        for e in range(PE + 3, NE3): epoch(e)
        stamp(a, 6)
        if not kh: a("s_branch P3_GE")
    a.label("P3_GE")
    a(f"s_mov_b32 s{T0}, 0xffff0000")
    a("s_waitcnt vmcnt(0)")
    a("s_nop 6")
    for j in range(4):
        d0, d1 = ga(0, j), ga(1, j)
        for d, r in ((d0, PART + 2 * j), (d1, PART + 8 + 2 * j)):
            for i in range(2):
                a(f"v_lshlrev_b32 v{40+2*i}, 16, v{r+i}")
                a(f"v_and_b32 v{41+2*i}, s{T0}, v{r+i}")
            for i in range(2): a(f"v_pk_add_f32 {v(d+2*i,2)}, {v(d+2*i,2)}, {v(40+2*i,2)}")
        xr = XR + 4 * j
        for k in range(4):
            a(f"v_lshlrev_b32 v{32+2*k}, 16, v{xr+k}")
            a(f"v_and_b32 v{33+2*k}, s{T0}, v{xr+k}")
        for i in range(4): a(f"v_permlane16_swap_b32 v{d0+i}, v{d1+i}")
        for k in range(4):
            d = (d0, d1)[k >> 1] + 2 * (k & 1)
            a(f"v_pk_add_f32 {v(d,2)}, {v(d,2)}, {v(32+2*k,2)}")
        for k in range(4):
            d = (d0, d1)[k >> 1] + 2 * (k & 1)
            a(f"v_cvt_pk_bf16_f32 v{xr+k}, v{d}, v{d+1}")
        a(f"buffer_store_dwordx4 {v(xr,4)}, v{VXA+j}, s[{SKV}:{SKV+3}], s{S_AO} offen")
    a("s_branch KM_FIN")
    a.label("P3_L")
    if PR3 < 0: a(f"s_setprio {-PR3}")
    a(f"s_lshl_b32 s{T3}, s{S_WN}, 11")
    a(f"v_add_u32 v4, s{T3}, v{VKVD}")
    a(f"s_lshl_b32 s{T0}, s{S_WN}, 14")
    a(f"s_lshl_b32 s{T1}, s{S_C2}, 8")
    a(f"s_add_u32 s{T0}, s{T0}, s{T1}")
    a(f"v_add_u32 v5, s{T0}, v3")
    a("v_xor_b32 v6, 128, v5")
    a(f"v_add_u32 v6, {8192-1024}, v6")
    a(f"v_lshrrev_b32 v22, 3, v{VL}")
    a("v_lshlrev_b32 v22, 11, v22")
    a(f"v_lshlrev_b32 v23, 1, v{VQQ}")
    a(f"v_and_b32 v25, 7, v{VL}")
    a("v_xor_b32 v23, v23, v25")
    a("v_lshl_add_u32 v22, v23, 4, v22")
    a(f"s_lshl_b32 s{T1}, s{S_KH}, 7")
    a(f"s_add_u32 s{T0}, s{T0}, s{T1}")
    a(f"v_add_u32 v7, s{T0}, v22")
    a(f"s_lshl_b32 s{T2}, s{S_WN}, 10")
    a(f"s_sub_u32 s{T2}, 8192, s{T2}")
    if STASH:
        a(f"s_lshl_b32 s{T0}, s{S_WN}, 10")
        a(f"v_add_u32 v12, s{T0}, v{VKVD}")
        a("v_add_u32 v13, 0x10000, v12")
        a("v_add_u32 v14, 0x20000, v12")
    def toO(split):
        a(f"s_mov_b32 s{S_WDO}, {(0, NA)[KHV] if split else NA + NB}")
        a(f"s_mul_i32 s{S_AO}, s{S_G}, {ACT_NU}")
        a(f"s_add_u32 s{S_AO}, s{S_AO}, 112")
        a(f"s_add_u32 s{S_AO}, s{S_AO}, s{S_WDO}")
        a(f"s_lshl_b32 s{S_AO}, s{S_AO}, 13")
        a(f"s_lshl_b32 s{S_WDO}, s{S_WDO}, 16")
    a(f"s_lshl_b32 s{S_KVO}, s2, 7")
    a(f"s_add_u32 s{S_KVO}, s{S_KVO}, {F_P}")
    a(f"s_xor_b32 s{S_MKV}, s{S_KVO}, {1 << 7}")
    def wave4(fn):
        _lab[0] += 1
        a(f"s_cmp_lg_u32 s{S_WAVE}, 4")
        a(f"s_cbranch_scc1 W4_{_lab[0]}")
        n = _lab[0]
        fn()
        a.label(f"W4_{n}")
    def pollO():
        a(f"s_lshr_b32 s{T0}, s{S_G}, 1")
        a(f"s_lshl_b32 s{T0}, s{T0}, 8")
        a(f"s_add_u32 s{T0}, s{T0}, {F_O}")
        poll_issue(a, T0, 32)
    def nonce_out():
        a(f"s_cmp_lg_u32 s2, 0")
        a(f"s_cbranch_scc1 P3_NN{KHV}")
        a(f"s_movk_i32 s{T0}, {F_NONCE}")
        flag_set(a, T0)
        a.label(f"P3_NN{KHV}")
    configure(0)
    vm = VM(); vm.add(3, 2)
    def lep(e, dyn, emit_code=True):
        b = a if emit_code else A()
        b("s_barrier")
        if emit_code:
            if e == 3: wave4(lambda: flag_set(a, S_XO))
            if e == 20: wave4(pollO)
            if e == EF: wave4(lambda: (flag_set(a, S_MKV), nonce_out()))
            if e == PE: wave4(lambda: poll_issue(a, S_KVO, 1))
        mark = len(vm.q)
        mine = sorted(u for u in WHEN if WHEN[u] == e)
        if STASH:
            for t in mine:
                if t >= NDOWN: b(f"ds_write_b128 v{12 + (ADDR[t] >> 16)}, {v(WRG + 4 * (t - NDOWN), 4)} offset:{(ADDR[t] & 0xffff) + 8192}")
        for t in mine:
            if t == NFF and NDOWN > NFF: toO(True)
            if t == NDOWN: toO(False)
            l_ustep(b, t, dyn); vm.add((t - 1) // 2, 4 if t < NDOWN else (2 if STASH else 3))
        b(f"s_waitcnt vmcnt({vm.wait(e + 1)})" + (" lgkmcnt(0)" if STASH else ""))
        lep.marks[e] = mark
        if emit_code and e in (22, PE + 1):
            src = 20 if e == 22 else PE
            wave4(lambda: (a(f"s_waitcnt vmcnt({len(vm.q) - lep.marks[src]})"), poll_check(a)))
    lep.marks = {}
    assert all(ADDR[t] == (t % NSLOT) * 16384 and WHEN[t] == (t - 8) // 2 for t in range(8, 50))
    for e in range(4): lep(e, True)
    a(f"s_mov_b32 s{S_CNT}, 16")
    a.label("P3_LA")
    lep(4, True)
    a(f"s_sub_u32 s{S_CNT}, s{S_CNT}, 1")
    a(f"s_cmp_lg_u32 s{S_CNT}, 0")
    a(f"s_cbranch_scc1 P3_LA")
    for e in range(5, 20): lep(e, True, False)
    q20 = list(vm.q)
    a(f"s_cmp_lg_u32 s{S_KH}, 0")
    a("s_cbranch_scc1 P3_L1")
    for kh in range(2):
        configure(kh)
        vm.q = list(q20)
        if kh: a.label("P3_L1")
        for e in range(20, NE3): lep(e, False)
        if not kh: a("s_branch P3_LE")
    a.label("P3_LE")
    stamp(a, 5); stamp(a, 6)
    a("s_branch KM_FIN")
```

```python
from asmlib import *
import struct, math, os
NAME = "parallel_sum__grouped_kv_mqa__glu_gated_reglu__prompt_kernel"
QSCALE = struct.unpack("<I", struct.pack("<f", math.log2(math.e) / math.sqrt(32.0)))[0]
STOP = os.environ.get("STOP", "")
KVL = 131072
QLDS = 0
TLDS = 0
KVS = 22
F_KV, F_H, F_O, F_NONCE, F_P = 0, 12288, 16384, 24576, 32768
WS_ST = WS_XN
WLDS = 98304
KXL = 16384
STL = 32768
CSL = 16384
NS = int(os.environ.get('X_NS', 10))
SPIN_MAX = 1 << 21
P1MODE = int(os.environ.get('X_P1MODE', 1))
P1SHIFT = int(os.environ.get('X_P1SHIFT', 6))
P1PRIO = int(os.environ.get('X_P1PRIO', 0))
UNROLL = int(os.environ.get('X_UNROLL', 0))
NPRE = int(os.environ.get('X_NPRE', 1))
TLBW = int(os.environ.get('X_TLBW', 0))
TLBS = int(os.environ.get('X_TLBS', 21))
TLBP = 4
EARLY = int(os.environ.get('X_EARLY', 4))
NPRO = int(os.environ.get('X_NPRO', 4))
TE = int(os.environ.get('X_TE', 1))
TLATE = int(os.environ.get('X_TLATE', 1))
CODEPF = int(os.environ.get('X_CODEPF', 1))
PR1 = int(os.environ.get('X_PR1', 0))
PR2 = int(os.environ.get('X_PR2', 0))
PR3 = int(os.environ.get('X_PR3', 0))
NE = int(os.environ.get('X_NE', 4))
HSTEP = int(os.environ.get('X_HSTEP', 2))
WPF = int(os.environ.get('X_WPF', 0))
WST = int(os.environ.get('X_WST', 0))
WOFF = int(os.environ.get('X_WOFF', 0))
FART = int(os.environ.get('X_FART', 1))
HL = int(os.environ.get('X_HL', 1))
XL = int(os.environ.get('X_XL', 3))
P1TOUCH = int(os.environ.get('X_P1T', 1))

S_WAVE = 3
S_TW, S_TA = 4, 5
P_WS = 6
NONCE = 8
QMASK = 10
SX = 12
SWD = 16
S_XO, S_AO, S_WDO, S_MX, S_MW, S_CNT = 20, 21, 22, 23, 24, 25
S_HO = 24
S_CT, S_RP, S_WM, S_P, S_BB, S_WN = 26, 27, 28, 29, 30, 31
T0, T1, T2, T3 = 32, 33, 34, 35
SACT, SKV = 36, 40
P_X, P_OUT, P_WO, S_ISV, S_PB = 44, 46, 48, 50, 51
S_G, S_C2, S_KH, S_KVO, S_MKV, S_RING = 52, 53, 54, 55, 56, 57
SFLAG = 58
SWO, SPART = 92, 96
VL, VXD, VWA, VWB, VWS, VXR, VWR, VWP, VQQ, VT = 1, 2, 4, 6, 8, 10, 12, 14, 16, 17
ONES, CS = 20, 24
VKVR, VKVD, VPA, VPW = 18, 19, 20, 21
HS, VHO, VWOD = 160, 4, 7
VXA, XR = 8, 224
VTCH, VDUM = 31, 30
VPL, VPD = 27, 28
ACC, XF, WF = 128, 64, 32
def acc(st, t, j): return ACC + ((st * 2 + t) * 8 + j) * 4
def xf(p, j): return XF + (p * 8 + j) * 4
def wf(p, st, t): return WF + (p * 4 + st * 2 + t) * 4
def emit(a, groups):
    for g in groups:
        for x in g: a(x)

def flag_set(a, off_sgpr):
    a(f"v_mov_b32 v22, s{off_sgpr}")
    a(f"v_mov_b32 v24, s{NONCE}")
    a(f"v_mov_b32 v25, s{NONCE+1}")
    a("s_mov_b64 exec, 1")
    a(f"global_store_dwordx2 v22, v[24:25], s[{SFLAG}:{SFLAG+1}] sc1")
    a("s_mov_b64 exec, -1")
def poll_load(): return f"global_load_dwordx2 {v(VPD,2)}, v{VPL}, s[{SFLAG}:{SFLAG+1}] sc1"
def poll_issue(a, off_sgpr, n):
    a(f"v_and_b32 v{VPL}, {n-1}, v{VL}")
    a(f"v_lshlrev_b32 v{VPL}, 3, v{VPL}")
    a(f"v_add_u32 v{VPL}, s{off_sgpr}, v{VPL}")
    a(poll_load())
_lab = [0]
def spin(a, cmps, loads, sleep=1):
    _lab[0] += 1
    n = _lab[0]
    a(f"s_mov_b32 s{T1}, {SPIN_MAX}")
    a.label(f"PL{n}")
    for x in cmps: a(x)
    a("s_cmp_eq_u64 vcc, -1")
    a(f"s_cbranch_scc1 PD{n}")
    a(f"s_sub_u32 s{T1}, s{T1}, 1")
    a(f"s_cbranch_scc1 PD{n}")
    a(f"s_sleep {sleep}")
    for x in loads: a(x)
    a("s_waitcnt vmcnt(0)")
    a(f"s_branch PL{n}")
    a.label(f"PD{n}")
def poll_check(a):
    spin(a, [f"v_cmp_eq_u64 vcc, s[{NONCE}:{NONCE+1}], {v(VPD,2)}"], [poll_load()])
def wave0(a, fn):
    _lab[0] += 1
    n = _lab[0]
    a(f"s_cmp_lg_u32 s{S_WAVE}, 0")
    a(f"s_cbranch_scc1 W0_{n}")
    fn()
    a.label(f"W0_{n}")

def p1_dma_x(h, tau):
    if os.environ.get("X_ROT"):
        return [[f"s_add_u32 s{S_XO}, s{S_ROT}, {tau*128}", f"s_and_b32 s{S_XO}, s{S_XO}, 2047", f"s_add_u32 m0, s{S_MX}, {(h*3 + tau%3)*16384}",
             f"s_or_b32 s{S_XO}, s{S_XO}, {h*128*2048}" if h else "s_nop 0",
             f"buffer_load_dwordx4 v{VXD}, s[{SX}:{SX+3}], s{S_XO} offen lds"],
            [f"buffer_load_dwordx4 v{VXD+1}, s[{SX}:{SX+3}], s{S_XO} offen offset:1024 lds"]]
    return [[f"s_add_u32 m0, s{S_MX}, {(h*3 + tau%3)*16384}", f"s_mov_b32 s{S_XO}, {h*128*2048 + tau*128}",
             f"buffer_load_dwordx4 v{VXD}, s[{SX}:{SX+3}], s{S_XO} offen lds"],
            [f"buffer_load_dwordx4 v{VXD+1}, s[{SX}:{SX+3}], s{S_XO} offen offset:1024 lds"]]
def p1_dma_w(k):
    slot = k % 4
    return [[f"s_add_u32 m0, s{S_MW}, {slot*16384}", "s_nop 0", f"global_load_lds_dwordx4 {v(VWA,2)}, off",
             f"s_add_u32 m0, s{S_MW}, {slot*16384+2048}",
             f"v_lshl_add_u64 {v(VWA,2)}, {v(VWS,2)}, 0, {v(VWA,2)}"],
            [f"global_load_lds_dwordx4 {v(VWB,2)}, off",
             f"v_lshl_add_u64 {v(VWB,2)}, {v(VWS,2)}, 0, {v(VWB,2)}"]]
def p1_reads(k):
    p = k & 1
    r = []
    for st in range(2):
        for t in range(2):
            for half in range(2):
                r.append(f"ds_read_b64_tr_b16 {v(wf(p,st,t)+2*half,2)}, v{VWR+t} offset:{(k%4)*16384 + st*8192 + half*4096}")
    for j in range(8):
        r.append(f"ds_read_b128 {v(xf(p,j),4)}, v{VXR+(k&1)} offset:{((k>>1)%3)*16384 + j*2048}")
    return r
def p1_mfma(p, first=False):
    m = []
    for j in range(8):
        order = [(0,0),(0,1),(1,0),(1,1)]
        if j & 1: order = order[::-1]
        for st, t in order:
            d = acc(st, t, j)
            m.append(f"v_mfma_f32_16x16x32_bf16 {v(d,4)}, {v(wf(p,st,t),4)}, {v(xf(p,j),4)}, {0 if first else v(d,4)}")
    return m
def cs_mfma(p, st, grp): return f"v_mfma_f32_16x16x32_bf16 {v(CS+4*st,4)}, {v(wf(p,st,grp),4)}, {v(ONES,4)}, {v(CS+4*st,4)}"
CSV = int(os.environ.get("X_CSV", 0))
def cs_valu(p, grp):
    o = []
    for st in range(2):
        for r in range(4):
            src = wf(p, st, grp) + r; t = 20 + 2 * (r & 1)
            o += [f"v_lshlrev_b32 v{t}, 16, v{src}", f"v_and_b32 v{t+1}, 0xffff0000, v{src}",
                  f"v_add_f32 v{CS+2*st}, v{CS+2*st}, v{t}", f"v_add_f32 v{CS+2*st+1}, v{CS+2*st+1}, v{t+1}"]
    return o
def add_cs(m, fill, p, grp):
    if not CSV:
        return m[:10] + [cs_mfma(p, 0, grp)] + m[10:20] + [cs_mfma(p, 1, grp)] + m[20:], fill
    fill = [list(f) for f in fill]
    while len(fill) < 32: fill.append([])
    order = sorted(range(32), key=lambda i: (len(fill[i]) > 0, i))
    vv = cs_valu(p, grp)
    slots = sorted([i for i in range(32) if not fill[i]] * 2 + [i for i in range(32) if fill[i]])
    empt = [i for i in range(32) if not fill[i]]
    rest = [i for i in range(32) if fill[i]]
    need = 32 - 2 * len(empt)
    pick = sorted(empt * 2 + rest[-need:] if need > 0 else (empt * 2)[:32])
    for i, x in zip(pick, vv): fill[i].append(x)
    return m, fill
def weave(a, m, fill):
    for i, ins in enumerate(m):
        a(ins)
        if i < len(fill):
            for x in fill[i]: a(x)
    emit(a, fill[len(m):])
class VM:
    def __init__(self): self.q = []
    def add(self, need, n=1): self.q += [need] * n
    def wait(self, b):
        last = max([i for i, x in enumerate(self.q) if x <= b], default=-1)
        return len(self.q) - 1 - last
S_XM, S_XT, S_WM0, S_DX, S_DW = S_TW, S_TA, S_RING, S_ISV, S_PB
def gen_p1(a, grp, vm0):
    vm = VM(); vm.q = list(vm0.q)
    LO, HI = NS - 3, 26
    LO += LO & 1
    if not os.environ.get('X_LOOP'): LO = HI = 99
    G = "AB"[grp]
    for _ in range(int(os.environ.get("X_SH1", 0))): a("s_nop 0")
    def dyn_entry(k):
        tau = k // 2 + 2
        a(f"s_add_u32 s{S_XM}, s{S_MX}, {(tau % 3) * 16384}")
        a(f"s_movk_i32 s{S_XT}, {tau * 128}")
        a(f"s_movk_i32 s{S_WM0}, {k % 4}")
        a(f"s_movk_i32 s{S_DX}, {(k // 2) % 3}")
        for i in range(2):
            a(f"v_add_u32 v{VXR+i}, {((k // 2) % 3) * 16384}, v{VXR+i}")
            a(f"v_add_u32 v{VWR+i}, {((k + 1) % 4) * 16384}, v{VWR+i}")
    def dyn_exit(k):
        for i in range(2):
            a(f"v_subrev_u32 v{VXR+i}, {((k // 2) % 3) * 16384}, v{VXR+i}")
            a(f"v_subrev_u32 v{VWR+i}, {((k + 1) % 4) * 16384}, v{VWR+i}")
    def dyn_step(p):
        fill = []
        if p == 0:
            fill.append([f"s_add_u32 m0, s{S_XM}, 49152", f"s_or_b32 s{S_XO}, s{S_XT}, {128*2048}",
                         f"buffer_load_dwordx4 v{VXD}, s[{SX}:{SX+3}], s{S_XO} offen lds"])
            fill.append([f"buffer_load_dwordx4 v{VXD+1}, s[{SX}:{SX+3}], s{S_XO} offen offset:1024 lds",
                         f"s_add_u32 s{S_XT}, s{S_XT}, 128", f"s_cmp_eq_u32 s{S_DX}, 0", f"s_movk_i32 s{T0}, 16384",
                         f"s_cselect_b32 s{T0}, {-32768 & 0xffffffff}, s{T0}", f"s_add_u32 s{S_XM}, s{S_XM}, s{T0}"])
        else:
            fill.append([f"s_mov_b32 m0, s{S_XM}", "s_nop 0", f"buffer_load_dwordx4 v{VXD}, s[{SX}:{SX+3}], s{S_XT} offen lds"])
            fill.append([f"buffer_load_dwordx4 v{VXD+1}, s[{SX}:{SX+3}], s{S_XT} offen offset:1024 lds"])
        fill.append([f"s_lshl_b32 s{T1}, s{S_WM0}, 14", f"s_add_u32 m0, s{S_MW}, s{T1}", f"s_add_u32 s{S_WM0}, s{S_WM0}, 1",
                     f"global_load_lds_dwordx4 {v(VWA,2)}, off", "s_add_u32 m0, m0, 2048",
                     f"v_lshl_add_u64 {v(VWA,2)}, {v(VWS,2)}, 0, {v(VWA,2)}"])
        fill.append([f"global_load_lds_dwordx4 {v(VWB,2)}, off", f"s_and_b32 s{S_WM0}, s{S_WM0}, 3",
                     f"v_lshl_add_u64 {v(VWB,2)}, {v(VWS,2)}, 0, {v(VWB,2)}"])
        q = p ^ 1
        rd = [[f"ds_read_b64_tr_b16 {v(wf(q,st,t)+2*half,2)}, v{VWR+t} offset:{st*8192 + half*4096}"] for st in range(2) for t in range(2) for half in range(2)]
        rd[-1] += [f"s_cmp_eq_u32 s{S_WM0}, 3", f"s_movk_i32 s{T0}, 16384", f"s_cselect_b32 s{T0}, {-49152 & 0xffffffff}, s{T0}",
                   f"v_add_u32 v{VWR}, s{T0}, v{VWR}", f"v_add_u32 v{VWR+1}, s{T0}, v{VWR+1}"]
        rd += [[f"ds_read_b128 {v(xf(q,j),4)}, v{VXR+q} offset:{j*2048}"] for j in range(8)]
        if p == 0:
            rd[-1] += [f"s_cmp_eq_u32 s{S_DX}, 2", f"s_movk_i32 s{T0}, 16384", f"s_cselect_b32 s{T0}, {-32768 & 0xffffffff}, s{T0}",
                       f"s_cselect_b32 s{S_DX}, -1, s{S_DX}", f"v_add_u32 v{VXR}, s{T0}, v{VXR}", f"v_add_u32 v{VXR+1}, s{T0}, v{VXR+1}",
                       f"s_add_u32 s{S_DX}, s{S_DX}, 1"]
        fill += rd
        if grp: fill = [[] for _ in range(P1SHIFT)] + fill
        m, fill = add_cs(p1_mfma(p), fill, p, grp)
        weave(a, m, fill)
        a("s_waitcnt vmcnt(8) lgkmcnt(0)")
        if p == 1:
            a(f"s_sub_u32 s{S_DW}, s{S_DW}, 1")
            a(f"s_cmp_lg_u32 s{S_DW}, 0")
        a("s_barrier")
    for s_ in range(32):
        p = s_ & 1
        h = (s_ + 1) & 1; tau = (s_ - 1 - h) // 2 + 3
        if LO <= s_ < HI:
            vm.add(2 * tau - 1, 2); vm.add(s_ + 3, 2)
            assert vm.wait(s_ + 1) == 8
            if s_ == LO:
                dyn_entry(LO)
                a(f"s_movk_i32 s{S_DW}, {(HI - LO) // 2}")
                a.raw(".p2align 6")
                a.label("P1_L" + G)
                dyn_step(0); dyn_step(1)
                a("s_cbranch_scc1 P1_L" + G)
                dyn_exit(HI)
            continue
        nstamp(a, f"s{s_}")
        fill = []
        def pl_(base): return ["v_mbcnt_lo_u32_b32 v16, -1, 0", "v_mbcnt_hi_u32_b32 v16, -1, v16", "v_lshlrev_b32 v16, 4, v16", f"global_load_dwordx4 v[16:19], v16, s[{SFLAG}:{SFLAG+1}] offset:{base} sc1"]
        if s_ in (NS - 6, KVS):
            mark = len(vm.q)
            if not grp:
                fill.append([f"s_cmp_lg_u32 s{S_WAVE}, 0", f"s_cbranch_scc1 P1_NP{s_}"] + pl_(1024 if s_ != KVS else 0) + [f"P1_NP{s_}:"])
        if s_ == 2:
            if not grp:
                fill.append([f"s_cmp_lg_u32 s{S_WAVE}, 0", "s_cbranch_scc1 P1_NF", f"v_mov_b32 v16, s{NONCE}", f"v_mov_b32 v17, s{NONCE+1}", f"v_mov_b32 v18, s{S_CNT}",
                             "s_mov_b64 exec, 1", f"global_store_dwordx2 v18, v[16:17], s[{SFLAG}:{SFLAG+1}] sc1", "s_mov_b64 exec, -1", "P1_NF:"])
        if s_ == 0:
            for i, g in enumerate(p1_dma_x(0, 1) + p1_dma_x(1, 1) + p1_dma_w(2)):
                fill.append([f"s_cmp_lg_u32 s{S_KH}, 0", f"s_cbranch_scc1 P1_S{G}{i}"] + g + [f"P1_S{G}{i}:"])
            fill += p1_dma_w(3); vm.add(2, 2)
            fill += p1_dma_x(0, 2); vm.add(3, 2)
        if s_ + 4 == NS:
            fill.append([f"s_mov_b64 exec, s[{QMASK}:{QMASK+1}]", f"v_mov_b32 v{VWA}, v{VWP}", f"v_mov_b32 v{VWA+1}, v{VWP+1}",
                         f"v_mov_b32 v{VWS}, 512", f"v_lshl_add_u64 {v(VWB,2)}, {v(VWS,2)}, 0, {v(VWA,2)}", f"v_mov_b32 v{VWS}, 2048", "s_mov_b64 exec, -1"])
        if tau < 16:
            fill += p1_dma_x(h, tau); vm.add(2 * tau - 1, 2)
        if s_ + 4 < 32:
            fill += p1_dma_w(s_ + 4); vm.add(s_ + 3, 2)
        if WST and s_ % WST == WOFF and WPF + s_ // WST * (WST // 4) < 8:
            for _ in range(WST // 4):
                fill.append([f"s_add_u32 s{S_TW}, s{S_TW}, {128*7168}", f"s_addc_u32 s{S_TA}, s{S_TA}, 0", "s_mov_b64 exec, 0x7f",
                             f"global_load_dword v{VL}, v0, s[{S_TW}:{S_TA}]", "s_mov_b64 exec, -1"])
                vm.add(min(s_ + 4, 27), 1)
        if s_ == 27:
            fill.append([f"v_mbcnt_lo_u32_b32 v{VL}, -1, 0", f"v_mbcnt_hi_u32_b32 v{VL}, -1, v{VL}"])
            fill.append([f"v_lshlrev_b32 v{VKVD}, 4, v{VL}", f"s_lshr_b32 s{T0}, s2, 3", f"s_lshl_b32 s{T0}, s{T0}, 13", f"s_lshr_b32 s{T1}, s{S_MX}, 1", f"s_add_u32 s{T0}, s{T0}, s{T1}",
                         f"s_add_u32 s{T0}, s{T0}, 8192", f"buffer_load_dword v16, v{VKVD}, s[{SKV}:{SKV+3}], s{T0} offen"])
            vm.add(30, 1)
        if s_ == 29:
            fill.append([f"s_lshr_b32 s{T0}, s{S_MX}, 1", f"s_add_u32 m0, s{T0}, {STL}", "s_nop 0",
                         f"buffer_load_dwordx4 v{VKVD}, s[{SPART}:{SPART+3}], s{S_AO} offen lds"])
            vm.add(31, 1)
        if s_ == 30:
            fill.append([f"s_xor_b32 m0, s{S_MKV}, 0x4000", f"s_add_u32 s{T0}, s{S_KVO}, 8192",
                         f"buffer_load_dwordx4 v{VKVD}, s[{SKV}:{SKV+3}], s{T0} offen lds"])
            fill.append([f"buffer_load_dwordx4 v{VKVD}, s[{SKV}:{SKV+3}], s{T0} offen offset:1024 lds"])
            vm.add(99, 2)
        m = p1_mfma(p, s_ == 0)
        if s_ == 30:
            fill.append([f"v_lshlrev_b32 v{VKVD}, 4, v{VL}", f"v_lshrrev_b32 v{VQQ}, 4, v{VL}", f"v_and_b32 v{VT}, 15, v{VL}",
                         f"v_add_u32 v{VKVR}, {KVL}, v{VKVD}"])
            fill.append([f"v_lshlrev_b32 v0, 3, v{VT}", f"s_lshr_b32 s{T0}, s{S_MX}, 1", f"v_add_u32 v0, s{T0}, v0", f"v_add_u32 v{VWP}, s{S_MX}, v{VKVD}",
                         f"s_lshl_b32 s{T0}, s{S_WN}, 11", f"v_add_u32 v{VWP+1}, s{T0}, v{VKVD}"])
            if CSV:
                fill.append([f"s_lshl_b32 s{T0}, s{S_WAVE}, 7", f"v_lshlrev_b32 v28, 2, v{VT}", f"v_add_u32 v28, s{T0}, v28",
                             f"s_lshl_b32 s{T0}, s{S_WN}, 7", f"v_lshlrev_b32 v{VWP+1}, 4, v{VQQ}", f"v_add_u32 v{VWP+1}, s{T0}, v{VWP+1}"])
        if s_ < 31:
            fill += [[x] for x in p1_reads(s_ + 1)]
            if grp: fill = [[] for _ in range(P1SHIFT if len(fill) <= 26 else 0)] + fill
            m, fill = add_cs(m, fill, p, grp)
        elif CSV:
            vv = cs_valu(p, grp)
            fill = [vv[2*i:2*i+2] for i in range(16)]
            fill += [[f"v_add_f32 v{CS}, v{CS}, v{CS+1}", f"v_add_f32 v{CS+2}, v{CS+2}, v{CS+3}"]]
            for sw in ("v_permlane16_swap_b32", "v_permlane32_swap_b32"):
                fill += [[f"v_mov_b32 v{CS+1}, v{CS}", f"v_mov_b32 v{CS+3}, v{CS+2}"], ["s_nop 0", f"{sw} v{CS}, v{CS+1}", f"{sw} v{CS+2}, v{CS+3}"],
                         [f"v_add_f32 v{CS}, v{CS}, v{CS+1}", f"v_add_f32 v{CS+2}, v{CS+2}, v{CS+3}"]]
            fill += [[f"ds_write_b32 v28, v{CS} offset:{CSL}", f"ds_write_b32 v28, v{CS+2} offset:{CSL+64}"]]
            ex = [[f"s_mov_b32 m0, s{S_MKV}", "s_nop 0", f"buffer_load_dwordx4 v{VKVD}, s[{SKV}:{SKV+3}], s{S_KVO} offen lds"],
                  [f"buffer_load_dwordx4 v{VKVD}, s[{SKV}:{SKV+3}], s{S_KVO} offen offset:1024 lds", f"s_add_u32 s{S_KVO}, s{S_KVO}, 16384"]]
            ex += [[f"ds_read_b64 {v(XF+2*j,2)}, v0 offset:{STL + j*128}"] for j in range(8)]
            for i, e in enumerate(ex): fill[i] = fill[i] + list(e)
        else:
            m = [cs_mfma(p, 0, grp), cs_mfma(p, 1, grp)] + m
            fill = [[f"s_mov_b32 m0, s{S_MKV}", "s_nop 0", f"buffer_load_dwordx4 v{VKVD}, s[{SKV}:{SKV+3}], s{S_KVO} offen lds"],
                    [f"buffer_load_dwordx4 v{VKVD}, s[{SKV}:{SKV+3}], s{S_KVO} offen offset:1024 lds", f"s_add_u32 s{S_KVO}, s{S_KVO}, 16384"]]
            fill += [[f"ds_read_b64 {v(XF+2*j,2)}, v0 offset:{STL + j*128}"] for j in range(8)] + [[], []]
            fill += [[f"ds_write_b128 v{VWP}, {v(CS+4*st,4)} offset:{CSL + st*1024}"] for st in range(2)]
        weave(a, m, fill)
        if s_ < 31:
            a(f"s_waitcnt vmcnt({vm.wait(s_ + 1)}) lgkmcnt(0)")
        else:
            a("s_waitcnt lgkmcnt(0)")
        if s_ in (NS - 5, KVS + 1) and not grp:
            n = f"s[{NONCE}:{NONCE+1}]"
            a(f"s_cmp_lg_u32 s{S_WAVE}, 0")
            a(f"s_cbranch_scc1 P1_NC{s_}")
            a(f"s_waitcnt vmcnt({len(vm.q) - mark})")
            spin(a, [f"v_cmp_eq_u64 vcc, {n}, v[16:17]", f"v_cmp_eq_u64 s[{T2}:{T3}], {n}, v[18:19]", f"s_and_b64 vcc, vcc, s[{T2}:{T3}]"],
                 pl_(1024 if s_ != KVS + 1 else 0), sleep=8)
            a.label(f"P1_NC{s_}")
        a("s_barrier")
def kv_dma():
    return [[f"s_mov_b32 m0, s{S_MKV}", f"s_xor_b32 s{S_MKV}, s{S_MKV}, 0x4000",
             f"buffer_load_dwordx4 v{VKVD}, s[{SKV}:{SKV+3}], s{S_KVO} offen lds"],
            [f"buffer_load_dwordx4 v{VKVD}, s[{SKV}:{SKV+3}], s{S_KVO} offen offset:1024 lds",
             f"s_add_u32 s{S_KVO}, s{S_KVO}, 8192"]]

QF, KB, VB, PB, SEL, RS, SB, OA, NM = 32, 40, 56, 72, 88, 92, 96, 128, 144
def mf32(d, x, y, c): return f"v_mfma_f32_32x32x16_bf16 {v(d,16)}, {v(x,4)}, {v(y,4)}, {c}"
def mfrs(p): return f"v_mfma_f32_16x16x32_bf16 {v(RS,4)}, {v(SEL,4)}, {v(p,4)}, {v(RS,4)}"
LAG = int(os.environ.get('X_LAG', 1))
CUTS = eval(os.environ.get('X_CUTS', '[0, 4, 9, 13, 16, 21]'))
def att_slot(a, n, qk=True, pv=True, rd=True, pre=()):
    b = n & 1
    S = SB + 16 * b; S1 = SB + 16 * (b ^ 1)
    P = PB + 8 * b; P1 = PB + 8 * (b ^ 1)
    K1 = KB + 8 * (b ^ 1); V1 = VB + 8 * (b ^ 1)
    m = []
    if qk:
        m.append(mf32(S1, K1, QF, v(NM, 16)))
        m.append(mf32(S1, K1 + 4, QF + 4, v(S1, 16)))
    if pv:
        m += [mf32(OA, V1, P1, v(OA, 16)), mfrs(P1), mf32(OA, V1 + 4, P1 + 4, v(OA, 16)), mfrs(P1 + 4)]
    val = []
    for i in range(16):
        val.append(f"v_exp_f32 v{S+i}, v{S+i}")
        k = i - LAG
        if k >= 1 and k % 2 == 1:
            val.append(f"v_cvt_pk_bf16_f32 v{P+k//2}, v{S+k-1}, v{S+k}")
    if LAG == 1: val.append("s_nop 0")
    for k in range(16 - LAG, 16):
        if k % 2 == 1: val.append(f"v_cvt_pk_bf16_f32 v{P+k//2}, v{S+k-1}, v{S+k}")
    rds = []
    if rd:
        pos = (n & 3) * 2048
        rds = [f"ds_read_b128 {v(KB+8*b,4)}, v{VKVR} offset:{pos}",
               f"ds_read_b128 {v(KB+8*b+4,4)}, v{VKVR} offset:{pos+1024}",
               f"ds_read_b128 {v(VB+8*b,4)}, v{VKVR} offset:{8192+pos}",
               f"ds_read_b128 {v(VB+8*b+4,4)}, v{VKVR} offset:{8192+pos+1024}"]
    other = [list(g) for g in pre] + [[x] for x in rds]
    cuts = CUTS[:len(m)]
    k = 0; oi = 0
    for i, x in enumerate(val):
        if k < len(m) and i == cuts[k]:
            a(m[k]); k += 1
            if oi < len(other):
                emit(a, [other[oi]]); oi += 1
        a(x)
        if i in (2, 6, 11) and oi < len(other) and len(other) > len(m):
            emit(a, [other[oi]]); oi += 1
    emit(a, other[oi:])
def prefill_dma():
    return [[f"s_add_u32 m0, s{S_RING}, s{T3}", "s_nop 0",
             f"buffer_load_dwordx4 v{VPA}, s[{SACT}:{SACT+3}], s{S_AO} offen lds",
             f"s_add_u32 s{S_AO}, s{S_AO}, 8192"],
            [f"s_add_u32 m0, m0, 8192", f"s_add_u32 s{S_RING}, s{S_RING}, 16384",
             f"buffer_load_dwordx4 v{VPW}, s[{SWD}:{SWD+3}], s{S_WDO} offen lds",
             f"s_add_u32 s{S_WDO}, s{S_WDO}, 65536"]]
def touch_w(n0):
    return [[f"s_add_u32 s{T0}, s{S_WAVE}, {n0}", f"s_lshl_b32 s{T0}, s{T0}, 17", f"s_add_u32 s{T0}, s{T0}, s{S_TW}",
             f"buffer_load_dword v{VDUM}, v{VTCH}, s[{SWD}:{SWD+3}], s{T0} offen"]]
def touch_a(m0):
    return [[f"s_add_u32 s{T0}, s{S_WAVE}, {m0}", f"s_lshl_b32 s{T0}, s{T0}, 15", f"s_add_u32 s{T0}, s{T0}, s{S_TA}",
             f"buffer_load_dword v{VDUM}, v{VTCH}, s[{SACT}:{SACT+3}], s{T0} offen"]]
def touch_wo():
    return [[f"s_lshl_b32 s{T0}, s2, 13", f"s_add_u32 s{T0}, s{T0}, s{T3}",
             f"buffer_load_dword v{VDUM}, v{VKVD}, s[{SWO}:{SWO+3}], s{T0} offen"]]
STASH = int(os.environ.get("X_STASH", 0)); WRG = 160; STH0 = 12
def wo_stash(i0, n):
    if not STASH: return []
    g = [f"s_cmp_eq_u32 s{S_WM}, 0", f"s_cbranch_scc1 WS{i0}"]
    for i in range(i0, i0 + n):
        g += [f"s_mov_b32 s{T0}, {(STH0 + i)*65536}", f"buffer_load_dwordx4 {v(WRG+4*i,4)}, v12, s[{SWO}:{SWO+3}], s{T0} offen"]
    return [g + [f"WS{i0}:"]]
def h_store(j):
    off = (j >> 1) * 2048 + (j & 1) * 256
    tail = f"v{VHO + (off>>12)}, s[{SACT}:{SACT+3}], s{S_HO} offen offset:{off & 4095} sc1"
    return [[f"s_cmp_eq_u32 s{S_WN}, 3", f"s_cbranch_scc1 HS{j}A", f"buffer_store_dwordx4 {v(HS+4*j,4)}, {tail}",
             f"s_branch HS{j}B", f"HS{j}A:", f"buffer_store_dwordx2 {v(HS+4*j,2)}, {tail}", f"HS{j}B:"]]
def att_epoch(a, E, first=False, last=False, prefill=0, wait=0, post=None, pre_bar=None, x1=(), x2=(), x3=()):
    nstamp(a, f"e{E}a")
    a(f"s_waitcnt vmcnt({wait}) lgkmcnt(0)")
    if pre_bar: pre_bar()
    a("s_barrier")
    nstamp(a, f"e{E}c")
    if not first: a(f"v_xor_b32 v{VKVR}, 0x4000, v{VKVR}")
    if post: post()
    for i in range(4):
        pre = []
        if i == 0 and not last: pre += kv_dma()
        if i in (1, 2)[:prefill]: pre += prefill_dma()
        if i == 1: pre += list(x1)
        if i == 2: pre += list(x2)
        if i == 3: pre += list(x3)
        if i: a("s_waitcnt lgkmcnt(0)")
        att_slot(a, 4 * E + i, qk=not (last and i == 3), pv=not (first and i == 0), pre=pre)

def wave_sum(a, r, t):
    for mod in ("quad_perm:[1,0,3,2]", "quad_perm:[2,3,0,1]", "row_half_mirror", "row_mirror"):
        a("s_nop 1")
        a(f"v_add_f32_dpp v{r}, v{r}, v{r} {mod} row_mask:0xf bank_mask:0xf")
    for sw in ("v_permlane16_swap_b32", "v_permlane32_swap_b32"):
        a(f"v_mov_b32 v{t}, v{r}")
        a("s_nop 1")
        a(f"{sw} v{r}, v{t}")
        a(f"v_add_f32 v{r}, v{r}, v{t}")

def gen_p0(a, vm):
    VTR, VTW, VFR, VTA, VTB, VTX, VQS, VEX, VKS, VQD = 0, 20, 30, 22, 24, 26, 27, 28, 29, 30
    A0, A1, A2, A3, A4, A5, A6, A7, TID = 100, 101, 102, 103, 104, 105, 106, 107, 31
    a(f"s_load_dwordx2 s[{P_X}:{P_X+1}], s[0:1], {K_X}")
    a(f"s_load_dwordx8 s[92:99], s[0:1], {K_WQ}")
    a(f"s_load_dwordx2 s[{P_WS}:{P_WS+1}], s[0:1], {K_WS}")
    a(f"s_load_dwordx8 s[36:43], s[0:1], {K_WG}")
    a(f"v_lshrrev_b32 v{A0}, 6, v0")
    a(f"v_and_b32 v{VL}, 63, v0")
    a(f"v_lshrrev_b32 v{A1}, 3, v0")
    a(f"v_readfirstlane_b32 s{S_WAVE}, v{A0}")
    a(f"v_lshlrev_b32 v{VKVD}, 4, v{VL}")
    a(f"s_lshr_b32 s{S_PB}, s2, 1")
    a(f"s_and_b32 s{S_KH}, s2, 1")
    a(f"s_lshl_b32 s{T0}, s{S_PB}, 4")
    a(f"s_add_u32 s{S_AO}, s{T0}, s{S_WAVE}")
    a(f"s_lshl_b32 s{T0}, s{S_AO}, 11")
    a(f"s_add_u32 s{T1}, s{T0}, {8*2048}")
    a(f"s_cmp_lg_u32 s{S_KH}, 0")
    a("s_waitcnt lgkmcnt(0)")
    if STOP == "p0": a("s_branch KM_FIN")
    srd(a, SX, P_X, P_X + 1, 4 << 20)
    a("s_cbranch_scc1 P0_NOX")
    a(f"buffer_load_dwordx4 v[32:35], v{VKVD}, s[{SX}:{SX+3}], s{T0} offen")
    a(f"buffer_load_dwordx4 v[36:39], v{VKVD}, s[{SX}:{SX+3}], s{T0} offen offset:1024")
    a(f"buffer_load_dwordx4 v[40:43], v{VKVD}, s[{SX}:{SX+3}], s{T1} offen")
    a(f"buffer_load_dwordx4 v[44:47], v{VKVD}, s[{SX}:{SX+3}], s{T1} offen offset:1024")
    a.label("P0_NOX")
    a(f"s_getpc_b64 s[{T2}:{T3}]")
    a.label("PF_BASE")
    a(f"s_lshr_b32 s{T0}, s2, 3")
    a(f"s_lshl_b32 s{T0}, s{T0}, 12")
    a(f"v_lshlrev_b32 v{A1}, 6, v{A1}")
    a(f"v_add_u32 v{A1}, s{T0}, v{A1}")
    a(f"v_min_u32 v{A1}, KM_END - PF_BASE, v{A1}")
    a(f"global_load_dword v18, v{A1}, s[{T2}:{T3}]")
    a(f"v_mov_b32 v{TID}, v0")
    a(f"s_add_u32 s{SFLAG}, s{P_WS}, {WS_FLAG}")
    a(f"s_addc_u32 s{SFLAG+1}, s{P_WS+1}, 0")
    a(f"s_load_dwordx2 s[{NONCE}:{NONCE+1}], s[{SFLAG}:{SFLAG+1}], {F_NONCE}")
    a(f"v_lshrrev_b32 v{VQQ}, 4, v{VL}")
    a(f"v_and_b32 v{VT}, 15, v{VL}")
    a(f"s_mov_b32 s{P_OUT}, s42")
    a(f"s_mov_b32 s{P_OUT+1}, s43")
    a(f"s_mov_b32 s{P_WO}, s98")
    a(f"s_mov_b32 s{P_WO+1}, s99")
    srd(a, SWD, 40, 41, 3584 * 2048)
    a(f"s_cmp_lt_u32 s{S_WAVE}, 4")
    a(f"s_cselect_b32 s{S_TW}, s36, s38")
    a(f"s_cselect_b32 s{S_TA}, s37, s39")
    a(f"s_cmp_eq_u32 s{S_KH}, 0")
    a(f"s_cselect_b32 s{SACT}, s94, s92")
    a(f"s_cselect_b32 s{SACT+1}, s95, s93")
    a(f"s_mov_b32 s{SACT+2}, {2 << 20}")
    a(f"s_cselect_b32 s{SACT+2}, 65536, s{SACT+2}")
    a(f"s_mov_b32 s{SACT+3}, 0x20000")
    srd(a, SKV, 96, 97, 65536)
    srd(a, SPART, P_WS, P_WS + 1, 8 << 20)
    a(f"s_lshr_b32 s{S_WM}, s{S_WAVE}, 2")
    a(f"s_and_b32 s{S_P}, s{S_WAVE}, 1")
    a(f"s_bfe_u32 s{S_BB}, s{S_WAVE}, 0x10001")
    a(f"s_and_b32 s{S_WN}, s{S_WAVE}, 3")
    a(f"s_lshl_b32 s{S_MX}, s{S_WAVE}, 11")
    a(f"s_cmp_lg_u32 s{S_KH}, 0")
    a("s_cbranch_scc1 P0_NOW")
    a(f"s_lshl_b32 s{S_RING}, s{S_WAVE}, 13")
    a(f"s_lshl_b32 s{T1}, s{S_WAVE}, 14")
    a(f"v_and_b32 v{A0}, 32, v{VL}")
    a(f"v_xor_b32 v{A0}, v{A0}, v{VKVD}")
    for q in range(4):
        a(f"s_add_u32 m0, s{T1}, {32768 + q*4096}")
        a(f"s_add_u32 s{T0}, s{S_RING}, {(q&1)*4096}")
        r = (SACT, SKV)[q >> 1]
        for i in range(4):
            a(f"buffer_load_dwordx4 v{A0}, s[{r}:{r+3}], s{T0} offen offset:{i*1024} lds")
    a.label("P0_NOW")
    a(f"s_lshr_b32 s{T0}, s2, 3")
    a(f"s_lshl_b32 s{S_RP}, s{S_KH}, 2")
    a(f"s_and_b32 s{T1}, s{T0}, 3")
    a(f"s_add_u32 s{S_RP}, s{S_RP}, s{T1}")
    a(f"s_bfe_u32 s{S_CT}, s2, 0x20001")
    a(f"s_lshl_b32 s{S_G}, s{S_CT}, 2")
    a(f"s_lshl_b32 s{S_CT}, s{S_CT}, 3")
    a(f"s_lshr_b32 s{S_C2}, s{T0}, 2")
    a(f"s_add_u32 s{S_CT}, s{S_CT}, s{S_C2}")
    a(f"s_add_u32 s{S_G}, s{S_G}, s{T1}")
    a(f"s_lshl_b32 s{T0}, s{S_RP}, 19")
    srd(a, SX, P_X, P_X + 1, 512 << 10, add_lo=f"s{T0}")
    def addr_x():
        a(f"v_lshrrev_b32 v{A0}, 3, v{VL}")
        a(f"s_lshl_b32 s{T0}, s{S_WAVE}, 4")
        a(f"v_add_u32 v{A0}, s{T0}, v{A0}")
        a(f"v_lshlrev_b32 v{A0}, 11, v{A0}")
        a(f"v_and_b32 v{A1}, 7, v{VL}")
        a(f"v_xor_b32 v{A1}, v{A1}, v{VQQ}")
        a(f"v_lshl_add_u32 v{VXD}, v{A1}, 4, v{A0}")
        a(f"v_xor_b32 v{VXD+1}, 64, v{VXD}")
        a(f"v_add_u32 v{VXD+1}, {8*2048 - 1024}, v{VXD+1}")
    def addr_w():
        a(f"s_lshl_b32 s{S_MW}, s{S_BB}, 2")
        a(f"s_add_u32 s{S_MW}, s{S_MW}, s{S_P}")
        a(f"s_lshl_b32 s{S_MW}, s{S_MW}, 10")
        a(f"s_lshl_b32 s{T0}, s{S_WM}, 13")
        a(f"s_add_u32 s{S_MW}, s{S_MW}, s{T0}")
        a(f"s_add_u32 s{S_MW}, s{S_MW}, {WLDS}")
        a(f"s_lshl_b32 s{T0}, s{S_P}, 3")
        a(f"s_lshl_b32 s{T1}, s{S_BB}, 2")
        a(f"s_add_u32 s{T0}, s{T0}, s{T1}")
        a(f"v_add_u32 v{A0}, s{T0}, v{VQQ}")
        a(f"s_lshl_b32 s{T0}, s{S_P}, 2")
        a(f"v_add_u32 v{A1}, s{T0}, v{VQQ}")
        a(f"v_lshlrev_b32 v{A1}, 1, v{A1}")
        a(f"v_xor_b32 v{A1}, v{A1}, v{VT}")
        a(f"v_lshlrev_b32 v{A2}, 4, v{A1}")
        a(f"v_subrev_u32 v{A3}, 192, v{A2}")
        a(f"v_add_u32 v{A4}, 32, v{A2}")
        a(f"v_cmp_le_u32 vcc, 12, v{A1}")
        a(f"v_cmp_le_u32 s[{QMASK}:{QMASK+1}], 14, v{A1}")
        a(f"s_and_b32 s{T0}, s{S_CT}, 1")
        a(f"s_cmp_eq_u32 s{T0}, 1")
        a(f"v_cndmask_b32 v{A3}, v{A4}, v{A3}, vcc")
        a(f"s_cselect_b64 s[{T2}:{T3}], -1, 0")
        a(f"v_cndmask_b32 v{A3}, v{A2}, v{A3}, s[{T2}:{T3}]")
        a(f"s_mul_i32 s{T0}, s{S_CT}, 224")
        if os.environ.get("X_ALIGN"):
            a(f"s_min_u32 s{T0}, s{S_CT}, 27"); a(f"s_lshl_b32 s{T0}, s{T0}, 8"); a(f"v_mov_b32 v{A3}, v{A2}")
        a(f"v_add_u32 v{A3}, s{T0}, v{A3}")
        a(f"v_mov_b32 v{A5}, 7168")
        a(f"v_mad_u32_u24 v{A3}, v{A0}, v{A5}, v{A3}")
        a(f"s_lshl_b32 s{T0}, s{S_CT}, 6")
        a(f"s_lshl_b32 s{T1}, s{S_WM}, 5")
        a(f"s_add_u32 s{T0}, s{T0}, s{T1}")
        a(f"v_and_b32 v{A2}, 16, v{A2}")
        a(f"v_add_u32 v{A4}, s{T0}, v{A2}")
        a(f"v_lshl_add_u32 v{A4}, v{A0}, 11, v{A4}")
        a(f"v_mov_b32 v{A0}, 2048")
        a(f"v_cndmask_b32 v{A3}, v{A3}, v{A4}, s[{QMASK}:{QMASK+1}]")
        a(f"v_cndmask_b32 v{A5}, v{A5}, v{A0}, s[{QMASK}:{QMASK+1}]")
        a(f"v_mov_b32 v{A0}, s92")
        a(f"v_mov_b32 v{A1}, s93")
        a(f"v_mov_b32 v{A6}, s{S_TW}")
        a(f"v_mov_b32 v{A7}, s{S_TA}")
        a(f"v_cndmask_b32 v{A6}, v{A6}, v{A0}, s[{QMASK}:{QMASK+1}]")
        a(f"v_cndmask_b32 v{A7}, v{A7}, v{A1}, s[{QMASK}:{QMASK+1}]")
        a(f"v_lshlrev_b32 v{VWS}, 5, v{A5}")
        a(f"v_mov_b32 v{VWS+1}, 0")
        a(f"v_add_co_u32 v{VWA}, vcc, v{A3}, v{A6}")
        a(f"v_lshlrev_b32 v{A4}, 4, v{A5}")
        a(f"v_mov_b32 v{A5}, 0")
        a(f"v_addc_co_u32 v{VWA+1}, vcc, 0, v{A7}, vcc")
        a(f"v_lshl_add_u64 {v(VWB,2)}, {v(A4,2)}, 0, {v(VWA,2)}")
    def addr_rest():
        a(f"s_lshl_b32 s{T0}, s{S_CT}, 16")
        a(f"s_lshl_b32 s{T1}, s{S_WM}, 10")
        a(f"s_add_u32 s{T0}, s{T0}, s{T1}")
        a(f"s_lshl_b32 s{T1}, s{S_P}, 8")
        a(f"s_add_u32 s{T0}, s{T0}, s{T1}")
        a(f"s_lshl_b32 s{T1}, s{S_BB}, 7")
        a(f"s_add_u32 s{T0}, s{T0}, s{T1}")
        a(f"s_add_u32 s{T0}, s{T0}, {WS_WQP + NS*2048}")
        a(f"s_add_u32 s{T0}, s{T0}, s{P_WS}")
        a(f"s_addc_u32 s{T1}, s{P_WS+1}, 0")
        a(f"v_lshl_add_u32 v{A4}, v{VQQ}, 5, v{A2}")
        a(f"v_lshl_add_u64 {v(VWP,2)}, {v(A4,2)}, 0, s[{T0}:{T1}]")
        srd(a, SWO, P_WO, P_WO + 1, 1024 * 2048)
        a(f"v_lshrrev_b32 v{A0}, 1, v{VT}")
        a(f"v_xor_b32 v{A0}, v{A0}, v{VQQ}")
        a(f"v_lshlrev_b32 v{A0}, 4, v{A0}")
        a(f"v_lshl_add_u32 v{A0}, v{VT}, 7, v{A0}")
        a(f"s_mul_i32 s{T0}, s{S_WM}, 49152")
        a(f"v_add_u32 v{VXR}, s{T0}, v{A0}")
        a(f"v_xor_b32 v{VXR+1}, 64, v{VXR}")
        a(f"v_lshrrev_b32 v{A3}, 2, v{VT}")
        a(f"v_lshl_add_u32 v{A0}, v{VQQ}, 2, v{A3}")
        a(f"v_and_b32 v{A1}, 7, v{A0}")
        a(f"s_lshl_b32 s{T0}, s{S_WN}, 1")
        a(f"v_xor_b32 v{A1}, s{T0}, v{A1}")
        a(f"v_lshlrev_b32 v{A1}, 5, v{A1}")
        a(f"v_lshl_add_u32 v{A1}, v{A0}, 8, v{A1}")
        a(f"v_and_b32 v{A2}, 3, v{VL}")
        a(f"v_lshl_add_u32 v{A1}, v{A2}, 3, v{A1}")
        a(f"v_add_u32 v{VWR}, {WLDS}, v{A1}")
        a(f"v_xor_b32 v{VWR+1}, 32, v{VWR}")
        a(f"s_lshl_b32 s{S_KVO}, s{S_WN}, 11")
        a(f"s_cmp_eq_u32 s{S_WM}, 0")
        a(f"s_movk_i32 s{T0}, 4096")
        a(f"s_cselect_b32 s{T0}, s{T0}, 0x20000")
        a(f"s_add_u32 s{S_KVO}, s{S_KVO}, s{T0}")
        a(f"s_add_u32 s{S_MKV}, s{S_MX}, {KVL + 0x4000}")
    def final_srd():
        srd(a, SACT, P_WS, P_WS + 1, 16 * ACT_NU * 8192, add_lo=WS_ACT)
        srd(a, SKV, P_WS, P_WS + 1, (256 << 10) + 32768, add_lo=WS_KV - 8192)
    def nonce():
        a(f"s_add_u32 s{NONCE}, s{NONCE}, 0x9e3779b9")
        a(f"s_add_u32 s{NONCE+1}, s{NONCE+1}, 0x85ebca6b")
    first = lambda: emit(a, p1_dma_x(0, 0) + p1_dma_x(1, 0) + p1_dma_w(0) + p1_dma_w(1))
    second = lambda: emit(a, p1_dma_x(0, 1) + p1_dma_x(1, 1) + p1_dma_w(2))
    a(f"s_cmp_eq_u32 s{S_KH}, 0")
    a("s_cbranch_scc1 P0_EVEN")
    addr_x()
    emit(a, p1_dma_x(0, 0) + p1_dma_x(1, 0))
    addr_w()
    emit(a, p1_dma_w(0) + p1_dma_w(1))
    a(f"v_bfe_u32 v{A0}, v{VL}, 1, 2")
    a(f"v_and_b32 v{A1}, 1, v{VL}")
    a(f"v_lshrrev_b32 v{A3}, 3, v{TID}")
    a(f"v_lshlrev_b32 v{VQS}, 11, v{A0}")
    a(f"v_lshl_add_u32 v{VQS}, v{A3}, 5, v{VQS}")
    a(f"v_lshl_add_u32 v{VQS}, v{A1}, 4, v{VQS}")
    a(f"s_lshl_b32 s{T2}, s{S_PB}, 14")
    a(f"s_add_u32 s{T3}, s{T2}, 8192")
    a(f"buffer_load_dwordx4 v[48:51], v{VQS}, s[{SACT}:{SACT+3}], s{T2} offen")
    a(f"buffer_load_dwordx4 v[52:55], v{VQS}, s[{SACT}:{SACT+3}], s{T3} offen")
    second()
    a(f"v_lshrrev_b32 v{A4}, 1, v{A3}")
    a(f"v_lshlrev_b32 v{VQD}, 16, v{A4}")
    a(f"v_and_b32 v{A4}, 1, v{A3}")
    a(f"v_lshl_add_u32 v{VQD}, v{A4}, 10, v{VQD}")
    a(f"v_lshl_add_u32 v{VQD}, v{A0}, 5, v{VQD}")
    a(f"v_lshl_add_u32 v{VQD}, v{A1}, 4, v{VQD}")
    addr_rest()
    final_srd()
    a(f"s_lshr_b32 s{S_CNT}, s{S_PB}, 2")
    a(f"s_lshl_b32 s{S_CNT}, s{S_CNT}, 11")
    a(f"s_and_b32 s{T0}, s{S_PB}, 3")
    a(f"s_lshl_b32 s{T0}, s{T0}, 8")
    a(f"s_add_u32 s{S_CNT}, s{S_CNT}, s{T0}")
    a(f"s_add_u32 s{S_CNT}, s{S_CNT}, {WS_WQP}")
    a("s_waitcnt vmcnt(10) lgkmcnt(0)")
    nonce()
    a("s_barrier")
    for x in p1_reads(0): a(x)
    a("s_waitcnt vmcnt(6)")
    a(f"buffer_store_dwordx4 v[48:51], v{VQD}, s[{SPART}:{SPART+3}], s{S_CNT} offen sc1")
    a(f"buffer_store_dwordx4 v[52:55], v{VQD}, s[{SPART}:{SPART+3}], s{S_CNT} offen offset:128 sc1")
    a("s_branch P0_JOIN")
    a.label("P0_EVEN")
    a(f"s_lshl_b32 s{T0}, s{S_WAVE}, 4")
    a(f"v_lshlrev_b32 v{VTW}, 8, v{VL}")
    a(f"v_add_u32 v{VTW}, s{T0}, v{VTW}")
    addr_x()
    addr_w()
    a(f"v_mov_b32 v{VKS}, v{A2}")
    a(f"s_and_b32 s{T0}, s{S_RP}, 3")
    a(f"v_mul_lo_u32 v{A4}, v{VWS}, s{T0}")
    a(f"v_lshl_add_u64 {v(VTA,2)}, {v(A4,2)}, 0, {v(VWA,2)}")
    a(f"v_lshl_add_u64 {v(VTB,2)}, {v(A4,2)}, 0, {v(VWB,2)}")
    a(f"v_lshrrev_b32 v{VTX}, 4, v{TID}")
    a(f"v_lshlrev_b32 v{VTX}, 11, v{VTX}")
    a(f"v_lshl_add_u32 v{VTX}, v{VT}, 7, v{VTX}")
    a(f"s_lshl_b32 s{T0}, s{S_C2}, 16")
    a(f"v_add_u32 v{VTX}, s{T0}, v{VTX}")
    a(f"s_lshl_b32 s{S_AO}, s{S_AO}, 3")
    a(f"s_mov_b32 s{T3}, 0xffff0000")
    a("s_waitcnt vmcnt(17)")
    nstamp(a, "xl")
    def ln(r):
        o = []
        I = 32 + 8 * r; X = 64 + 32 * r; C = X + 16; A_ = 52 + 6 * r
        M = A_ + 4
        def wsum(x, t):
            for mod in ("quad_perm:[1,0,3,2]", "quad_perm:[2,3,0,1]", "row_half_mirror", "row_mirror"):
                o.append("NOP2"); o.append(f"v_add_f32_dpp v{x}, v{x}, v{x} {mod} row_mask:0xf bank_mask:0xf")
            for sw in ("v_permlane16_swap_b32", "v_permlane32_swap_b32"):
                o.append(f"v_mov_b32 v{t}, v{x}"); o.append("NOP2"); o.append(f"{sw} v{x}, v{t}"); o.append(f"v_add_f32 v{x}, v{x}, v{t}")
        def rbf(x):
            o.append(f"v_cvt_pk_bf16_f32 v{x}, v{x}, v{x}"); o.append(f"v_and_b32 v{x}, s{T3}, v{x}")
        for k in range(8):
            o.append(f"v_lshlrev_b32 v{X+2*k}, 16, v{I+k}"); o.append(f"v_and_b32 v{X+2*k+1}, s{T3}, v{I+k}")
        o.append(f"v_pk_add_f32 {v(A_,2)}, {v(X,2)}, {v(X+2,2)}"); o.append(f"v_pk_add_f32 {v(A_+2,2)}, {v(X+4,2)}, {v(X+6,2)}")
        for k in (4, 6):
            o.append(f"v_pk_add_f32 {v(A_,2)}, {v(A_,2)}, {v(X+2*k,2)}"); o.append(f"v_pk_add_f32 {v(A_+2,2)}, {v(A_+2,2)}, {v(X+2*k+2,2)}")
        o.append(f"v_pk_add_f32 {v(A_,2)}, {v(A_,2)}, {v(A_+2,2)}"); o.append(f"v_add_f32 v{A_}, v{A_}, v{A_+1}")
        wsum(A_, A_ + 1)
        o.append(f"v_mul_f32 v{M}, 0xba800000, v{A_}")
        for k in range(8): o.append(f"v_pk_add_f32 {v(C+2*k,2)}, {v(X+2*k,2)}, {v(M,2)} op_sel_hi:[1,0]")
        o.append(f"v_pk_mul_f32 {v(A_,2)}, {v(C,2)}, {v(C,2)}"); o.append(f"v_pk_mul_f32 {v(A_+2,2)}, {v(C+2,2)}, {v(C+2,2)}")
        for k in range(2, 8):
            q = A_ + 2 * (k % 2); o.append(f"v_pk_fma_f32 {v(q,2)}, {v(C+2*k,2)}, {v(C+2*k,2)}, {v(q,2)}")
        o.append(f"v_pk_add_f32 {v(A_,2)}, {v(A_,2)}, {v(A_+2,2)}"); o.append(f"v_add_f32 v{A_}, v{A_}, v{A_+1}")
        rbf(M)
        wsum(A_, A_ + 1)
        for k in range(8): o.append(f"v_pk_add_f32 {v(C+2*k,2)}, {v(X+2*k,2)}, {v(M,2)} op_sel_hi:[1,0]")
        o.append(f"v_mul_f32 v{A_}, 0x3a800000, v{A_}"); rbf(A_)
        o.append(f"v_add_f32 v{A_}, 0x3727c5ac, v{A_}"); rbf(A_)
        o.append(f"v_sqrt_f32 v{A_}, v{A_}"); o.append("NOP1"); rbf(A_)
        o.append(f"v_rcp_f32 v{M+1}, v{A_}"); o.append("NOP1")
        for k in range(8): o.append(f"v_pk_mul_f32 {v(C+2*k,2)}, {v(C+2*k,2)}, {v(M,2)} op_sel:[0,1] op_sel_hi:[1,1]")
        for k in range(8): o.append(f"v_cvt_pk_bf16_f32 v{I+k}, v{C+2*k}, v{C+2*k+1}")
        return o
    for x0, x1 in zip(ln(0), ln(1)):
        if x0 == "NOP2": a("s_nop 0")
        elif x0 == "NOP1": pass
        else:
            a(x0); a(x1)
    for r in range(2):
        a(f"ds_write_b128 v{VTW}, {v(32+8*r,4)} offset:{r*128}")
        a(f"ds_write_b128 v{VTW}, {v(36+8*r,4)} offset:{16384 + r*128}")
    a("s_mov_b64 exec, 1")
    a(f"buffer_store_dwordx2 v[56:57], v{VKVD}, s[{SPART}:{SPART+3}], s{S_AO} offen sc1")
    a(f"buffer_store_dwordx2 v[62:63], v{VKVD}, s[{SPART}:{SPART+3}], s{S_AO} offen offset:64 sc1")
    mk_ = ((1 << XL) - 1) * 0x10001
    a(f"s_mov_b32 exec_lo, {mk_}")
    a(f"s_mov_b32 exec_hi, {mk_}")
    a(f"buffer_load_dword v18, v{VTX}, s[{SX}:{SX+3}], 0 offen")
    a("s_mov_b64 exec, -1")
    a(f"global_load_dword v18, {v(VTA,2)}, off")
    a(f"global_load_dword v18, {v(VTB,2)}, off")
    a(f"v_mov_b32 v{A2}, v{VKS}")
    a(f"v_mov_b32 v{A5}, 0")
    addr_rest()
    a(f"s_lshl_b32 s{T0}, s{S_WM}, 14")
    a(f"v_add_u32 v{VFR}, s{T0}, v{VKVD}")
    a(f"s_lshl_b32 s{T1}, s{S_BB}, 13")
    a(f"s_lshl_b32 s{T2}, s{S_P}, 5")
    a(f"s_add_u32 s{T1}, s{T1}, s{T2}")
    a(f"s_lshl_b32 s{T0}, s{S_WM}, 16")
    a(f"s_add_u32 s{T0}, s{T0}, s{T1}")
    a(f"s_add_u32 s{T0}, s{T0}, 32768")
    a(f"v_lshl_add_u32 v{VTR}, v{VQQ}, 3, v{A3}")
    a(f"v_lshlrev_b32 v{VTR}, 6, v{VTR}")
    a(f"v_lshl_add_u32 v{VTR}, v{A2}, 3, v{VTR}")
    a(f"v_add_u32 v{VTR}, s{T0}, v{VTR}")
    a(f"v_and_b32 v{A0}, 16, v{VL}")
    a(f"v_lshlrev_b32 v{A1}, 1, v{A0}")
    a(f"v_xor_b32 v{VTR}, v{VTR}, v{A1}")
    a(f"v_lshrrev_b32 v{VEX}, 1, v{VL}")
    a(f"v_lshlrev_b32 v{VEX}, 6, v{VEX}")
    a(f"v_and_b32 v{A0}, 1, v{VL}")
    a(f"v_lshl_add_u32 v{VEX}, v{A0}, 4, v{VEX}")
    a(f"s_add_u32 s{T1}, s{T1}, {32768 + 7*16384}")
    a(f"v_add_u32 v{VEX}, s{T1}, v{VEX}")
    a(f"v_xor_b32 v{VEX}, v{VEX}, v{A1}")
    a(f"s_lshr_b32 s{S_WDO}, s{S_PB}, 1")
    a(f"s_lshl_b32 s{S_WDO}, s{S_WDO}, 11")
    a(f"s_and_b32 s{T0}, s{S_PB}, 1")
    a(f"s_lshl_b32 s{T1}, s{T0}, 8")
    a(f"s_lshl_b32 s{T2}, s{S_P}, 3")
    a(f"s_add_u32 s{T1}, s{T1}, s{T2}")
    a(f"s_lshl_b32 s{T0}, s{T0}, 10")
    a(f"s_lshl_b32 s{T2}, s{S_P}, 8")
    a(f"s_add_u32 s{T0}, s{T0}, s{T2}")
    a(f"s_add_u32 s{T0}, s{T0}, 0x20000")
    a(f"s_cmp_eq_u32 s{S_BB}, 0")
    a(f"s_cselect_b32 s{T0}, s{T1}, s{T0}")
    a(f"s_cselect_b64 vcc, -1, 0")
    a(f"s_add_u32 s{S_WDO}, s{S_WDO}, s{T0}")
    a(f"s_add_u32 s{S_WDO}, s{S_WDO}, 8192")
    a(f"v_lshlrev_b32 v{A0}, 9, v{VQQ}")
    a(f"v_and_b32 v{A1}, 512, v{A0}")
    a(f"v_lshrrev_b32 v{A2}, 1, v{VQQ}")
    a(f"v_lshl_add_u32 v{A1}, v{A2}, 3, v{A1}")
    a(f"v_cndmask_b32 v{A0}, v{A1}, v{A0}, vcc")
    a(f"v_lshl_add_u32 v{VKS}, v{VT}, 4, v{A0}")
    final_srd()
    a("s_waitcnt vmcnt(5) lgkmcnt(0)")
    nonce()
    a("s_barrier")
    nstamp(a, "b1")
    def rd(u):
        a(f"ds_read_b128 {v(32+4*(u%8),4)}, v{VFR} offset:{u*1024}")
        for h in range(2):
            a(f"ds_read_b64_tr_b16 {v(64+4*u+2*h,2)}, v{VTR} offset:{(u>>2)*16384 + (u&3)*2048 + h*256}")
    for u in range(5): rd(u)
    a(f"s_cmp_lg_u32 s{S_BB}, 0")
    a("s_cbranch_scc1 P0_V")
    for isv in range(2):
        if isv: a.label("P0_V")
        for u in range(16):
            a(f"s_waitcnt lgkmcnt({min(12, 3*(15-u))})")
            x = 32 + 4 * (u % 8); w = 64 + 4 * u; d = (20, 24)[u & 1]
            c = "0" if u < 2 else v(d, 4)
            ab = (x, w) if isv else (w, x)
            a(f"v_mfma_f32_16x16x32_bf16 {v(d,4)}, {v(ab[0],4)}, {v(ab[1],4)}, {c}")
            if u + 5 < 16: rd(u + 5)
        if not isv: a("s_branch P0_MD")
    a.label("P0_MD")
    a("s_nop 7")
    a("v_pk_add_f32 v[20:21], v[20:21], v[24:25]")
    a("v_pk_add_f32 v[22:23], v[22:23], v[26:27]")
    a(f"s_cmp_eq_u32 s{S_WM}, 0")
    a("s_cbranch_scc1 P0_W0")
    a(f"ds_write_b128 v{VEX}, v[20:23]")
    a("s_waitcnt lgkmcnt(0)")
    a.label("P0_W0")
    a("s_barrier")
    nstamp(a, "b2")
    first()
    a(f"s_cmp_lg_u32 s{S_WM}, 0")
    a("s_cbranch_scc1 P0_KVD")
    a(f"ds_read_b128 v[24:27], v{VEX}")
    a("s_waitcnt lgkmcnt(0)")
    a("v_pk_add_f32 v[20:21], v[20:21], v[24:25]")
    a("v_pk_add_f32 v[22:23], v[22:23], v[26:27]")
    a("v_cvt_pk_bf16_f32 v20, v20, v21")
    a("v_cvt_pk_bf16_f32 v21, v22, v23")
    a(f"buffer_store_dwordx2 v[20:21], v{VKS}, s[{SKV}:{SKV+3}], s{S_WDO} offen sc1")
    a.label("P0_KVD")
    a("s_waitcnt vmcnt(2)")
    a("s_barrier")
    for x in p1_reads(0): a(x)
    a("s_waitcnt vmcnt(0)")
    a.label("P0_JOIN")
    srd(a, SPART, P_WS, P_WS + 1, 16384, add_lo=WS_ST)
    vm.add(1, 6)

def gen(a):
    kernel_head(a, NAME)
    a("s_cmp_ge_u32 s2, 256")
    a("s_cbranch_scc1 KM_END")
    stamp(a, 0)
    vm = VM()
    gen_p0(a, vm)
    nstamp(a, "fl")
    stamp(a, 1)
    a(f"s_lshl_b32 s{S_CNT}, s{S_KH}, 7")
    a(f"s_add_u32 s{S_CNT}, s{S_CNT}, s{S_PB}")
    a(f"s_lshl_b32 s{S_CNT}, s{S_CNT}, 3")
    a(f"s_add_u32 s{S_CNT}, s{S_CNT}, {F_KV}")
    a(f"s_lshl_b32 s{S_AO}, s{S_RP}, 1")
    a(f"s_add_u32 s{S_AO}, s{S_AO}, s{S_WM}")
    a(f"s_lshl_b32 s{S_AO}, s{S_AO}, 10")
    for i in range(4): a(f"v_mov_b32 v{ONES+i}, 0x3f803f80")
    for i in range(8): a(f"v_mov_b32 v{CS+i}, 0")
    a("s_waitcnt lgkmcnt(0)")
    a("s_barrier")
    nstamp(a, "p1s")
    a(f"s_cmp_lg_u32 s{S_WM}, 0")
    a("s_cbranch_scc1 P1_B")
    if PR1 < 0: a(f"s_setprio {-PR1}")
    gen_p1(a, 0, vm)
    a("s_branch P1_END")
    a.label("P1_B")
    if PR1 > 0: a(f"s_setprio {PR1}")
    gen_p1(a, 1, vm)
    a.label("P1_END")
    if PR1: a("s_setprio 0")
    stamp(a, 2)
    nstamp(a, "p1e")
    if STOP == "p1": a("s_branch KM_FIN")
    for _ in range(int(os.environ.get("X_SHE", 0))): a("s_nop 0")
    CSR = XF + 16
    for t in range(2):
        for st in range(2):
            a(f"ds_read_b128 {v(CSR+(st*2+t)*4,4)}, v{VWP+1} offset:{CSL + (t*512 + st*64 if CSV else t*8192 + st*1024)}")
    a(f"v_lshlrev_b32 v{VHO}, 9, v{VQQ}")
    a(f"v_lshl_add_u32 v{VHO}, v{VT}, 4, v{VHO}")
    a(f"v_add_u32 v{VHO+1}, 0x1000, v{VHO}")
    a(f"s_lshr_b32 s{T0}, s{S_CT}, 1")
    a(f"s_mul_i32 s{T0}, s{T0}, 7")
    a(f"s_and_b32 s{T1}, s{S_CT}, 1")
    a(f"s_lshl_b32 s{T2}, s{T1}, 2")
    a(f"s_add_u32 s{T2}, s{T2}, s{S_WN}")
    a(f"s_cmp_eq_u32 s{S_WN}, 3")
    a(f"s_cselect_b32 s{T2}, 3, s{T2}")
    a(f"s_add_u32 s{T0}, s{T0}, s{T2}")
    a(f"s_lshl_b32 s{T2}, s{S_RP}, 1")
    a(f"s_add_u32 s{T2}, s{T2}, s{S_WM}")
    a(f"s_mul_i32 s{T3}, s{T2}, {ACT_NU}")
    a(f"s_add_u32 s{T0}, s{T0}, s{T3}")
    a(f"s_lshl_b32 s{S_HO}, s{T0}, 13")
    a(f"s_lshl_b32 s{S_XO}, s{S_RP}, 8")
    a(f"s_lshl_b32 s{T3}, s{S_CT}, 3")
    a(f"s_add_u32 s{S_XO}, s{S_XO}, s{T3}")
    a(f"s_add_u32 s{S_XO}, s{S_XO}, {F_H}")
    a("s_waitcnt lgkmcnt(0)")
    for j in range(8): a(f"v_mul_f32 v{XF+32+j}, v{XF+2*j+1}, v{XF+2*j+1}")
    a(f"s_cmp_eq_u32 s{S_WN}, 3")
    a("s_cbranch_scc1 P1_EP3")
    def center(st, t, j):
        g = acc(st, t, j); c = CSR + (st * 2 + t) * 4
        for i in (0, 2): a(f"v_pk_fma_f32 {v(g+i,2)}, {v(c+i,2)}, {v(XF+2*j,2)}, {v(g+i,2)} op_sel_hi:[1,0,1]")
    def hpair(t, j):
        g = acc(0, t, j); u = acc(1, t, j); dst = HS + 4 * j + 2 * t
        r2 = XF + 32 + (j & ~1); sel = "op_sel:[0,1] op_sel_hi:[1,1]" if j & 1 else "op_sel_hi:[1,0]"
        center(0, t, j); center(1, t, j)
        for i in range(4): a(f"v_max_f32 v{g+i}, 0, v{g+i}")
        for i in (0, 2): a(f"v_pk_mul_f32 {v(u+i,2)}, {v(u+i,2)}, {v(r2,2)} {sel}")
        for i in (0, 2): a(f"v_pk_mul_f32 {v(g+i,2)}, {v(g+i,2)}, {v(u+i,2)}")
        for i in (2, 0): a(f"v_cvt_pk_bf16_f32 v{dst+i//2}, v{g+i}, v{g+i+1}")
    def hst(j, n):
        off = (j >> 1) * 2048 + (j & 1) * 256
        a(f"buffer_store_dwordx{n} {v(HS+4*j,n)}, v{VHO + (off>>12)}, s[{SACT}:{SACT+3}], s{S_HO} offen offset:{off & 4095} sc1")
    for j in range(8):
        hpair(1, j); hpair(0, j)
        if j % HSTEP == 0 and j // HSTEP < NE: hst(j // HSTEP, 4)
    a("s_branch P1_EPD")
    a.label("P1_EP3")
    a(f"s_lshl_b32 s{S_CNT}, s{S_WM}, 13")
    a(f"v_add_u32 v24, s{S_CNT}, v{VHO}")
    for j in range(8): a(f"v_mul_f32 v{XF+2*j+1}, {QSCALE}, v{XF+2*j+1}")
    for j in range(8):
        tmp = XF + 40 + 4 * (j & 3)
        for st in range(2):
            g = acc(st, 1, j)
            center(st, 1, j)
            for i in (0, 2): a(f"v_pk_mul_f32 {v(g+i,2)}, {v(g+i,2)}, {v(XF+2*j,2)} op_sel:[0,1] op_sel_hi:[1,1]")
            for i in (0, 2): a(f"v_cvt_pk_bf16_f32 v{tmp+2*st+i//2}, v{g+i}, v{g+i+1}")
        a(f"ds_write_b128 v24, {v(tmp,4)} offset:{QLDS + (j>>1)*2048 + (j&1)*256}")
    a(f"s_lshl_b32 s{T1}, s{T1}, 3")
    a(f"s_add_u32 s{S_HO}, s{S_HO}, s{T1}")
    for j in range(8):
        hpair(0, j)
        if j % HSTEP == 0 and j // HSTEP < NE: hst(j // HSTEP, 2)
    a.label("P1_EPD")
    srd(a, SPART, P_WS, P_WS + 1, 8 << 20, add_lo=WS_PART)
    a(f"s_lshl_b32 s{T3}, s{S_WAVE}, 10")
    a(f"v_add_u32 v{VPA}, s{T3}, v{VKVD}")
    a(f"v_lshlrev_b32 v3, 1, v{VQQ}")
    a(f"v_xor_b32 v3, v3, v{VT}")
    a("v_lshlrev_b32 v3, 4, v3")
    a(f"v_lshl_add_u32 v3, v{VQQ}, 11, v3")
    a(f"s_lshl_b32 s{T0}, s{S_WAVE}, 13")
    a(f"s_lshl_b32 s{T1}, s{S_C2}, 8")
    a(f"s_add_u32 s{T0}, s{T0}, s{T1}")
    a(f"s_lshl_b32 s{T1}, s{S_P}, 7")
    a(f"v_xor_b32 v{VPW}, s{T1}, v3")
    a(f"v_add_u32 v{VPW}, s{T0}, v{VPW}")
    a(f"s_mul_i32 s{T0}, s{S_G}, {ACT_NU}")
    a(f"s_mul_i32 s{T1}, s{S_KH}, 56")
    a(f"s_add_u32 s{T0}, s{T0}, s{T1}")
    a(f"s_lshl_b32 s{S_AO}, s{T0}, 13")
    a(f"s_lshl_b32 s{S_WDO}, s{T1}, 16")
    a(f"s_mov_b32 s{S_RING}, 0")
    a(f"v_lshlrev_b32 v{VTCH}, 6, v{VL}")
    a(f"s_lshr_b32 s{T0}, s2, 3")
    a(f"s_lshl_b32 s{T0}, s{T0}, 12")
    a(f"s_add_u32 s{S_TW}, s{S_WDO}, s{T0}")
    a(f"s_lshl_b32 s{T0}, s{S_C2}, 12")
    a(f"s_add_u32 s{S_TA}, s{S_AO}, s{T0}")
    a(f"v_lshlrev_b32 v26, 11, v{VT}")
    a(f"v_and_b32 v27, 1, v{VQQ}")
    a("v_lshl_add_u32 v26, v27, 5, v26")
    a(f"v_lshrrev_b32 v27, 1, v{VQQ}")
    a(f"v_lshl_add_u32 v{VXA}, v27, 4, v26")
    for j in range(1, 4): a(f"v_add_u32 v{VXA+j}, {j*32768}, v{VXA}")
    a(f"s_lshl_b32 s{S_ISV}, s{S_G}, 18")
    a(f"s_lshl_b32 s{T0}, s{S_BB}, 17")
    a(f"s_add_u32 s{S_ISV}, s{S_ISV}, s{T0}")
    a(f"s_lshl_b32 s{T0}, s{S_C2}, 8")
    a(f"s_add_u32 s{S_ISV}, s{S_ISV}, s{T0}")
    a(f"s_lshl_b32 s{T0}, s{S_KH}, 7")
    a(f"s_add_u32 s{S_ISV}, s{S_ISV}, s{T0}")
    a(f"s_lshl_b32 s{T0}, s{S_P}, 6")
    a(f"s_add_u32 s{S_ISV}, s{S_ISV}, s{T0}")
    srd(a, SX, P_X, P_X + 1, 4 << 20)
    if STASH:
        a(f"v_lshrrev_b32 v22, 3, v{VL}")
        a("v_lshlrev_b32 v22, 11, v22")
        a(f"v_lshlrev_b32 v23, 1, v{VQQ}")
        a(f"v_and_b32 v25, 7, v{VL}")
        a("v_xor_b32 v23, v23, v25")
        a("v_lshl_add_u32 v22, v23, 4, v22")
        a(f"s_lshl_b32 s{T0}, s{S_WN}, 14")
        a(f"s_lshl_b32 s{T1}, s{S_C2}, 8")
        a(f"s_add_u32 s{T0}, s{T0}, s{T1}")
        a(f"s_lshl_b32 s{T1}, s{S_KH}, 7")
        a(f"s_add_u32 s{T0}, s{T0}, s{T1}")
        a(f"v_add_u32 v12, s{T0}, v22")
    a(f"v_lshrrev_b32 v25, 2, v{VL}")
    a(f"v_xor_b32 v25, v25, v{VQQ}")
    a("v_and_b32 v25, 1, v25")
    a(f"v_and_b32 v26, 3, v{VL}")
    a("v_or_b32 v25, v25, v26")
    a("v_cmp_eq_u32 vcc, 0, v25")
    a("v_mov_b32 v26, 0x3f803f80")
    a("v_mov_b32 v27, 0")
    a(f"s_waitcnt vmcnt({NE}) lgkmcnt(0)")
    a("s_barrier")
    a(f"ds_read_b128 {v(QF,4)}, v{VWP} offset:{QLDS}")
    a(f"ds_read_b128 {v(QF+4,4)}, v{VWP} offset:{QLDS+1024}")
    for b in range(2):
        for s_ in range(2):
            a(f"ds_read_b128 {v(KB+8*b+4*s_,4)}, v{VKVR} offset:{0x4000 + (2+b)*2048 + s_*1024}")
    for i in range(4): a(f"v_cndmask_b32 v{SEL+i}, v27, v26, vcc")
    for i in range(4): a(f"v_mov_b32 v{RS+i}, 0")
    for i in range(16): a(f"v_mov_b32 v{OA+i}, 0")
    a("s_waitcnt lgkmcnt(0)")
    a(mf32(SB, KB, QF, "0"))
    a(mf32(SB, KB + 4, QF + 4, v(SB, 16)))
    a("s_nop 11")
    a(f"v_max3_f32 v26, v{SB}, v{SB+1}, v{SB+2}")
    for i in range(3, 15, 2): a(f"v_max3_f32 v26, v26, v{SB+i}, v{SB+i+1}")
    a(f"v_max_f32 v26, v26, v{SB+15}")
    a("v_mov_b32 v27, v26")
    a("s_nop 1")
    a("v_permlane32_swap_b32 v26, v27")
    a("s_nop 0")
    a("v_max_f32 v26, v26, v27")
    for i in range(16): a(f"v_sub_f32 v{NM+i}, 0, v26")
    for i in range(16): a(f"v_sub_f32 v{SB+i}, v{SB+i}, v26")
    stamp(a, 3)
    if PR2:
        a(f"s_cmp_{'lg' if PR2 > 0 else 'eq'}_u32 s{S_WM}, 0")
        a("s_cbranch_scc0 P2_NP")
        a(f"s_setprio {abs(PR2)}")
        a.label("P2_NP")
    def pollH():
        a(f"s_lshr_b32 s{T0}, s{S_G}, 1")
        a(f"s_lshl_b32 s{T0}, s{T0}, 8")
        a(f"s_lshl_b32 s{T1}, s{S_KH}, 7")
        a(f"s_add_u32 s{T0}, s{T0}, s{T1}")
        a(f"s_add_u32 s{T0}, s{T0}, {F_H}")
        poll_issue(a, T0, 16)
    for _ in range(int(os.environ.get("X_SH2", 0))): a("s_nop 0")
    rest = list(range(NE, 8)); prev = NE
    for E in range(4):
        mine, rest = rest[:2], rest[2:]
        att_epoch(a, E, first=(E == 0), wait=prev, x1=wo_stash(5 * (E - 2), 5) if E >= 2 else (), x2=h_store(mine[0]) if mine else (), x3=h_store(mine[1]) if len(mine) > 1 else ())
        prev = len(mine)
    att_epoch(a, 4, wait=prev, x1=wo_stash(10, 5))
    att_epoch(a, 5, post=lambda: wave0(a, lambda: flag_set(a, S_XO)), x1=touch_wo() if FART else ())
    att_epoch(a, 6, wait=int(FART > 0), x1=touch_w(20) if FART else ())
    xl = [f"s_cmp_lg_u32 s{S_WM}, 0", "s_cbranch_scc1 P2_NX"] + [f"buffer_load_dwordx4 {v(XR+4*j,4)}, v{VXA+j}, s[{SX}:{SX+3}], s{S_ISV} offen" for j in range(4)] + ["P2_NX:"]
    if HL == 0:
        att_epoch(a, 7, wait=int(FART > 0), post=lambda: wave0(a, pollH), x1=touch_w(12))
        att_epoch(a, 8, wait=1, post=lambda: wave0(a, lambda: poll_check(a)), x1=touch_w(4))
        att_epoch(a, 9, prefill=2, wait=1, x3=touch_a(6))
        att_epoch(a, 10, prefill=2, wait=5)
        att_epoch(a, 11, prefill=2, wait=4)
        att_epoch(a, 12, prefill=2, wait=4, x3=touch_a(0))
        att_epoch(a, 13, wait=5)
        att_epoch(a, 14, x1=[xl])
    else:
        att_epoch(a, 7, wait=int(FART > 0), x1=touch_w(12))
        att_epoch(a, 8, wait=1, x1=[xl] + wo_stash(15, 5))
        att_epoch(a, 9, post=lambda: wave0(a, pollH), x1=touch_w(4))
        att_epoch(a, 10, wait=1, post=lambda: wave0(a, lambda: poll_check(a)))
        att_epoch(a, 11, prefill=2, x3=touch_a(6))
        att_epoch(a, 12, prefill=2, wait=5, x3=touch_a(0))
        att_epoch(a, 13, prefill=2, wait=5)
        att_epoch(a, 14, prefill=2, wait=4)
    att_epoch(a, 15, last=True)
    a("s_waitcnt lgkmcnt(0)")
    a(mf32(OA, VB + 8, PB + 8, v(OA, 16)))
    a(mfrs(PB + 8))
    a(mf32(OA, VB + 12, PB + 12, v(OA, 16)))
    a(mfrs(PB + 12))
    a(f"s_add_u32 s{S_XO}, s{S_XO}, {F_O - F_H}")
    a(f"s_lshl_b32 s{T0}, s{S_RP}, 1")
    a(f"s_add_u32 s{T0}, s{T0}, s{S_WM}")
    a(f"s_mul_i32 s{T0}, s{T0}, {ACT_NU}")
    a(f"s_add_u32 s{T0}, s{T0}, s{S_CT}")
    a(f"s_add_u32 s{T0}, s{T0}, 112")
    a(f"s_lshl_b32 s{T0}, s{T0}, 13")
    a(f"s_lshl_b32 s{T1}, s{S_WN}, 11")
    a(f"s_add_u32 s{S_CNT}, s{T0}, s{T1}")
    a("s_nop 4")
    a(f"v_mul_f32 v26, 0, v{RS}")
    for i in range(16): a(f"v_fma_f32 v26, v{OA+i}, 0, v26")
    a("v_cmp_u_f32 vcc, v26, v26")
    a("s_cmp_lg_u64 vcc, 0")
    a("s_cbranch_scc1 P2_SLOW")
    a.label("P2_FIN")
    a(f"v_rcp_f32 v26, v{RS}")
    a("s_nop 0")
    for i in range(16): a(f"v_mul_f32 v{OA+i}, v{OA+i}, v26")
    for k, base in enumerate((0, 8, 4, 12)):
        a(f"v_cvt_pk_bf16_f32 v{PB+2*k}, v{OA+base}, v{OA+base+1}")
        a(f"v_cvt_pk_bf16_f32 v{PB+2*k+1}, v{OA+base+2}, v{OA+base+3}")
    a(f"buffer_store_dwordx4 {v(PB,4)}, v{VKVD}, s[{SACT}:{SACT+3}], s{S_CNT} offen sc1")
    a(f"buffer_store_dwordx4 {v(PB+4,4)}, v{VKVD}, s[{SACT}:{SACT+3}], s{S_CNT} offen offset:1024 sc1")
    stamp(a, 4)
    if PR2: a("s_setprio 0")
    import mk3
    mk3.gen_p3(a)
    a.label("P2_SLOW")
    a(f"s_mov_b32 s{T0}, 8192")
    a(f"v_mov_b32 v27, 0xff800000")
    a(f"v_mov_b32 v{RS}, 0")
    for i in range(16): a(f"v_mov_b32 v{OA+i}, 0")
    a.label("P2_SL")
    a(f"s_add_u32 s{T1}, s{T0}, 0x20000")
    a(f"buffer_load_dwordx4 {v(KB,4)}, v{VKVD}, s[{SKV}:{SKV+3}], s{T0} offen sc1")
    a(f"buffer_load_dwordx4 {v(KB+4,4)}, v{VKVD}, s[{SKV}:{SKV+3}], s{T0} offen offset:1024 sc1")
    a(f"buffer_load_dwordx4 {v(VB,4)}, v{VKVD}, s[{SKV}:{SKV+3}], s{T1} offen sc1")
    a(f"buffer_load_dwordx4 {v(VB+4,4)}, v{VKVD}, s[{SKV}:{SKV+3}], s{T1} offen offset:1024 sc1")
    a("s_waitcnt vmcnt(0)")
    a(mf32(SB, KB, QF, "0"))
    a(mf32(SB, KB + 4, QF + 4, v(SB, 16)))
    a("s_nop 15")
    a(f"v_max3_f32 v26, v27, v{SB}, v{SB+1}")
    for i in range(2, 16, 2): a(f"v_max3_f32 v26, v26, v{SB+i}, v{SB+i+1}")
    a("v_mov_b32 v28, v26")
    a("s_nop 1")
    a("v_permlane32_swap_b32 v26, v28")
    a("s_nop 0")
    a("v_max_f32 v26, v26, v28")
    a("v_sub_f32 v28, v27, v26")
    a("v_exp_f32 v28, v28")
    a("v_mov_b32 v27, v26")
    for i in range(16): a(f"v_sub_f32 v{SB+i}, v{SB+i}, v26")
    for i in range(16): a(f"v_exp_f32 v{SB+i}, v{SB+i}")
    for i in range(16): a(f"v_mul_f32 v{OA+i}, v{OA+i}, v28")
    a(f"v_mul_f32 v{RS}, v{RS}, v28")
    for i in range(8): a(f"v_cvt_pk_bf16_f32 v{PB+i}, v{SB+2*i}, v{SB+2*i+1}")
    a("s_nop 1")
    a(mf32(OA, VB, PB, v(OA, 16)))
    a(mfrs(PB))
    a(mf32(OA, VB + 4, PB + 4, v(OA, 16)))
    a(mfrs(PB + 4))
    a("s_nop 15")
    a(f"s_add_u32 s{T0}, s{T0}, 2048")
    a(f"s_cmp_lt_u32 s{T0}, {8192 + 64*2048}")
    a("s_cbranch_scc1 P2_SL")
    a("s_branch P2_FIN")
    a.label("KM_FIN")
    if STAMPS: a("s_waitcnt vmcnt(0)")
    stamp(a, 7)
    stamp_flush(a, 0, 8, P_WS, S_WAVE)
    a.label("KM_END")
    a("s_endpgm")
    return dict(name=NAME, grid=256, block=512, lds=int(os.environ.get('X_LDS', 163840)), vgpr=256, sgpr=102)
```

```python
from asmlib import *
import struct, math, os
NAME = "parallel_sum__grouped_kv_mqa__glu_gated_reglu__prompt_kernel"
QSCALE = struct.unpack("<I", struct.pack("<f", math.log2(math.e) / math.sqrt(32.0)))[0]
STOP = os.environ.get("STOP", "")
KVL = 131072
QLDS = 0
TLDS = 0
F_KV, F_H, F_O, F_NONCE, F_P = 8192, 12288, 16384, 24576, 32768
WS_ST = WS_XN
WLDS = 98304
KXL = 16384
STL = 32768
CSL = 16384
NS = int(os.environ.get('X_NS', 12))
SPIN_MAX = 1 << 21
P1MODE = int(os.environ.get('X_P1MODE', 1))
P1SHIFT = int(os.environ.get('X_P1SHIFT', 6))
P1PRIO = int(os.environ.get('X_P1PRIO', 0))
UNROLL = int(os.environ.get('X_UNROLL', 0))
NPRE = int(os.environ.get('X_NPRE', 1))
TLBW = int(os.environ.get('X_TLBW', 0))
TLBS = int(os.environ.get('X_TLBS', 21))
TLBP = 4
EARLY = int(os.environ.get('X_EARLY', 4))
NPRO = int(os.environ.get('X_NPRO', 4))
TE = int(os.environ.get('X_TE', 1))
TLATE = int(os.environ.get('X_TLATE', 1))
CODEPF = int(os.environ.get('X_CODEPF', 1))
PR1 = int(os.environ.get('X_PR1', 0))
PR2 = int(os.environ.get('X_PR2', 0))
PR3 = int(os.environ.get('X_PR3', 0))
NE = int(os.environ.get('X_NE', 4))
HSTEP = int(os.environ.get('X_HSTEP', 2))
WPF = int(os.environ.get('X_WPF', 0))
WST = int(os.environ.get('X_WST', 0))
WOFF = int(os.environ.get('X_WOFF', 0))
FART = int(os.environ.get('X_FART', 1))
HL = int(os.environ.get('X_HL', 1))
XL = int(os.environ.get('X_XL', 3))
P1TOUCH = int(os.environ.get('X_P1T', 1))

S_WAVE = 3
S_TW, S_TA = 4, 5
P_WS = 6
NONCE = 8
QMASK = 10
SX = 12
SWD = 16
S_XO, S_AO, S_WDO, S_MX, S_MW, S_CNT = 20, 21, 22, 23, 24, 25
S_HO = 24
S_CT, S_RP, S_WM, S_P, S_BB, S_WN = 26, 27, 28, 29, 30, 31
T0, T1, T2, T3 = 32, 33, 34, 35
SACT, SKV = 36, 40
P_X, P_OUT, P_WO, S_ISV, S_PB = 44, 46, 48, 50, 51
S_G, S_C2, S_KH, S_KVO, S_MKV, S_RING = 52, 53, 54, 55, 56, 57
SFLAG = 58
SWO, SPART = 92, 96
VL, VXD, VWA, VWB, VWS, VXR, VWR, VWP, VQQ, VT = 1, 2, 4, 6, 8, 10, 12, 14, 16, 17
ONES, CS = 20, 24
VKVR, VKVD, VPA, VPW = 18, 19, 20, 21
HS, VHO, VWOD = 160, 4, 7
VXA, XR = 8, 224
VTCH, VDUM = 31, 30
VPL, VPD = 27, 28
ACC, XF, WF = 128, 64, 32
def acc(st, t, j): return ACC + ((st * 2 + t) * 8 + j) * 4
def xf(p, j): return XF + (p * 8 + j) * 4
def wf(p, st, t): return WF + (p * 4 + st * 2 + t) * 4
def emit(a, groups):
    for g in groups:
        for x in g: a(x)

def flag_set(a, off_sgpr):
    a(f"v_mov_b32 v22, s{off_sgpr}")
    a(f"v_mov_b32 v24, s{NONCE}")
    a(f"v_mov_b32 v25, s{NONCE+1}")
    a("s_mov_b64 exec, 1")
    a(f"global_store_dwordx2 v22, v[24:25], s[{SFLAG}:{SFLAG+1}] sc1")
    a("s_mov_b64 exec, -1")
def poll_load(): return f"global_load_dwordx2 {v(VPD,2)}, v{VPL}, s[{SFLAG}:{SFLAG+1}] sc1"
def poll_issue(a, off_sgpr, n):
    a(f"v_and_b32 v{VPL}, {n-1}, v{VL}")
    a(f"v_lshlrev_b32 v{VPL}, 3, v{VPL}")
    a(f"v_add_u32 v{VPL}, s{off_sgpr}, v{VPL}")
    a(poll_load())
_lab = [0]
def spin(a, cmps, loads, sleep=1):
    _lab[0] += 1
    n = _lab[0]
    a(f"s_mov_b32 s{T1}, {SPIN_MAX}")
    a.label(f"PL{n}")
    for x in cmps: a(x)
    a("s_cmp_eq_u64 vcc, -1")
    a(f"s_cbranch_scc1 PD{n}")
    a(f"s_sub_u32 s{T1}, s{T1}, 1")
    a(f"s_cbranch_scc1 PD{n}")
    a(f"s_sleep {sleep}")
    for x in loads: a(x)
    a("s_waitcnt vmcnt(0)")
    a(f"s_branch PL{n}")
    a.label(f"PD{n}")
def poll_check(a):
    spin(a, [f"v_cmp_eq_u64 vcc, s[{NONCE}:{NONCE+1}], {v(VPD,2)}"], [poll_load()])
def wave0(a, fn):
    _lab[0] += 1
    n = _lab[0]
    a(f"s_cmp_lg_u32 s{S_WAVE}, 0")
    a(f"s_cbranch_scc1 W0_{n}")
    fn()
    a.label(f"W0_{n}")

def p1_dma_x(h, tau):
    if os.environ.get("X_ROT"):
        return [[f"s_add_u32 s{S_XO}, s{S_ROT}, {tau*128}", f"s_and_b32 s{S_XO}, s{S_XO}, 2047", f"s_add_u32 m0, s{S_MX}, {(h*3 + tau%3)*16384}",
             f"s_or_b32 s{S_XO}, s{S_XO}, {h*128*2048}" if h else "s_nop 0",
             f"buffer_load_dwordx4 v{VXD}, s[{SX}:{SX+3}], s{S_XO} offen lds"],
            [f"buffer_load_dwordx4 v{VXD+1}, s[{SX}:{SX+3}], s{S_XO} offen offset:1024 lds"]]
    return [[f"s_add_u32 m0, s{S_MX}, {(h*3 + tau%3)*16384}", f"s_mov_b32 s{S_XO}, {h*128*2048 + tau*128}",
             f"buffer_load_dwordx4 v{VXD}, s[{SX}:{SX+3}], s{S_XO} offen lds"],
            [f"buffer_load_dwordx4 v{VXD+1}, s[{SX}:{SX+3}], s{S_XO} offen offset:1024 lds"]]
def p1_dma_w(k):
    slot = k % 4
    return [[f"s_add_u32 m0, s{S_MW}, {slot*16384}", "s_nop 0", f"global_load_lds_dwordx4 {v(VWA,2)}, off",
             f"s_add_u32 m0, s{S_MW}, {slot*16384+2048}",
             f"v_lshl_add_u64 {v(VWA,2)}, {v(VWS,2)}, 0, {v(VWA,2)}"],
            [f"global_load_lds_dwordx4 {v(VWB,2)}, off",
             f"v_lshl_add_u64 {v(VWB,2)}, {v(VWS,2)}, 0, {v(VWB,2)}"]]
def p1_reads(k):
    p = k & 1
    r = []
    for st in range(2):
        for t in range(2):
            for half in range(2):
                r.append(f"ds_read_b64_tr_b16 {v(wf(p,st,t)+2*half,2)}, v{VWR+t} offset:{(k%4)*16384 + st*8192 + half*4096}")
    for j in range(8):
        r.append(f"ds_read_b128 {v(xf(p,j),4)}, v{VXR+(k&1)} offset:{((k>>1)%3)*16384 + j*2048}")
    return r
def p1_mfma(p, first=False):
    m = []
    for j in range(8):
        order = [(0,0),(0,1),(1,0),(1,1)]
        if j & 1: order = order[::-1]
        for st, t in order:
            d = acc(st, t, j)
            m.append(f"v_mfma_f32_16x16x32_bf16 {v(d,4)}, {v(wf(p,st,t),4)}, {v(xf(p,j),4)}, {0 if first else v(d,4)}")
    return m
def cs_mfma(p, st, grp): return f"v_mfma_f32_16x16x32_bf16 {v(CS+4*st,4)}, {v(wf(p,st,grp),4)}, {v(ONES,4)}, {v(CS+4*st,4)}"
CSV = int(os.environ.get("X_CSV", 0))
def cs_valu(p, grp):
    o = []
    for st in range(2):
        for r in range(4):
            src = wf(p, st, grp) + r; t = 20 + 2 * (r & 1)
            o += [f"v_lshlrev_b32 v{t}, 16, v{src}", f"v_and_b32 v{t+1}, 0xffff0000, v{src}",
                  f"v_add_f32 v{CS+2*st}, v{CS+2*st}, v{t}", f"v_add_f32 v{CS+2*st+1}, v{CS+2*st+1}, v{t+1}"]
    return o
def add_cs(m, fill, p, grp):
    if not CSV:
        return m[:10] + [cs_mfma(p, 0, grp)] + m[10:20] + [cs_mfma(p, 1, grp)] + m[20:], fill
    fill = [list(f) for f in fill]
    while len(fill) < 32: fill.append([])
    order = sorted(range(32), key=lambda i: (len(fill[i]) > 0, i))
    vv = cs_valu(p, grp)
    slots = sorted([i for i in range(32) if not fill[i]] * 2 + [i for i in range(32) if fill[i]])
    empt = [i for i in range(32) if not fill[i]]
    rest = [i for i in range(32) if fill[i]]
    need = 32 - 2 * len(empt)
    pick = sorted(empt * 2 + rest[-need:] if need > 0 else (empt * 2)[:32])
    for i, x in zip(pick, vv): fill[i].append(x)
    return m, fill
def weave(a, m, fill):
    for i, ins in enumerate(m):
        a(ins)
        if i < len(fill):
            for x in fill[i]: a(x)
    emit(a, fill[len(m):])
class VM:
    def __init__(self): self.q = []
    def add(self, need, n=1): self.q += [need] * n
    def wait(self, b):
        last = max([i for i, x in enumerate(self.q) if x <= b], default=-1)
        return len(self.q) - 1 - last
S_XM, S_XT, S_WM0, S_DX, S_DW = S_TW, S_TA, S_RING, S_ISV, S_PB
def gen_p1(a, grp, vm0):
    vm = VM(); vm.q = list(vm0.q)
    LO, HI = NS - 3, 26
    LO += LO & 1
    if not os.environ.get('X_LOOP'): LO = HI = 99
    G = "AB"[grp]
    for _ in range(int(os.environ.get("X_SH1", 0))): a("s_nop 0")
    def dyn_entry(k):
        tau = k // 2 + 2
        a(f"s_add_u32 s{S_XM}, s{S_MX}, {(tau % 3) * 16384}")
        a(f"s_movk_i32 s{S_XT}, {tau * 128}")
        a(f"s_movk_i32 s{S_WM0}, {k % 4}")
        a(f"s_movk_i32 s{S_DX}, {(k // 2) % 3}")
        for i in range(2):
            a(f"v_add_u32 v{VXR+i}, {((k // 2) % 3) * 16384}, v{VXR+i}")
            a(f"v_add_u32 v{VWR+i}, {((k + 1) % 4) * 16384}, v{VWR+i}")
    def dyn_exit(k):
        for i in range(2):
            a(f"v_subrev_u32 v{VXR+i}, {((k // 2) % 3) * 16384}, v{VXR+i}")
            a(f"v_subrev_u32 v{VWR+i}, {((k + 1) % 4) * 16384}, v{VWR+i}")
    def dyn_step(p):
        fill = []
        if p == 0:
            fill.append([f"s_add_u32 m0, s{S_XM}, 49152", f"s_or_b32 s{S_XO}, s{S_XT}, {128*2048}",
                         f"buffer_load_dwordx4 v{VXD}, s[{SX}:{SX+3}], s{S_XO} offen lds"])
            fill.append([f"buffer_load_dwordx4 v{VXD+1}, s[{SX}:{SX+3}], s{S_XO} offen offset:1024 lds",
                         f"s_add_u32 s{S_XT}, s{S_XT}, 128", f"s_cmp_eq_u32 s{S_DX}, 0", f"s_movk_i32 s{T0}, 16384",
                         f"s_cselect_b32 s{T0}, {-32768 & 0xffffffff}, s{T0}", f"s_add_u32 s{S_XM}, s{S_XM}, s{T0}"])
        else:
            fill.append([f"s_mov_b32 m0, s{S_XM}", "s_nop 0", f"buffer_load_dwordx4 v{VXD}, s[{SX}:{SX+3}], s{S_XT} offen lds"])
            fill.append([f"buffer_load_dwordx4 v{VXD+1}, s[{SX}:{SX+3}], s{S_XT} offen offset:1024 lds"])
        fill.append([f"s_lshl_b32 s{T1}, s{S_WM0}, 14", f"s_add_u32 m0, s{S_MW}, s{T1}", f"s_add_u32 s{S_WM0}, s{S_WM0}, 1",
                     f"global_load_lds_dwordx4 {v(VWA,2)}, off", "s_add_u32 m0, m0, 2048",
                     f"v_lshl_add_u64 {v(VWA,2)}, {v(VWS,2)}, 0, {v(VWA,2)}"])
        fill.append([f"global_load_lds_dwordx4 {v(VWB,2)}, off", f"s_and_b32 s{S_WM0}, s{S_WM0}, 3",
                     f"v_lshl_add_u64 {v(VWB,2)}, {v(VWS,2)}, 0, {v(VWB,2)}"])
        q = p ^ 1
        rd = [[f"ds_read_b64_tr_b16 {v(wf(q,st,t)+2*half,2)}, v{VWR+t} offset:{st*8192 + half*4096}"] for st in range(2) for t in range(2) for half in range(2)]
        rd[-1] += [f"s_cmp_eq_u32 s{S_WM0}, 3", f"s_movk_i32 s{T0}, 16384", f"s_cselect_b32 s{T0}, {-49152 & 0xffffffff}, s{T0}",
                   f"v_add_u32 v{VWR}, s{T0}, v{VWR}", f"v_add_u32 v{VWR+1}, s{T0}, v{VWR+1}"]
        rd += [[f"ds_read_b128 {v(xf(q,j),4)}, v{VXR+q} offset:{j*2048}"] for j in range(8)]
        if p == 0:
            rd[-1] += [f"s_cmp_eq_u32 s{S_DX}, 2", f"s_movk_i32 s{T0}, 16384", f"s_cselect_b32 s{T0}, {-32768 & 0xffffffff}, s{T0}",
                       f"s_cselect_b32 s{S_DX}, -1, s{S_DX}", f"v_add_u32 v{VXR}, s{T0}, v{VXR}", f"v_add_u32 v{VXR+1}, s{T0}, v{VXR+1}",
                       f"s_add_u32 s{S_DX}, s{S_DX}, 1"]
        fill += rd
        if grp: fill = [[] for _ in range(P1SHIFT)] + fill
        m, fill = add_cs(p1_mfma(p), fill, p, grp)
        weave(a, m, fill)
        a("s_waitcnt vmcnt(8) lgkmcnt(0)")
        if p == 1:
            a(f"s_sub_u32 s{S_DW}, s{S_DW}, 1")
            a(f"s_cmp_lg_u32 s{S_DW}, 0")
        a("s_barrier")
    for s_ in range(32):
        p = s_ & 1
        h = (s_ + 1) & 1; tau = (s_ - 1 - h) // 2 + 3
        if LO <= s_ < HI:
            vm.add(2 * tau - 1, 2); vm.add(s_ + 3, 2)
            assert vm.wait(s_ + 1) == 8
            if s_ == LO:
                dyn_entry(LO)
                a(f"s_movk_i32 s{S_DW}, {(HI - LO) // 2}")
                a.raw(".p2align 6")
                a.label("P1_L" + G)
                dyn_step(0); dyn_step(1)
                a("s_cbranch_scc1 P1_L" + G)
                dyn_exit(HI)
            continue
        nstamp(a, f"s{s_}")
        fill = []
        if s_ == NS - 6:
            mark = len(vm.q)
            if not grp:
                fill.append([f"s_cmp_gt_u32 s{S_WAVE}, 1", "s_cbranch_scc1 P1_NP0", "v_mbcnt_lo_u32_b32 v16, -1, 0", "v_mbcnt_hi_u32_b32 v16, -1, v16", "v_lshlrev_b32 v16, 4, v16", f"v_add_u32 v16, s{S_PB}, v16", f"global_load_dwordx4 v[16:19], v16, s[{SFLAG}:{SFLAG+1}] sc1", "P1_NP0:"])
        if s_ == 1:
            if not grp:
                fill.append([f"s_cmp_lg_u32 s{S_WAVE}, 0", "s_cbranch_scc1 P1_NF", f"v_mov_b32 v16, s{NONCE}", f"v_mov_b32 v17, s{NONCE+1}", f"v_mov_b32 v18, s{S_CNT}",
                             "s_mov_b64 exec, 1", f"global_store_dwordx2 v18, v[16:17], s[{SFLAG}:{SFLAG+1}] sc1", "s_mov_b64 exec, -1", "P1_NF:"])
        if s_ == 0:
            fill += p1_dma_x(1, 1); vm.add(1, 2)
            fill += p1_dma_w(2); vm.add(1, 2)
            fill += p1_dma_w(3); vm.add(2, 2)
            fill += p1_dma_x(0, 2); vm.add(3, 2)
        if s_ + 4 == NS:
            fill.append([f"s_mov_b64 exec, s[{QMASK}:{QMASK+1}]", f"v_mov_b32 v{VWA}, v{VWP}", f"v_mov_b32 v{VWA+1}, v{VWP+1}",
                         f"v_mov_b32 v{VWS}, 512", f"v_lshl_add_u64 {v(VWB,2)}, {v(VWS,2)}, 0, {v(VWA,2)}", f"v_mov_b32 v{VWS}, 2048", "s_mov_b64 exec, -1"])
        if tau < 16:
            fill += p1_dma_x(h, tau); vm.add(2 * tau - 1, 2)
        if s_ + 4 < 32:
            fill += p1_dma_w(s_ + 4); vm.add(s_ + 3, 2)
        if WST and s_ % WST == WOFF and WPF + s_ // WST * (WST // 4) < 8:
            for _ in range(WST // 4):
                fill.append([f"s_add_u32 s{S_TW}, s{S_TW}, {128*7168}", f"s_addc_u32 s{S_TA}, s{S_TA}, 0", "s_mov_b64 exec, 0x7f",
                             f"global_load_dword v{VL}, v0, s[{S_TW}:{S_TA}]", "s_mov_b64 exec, -1"])
                vm.add(min(s_ + 4, 27), 1)
        if s_ == 27:
            fill.append([f"v_mbcnt_lo_u32_b32 v{VL}, -1, 0", f"v_mbcnt_hi_u32_b32 v{VL}, -1, v{VL}"])
            fill.append([f"v_lshlrev_b32 v{VKVD}, 4, v{VL}", f"s_lshr_b32 s{T0}, s2, 3", f"s_lshl_b32 s{T0}, s{T0}, 13", f"s_lshr_b32 s{T1}, s{S_MX}, 1", f"s_add_u32 s{T0}, s{T0}, s{T1}",
                         f"s_add_u32 s{T0}, s{T0}, 8192", f"buffer_load_dword v16, v{VKVD}, s[{SKV}:{SKV+3}], s{T0} offen"])
            vm.add(30, 1)
        if s_ == 29:
            fill.append([f"s_lshr_b32 s{T0}, s{S_MX}, 1", f"s_add_u32 m0, s{T0}, {STL}", "s_nop 0",
                         f"buffer_load_dwordx4 v{VKVD}, s[{SPART}:{SPART+3}], s{S_AO} offen lds"])
            vm.add(31, 1)
        if s_ == 30:
            fill.append([f"s_xor_b32 m0, s{S_MKV}, 0x4000", f"s_add_u32 s{T0}, s{S_KVO}, 8192",
                         f"buffer_load_dwordx4 v{VKVD}, s[{SKV}:{SKV+3}], s{T0} offen lds"])
            fill.append([f"buffer_load_dwordx4 v{VKVD}, s[{SKV}:{SKV+3}], s{T0} offen offset:1024 lds"])
            vm.add(99, 2)
        m = p1_mfma(p, s_ == 0)
        if s_ == 30:
            fill.append([f"v_lshlrev_b32 v{VKVD}, 4, v{VL}", f"v_lshrrev_b32 v{VQQ}, 4, v{VL}", f"v_and_b32 v{VT}, 15, v{VL}",
                         f"v_add_u32 v{VKVR}, {KVL}, v{VKVD}"])
            fill.append([f"v_lshlrev_b32 v0, 3, v{VT}", f"s_lshr_b32 s{T0}, s{S_MX}, 1", f"v_add_u32 v0, s{T0}, v0", f"v_add_u32 v{VWP}, s{S_MX}, v{VKVD}",
                         f"s_lshl_b32 s{T0}, s{S_WN}, 11", f"v_add_u32 v{VWP+1}, s{T0}, v{VKVD}"])
            if CSV:
                fill.append([f"s_lshl_b32 s{T0}, s{S_WAVE}, 7", f"v_lshlrev_b32 v28, 2, v{VT}", f"v_add_u32 v28, s{T0}, v28",
                             f"s_lshl_b32 s{T0}, s{S_WN}, 7", f"v_lshlrev_b32 v{VWP+1}, 4, v{VQQ}", f"v_add_u32 v{VWP+1}, s{T0}, v{VWP+1}"])
        if s_ < 31:
            fill += [[x] for x in p1_reads(s_ + 1)]
            if grp: fill = [[] for _ in range(P1SHIFT if len(fill) <= 26 else 0)] + fill
            m, fill = add_cs(m, fill, p, grp)
        elif CSV:
            vv = cs_valu(p, grp)
            fill = [vv[2*i:2*i+2] for i in range(16)]
            fill += [[f"v_add_f32 v{CS}, v{CS}, v{CS+1}", f"v_add_f32 v{CS+2}, v{CS+2}, v{CS+3}"]]
            for sw in ("v_permlane16_swap_b32", "v_permlane32_swap_b32"):
                fill += [[f"v_mov_b32 v{CS+1}, v{CS}", f"v_mov_b32 v{CS+3}, v{CS+2}"], ["s_nop 0", f"{sw} v{CS}, v{CS+1}", f"{sw} v{CS+2}, v{CS+3}"],
                         [f"v_add_f32 v{CS}, v{CS}, v{CS+1}", f"v_add_f32 v{CS+2}, v{CS+2}, v{CS+3}"]]
            fill += [[f"ds_write_b32 v28, v{CS} offset:{CSL}", f"ds_write_b32 v28, v{CS+2} offset:{CSL+64}"]]
            ex = [[f"s_mov_b32 m0, s{S_MKV}", "s_nop 0", f"buffer_load_dwordx4 v{VKVD}, s[{SKV}:{SKV+3}], s{S_KVO} offen lds"],
                  [f"buffer_load_dwordx4 v{VKVD}, s[{SKV}:{SKV+3}], s{S_KVO} offen offset:1024 lds", f"s_add_u32 s{S_KVO}, s{S_KVO}, 16384"]]
            ex += [[f"ds_read_b64 {v(XF+2*j,2)}, v0 offset:{STL + j*128}"] for j in range(8)]
            for i, e in enumerate(ex): fill[i] = fill[i] + list(e)
        else:
            m = [cs_mfma(p, 0, grp), cs_mfma(p, 1, grp)] + m
            fill = [[f"s_mov_b32 m0, s{S_MKV}", "s_nop 0", f"buffer_load_dwordx4 v{VKVD}, s[{SKV}:{SKV+3}], s{S_KVO} offen lds"],
                    [f"buffer_load_dwordx4 v{VKVD}, s[{SKV}:{SKV+3}], s{S_KVO} offen offset:1024 lds", f"s_add_u32 s{S_KVO}, s{S_KVO}, 16384"]]
            fill += [[f"ds_read_b64 {v(XF+2*j,2)}, v0 offset:{STL + j*128}"] for j in range(8)] + [[], []]
            fill += [[f"ds_write_b128 v{VWP}, {v(CS+4*st,4)} offset:{CSL + st*1024}"] for st in range(2)]
        weave(a, m, fill)
        if s_ < 31:
            a(f"s_waitcnt vmcnt({vm.wait(s_ + 1)}) lgkmcnt(0)")
        else:
            a("s_waitcnt lgkmcnt(0)")
        if s_ == NS - 5 and not grp:
            n = f"s[{NONCE}:{NONCE+1}]"
            a(f"s_cmp_gt_u32 s{S_WAVE}, 1")
            a("s_cbranch_scc1 P1_NP1")
            a(f"s_waitcnt vmcnt({len(vm.q) - mark})")
            spin(a, [f"v_cmp_eq_u64 vcc, {n}, v[16:17]", f"v_cmp_eq_u64 s[{T2}:{T3}], {n}, v[18:19]", f"s_and_b64 vcc, vcc, s[{T2}:{T3}]"],
                 ["v_mbcnt_lo_u32_b32 v16, -1, 0", "v_mbcnt_hi_u32_b32 v16, -1, v16", "v_lshlrev_b32 v16, 4, v16", f"v_add_u32 v16, s{S_PB}, v16", f"global_load_dwordx4 v[16:19], v16, s[{SFLAG}:{SFLAG+1}] sc1"], sleep=8)
            a.label("P1_NP1")
        a("s_barrier")
def kv_dma():
    return [[f"s_mov_b32 m0, s{S_MKV}", f"s_xor_b32 s{S_MKV}, s{S_MKV}, 0x4000",
             f"buffer_load_dwordx4 v{VKVD}, s[{SKV}:{SKV+3}], s{S_KVO} offen lds"],
            [f"buffer_load_dwordx4 v{VKVD}, s[{SKV}:{SKV+3}], s{S_KVO} offen offset:1024 lds",
             f"s_add_u32 s{S_KVO}, s{S_KVO}, 8192"]]

QF, KB, VB, PB, SEL, RS, SB, OA, NM = 32, 40, 56, 72, 88, 92, 96, 128, 144
def mf32(d, x, y, c): return f"v_mfma_f32_32x32x16_bf16 {v(d,16)}, {v(x,4)}, {v(y,4)}, {c}"
def mfrs(p): return f"v_mfma_f32_16x16x32_bf16 {v(RS,4)}, {v(SEL,4)}, {v(p,4)}, {v(RS,4)}"
LAG = int(os.environ.get('X_LAG', 1))
CUTS = eval(os.environ.get('X_CUTS', '[0, 4, 9, 13, 16, 21]'))
def att_slot(a, n, qk=True, pv=True, rd=True, pre=()):
    b = n & 1
    S = SB + 16 * b; S1 = SB + 16 * (b ^ 1)
    P = PB + 8 * b; P1 = PB + 8 * (b ^ 1)
    K1 = KB + 8 * (b ^ 1); V1 = VB + 8 * (b ^ 1)
    m = []
    if qk:
        m.append(mf32(S1, K1, QF, v(NM, 16)))
        m.append(mf32(S1, K1 + 4, QF + 4, v(S1, 16)))
    if pv:
        m += [mf32(OA, V1, P1, v(OA, 16)), mfrs(P1), mf32(OA, V1 + 4, P1 + 4, v(OA, 16)), mfrs(P1 + 4)]
    val = []
    for i in range(16):
        val.append(f"v_exp_f32 v{S+i}, v{S+i}")
        k = i - LAG
        if k >= 1 and k % 2 == 1:
            val.append(f"v_cvt_pk_bf16_f32 v{P+k//2}, v{S+k-1}, v{S+k}")
    if LAG == 1: val.append("s_nop 0")
    for k in range(16 - LAG, 16):
        if k % 2 == 1: val.append(f"v_cvt_pk_bf16_f32 v{P+k//2}, v{S+k-1}, v{S+k}")
    rds = []
    if rd:
        pos = (n & 3) * 2048
        rds = [f"ds_read_b128 {v(KB+8*b,4)}, v{VKVR} offset:{pos}",
               f"ds_read_b128 {v(KB+8*b+4,4)}, v{VKVR} offset:{pos+1024}",
               f"ds_read_b128 {v(VB+8*b,4)}, v{VKVR} offset:{8192+pos}",
               f"ds_read_b128 {v(VB+8*b+4,4)}, v{VKVR} offset:{8192+pos+1024}"]
    other = [list(g) for g in pre] + [[x] for x in rds]
    cuts = CUTS[:len(m)]
    k = 0; oi = 0
    for i, x in enumerate(val):
        if k < len(m) and i == cuts[k]:
            a(m[k]); k += 1
            if oi < len(other):
                emit(a, [other[oi]]); oi += 1
        a(x)
        if i in (2, 6, 11) and oi < len(other) and len(other) > len(m):
            emit(a, [other[oi]]); oi += 1
    emit(a, other[oi:])
def prefill_dma():
    return [[f"s_add_u32 m0, s{S_RING}, s{T3}", "s_nop 0",
             f"buffer_load_dwordx4 v{VPA}, s[{SACT}:{SACT+3}], s{S_AO} offen lds",
             f"s_add_u32 s{S_AO}, s{S_AO}, 8192"],
            [f"s_add_u32 m0, m0, 8192", f"s_add_u32 s{S_RING}, s{S_RING}, 16384",
             f"buffer_load_dwordx4 v{VPW}, s[{SWD}:{SWD+3}], s{S_WDO} offen lds",
             f"s_add_u32 s{S_WDO}, s{S_WDO}, 65536"]]
def touch_w(n0):
    return [[f"s_add_u32 s{T0}, s{S_WAVE}, {n0}", f"s_lshl_b32 s{T0}, s{T0}, 17", f"s_add_u32 s{T0}, s{T0}, s{S_TW}",
             f"buffer_load_dword v{VDUM}, v{VTCH}, s[{SWD}:{SWD+3}], s{T0} offen"]]
def touch_a(m0):
    return [[f"s_add_u32 s{T0}, s{S_WAVE}, {m0}", f"s_lshl_b32 s{T0}, s{T0}, 15", f"s_add_u32 s{T0}, s{T0}, s{S_TA}",
             f"buffer_load_dword v{VDUM}, v{VTCH}, s[{SACT}:{SACT+3}], s{T0} offen"]]
def touch_wo():
    return [[f"s_lshl_b32 s{T0}, s2, 13", f"s_add_u32 s{T0}, s{T0}, s{T3}",
             f"buffer_load_dword v{VDUM}, v{VKVD}, s[{SWO}:{SWO+3}], s{T0} offen"]]
STASH = int(os.environ.get("X_STASH", 0)); WRG = 160; STH0 = 12
def wo_stash(i0, n):
    if not STASH: return []
    g = [f"s_cmp_eq_u32 s{S_WM}, 0", f"s_cbranch_scc1 WS{i0}"]
    for i in range(i0, i0 + n):
        g += [f"s_mov_b32 s{T0}, {(STH0 + i)*65536}", f"buffer_load_dwordx4 {v(WRG+4*i,4)}, v12, s[{SWO}:{SWO+3}], s{T0} offen"]
    return [g + [f"WS{i0}:"]]
def h_store(j):
    off = (j >> 1) * 2048 + (j & 1) * 256
    tail = f"v{VHO + (off>>12)}, s[{SACT}:{SACT+3}], s{S_HO} offen offset:{off & 4095} sc1"
    return [[f"s_cmp_eq_u32 s{S_WN}, 3", f"s_cbranch_scc1 HS{j}A", f"buffer_store_dwordx4 {v(HS+4*j,4)}, {tail}",
             f"s_branch HS{j}B", f"HS{j}A:", f"buffer_store_dwordx2 {v(HS+4*j,2)}, {tail}", f"HS{j}B:"]]
def att_epoch(a, E, first=False, last=False, prefill=0, wait=0, post=None, pre_bar=None, x1=(), x2=(), x3=()):
    nstamp(a, f"e{E}a")
    a(f"s_waitcnt vmcnt({wait}) lgkmcnt(0)")
    if pre_bar: pre_bar()
    a("s_barrier")
    nstamp(a, f"e{E}c")
    if not first: a(f"v_xor_b32 v{VKVR}, 0x4000, v{VKVR}")
    if post: post()
    for i in range(4):
        pre = []
        if i == 0 and not last: pre += kv_dma()
        if i in (1, 2)[:prefill]: pre += prefill_dma()
        if i == 1: pre += list(x1)
        if i == 2: pre += list(x2)
        if i == 3: pre += list(x3)
        if i: a("s_waitcnt lgkmcnt(0)")
        att_slot(a, 4 * E + i, qk=not (last and i == 3), pv=not (first and i == 0), pre=pre)

def wave_sum(a, r, t):
    for mod in ("quad_perm:[1,0,3,2]", "quad_perm:[2,3,0,1]", "row_half_mirror", "row_mirror"):
        a("s_nop 1")
        a(f"v_add_f32_dpp v{r}, v{r}, v{r} {mod} row_mask:0xf bank_mask:0xf")
    for sw in ("v_permlane16_swap_b32", "v_permlane32_swap_b32"):
        a(f"v_mov_b32 v{t}, v{r}")
        a("s_nop 1")
        a(f"{sw} v{r}, v{t}")
        a(f"v_add_f32 v{r}, v{r}, v{t}")

def gen_p0(a, vm):
    VTR, VTW, VFR, VTA, VTB, VTX, VQS, VEX, VKS, VQD, VPF = 0, 20, 21, 22, 24, 26, 27, 28, 29, 30, 31
    SV = 29
    A0, A1, A2, A3, A4, A5, A6, A7, TID = 100, 101, 102, 103, 104, 105, 106, 107, 108
    TL = 16384
    a(f"s_load_dwordx2 s[{P_X}:{P_X+1}], s[0:1], {K_X}")
    a(f"s_load_dwordx8 s[92:99], s[0:1], {K_WQ}")
    a(f"s_load_dwordx2 s[{P_WS}:{P_WS+1}], s[0:1], {K_WS}")
    a(f"s_load_dwordx8 s[36:43], s[0:1], {K_WG}")
    a(f"v_lshrrev_b32 v{A0}, 6, v0")
    a(f"v_and_b32 v{VL}, 63, v0")
    a(f"v_mov_b32 v{TID}, v0")
    a(f"v_readfirstlane_b32 s{S_WAVE}, v{A0}")
    a(f"v_lshlrev_b32 v{VKVD}, 4, v{VL}")
    a(f"s_lshr_b32 s{S_PB}, s2, 4")
    a(f"s_lshl_b32 s{S_PB}, s{S_PB}, 3")
    a(f"s_and_b32 s{T0}, s2, 7")
    a(f"s_add_u32 s{S_PB}, s{S_PB}, s{T0}")
    a(f"s_lshl_b32 s{T0}, s{S_PB}, 4")
    a(f"s_add_u32 s{S_AO}, s{T0}, s{S_WAVE}")
    a(f"s_lshl_b32 s{T0}, s{S_AO}, 11")
    a(f"s_add_u32 s{T1}, s{T0}, {8*2048}")
    a("s_waitcnt lgkmcnt(0)")
    if STOP == "p0": a("s_branch KM_FIN")
    srd(a, SX, P_X, P_X + 1, 4 << 20)
    a(f"buffer_load_dwordx4 v[32:35], v{VKVD}, s[{SX}:{SX+3}], s{T0} offen")
    a(f"buffer_load_dwordx4 v[36:39], v{VKVD}, s[{SX}:{SX+3}], s{T0} offen offset:1024")
    a(f"buffer_load_dwordx4 v[40:43], v{VKVD}, s[{SX}:{SX+3}], s{T1} offen")
    a(f"buffer_load_dwordx4 v[44:47], v{VKVD}, s[{SX}:{SX+3}], s{T1} offen offset:1024")
    nstamp(a, "xi")
    a(f"s_getpc_b64 s[{T2}:{T3}]")
    a.label("PF_BASE")
    a(f"s_lshr_b32 s{T0}, s2, 3")
    a(f"s_lshl_b32 s{T0}, s{T0}, 12")
    a(f"v_lshrrev_b32 v{VPF}, 3, v0")
    a(f"v_lshlrev_b32 v{VPF}, 6, v{VPF}")
    a(f"v_add_u32 v{VPF}, s{T0}, v{VPF}")
    a(f"v_min_u32 v{VPF}, KM_END - PF_BASE, v{VPF}")
    a(f"global_load_dword v18, v{VPF}, s[{T2}:{T3}]")
    a(f"s_add_u32 s{SFLAG}, s{P_WS}, {WS_FLAG}")
    a(f"s_addc_u32 s{SFLAG+1}, s{P_WS+1}, 0")
    a(f"s_load_dwordx2 s[{NONCE}:{NONCE+1}], s[{SFLAG}:{SFLAG+1}], {F_NONCE}")
    a(f"v_lshrrev_b32 v{VQQ}, 4, v{VL}")
    a(f"v_and_b32 v{VT}, 15, v{VL}")
    a(f"s_bfe_u32 s{S_ISV}, s2, 0x10003")
    a(f"s_and_b32 s{S_KH}, s2, 1")
    a(f"s_mov_b32 s{P_OUT}, s42")
    a(f"s_mov_b32 s{P_OUT+1}, s43")
    a(f"s_mov_b32 s{P_WO}, s98")
    a(f"s_mov_b32 s{P_WO+1}, s99")
    srd(a, SWD, 40, 41, 3584 * 2048)
    a(f"s_cmp_lt_u32 s{S_WAVE}, 4")
    a(f"s_cselect_b32 s{S_TW}, s36, s38")
    a(f"s_cselect_b32 s{S_TA}, s37, s39")
    if WPF:
        a(f"v_and_b32 v{A0}, 255, v0")
        a(f"v_min_u32 v{A0}, {28*WPF - 1}, v{A0}")
        a(f"v_lshlrev_b32 v{A0}, 7, v{A0}")
        a(f"s_mul_i32 s{T0}, s2, {3584*WPF}")
        a(f"v_add_u32 v{A0}, s{T0}, v{A0}")
        a(f"global_load_dword v18, v{A0}, s[{S_TW}:{S_TA}]")
    srd(a, SACT, 92, 93, 2 << 20)
    a(f"s_cmp_eq_u32 s{S_ISV}, 0")
    a(f"s_cselect_b32 s{SKV}, s94, s96")
    a(f"s_cselect_b32 s{SKV+1}, s95, s97")
    a(f"s_mov_b32 s{SKV+2}, 65536")
    a(f"s_mov_b32 s{SKV+3}, 0x20000")
    srd(a, SPART, P_WS, P_WS + 1, 8 << 20)
    a(f"s_lshr_b32 s{T0}, s2, 3")
    a(f"s_lshl_b32 s{S_RP}, s{S_KH}, 2")
    a(f"s_and_b32 s{T1}, s{T0}, 3")
    a(f"s_add_u32 s{S_RP}, s{S_RP}, s{T1}")
    a(f"s_bfe_u32 s{S_CT}, s2, 0x20001")
    a(f"s_lshl_b32 s{S_G}, s{S_CT}, 2")
    a(f"s_lshl_b32 s{S_CT}, s{S_CT}, 3")
    a(f"s_lshr_b32 s{S_C2}, s{T0}, 2")
    a(f"s_add_u32 s{S_CT}, s{S_CT}, s{S_C2}")
    a(f"s_add_u32 s{S_G}, s{S_G}, s{T1}")
    a(f"s_lshr_b32 s{S_WM}, s{S_WAVE}, 2")
    a(f"s_and_b32 s{S_P}, s{S_WAVE}, 1")
    a(f"s_bfe_u32 s{S_BB}, s{S_WAVE}, 0x10001")
    a(f"s_and_b32 s{S_WN}, s{S_WAVE}, 3")
    a(f"s_lshl_b32 s{S_MX}, s{S_WAVE}, 11")
    a(f"s_lshl_b32 s{S_RING}, s{S_WAVE}, 13")
    a(f"s_lshl_b32 s{T1}, s{S_WM}, 15")
    a(f"s_add_u32 s{T1}, s{T1}, 0x10000")
    a(f"s_add_u32 s{T1}, s{T1}, s{S_RING}")
    for h in range(2):
        a(f"s_add_u32 m0, s{T1}, {h*4096}")
        a(f"s_add_u32 s{T0}, s{S_RING}, {h*4096}")
        for i in range(4):
            a(f"buffer_load_dwordx4 v{VKVD}, s[{SKV}:{SKV+3}], s{T0} offen offset:{i*1024} lds")
    a(f"v_lshrrev_b32 v{A2}, 3, v{TID}")
    a(f"v_and_b32 v{A0}, 7, v{A2}")
    a(f"s_lshl_b32 s{T0}, s{S_WAVE}, 4")
    a(f"v_add_u32 v{A0}, s{T0}, v{A0}")
    a(f"v_lshlrev_b32 v{A0}, 11, v{A0}")
    a(f"v_and_b32 v{A1}, 7, v{VL}")
    a(f"v_xor_b32 v{A1}, v{A1}, v{VQQ}")
    a(f"v_lshl_add_u32 v{VXD}, v{A1}, 4, v{A0}")
    a(f"v_xor_b32 v{VXD+1}, 64, v{VXD}")
    a(f"v_add_u32 v{VXD+1}, {8*2048 - 1024}, v{VXD+1}")
    a(f"s_add_u32 s{T0}, s{T0}, {TL}")
    a(f"v_lshlrev_b32 v{VTW}, 8, v{VL}")
    a(f"v_add_u32 v{VTW}, s{T0}, v{VTW}")
    a(f"s_lshl_b32 s{T0}, s{S_RP}, 19")
    srd(a, SX, P_X, P_X + 1, 512 << 10, add_lo=f"s{T0}")
    if TE >= 1: emit(a, p1_dma_x(0, 0) + p1_dma_x(1, 0)); vm.add(-1, 4)
    a(f"v_lshrrev_b32 v{VTX}, 4, v{TID}")
    a(f"v_lshlrev_b32 v{VTX}, 11, v{VTX}")
    a(f"v_lshl_add_u32 v{VTX}, v{VT}, 7, v{VTX}")
    a(f"s_lshl_b32 s{T0}, s{S_C2}, 16")
    a(f"v_add_u32 v{VTX}, s{T0}, v{VTX}")
    a(f"s_lshl_b32 s{S_MW}, s{S_BB}, 2")
    a(f"s_add_u32 s{S_MW}, s{S_MW}, s{S_P}")
    a(f"s_lshl_b32 s{S_MW}, s{S_MW}, 10")
    a(f"s_lshl_b32 s{T0}, s{S_WM}, 13")
    a(f"s_add_u32 s{S_MW}, s{S_MW}, s{T0}")
    a(f"s_add_u32 s{S_MW}, s{S_MW}, {WLDS}")
    a(f"s_lshl_b32 s{T0}, s{S_P}, 3")
    a(f"s_lshl_b32 s{T1}, s{S_BB}, 2")
    a(f"s_add_u32 s{T0}, s{T0}, s{T1}")
    a(f"v_add_u32 v{A0}, s{T0}, v{VQQ}")
    a(f"s_lshl_b32 s{T0}, s{S_P}, 2")
    a(f"v_add_u32 v{A1}, s{T0}, v{VQQ}")
    a(f"v_lshlrev_b32 v{A1}, 1, v{A1}")
    a(f"v_xor_b32 v{A1}, v{A1}, v{VT}")
    a(f"v_lshlrev_b32 v{A2}, 4, v{A1}")
    a(f"v_subrev_u32 v{A3}, 192, v{A2}")
    a(f"v_add_u32 v{A4}, 32, v{A2}")
    a(f"v_cmp_le_u32 vcc, 12, v{A1}")
    a(f"v_cmp_le_u32 s[{QMASK}:{QMASK+1}], 14, v{A1}")
    a(f"s_and_b32 s{T0}, s{S_CT}, 1")
    a(f"s_cmp_eq_u32 s{T0}, 1")
    a(f"v_cndmask_b32 v{A3}, v{A4}, v{A3}, vcc")
    a(f"s_cselect_b64 s[{T2}:{T3}], -1, 0")
    a(f"v_cndmask_b32 v{A3}, v{A2}, v{A3}, s[{T2}:{T3}]")
    a(f"s_mul_i32 s{T0}, s{S_CT}, 224")
    if os.environ.get("X_ALIGN"):
        a(f"s_min_u32 s{T0}, s{S_CT}, 27"); a(f"s_lshl_b32 s{T0}, s{T0}, 8"); a(f"v_mov_b32 v{A3}, v{A2}")
    a(f"v_add_u32 v{A3}, s{T0}, v{A3}")
    a(f"v_mov_b32 v{A5}, 7168")
    a(f"v_mad_u32_u24 v{A3}, v{A0}, v{A5}, v{A3}")
    a(f"s_lshl_b32 s{T0}, s{S_CT}, 6")
    a(f"s_lshl_b32 s{T1}, s{S_WM}, 5")
    a(f"s_add_u32 s{T0}, s{T0}, s{T1}")
    a(f"v_and_b32 v{A2}, 16, v{A2}")
    a(f"v_add_u32 v{A4}, s{T0}, v{A2}")
    a(f"v_lshl_add_u32 v{A4}, v{A0}, 11, v{A4}")
    a(f"v_mov_b32 v{A0}, 2048")
    a(f"v_cndmask_b32 v{A3}, v{A3}, v{A4}, s[{QMASK}:{QMASK+1}]")
    a(f"v_cndmask_b32 v{A5}, v{A5}, v{A0}, s[{QMASK}:{QMASK+1}]")
    a(f"v_mov_b32 v{A0}, s92")
    a(f"v_mov_b32 v{A1}, s93")
    a(f"v_mov_b32 v{A6}, s{S_TW}")
    a(f"v_mov_b32 v{A7}, s{S_TA}")
    a(f"v_cndmask_b32 v{A6}, v{A6}, v{A0}, s[{QMASK}:{QMASK+1}]")
    a(f"v_cndmask_b32 v{A7}, v{A7}, v{A1}, s[{QMASK}:{QMASK+1}]")
    a(f"v_lshlrev_b32 v{VWS}, 5, v{A5}")
    a(f"v_mov_b32 v{VWS+1}, 0")
    a(f"v_add_co_u32 v{VWA}, vcc, v{A3}, v{A6}")
    a(f"v_lshlrev_b32 v{A4}, 4, v{A5}")
    a(f"v_mov_b32 v{A5}, 0")
    a(f"v_addc_co_u32 v{VWA+1}, vcc, 0, v{A7}, vcc")
    a(f"v_lshl_add_u64 {v(VWB,2)}, {v(A4,2)}, 0, {v(VWA,2)}")
    a(f"s_and_b32 s{T0}, s{S_RP}, 3")
    a(f"s_add_u32 s{T0}, s{T0}, 2")
    a(f"v_mov_b32 v{SV}, v{A2}")
    a(f"v_mul_lo_u32 v{A4}, v{VWS}, s{T0}")
    a(f"v_lshl_add_u64 {v(VTA,2)}, {v(A4,2)}, 0, {v(VWA,2)}")
    a(f"v_lshl_add_u64 {v(VTB,2)}, {v(A4,2)}, 0, {v(VWB,2)}")
    nstamp(a, "su")
    def tiles(lo, hi):
        if lo < 1 <= hi: emit(a, p1_dma_x(0, 0) + p1_dma_x(1, 0)); vm.add(-1, 4)
        if lo < 2 <= hi:
            emit(a, p1_dma_w(0)); vm.add(-1, 2)
            emit(a, p1_dma_w(1)); vm.add(0, 2)
    if TE >= 2:
        emit(a, p1_dma_w(0)); vm.add(-1, 2)
        emit(a, p1_dma_w(1)); vm.add(0, 2)
    a(f"v_bfe_u32 v{A0}, v{VL}, 1, 2")
    a(f"v_and_b32 v{A1}, 1, v{VL}")
    a(f"v_lshrrev_b32 v{A2}, 3, v{TID}")
    a(f"v_lshlrev_b32 v{VQS}, 11, v{A0}")
    a(f"v_lshl_add_u32 v{VQS}, v{A2}, 5, v{VQS}")
    a(f"v_lshl_add_u32 v{VQS}, v{A1}, 4, v{VQS}")
    a(f"v_lshrrev_b32 v{A3}, 1, v{A2}")
    a(f"v_lshlrev_b32 v{VQD}, 16, v{A3}")
    a(f"v_and_b32 v{A3}, 1, v{A2}")
    a(f"v_lshl_add_u32 v{VQD}, v{A3}, 10, v{VQD}")
    a(f"v_lshl_add_u32 v{VQD}, v{A0}, 5, v{VQD}")
    a(f"v_lshl_add_u32 v{VQD}, v{A1}, 4, v{VQD}")
    a(f"s_lshl_b32 s{T2}, s2, 13")
    a(f"buffer_load_dwordx4 v[48:51], v{VQS}, s[{SACT}:{SACT+3}], s{T2} offen")
    vm.add(99, 1)
    a(f"s_lshl_b32 s{S_AO}, s{S_AO}, 3")
    a(f"s_mov_b32 s{T3}, 0xffff0000")
    a(f"s_waitcnt vmcnt({9 + (WPF > 0) + len(vm.q)})")
    nstamp(a, "xl")
    def ln(r):
        o = []
        I = 32 + 8 * r; X = 64 + 32 * r; C = X + 16; A_ = 52 + 6 * r
        M = A_ + 4
        def wsum(x, t):
            for mod in ("quad_perm:[1,0,3,2]", "quad_perm:[2,3,0,1]", "row_half_mirror", "row_mirror"):
                o.append("NOP2"); o.append(f"v_add_f32_dpp v{x}, v{x}, v{x} {mod} row_mask:0xf bank_mask:0xf")
            for sw in ("v_permlane16_swap_b32", "v_permlane32_swap_b32"):
                o.append(f"v_mov_b32 v{t}, v{x}"); o.append("NOP2"); o.append(f"{sw} v{x}, v{t}"); o.append(f"v_add_f32 v{x}, v{x}, v{t}")
        def rbf(x):
            o.append(f"v_cvt_pk_bf16_f32 v{x}, v{x}, v{x}"); o.append(f"v_and_b32 v{x}, s{T3}, v{x}")
        for k in range(8):
            o.append(f"v_lshlrev_b32 v{X+2*k}, 16, v{I+k}"); o.append(f"v_and_b32 v{X+2*k+1}, s{T3}, v{I+k}")
        o.append(f"v_pk_add_f32 {v(A_,2)}, {v(X,2)}, {v(X+2,2)}"); o.append(f"v_pk_add_f32 {v(A_+2,2)}, {v(X+4,2)}, {v(X+6,2)}")
        for k in (4, 6):
            o.append(f"v_pk_add_f32 {v(A_,2)}, {v(A_,2)}, {v(X+2*k,2)}"); o.append(f"v_pk_add_f32 {v(A_+2,2)}, {v(A_+2,2)}, {v(X+2*k+2,2)}")
        o.append(f"v_pk_add_f32 {v(A_,2)}, {v(A_,2)}, {v(A_+2,2)}"); o.append(f"v_add_f32 v{A_}, v{A_}, v{A_+1}")
        wsum(A_, A_ + 1)
        o.append(f"v_mul_f32 v{M}, 0xba800000, v{A_}")
        for k in range(8): o.append(f"v_pk_add_f32 {v(C+2*k,2)}, {v(X+2*k,2)}, {v(M,2)} op_sel_hi:[1,0]")
        o.append(f"v_pk_mul_f32 {v(A_,2)}, {v(C,2)}, {v(C,2)}"); o.append(f"v_pk_mul_f32 {v(A_+2,2)}, {v(C+2,2)}, {v(C+2,2)}")
        for k in range(2, 8):
            q = A_ + 2 * (k % 2); o.append(f"v_pk_fma_f32 {v(q,2)}, {v(C+2*k,2)}, {v(C+2*k,2)}, {v(q,2)}")
        o.append(f"v_pk_add_f32 {v(A_,2)}, {v(A_,2)}, {v(A_+2,2)}"); o.append(f"v_add_f32 v{A_}, v{A_}, v{A_+1}")
        rbf(M)
        wsum(A_, A_ + 1)
        for k in range(8): o.append(f"v_pk_add_f32 {v(C+2*k,2)}, {v(X+2*k,2)}, {v(M,2)} op_sel_hi:[1,0]")
        o.append(f"v_mul_f32 v{A_}, 0x3a800000, v{A_}"); rbf(A_)
        o.append(f"v_add_f32 v{A_}, 0x3727c5ac, v{A_}"); rbf(A_)
        o.append(f"v_sqrt_f32 v{A_}, v{A_}"); o.append("NOP1"); rbf(A_)
        o.append(f"v_rcp_f32 v{M+1}, v{A_}"); o.append("NOP1")
        for k in range(8): o.append(f"v_pk_mul_f32 {v(C+2*k,2)}, {v(C+2*k,2)}, {v(M,2)} op_sel:[0,1] op_sel_hi:[1,1]")
        for k in range(8): o.append(f"v_cvt_pk_bf16_f32 v{I+k}, v{C+2*k}, v{C+2*k+1}")
        return o
    for x0, x1 in zip(ln(0), ln(1)):
        if x0 == "NOP2": a("s_nop 0")
        elif x0 == "NOP1": pass
        else:
            a(x0); a(x1)
    nstamp(a, "ln")
    for r in range(2):
        a(f"ds_write_b128 v{VTW}, {v(32+8*r,4)} offset:{r*128}")
        a(f"ds_write_b128 v{VTW}, {v(36+8*r,4)} offset:{16384 + r*128}")
    a("s_mov_b64 exec, 1")
    a(f"buffer_store_dwordx2 v[56:57], v{VKVD}, s[{SPART}:{SPART+3}], s{S_AO} offen sc1")
    a(f"buffer_store_dwordx2 v[62:63], v{VKVD}, s[{SPART}:{SPART+3}], s{S_AO} offen offset:64 sc1")
    a("s_mov_b64 exec, -1")
    vm.add(99, 2)
    q0 = len(vm.q)
    tiles(TE, 2)
    nstamp(a, "ti")
    a(f"v_and_b32 v{A1}, 1, v{VL}")
    a(f"v_mov_b32 v{A2}, v{SV}")
    a(f"v_mov_b32 v{A5}, 0")
    a(f"v_lshrrev_b32 v{VEX}, 1, v{VL}")
    a(f"v_lshlrev_b32 v{VEX}, 6, v{VEX}")
    a(f"v_lshl_add_u32 v{VEX}, v{A1}, 4, v{VEX}")
    a(f"s_lshl_b32 s{T0}, s{S_CT}, 16")
    a(f"s_lshl_b32 s{T1}, s{S_WM}, 10")
    a(f"s_add_u32 s{T0}, s{T0}, s{T1}")
    a(f"s_lshl_b32 s{T1}, s{S_P}, 8")
    a(f"s_add_u32 s{T0}, s{T0}, s{T1}")
    a(f"s_lshl_b32 s{T1}, s{S_BB}, 7")
    a(f"s_add_u32 s{T0}, s{T0}, s{T1}")
    a(f"s_add_u32 s{T0}, s{T0}, {WS_WQP + NS*2048}")
    a(f"s_add_u32 s{T0}, s{T0}, s{P_WS}")
    a(f"s_addc_u32 s{T1}, s{P_WS+1}, 0")
    a(f"v_lshl_add_u32 v{A4}, v{VQQ}, 5, v{A2}")
    a(f"v_lshl_add_u64 {v(VWP,2)}, {v(A4,2)}, 0, s[{T0}:{T1}]")
    srd(a, SWO, P_WO, P_WO + 1, 1024 * 2048)
    a(f"v_lshrrev_b32 v{A0}, 1, v{VT}")
    a(f"v_xor_b32 v{A0}, v{A0}, v{VQQ}")
    a(f"v_lshlrev_b32 v{A0}, 4, v{A0}")
    a(f"v_lshl_add_u32 v{A0}, v{VT}, 7, v{A0}")
    a(f"s_mul_i32 s{T0}, s{S_WM}, 49152")
    a(f"v_add_u32 v{VXR}, s{T0}, v{A0}")
    a(f"v_xor_b32 v{VXR+1}, 64, v{VXR}")
    a(f"v_lshrrev_b32 v{A3}, 2, v{VT}")
    a(f"v_lshl_add_u32 v{A0}, v{VQQ}, 2, v{A3}")
    a(f"v_and_b32 v{A1}, 7, v{A0}")
    a(f"s_lshl_b32 s{T0}, s{S_WN}, 1")
    a(f"v_xor_b32 v{A1}, s{T0}, v{A1}")
    a(f"v_lshlrev_b32 v{A1}, 5, v{A1}")
    a(f"v_lshl_add_u32 v{A1}, v{A0}, 8, v{A1}")
    a(f"v_and_b32 v{A2}, 3, v{VL}")
    a(f"v_lshl_add_u32 v{A1}, v{A2}, 3, v{A1}")
    a(f"v_add_u32 v{VWR}, {WLDS}, v{A1}")
    a(f"v_xor_b32 v{VWR+1}, 32, v{VWR}")
    a(f"s_lshl_b32 s{S_KVO}, s{S_WN}, 11")
    a(f"s_cmp_eq_u32 s{S_WM}, 0")
    a(f"s_movk_i32 s{T0}, 4096")
    a(f"s_cselect_b32 s{T0}, s{T0}, 0x20000")
    a(f"s_add_u32 s{S_KVO}, s{S_KVO}, s{T0}")
    a(f"s_add_u32 s{S_MKV}, s{S_MX}, {KVL + 0x4000}")
    a(f"s_lshr_b32 s{T0}, s{S_WAVE}, 1")
    a(f"s_lshl_b32 s{T1}, s{T0}, 13")
    a(f"s_add_u32 s{T1}, s{T1}, {TL}")
    a(f"v_add_u32 v{VFR}, s{T1}, v{VKVD}")
    a(f"s_lshl_b32 s{T0}, s{T0}, 14")
    a(f"s_lshl_b32 s{T1}, s{S_WM}, 15")
    a(f"s_add_u32 s{T0}, s{T0}, s{T1}")
    a(f"s_lshl_b32 s{T1}, s{S_P}, 5")
    a(f"s_add_u32 s{T1}, s{T1}, 0x10000")
    a(f"s_add_u32 s{T0}, s{T0}, s{T1}")
    a(f"v_lshl_add_u32 v{VTR}, v{VQQ}, 3, v{A3}")
    a(f"v_lshlrev_b32 v{VTR}, 6, v{VTR}")
    a(f"v_lshl_add_u32 v{VTR}, v{A2}, 3, v{VTR}")
    a(f"v_add_u32 v{VTR}, s{T0}, v{VTR}")
    a(f"v_add_u32 v{VEX}, s{T0}, v{VEX}")
    a(f"s_lshr_b32 s{S_WDO}, s{S_PB}, 1")
    a(f"s_lshl_b32 s{S_WDO}, s{S_WDO}, 11")
    a(f"s_and_b32 s{T0}, s{S_PB}, 1")
    a(f"s_lshl_b32 s{T1}, s{T0}, 8")
    a(f"s_lshl_b32 s{T2}, s{S_P}, 3")
    a(f"s_add_u32 s{T1}, s{T1}, s{T2}")
    a(f"s_lshl_b32 s{T0}, s{T0}, 10")
    a(f"s_lshl_b32 s{T2}, s{S_P}, 8")
    a(f"s_add_u32 s{T0}, s{T0}, s{T2}")
    a(f"s_add_u32 s{T0}, s{T0}, 0x20000")
    a(f"s_cmp_eq_u32 s{S_ISV}, 0")
    a(f"s_cselect_b32 s{T0}, s{T1}, s{T0}")
    a(f"s_cselect_b64 vcc, -1, 0")
    a(f"s_add_u32 s{S_WDO}, s{S_WDO}, s{T0}")
    a(f"s_add_u32 s{S_WDO}, s{S_WDO}, 8192")
    a(f"v_lshlrev_b32 v{A0}, 9, v{VQQ}")
    a(f"v_and_b32 v{A1}, 512, v{A0}")
    a(f"v_lshrrev_b32 v{A2}, 1, v{VQQ}")
    a(f"v_lshl_add_u32 v{A1}, v{A2}, 3, v{A1}")
    a(f"v_cndmask_b32 v{A0}, v{A1}, v{A0}, vcc")
    a(f"v_lshl_add_u32 v{VKS}, v{VT}, 4, v{A0}")
    a(f"s_lshr_b32 s{S_CNT}, s2, 3")
    a(f"s_lshl_b32 s{S_CNT}, s{S_CNT}, 11")
    a(f"s_and_b32 s{T0}, s2, 7")
    a(f"s_lshl_b32 s{T0}, s{T0}, 7")
    a(f"s_add_u32 s{S_CNT}, s{S_CNT}, s{T0}")
    a(f"s_add_u32 s{S_CNT}, s{S_CNT}, {WS_WQP}")
    srd(a, SACT, P_WS, P_WS + 1, 16 * ACT_NU * 8192, add_lo=WS_ACT)
    srd(a, SKV, P_WS, P_WS + 1, (256 << 10) + 32768, add_lo=WS_KV - 8192)
    a(f"s_waitcnt vmcnt({len(vm.q)}) lgkmcnt(0)")
    a(f"s_add_u32 s{NONCE}, s{NONCE}, 0x9e3779b9")
    a(f"s_add_u32 s{NONCE+1}, s{NONCE+1}, 0x85ebca6b")
    a("s_barrier")
    nstamp(a, "b1")
    for u in range(8):
        a(f"ds_read_b128 {v(64+4*u,4)}, v{VFR} offset:{u*1024}")
        for h in range(2):
            a(f"ds_read_b64_tr_b16 {v(96+4*u+2*h,2)}, v{VTR} offset:{u*2048 + h*256}")
    a(f"global_load_dword v18, {v(VTA,2)}, off")
    a(f"global_load_dword v18, {v(VTB,2)}, off")
    mk_ = (((1 << XL) - 1) << 1) * 0x10001
    a(f"s_mov_b32 exec_lo, {mk_}")
    a(f"s_mov_b32 exec_hi, {mk_}")
    a(f"buffer_load_dword v18, v{VTX}, s[{SX}:{SX+3}], 0 offen")
    a("s_mov_b64 exec, -1")
    vm.add(99, 3)
    a(f"s_waitcnt vmcnt({len(vm.q) - q0 + 2})")
    a(f"buffer_store_dwordx4 v[48:51], v{VQD}, s[{SPART}:{SPART+3}], s{S_CNT} offen sc1")
    vm.add(99, 1)
    a(f"s_cmp_lg_u32 s{S_ISV}, 0")
    a("s_cbranch_scc1 P0_V")
    for isv in range(2):
        if isv: a.label("P0_V")
        for u in range(8):
            a(f"s_waitcnt lgkmcnt({min(15, 3*(7-u))})")
            x = 64 + 4 * u; w = 96 + 4 * u; d = (20, 24)[u & 1]
            c = "0" if u < 2 else v(d, 4)
            ab = (x, w) if isv else (w, x)
            a(f"v_mfma_f32_16x16x32_bf16 {v(d,4)}, {v(ab[0],4)}, {v(ab[1],4)}, {c}")
        if not isv: a("s_branch P0_MD")
    a.label("P0_MD")
    srd(a, SPART, P_WS, P_WS + 1, 16384, add_lo=WS_ST)
    a("s_nop 3")
    a("v_pk_add_f32 v[20:21], v[20:21], v[24:25]")
    a("v_pk_add_f32 v[22:23], v[22:23], v[26:27]")
    a(f"ds_write_b128 v{VEX}, v[20:23]")
    a(f"s_waitcnt vmcnt({vm.wait(-1)}) lgkmcnt(0)")
    a("s_barrier")

def p0_finish(a):
    a(f"s_cmp_gt_u32 s{S_WAVE}, 1")
    a("s_cbranch_scc1 P0_KVD")
    a("v_add_u32 v30, 0x10000, v28")
    a("ds_read_b128 v[24:27], v28 offset:16384")
    a("ds_read_b128 v[48:51], v30")
    a("ds_read_b128 v[52:55], v30 offset:16384")
    a("s_waitcnt lgkmcnt(0)")
    for h in (0, 2):
        a(f"v_pk_add_f32 {v(20+h,2)}, {v(20+h,2)}, {v(24+h,2)}")
        a(f"v_pk_add_f32 {v(48+h,2)}, {v(48+h,2)}, {v(52+h,2)}")
        a(f"v_pk_add_f32 {v(20+h,2)}, {v(20+h,2)}, {v(48+h,2)}")
    a("v_cvt_pk_bf16_f32 v20, v20, v21")
    a("v_cvt_pk_bf16_f32 v21, v22, v23")
    a(f"buffer_store_dwordx2 v[20:21], v29, s[{SKV}:{SKV+3}], s{S_WDO} offen sc1")
    a.label("P0_KVD")

def gen(a):
    kernel_head(a, NAME)
    a("s_cmp_ge_u32 s2, 256")
    a("s_cbranch_scc1 KM_END")
    stamp(a, 0)
    vm = VM()
    gen_p0(a, vm)
    nstamp(a, "fl")
    stamp(a, 1)
    for x in p1_reads(0): a(x)
    emit(a, p1_dma_x(0, 1)); vm.add(1, 2)
    p0_finish(a)
    vm.add(1)
    a(f"s_lshl_b32 s{S_CNT}, s2, 3")
    a(f"s_add_u32 s{S_CNT}, s{S_CNT}, {F_KV}")
    a(f"s_lshl_b32 s{S_PB}, s{S_P}, 10")
    a(f"s_add_u32 s{S_PB}, s{S_PB}, {F_KV}")
    a(f"s_mul_i32 s{T0}, s{S_WN}, {7*128}")
    a(f"s_mul_i32 s{T1}, s2, 3584")
    a(f"s_add_u32 s{T0}, s{T0}, s{T1}")
    a(f"s_add_u32 s{T0}, s{T0}, {max(WPF - 1, 0) * 128 * 7168}")
    a(f"v_lshlrev_b32 v0, 3, v{VKVD}")
    a(f"v_add_u32 v0, s{T0}, v0")
    a(f"s_lshl_b32 s{S_AO}, s{S_RP}, 1")
    a(f"s_add_u32 s{S_AO}, s{S_AO}, s{S_WM}")
    a(f"s_lshl_b32 s{S_AO}, s{S_AO}, 10")
    for i in range(4): a(f"v_mov_b32 v{ONES+i}, 0x3f803f80")
    for i in range(8): a(f"v_mov_b32 v{CS+i}, 0")
    a(f"s_waitcnt vmcnt({vm.wait(0) - 1}) lgkmcnt(0)")
    a("s_barrier")
    nstamp(a, "p1s")
    a(f"s_cmp_lg_u32 s{S_WM}, 0")
    a("s_cbranch_scc1 P1_B")
    if PR1 < 0: a(f"s_setprio {-PR1}")
    gen_p1(a, 0, vm)
    a("s_branch P1_END")
    a.label("P1_B")
    if PR1 > 0: a(f"s_setprio {PR1}")
    gen_p1(a, 1, vm)
    a.label("P1_END")
    if PR1: a("s_setprio 0")
    stamp(a, 2)
    nstamp(a, "p1e")
    if STOP == "p1": a("s_branch KM_FIN")
    for _ in range(int(os.environ.get("X_SHE", 0))): a("s_nop 0")
    CSR = XF + 16
    for t in range(2):
        for st in range(2):
            a(f"ds_read_b128 {v(CSR+(st*2+t)*4,4)}, v{VWP+1} offset:{CSL + (t*512 + st*64 if CSV else t*8192 + st*1024)}")
    a(f"v_lshlrev_b32 v{VHO}, 9, v{VQQ}")
    a(f"v_lshl_add_u32 v{VHO}, v{VT}, 4, v{VHO}")
    a(f"v_add_u32 v{VHO+1}, 0x1000, v{VHO}")
    a(f"s_lshr_b32 s{T0}, s{S_CT}, 1")
    a(f"s_mul_i32 s{T0}, s{T0}, 7")
    a(f"s_and_b32 s{T1}, s{S_CT}, 1")
    a(f"s_lshl_b32 s{T2}, s{T1}, 2")
    a(f"s_add_u32 s{T2}, s{T2}, s{S_WN}")
    a(f"s_cmp_eq_u32 s{S_WN}, 3")
    a(f"s_cselect_b32 s{T2}, 3, s{T2}")
    a(f"s_add_u32 s{T0}, s{T0}, s{T2}")
    a(f"s_lshl_b32 s{T2}, s{S_RP}, 1")
    a(f"s_add_u32 s{T2}, s{T2}, s{S_WM}")
    a(f"s_mul_i32 s{T3}, s{T2}, {ACT_NU}")
    a(f"s_add_u32 s{T0}, s{T0}, s{T3}")
    a(f"s_lshl_b32 s{S_HO}, s{T0}, 13")
    a(f"s_lshl_b32 s{S_XO}, s{S_RP}, 8")
    a(f"s_lshl_b32 s{T3}, s{S_CT}, 3")
    a(f"s_add_u32 s{S_XO}, s{S_XO}, s{T3}")
    a(f"s_add_u32 s{S_XO}, s{S_XO}, {F_H}")
    a("s_waitcnt lgkmcnt(0)")
    for j in range(8): a(f"v_mul_f32 v{XF+32+j}, v{XF+2*j+1}, v{XF+2*j+1}")
    a(f"s_cmp_eq_u32 s{S_WN}, 3")
    a("s_cbranch_scc1 P1_EP3")
    def center(st, t, j):
        g = acc(st, t, j); c = CSR + (st * 2 + t) * 4
        for i in (0, 2): a(f"v_pk_fma_f32 {v(g+i,2)}, {v(c+i,2)}, {v(XF+2*j,2)}, {v(g+i,2)} op_sel_hi:[1,0,1]")
    def hpair(t, j):
        g = acc(0, t, j); u = acc(1, t, j); dst = HS + 4 * j + 2 * t
        r2 = XF + 32 + (j & ~1); sel = "op_sel:[0,1] op_sel_hi:[1,1]" if j & 1 else "op_sel_hi:[1,0]"
        center(0, t, j); center(1, t, j)
        for i in range(4): a(f"v_max_f32 v{g+i}, 0, v{g+i}")
        for i in (0, 2): a(f"v_pk_mul_f32 {v(u+i,2)}, {v(u+i,2)}, {v(r2,2)} {sel}")
        for i in (0, 2): a(f"v_pk_mul_f32 {v(g+i,2)}, {v(g+i,2)}, {v(u+i,2)}")
        for i in (2, 0): a(f"v_cvt_pk_bf16_f32 v{dst+i//2}, v{g+i}, v{g+i+1}")
    def hst(j, n):
        off = (j >> 1) * 2048 + (j & 1) * 256
        a(f"buffer_store_dwordx{n} {v(HS+4*j,n)}, v{VHO + (off>>12)}, s[{SACT}:{SACT+3}], s{S_HO} offen offset:{off & 4095} sc1")
    for j in range(8):
        hpair(1, j); hpair(0, j)
        if j % HSTEP == 0 and j // HSTEP < NE: hst(j // HSTEP, 4)
    a("s_branch P1_EPD")
    a.label("P1_EP3")
    a(f"s_lshl_b32 s{S_CNT}, s{S_WM}, 13")
    a(f"v_add_u32 v24, s{S_CNT}, v{VHO}")
    for j in range(8): a(f"v_mul_f32 v{XF+2*j+1}, {QSCALE}, v{XF+2*j+1}")
    for j in range(8):
        tmp = XF + 40 + 4 * (j & 3)
        for st in range(2):
            g = acc(st, 1, j)
            center(st, 1, j)
            for i in (0, 2): a(f"v_pk_mul_f32 {v(g+i,2)}, {v(g+i,2)}, {v(XF+2*j,2)} op_sel:[0,1] op_sel_hi:[1,1]")
            for i in (0, 2): a(f"v_cvt_pk_bf16_f32 v{tmp+2*st+i//2}, v{g+i}, v{g+i+1}")
        a(f"ds_write_b128 v24, {v(tmp,4)} offset:{QLDS + (j>>1)*2048 + (j&1)*256}")
    a(f"s_lshl_b32 s{T1}, s{T1}, 3")
    a(f"s_add_u32 s{S_HO}, s{S_HO}, s{T1}")
    for j in range(8):
        hpair(0, j)
        if j % HSTEP == 0 and j // HSTEP < NE: hst(j // HSTEP, 2)
    a.label("P1_EPD")
    srd(a, SPART, P_WS, P_WS + 1, 8 << 20, add_lo=WS_PART)
    a(f"s_lshl_b32 s{T3}, s{S_WAVE}, 10")
    a(f"v_add_u32 v{VPA}, s{T3}, v{VKVD}")
    a(f"v_lshlrev_b32 v3, 1, v{VQQ}")
    a(f"v_xor_b32 v3, v3, v{VT}")
    a("v_lshlrev_b32 v3, 4, v3")
    a(f"v_lshl_add_u32 v3, v{VQQ}, 11, v3")
    a(f"s_lshl_b32 s{T0}, s{S_WAVE}, 13")
    a(f"s_lshl_b32 s{T1}, s{S_C2}, 8")
    a(f"s_add_u32 s{T0}, s{T0}, s{T1}")
    a(f"s_lshl_b32 s{T1}, s{S_P}, 7")
    a(f"v_xor_b32 v{VPW}, s{T1}, v3")
    a(f"v_add_u32 v{VPW}, s{T0}, v{VPW}")
    a(f"s_mul_i32 s{T0}, s{S_G}, {ACT_NU}")
    a(f"s_mul_i32 s{T1}, s{S_KH}, 56")
    a(f"s_add_u32 s{T0}, s{T0}, s{T1}")
    a(f"s_lshl_b32 s{S_AO}, s{T0}, 13")
    a(f"s_lshl_b32 s{S_WDO}, s{T1}, 16")
    a(f"s_mov_b32 s{S_RING}, 0")
    a(f"v_lshlrev_b32 v{VTCH}, 6, v{VL}")
    a(f"s_lshr_b32 s{T0}, s2, 3")
    a(f"s_lshl_b32 s{T0}, s{T0}, 12")
    a(f"s_add_u32 s{S_TW}, s{S_WDO}, s{T0}")
    a(f"s_lshl_b32 s{T0}, s{S_C2}, 12")
    a(f"s_add_u32 s{S_TA}, s{S_AO}, s{T0}")
    a(f"v_lshlrev_b32 v26, 11, v{VT}")
    a(f"v_and_b32 v27, 1, v{VQQ}")
    a("v_lshl_add_u32 v26, v27, 5, v26")
    a(f"v_lshrrev_b32 v27, 1, v{VQQ}")
    a(f"v_lshl_add_u32 v{VXA}, v27, 4, v26")
    for j in range(1, 4): a(f"v_add_u32 v{VXA+j}, {j*32768}, v{VXA}")
    a(f"s_lshl_b32 s{S_ISV}, s{S_G}, 18")
    a(f"s_lshl_b32 s{T0}, s{S_BB}, 17")
    a(f"s_add_u32 s{S_ISV}, s{S_ISV}, s{T0}")
    a(f"s_lshl_b32 s{T0}, s{S_C2}, 8")
    a(f"s_add_u32 s{S_ISV}, s{S_ISV}, s{T0}")
    a(f"s_lshl_b32 s{T0}, s{S_KH}, 7")
    a(f"s_add_u32 s{S_ISV}, s{S_ISV}, s{T0}")
    a(f"s_lshl_b32 s{T0}, s{S_P}, 6")
    a(f"s_add_u32 s{S_ISV}, s{S_ISV}, s{T0}")
    srd(a, SX, P_X, P_X + 1, 4 << 20)
    if STASH:
        a(f"v_lshrrev_b32 v22, 3, v{VL}")
        a("v_lshlrev_b32 v22, 11, v22")
        a(f"v_lshlrev_b32 v23, 1, v{VQQ}")
        a(f"v_and_b32 v25, 7, v{VL}")
        a("v_xor_b32 v23, v23, v25")
        a("v_lshl_add_u32 v22, v23, 4, v22")
        a(f"s_lshl_b32 s{T0}, s{S_WN}, 14")
        a(f"s_lshl_b32 s{T1}, s{S_C2}, 8")
        a(f"s_add_u32 s{T0}, s{T0}, s{T1}")
        a(f"s_lshl_b32 s{T1}, s{S_KH}, 7")
        a(f"s_add_u32 s{T0}, s{T0}, s{T1}")
        a(f"v_add_u32 v12, s{T0}, v22")
    a(f"v_lshrrev_b32 v25, 2, v{VL}")
    a(f"v_xor_b32 v25, v25, v{VQQ}")
    a("v_and_b32 v25, 1, v25")
    a(f"v_and_b32 v26, 3, v{VL}")
    a("v_or_b32 v25, v25, v26")
    a("v_cmp_eq_u32 vcc, 0, v25")
    a("v_mov_b32 v26, 0x3f803f80")
    a("v_mov_b32 v27, 0")
    a(f"s_waitcnt vmcnt({NE}) lgkmcnt(0)")
    a("s_barrier")
    a(f"ds_read_b128 {v(QF,4)}, v{VWP} offset:{QLDS}")
    a(f"ds_read_b128 {v(QF+4,4)}, v{VWP} offset:{QLDS+1024}")
    for b in range(2):
        for s_ in range(2):
            a(f"ds_read_b128 {v(KB+8*b+4*s_,4)}, v{VKVR} offset:{0x4000 + (2+b)*2048 + s_*1024}")
    for i in range(4): a(f"v_cndmask_b32 v{SEL+i}, v27, v26, vcc")
    for i in range(4): a(f"v_mov_b32 v{RS+i}, 0")
    for i in range(16): a(f"v_mov_b32 v{OA+i}, 0")
    a("s_waitcnt lgkmcnt(0)")
    a(mf32(SB, KB, QF, "0"))
    a(mf32(SB, KB + 4, QF + 4, v(SB, 16)))
    a("s_nop 11")
    a(f"v_max3_f32 v26, v{SB}, v{SB+1}, v{SB+2}")
    for i in range(3, 15, 2): a(f"v_max3_f32 v26, v26, v{SB+i}, v{SB+i+1}")
    a(f"v_max_f32 v26, v26, v{SB+15}")
    a("v_mov_b32 v27, v26")
    a("s_nop 1")
    a("v_permlane32_swap_b32 v26, v27")
    a("s_nop 0")
    a("v_max_f32 v26, v26, v27")
    for i in range(16): a(f"v_sub_f32 v{NM+i}, 0, v26")
    for i in range(16): a(f"v_sub_f32 v{SB+i}, v{SB+i}, v26")
    stamp(a, 3)
    if PR2:
        a(f"s_cmp_{'lg' if PR2 > 0 else 'eq'}_u32 s{S_WM}, 0")
        a("s_cbranch_scc0 P2_NP")
        a(f"s_setprio {abs(PR2)}")
        a.label("P2_NP")
    def pollH():
        a(f"s_lshr_b32 s{T0}, s{S_G}, 1")
        a(f"s_lshl_b32 s{T0}, s{T0}, 8")
        a(f"s_lshl_b32 s{T1}, s{S_KH}, 7")
        a(f"s_add_u32 s{T0}, s{T0}, s{T1}")
        a(f"s_add_u32 s{T0}, s{T0}, {F_H}")
        poll_issue(a, T0, 16)
    for _ in range(int(os.environ.get("X_SH2", 0))): a("s_nop 0")
    rest = list(range(NE, 8)); prev = NE
    for E in range(4):
        mine, rest = rest[:2], rest[2:]
        att_epoch(a, E, first=(E == 0), wait=prev, x1=wo_stash(5 * (E - 2), 5) if E >= 2 else (), x2=h_store(mine[0]) if mine else (), x3=h_store(mine[1]) if len(mine) > 1 else ())
        prev = len(mine)
    att_epoch(a, 4, wait=prev, x1=wo_stash(10, 5))
    att_epoch(a, 5, post=lambda: wave0(a, lambda: flag_set(a, S_XO)), x1=touch_wo() if FART else ())
    att_epoch(a, 6, wait=int(FART > 0), x1=touch_w(20) if FART else ())
    xl = [f"s_cmp_lg_u32 s{S_WM}, 0", "s_cbranch_scc1 P2_NX"] + [f"buffer_load_dwordx4 {v(XR+4*j,4)}, v{VXA+j}, s[{SX}:{SX+3}], s{S_ISV} offen" for j in range(4)] + ["P2_NX:"]
    if HL == 0:
        att_epoch(a, 7, wait=int(FART > 0), post=lambda: wave0(a, pollH), x1=touch_w(12))
        att_epoch(a, 8, wait=1, post=lambda: wave0(a, lambda: poll_check(a)), x1=touch_w(4))
        att_epoch(a, 9, prefill=2, wait=1, x3=touch_a(6))
        att_epoch(a, 10, prefill=2, wait=5)
        att_epoch(a, 11, prefill=2, wait=4)
        att_epoch(a, 12, prefill=2, wait=4, x3=touch_a(0))
        att_epoch(a, 13, wait=5)
        att_epoch(a, 14, x1=[xl])
    else:
        att_epoch(a, 7, wait=int(FART > 0), x1=touch_w(12))
        att_epoch(a, 8, wait=1, x1=[xl] + wo_stash(15, 5))
        att_epoch(a, 9, post=lambda: wave0(a, pollH), x1=touch_w(4))
        att_epoch(a, 10, wait=1, post=lambda: wave0(a, lambda: poll_check(a)))
        att_epoch(a, 11, prefill=2, x3=touch_a(6))
        att_epoch(a, 12, prefill=2, wait=5, x3=touch_a(0))
        att_epoch(a, 13, prefill=2, wait=5)
        att_epoch(a, 14, prefill=2, wait=4)
    att_epoch(a, 15, last=True)
    a("s_waitcnt lgkmcnt(0)")
    a(mf32(OA, VB + 8, PB + 8, v(OA, 16)))
    a(mfrs(PB + 8))
    a(mf32(OA, VB + 12, PB + 12, v(OA, 16)))
    a(mfrs(PB + 12))
    a(f"s_add_u32 s{S_XO}, s{S_XO}, {F_O - F_H}")
    a(f"s_lshl_b32 s{T0}, s{S_RP}, 1")
    a(f"s_add_u32 s{T0}, s{T0}, s{S_WM}")
    a(f"s_mul_i32 s{T0}, s{T0}, {ACT_NU}")
    a(f"s_add_u32 s{T0}, s{T0}, s{S_CT}")
    a(f"s_add_u32 s{T0}, s{T0}, 112")
    a(f"s_lshl_b32 s{T0}, s{T0}, 13")
    a(f"s_lshl_b32 s{T1}, s{S_WN}, 11")
    a(f"s_add_u32 s{S_CNT}, s{T0}, s{T1}")
    a("s_nop 4")
    a(f"v_mul_f32 v26, 0, v{RS}")
    for i in range(16): a(f"v_fma_f32 v26, v{OA+i}, 0, v26")
    a("v_cmp_u_f32 vcc, v26, v26")
    a("s_cmp_lg_u64 vcc, 0")
    a("s_cbranch_scc1 P2_SLOW")
    a.label("P2_FIN")
    a(f"v_rcp_f32 v26, v{RS}")
    a("s_nop 0")
    for i in range(16): a(f"v_mul_f32 v{OA+i}, v{OA+i}, v26")
    for k, base in enumerate((0, 8, 4, 12)):
        a(f"v_cvt_pk_bf16_f32 v{PB+2*k}, v{OA+base}, v{OA+base+1}")
        a(f"v_cvt_pk_bf16_f32 v{PB+2*k+1}, v{OA+base+2}, v{OA+base+3}")
    a(f"buffer_store_dwordx4 {v(PB,4)}, v{VKVD}, s[{SACT}:{SACT+3}], s{S_CNT} offen sc1")
    a(f"buffer_store_dwordx4 {v(PB+4,4)}, v{VKVD}, s[{SACT}:{SACT+3}], s{S_CNT} offen offset:1024 sc1")
    stamp(a, 4)
    if PR2: a("s_setprio 0")
    import mk3
    mk3.gen_p3(a)
    a.label("P2_SLOW")
    a(f"s_mov_b32 s{T0}, 8192")
    a(f"v_mov_b32 v27, 0xff800000")
    a(f"v_mov_b32 v{RS}, 0")
    for i in range(16): a(f"v_mov_b32 v{OA+i}, 0")
    a.label("P2_SL")
    a(f"s_add_u32 s{T1}, s{T0}, 0x20000")
    a(f"buffer_load_dwordx4 {v(KB,4)}, v{VKVD}, s[{SKV}:{SKV+3}], s{T0} offen sc1")
    a(f"buffer_load_dwordx4 {v(KB+4,4)}, v{VKVD}, s[{SKV}:{SKV+3}], s{T0} offen offset:1024 sc1")
    a(f"buffer_load_dwordx4 {v(VB,4)}, v{VKVD}, s[{SKV}:{SKV+3}], s{T1} offen sc1")
    a(f"buffer_load_dwordx4 {v(VB+4,4)}, v{VKVD}, s[{SKV}:{SKV+3}], s{T1} offen offset:1024 sc1")
    a("s_waitcnt vmcnt(0)")
    a(mf32(SB, KB, QF, "0"))
    a(mf32(SB, KB + 4, QF + 4, v(SB, 16)))
    a("s_nop 15")
    a(f"v_max3_f32 v26, v27, v{SB}, v{SB+1}")
    for i in range(2, 16, 2): a(f"v_max3_f32 v26, v26, v{SB+i}, v{SB+i+1}")
    a("v_mov_b32 v28, v26")
    a("s_nop 1")
    a("v_permlane32_swap_b32 v26, v28")
    a("s_nop 0")
    a("v_max_f32 v26, v26, v28")
    a("v_sub_f32 v28, v27, v26")
    a("v_exp_f32 v28, v28")
    a("v_mov_b32 v27, v26")
    for i in range(16): a(f"v_sub_f32 v{SB+i}, v{SB+i}, v26")
    for i in range(16): a(f"v_exp_f32 v{SB+i}, v{SB+i}")
    for i in range(16): a(f"v_mul_f32 v{OA+i}, v{OA+i}, v28")
    a(f"v_mul_f32 v{RS}, v{RS}, v28")
    for i in range(8): a(f"v_cvt_pk_bf16_f32 v{PB+i}, v{SB+2*i}, v{SB+2*i+1}")
    a("s_nop 1")
    a(mf32(OA, VB, PB, v(OA, 16)))
    a(mfrs(PB))
    a(mf32(OA, VB + 4, PB + 4, v(OA, 16)))
    a(mfrs(PB + 4))
    a("s_nop 15")
    a(f"s_add_u32 s{T0}, s{T0}, 2048")
    a(f"s_cmp_lt_u32 s{T0}, {8192 + 64*2048}")
    a("s_cbranch_scc1 P2_SL")
    a("s_branch P2_FIN")
    a.label("KM_FIN")
    if STAMPS: a("s_waitcnt vmcnt(0)")
    stamp(a, 7)
    if os.environ.get("X_DBG"):
        a("s_waitcnt lgkmcnt(0)")
        a(f"s_cmp_ge_u32 s2, 8")
        a("s_cbranch_scc1 KM_END")
        a(f"s_cmp_lg_u32 s{S_WAVE}, 0")
        a("s_cbranch_scc1 KM_END")
        a(f"s_load_dwordx2 s[100:101], s[0:1], {K_DBG}")
        a("s_getreg_b32 s32, hwreg(HW_REG_XCC_ID)")
        a("s_and_b32 s32, s32, 15")
        a("s_sub_u32 s33, s66, s62")
        a("s_sub_u32 s34, s70, s62")
        a("s_mul_i32 s33, s33, 100000")
        a("s_add_u32 s33, s33, s34")
        a("s_mul_i32 s33, s33, 10")
        a("s_add_u32 s33, s33, s32")
        a("s_sub_u32 s34, s78, s62")
        a("s_sub_u32 s35, s90, s62")
        a("s_mul_i32 s34, s34, 100000")
        a("s_add_u32 s34, s34, s35")
        a("s_lshl_b32 s32, s2, 3")
        a("v_mov_b32 v1, s32"); a("v_mov_b32 v2, s33"); a("v_mov_b32 v3, s34")
        a("s_waitcnt lgkmcnt(0)")
        a("s_mov_b64 exec, 1")
        a("global_store_dwordx2 v1, v[2:3], s[100:101]")
    else:
        stamp_flush(a, 0, 8, P_WS, S_WAVE)
    a.label("KM_END")
    a("s_endpgm")
    return dict(name=NAME, grid=256, block=512, lds=int(os.environ.get('X_LDS', 163840)), vgpr=256, sgpr=102)
```

```python
class A:
    def __init__(self):
        self.l = []
    def __call__(self, s):
        for x in s.strip("\n").split("\n"):
            self.l.append("    " + x.strip() if not x.strip().endswith(":") else x.strip())
    def label(self, n): self.l.append(n + ":")
    def c(self, s): self.l.append("    ; " + s)
    def raw(self, s): self.l.append(s)
    def text(self): return "\n".join(self.l) + "\n"

def v(i, n=1): return f"v{i}" if n == 1 else f"v[{i}:{i+n-1}]"
def s(i, n=1): return f"s{i}" if n == 1 else f"s[{i}:{i+n-1}]"

def srd(a, d, base_lo, base_hi, nbytes, add_lo=None):
    if add_lo is None:
        a(f"s_mov_b32 s{d}, s{base_lo}")
        a(f"s_mov_b32 s{d+1}, s{base_hi}")
    else:
        a(f"s_add_u32 s{d}, s{base_lo}, {add_lo}")
        a(f"s_addc_u32 s{d+1}, s{base_hi}, 0")
    a(f"s_mov_b32 s{d+2}, {nbytes}")
    a(f"s_mov_b32 s{d+3}, 0x20000")

def kernel_head(a, name):
    a.raw(f".globl {name}")
    a.raw(".p2align 8")
    a.raw(f".type {name},@function")
    a.raw(f"{name}:")

def kernel_desc(name, vgpr, sgpr=102, agpr=0):
    acc = (vgpr + 3) // 4 * 4
    return f""".p2align 6
.amdhsa_kernel {name}
  .amdhsa_next_free_vgpr {acc + agpr if agpr else vgpr}
  .amdhsa_next_free_sgpr {sgpr}
  .amdhsa_accum_offset {acc}
  .amdhsa_group_segment_fixed_size 0
  .amdhsa_kernarg_size 96
  .amdhsa_user_sgpr_count 2
  .amdhsa_user_sgpr_kernarg_segment_ptr 1
  .amdhsa_system_sgpr_workgroup_id_x 1
.end_amdhsa_kernel
"""

K_X, K_WQ, K_WK, K_WV, K_WO, K_BX, K_WG, K_WU, K_WD, K_OUT, K_DBG, K_WS = [8 * i for i in range(12)]
WS_XN = 0
WS_Q = 4 << 20
WS_WQP = 4 << 20
WS_KV = 8 << 20
WS_FLAG = (8 << 20) + (512 << 10)
WS_ACT = 9 << 20
ACT_NU = 144
WS_PART = 32 << 20

import os
STAMPS = os.environ.get("STAMPS", "0") == "1"
WS_STAMP = 128 << 20
STAMP_MAP = dict(x.split("=") for x in os.environ.get("SMAP", "").split(",") if x)
def nstamp(a, name):
    if name in STAMP_MAP: stamp(a, int(STAMP_MAP[name]), True)
def stamp(a, i, force=False):
    if not STAMPS: return
    if STAMP_MAP and not force and i not in (0, 7): return
    a(f"s_memtime s[{60+4*i}:{61+4*i}]")
    a(f"s_memrealtime s[{62+4*i}:{63+4*i}]")
def stamp_flush(a, kidx, n, wsreg, wave_sgpr, vt=1):
    if not STAMPS: return
    a("s_waitcnt lgkmcnt(0)")
    a(f"s_add_u32 s98, s{wsreg}, {WS_STAMP + kidx * (1 << 20)}")
    a(f"s_addc_u32 s99, s{wsreg+1}, 0")
    a("s_lshl_b32 s32, s2, 3")
    a(f"s_add_u32 s32, s32, s{wave_sgpr}")
    a("s_lshl_b32 s32, s32, 6")
    a(f"v_mov_b32 v{vt}, s32")
    if os.environ.get("XCC"):
        a("s_getreg_b32 s60, hwreg(HW_REG_XCC_ID)")
    for i in range(n):
        a(f"v_mov_b32 v{vt+1}, s{60+4*i}")
        a(f"v_mov_b32 v{vt+2}, s{62+4*i}")
        a(f"global_store_dword v{vt}, v{vt+1}, s[98:99] offset:{8*i}")
        a(f"global_store_dword v{vt}, v{vt+2}, s[98:99] offset:{8*i+4}")
```

```python
from asmlib import *
import struct, math, os
NAME = "parallel_sum__grouped_kv_mqa__glu_gated_reglu__prompt_kernel"
QSCALE = struct.unpack("<I", struct.pack("<f", math.log2(math.e) / math.sqrt(32.0)))[0]
STOP = os.environ.get("STOP", "")
KVL = 131072
QLDS = 0
TLDS = 0
KVS = 22
S_ID = 100
RLDS = 65536
F_KV, F_H, F_O, F_NONCE, F_P = 0, 12288, 16384, 24576, 32768
WS_ST = WS_XN
WLDS = 98304
KXL = 16384
STL = 32768
CSL = 16384
NS = int(os.environ.get('X_NS', 11))
SPIN_MAX = 1 << 21
P1MODE = int(os.environ.get('X_P1MODE', 1))
P1SHIFT = int(os.environ.get('X_P1SHIFT', 6))
P1PRIO = int(os.environ.get('X_P1PRIO', 0))
UNROLL = int(os.environ.get('X_UNROLL', 0))
NPRE = int(os.environ.get('X_NPRE', 1))
TLBW = int(os.environ.get('X_TLBW', 0))
TLBS = int(os.environ.get('X_TLBS', 21))
TLBP = 4
EARLY = int(os.environ.get('X_EARLY', 4))
NPRO = int(os.environ.get('X_NPRO', 4))
TE = int(os.environ.get('X_TE', 1))
TLATE = int(os.environ.get('X_TLATE', 1))
CODEPF = int(os.environ.get('X_CODEPF', 1))
PR1 = int(os.environ.get('X_PR1', 0))
PR2 = int(os.environ.get('X_PR2', 0))
PR3 = int(os.environ.get('X_PR3', 0))
NE = int(os.environ.get('X_NE', 4))
HSTEP = int(os.environ.get('X_HSTEP', 2))
WPF = int(os.environ.get('X_WPF', 0))
WST = int(os.environ.get('X_WST', 0))
WOFF = int(os.environ.get('X_WOFF', 0))
FART = int(os.environ.get('X_FART', 1))
HL = int(os.environ.get('X_HL', 1))
XL = int(os.environ.get('X_XL', 3))
P1TOUCH = int(os.environ.get('X_P1T', 1))

S_WAVE = 3
S_TW, S_TA = 4, 5
P_WS = 6
NONCE = 8
QMASK = 10
SX = 12
SWD = 16
S_XO, S_AO, S_WDO, S_MX, S_MW, S_CNT = 20, 21, 22, 23, 24, 25
S_HO = 24
S_CT, S_RP, S_WM, S_P, S_BB, S_WN = 26, 27, 28, 29, 30, 31
T0, T1, T2, T3 = 32, 33, 34, 35
SACT, SKV = 36, 40
P_X, P_OUT, P_WO, S_ISV, S_PB = 44, 46, 48, 50, 51
S_G, S_C2, S_KH, S_KVO, S_MKV, S_RING = 52, 53, 54, 55, 56, 57
SFLAG = 58
SWO, SPART = 92, 96
VL, VXD, VWA, VWB, VWS, VXR, VWR, VWP, VQQ, VT = 1, 2, 4, 6, 8, 10, 12, 14, 16, 17
ONES, CS = 20, 24
VKVR, VKVD, VPA, VPW = 18, 19, 20, 21
HS, VHO, VWOD = 160, 4, 7
VXA, XR = 8, 224
VTCH, VDUM = 31, 30
VPL, VPD = 27, 28
ACC, XF, WF = 128, 64, 32
def acc(st, t, j): return ACC + ((st * 2 + t) * 8 + j) * 4
def xf(p, j): return XF + (p * 8 + j) * 4
def wf(p, st, t): return WF + (p * 4 + st * 2 + t) * 4
def emit(a, groups):
    for g in groups:
        for x in g: a(x)

def flag_set(a, off_sgpr):
    a(f"v_mov_b32 v22, s{off_sgpr}")
    a(f"v_mov_b32 v24, s{NONCE}")
    a(f"v_mov_b32 v25, s{NONCE+1}")
    a("s_mov_b64 exec, 1")
    a(f"global_store_dwordx2 v22, v[24:25], s[{SFLAG}:{SFLAG+1}] sc1")
    a("s_mov_b64 exec, -1")
def poll_load(): return f"global_load_dwordx2 {v(VPD,2)}, v{VPL}, s[{SFLAG}:{SFLAG+1}] sc1"
def poll_issue(a, off_sgpr, n):
    a(f"v_and_b32 v{VPL}, {n-1}, v{VL}")
    a(f"v_lshlrev_b32 v{VPL}, 3, v{VPL}")
    a(f"v_add_u32 v{VPL}, s{off_sgpr}, v{VPL}")
    a(poll_load())
_lab = [0]
def spin(a, cmps, loads, sleep=1):
    _lab[0] += 1
    n = _lab[0]
    a(f"s_mov_b32 s{T1}, {SPIN_MAX}")
    a.label(f"PL{n}")
    for x in cmps: a(x)
    a("s_cmp_eq_u64 vcc, -1")
    a(f"s_cbranch_scc1 PD{n}")
    a(f"s_sub_u32 s{T1}, s{T1}, 1")
    a(f"s_cbranch_scc1 PD{n}")
    a(f"s_sleep {sleep}")
    for x in loads: a(x)
    a("s_waitcnt vmcnt(0)")
    a(f"s_branch PL{n}")
    a.label(f"PD{n}")
def poll_check(a):
    spin(a, [f"v_cmp_eq_u64 vcc, s[{NONCE}:{NONCE+1}], {v(VPD,2)}"], [poll_load()])
def wave0(a, fn):
    _lab[0] += 1
    n = _lab[0]
    a(f"s_cmp_lg_u32 s{S_WAVE}, 0")
    a(f"s_cbranch_scc1 W0_{n}")
    fn()
    a.label(f"W0_{n}")

def p1_dma_x(h, tau):
    if os.environ.get("X_ROT"):
        return [[f"s_add_u32 s{S_XO}, s{S_ROT}, {tau*128}", f"s_and_b32 s{S_XO}, s{S_XO}, 2047", f"s_add_u32 m0, s{S_MX}, {(h*3 + tau%3)*16384}",
             f"s_or_b32 s{S_XO}, s{S_XO}, {h*128*2048}" if h else "s_nop 0",
             f"buffer_load_dwordx4 v{VXD}, s[{SX}:{SX+3}], s{S_XO} offen lds"],
            [f"buffer_load_dwordx4 v{VXD+1}, s[{SX}:{SX+3}], s{S_XO} offen offset:1024 lds"]]
    return [[f"s_add_u32 m0, s{S_MX}, {(h*3 + tau%3)*16384}", f"s_mov_b32 s{S_XO}, {h*128*2048 + tau*128}",
             f"buffer_load_dwordx4 v{VXD}, s[{SX}:{SX+3}], s{S_XO} offen lds"],
            [f"buffer_load_dwordx4 v{VXD+1}, s[{SX}:{SX+3}], s{S_XO} offen offset:1024 lds"]]
def p1_dma_w(k):
    slot = k % 4
    return [[f"s_add_u32 m0, s{S_MW}, {slot*16384}", "s_nop 0", f"global_load_lds_dwordx4 {v(VWA,2)}, off",
             f"s_add_u32 m0, s{S_MW}, {slot*16384+2048}",
             f"v_lshl_add_u64 {v(VWA,2)}, {v(VWS,2)}, 0, {v(VWA,2)}"],
            [f"global_load_lds_dwordx4 {v(VWB,2)}, off",
             f"v_lshl_add_u64 {v(VWB,2)}, {v(VWS,2)}, 0, {v(VWB,2)}"]]
def p1_reads(k):
    p = k & 1
    r = []
    for st in range(2):
        for t in range(2):
            for half in range(2):
                r.append(f"ds_read_b64_tr_b16 {v(wf(p,st,t)+2*half,2)}, v{VWR+t} offset:{(k%4)*16384 + st*8192 + half*4096}")
    for j in range(8):
        r.append(f"ds_read_b128 {v(xf(p,j),4)}, v{VXR+(k&1)} offset:{((k>>1)%3)*16384 + j*2048}")
    return r
def p1_mfma(p, first=False):
    m = []
    for j in range(8):
        order = [(0,0),(0,1),(1,0),(1,1)]
        if j & 1: order = order[::-1]
        for st, t in order:
            d = acc(st, t, j)
            m.append(f"v_mfma_f32_16x16x32_bf16 {v(d,4)}, {v(wf(p,st,t),4)}, {v(xf(p,j),4)}, {0 if first else v(d,4)}")
    return m
def cs_mfma(p, st, grp): return f"v_mfma_f32_16x16x32_bf16 {v(CS+4*st,4)}, {v(wf(p,st,grp),4)}, {v(ONES,4)}, {v(CS+4*st,4)}"
CSV = int(os.environ.get("X_CSV", 0))
def cs_valu(p, grp):
    o = []
    for st in range(2):
        for r in range(4):
            src = wf(p, st, grp) + r; t = 20 + 2 * (r & 1)
            o += [f"v_lshlrev_b32 v{t}, 16, v{src}", f"v_and_b32 v{t+1}, 0xffff0000, v{src}",
                  f"v_add_f32 v{CS+2*st}, v{CS+2*st}, v{t}", f"v_add_f32 v{CS+2*st+1}, v{CS+2*st+1}, v{t+1}"]
    return o
def add_cs(m, fill, p, grp):
    if not CSV:
        return m[:10] + [cs_mfma(p, 0, grp)] + m[10:20] + [cs_mfma(p, 1, grp)] + m[20:], fill
    fill = [list(f) for f in fill]
    while len(fill) < 32: fill.append([])
    order = sorted(range(32), key=lambda i: (len(fill[i]) > 0, i))
    vv = cs_valu(p, grp)
    slots = sorted([i for i in range(32) if not fill[i]] * 2 + [i for i in range(32) if fill[i]])
    empt = [i for i in range(32) if not fill[i]]
    rest = [i for i in range(32) if fill[i]]
    need = 32 - 2 * len(empt)
    pick = sorted(empt * 2 + rest[-need:] if need > 0 else (empt * 2)[:32])
    for i, x in zip(pick, vv): fill[i].append(x)
    return m, fill
def weave(a, m, fill):
    for i, ins in enumerate(m):
        a(ins)
        if i < len(fill):
            for x in fill[i]: a(x)
    emit(a, fill[len(m):])
class VM:
    def __init__(self): self.q = []
    def add(self, need, n=1): self.q += [need] * n
    def wait(self, b):
        last = max([i for i, x in enumerate(self.q) if x <= b], default=-1)
        return len(self.q) - 1 - last
S_XM, S_XT, S_WM0, S_DX, S_DW = S_TW, S_TA, S_RING, S_ISV, S_PB
def gen_p1(a, grp, vm0):
    vm = VM(); vm.q = list(vm0.q)
    LO, HI = NS - 3, 26
    LO += LO & 1
    if not os.environ.get('X_LOOP'): LO = HI = 99
    G = "AB"[grp]
    for _ in range(int(os.environ.get("X_SH1", 0))): a("s_nop 0")
    def dyn_entry(k):
        tau = k // 2 + 2
        a(f"s_add_u32 s{S_XM}, s{S_MX}, {(tau % 3) * 16384}")
        a(f"s_movk_i32 s{S_XT}, {tau * 128}")
        a(f"s_movk_i32 s{S_WM0}, {k % 4}")
        a(f"s_movk_i32 s{S_DX}, {(k // 2) % 3}")
        for i in range(2):
            a(f"v_add_u32 v{VXR+i}, {((k // 2) % 3) * 16384}, v{VXR+i}")
            a(f"v_add_u32 v{VWR+i}, {((k + 1) % 4) * 16384}, v{VWR+i}")
    def dyn_exit(k):
        for i in range(2):
            a(f"v_subrev_u32 v{VXR+i}, {((k // 2) % 3) * 16384}, v{VXR+i}")
            a(f"v_subrev_u32 v{VWR+i}, {((k + 1) % 4) * 16384}, v{VWR+i}")
    def dyn_step(p):
        fill = []
        if p == 0:
            fill.append([f"s_add_u32 m0, s{S_XM}, 49152", f"s_or_b32 s{S_XO}, s{S_XT}, {128*2048}",
                         f"buffer_load_dwordx4 v{VXD}, s[{SX}:{SX+3}], s{S_XO} offen lds"])
            fill.append([f"buffer_load_dwordx4 v{VXD+1}, s[{SX}:{SX+3}], s{S_XO} offen offset:1024 lds",
                         f"s_add_u32 s{S_XT}, s{S_XT}, 128", f"s_cmp_eq_u32 s{S_DX}, 0", f"s_movk_i32 s{T0}, 16384",
                         f"s_cselect_b32 s{T0}, {-32768 & 0xffffffff}, s{T0}", f"s_add_u32 s{S_XM}, s{S_XM}, s{T0}"])
        else:
            fill.append([f"s_mov_b32 m0, s{S_XM}", "s_nop 0", f"buffer_load_dwordx4 v{VXD}, s[{SX}:{SX+3}], s{S_XT} offen lds"])
            fill.append([f"buffer_load_dwordx4 v{VXD+1}, s[{SX}:{SX+3}], s{S_XT} offen offset:1024 lds"])
        fill.append([f"s_lshl_b32 s{T1}, s{S_WM0}, 14", f"s_add_u32 m0, s{S_MW}, s{T1}", f"s_add_u32 s{S_WM0}, s{S_WM0}, 1",
                     f"global_load_lds_dwordx4 {v(VWA,2)}, off", "s_add_u32 m0, m0, 2048",
                     f"v_lshl_add_u64 {v(VWA,2)}, {v(VWS,2)}, 0, {v(VWA,2)}"])
        fill.append([f"global_load_lds_dwordx4 {v(VWB,2)}, off", f"s_and_b32 s{S_WM0}, s{S_WM0}, 3",
                     f"v_lshl_add_u64 {v(VWB,2)}, {v(VWS,2)}, 0, {v(VWB,2)}"])
        q = p ^ 1
        rd = [[f"ds_read_b64_tr_b16 {v(wf(q,st,t)+2*half,2)}, v{VWR+t} offset:{st*8192 + half*4096}"] for st in range(2) for t in range(2) for half in range(2)]
        rd[-1] += [f"s_cmp_eq_u32 s{S_WM0}, 3", f"s_movk_i32 s{T0}, 16384", f"s_cselect_b32 s{T0}, {-49152 & 0xffffffff}, s{T0}",
                   f"v_add_u32 v{VWR}, s{T0}, v{VWR}", f"v_add_u32 v{VWR+1}, s{T0}, v{VWR+1}"]
        rd += [[f"ds_read_b128 {v(xf(q,j),4)}, v{VXR+q} offset:{j*2048}"] for j in range(8)]
        if p == 0:
            rd[-1] += [f"s_cmp_eq_u32 s{S_DX}, 2", f"s_movk_i32 s{T0}, 16384", f"s_cselect_b32 s{T0}, {-32768 & 0xffffffff}, s{T0}",
                       f"s_cselect_b32 s{S_DX}, -1, s{S_DX}", f"v_add_u32 v{VXR}, s{T0}, v{VXR}", f"v_add_u32 v{VXR+1}, s{T0}, v{VXR+1}",
                       f"s_add_u32 s{S_DX}, s{S_DX}, 1"]
        fill += rd
        if grp: fill = [[] for _ in range(P1SHIFT)] + fill
        m, fill = add_cs(p1_mfma(p), fill, p, grp)
        weave(a, m, fill)
        a("s_waitcnt vmcnt(8) lgkmcnt(0)")
        if p == 1:
            a(f"s_sub_u32 s{S_DW}, s{S_DW}, 1")
            a(f"s_cmp_lg_u32 s{S_DW}, 0")
        a("s_barrier")
    for s_ in range(32):
        p = s_ & 1
        h = (s_ + 1) & 1; tau = (s_ - 1 - h) // 2 + 3
        if LO <= s_ < HI:
            vm.add(2 * tau - 1, 2); vm.add(s_ + 3, 2)
            assert vm.wait(s_ + 1) == 8
            if s_ == LO:
                dyn_entry(LO)
                a(f"s_movk_i32 s{S_DW}, {(HI - LO) // 2}")
                a.raw(".p2align 6")
                a.label("P1_L" + G)
                dyn_step(0); dyn_step(1)
                a("s_cbranch_scc1 P1_L" + G)
                dyn_exit(HI)
            continue
        nstamp(a, f"s{s_}")
        fill = []
        def pl_(base): return ["v_mbcnt_lo_u32_b32 v16, -1, 0", "v_mbcnt_hi_u32_b32 v16, -1, v16", "v_lshlrev_b32 v16, 4, v16", f"global_load_dwordx4 v[16:19], v16, s[{SFLAG}:{SFLAG+1}] offset:{base} sc1"]
        if s_ in (NS - 6, KVS):
            mark = len(vm.q)
            if not grp:
                fill.append([f"s_cmp_lg_u32 s{S_WAVE}, 0", f"s_cbranch_scc1 P1_NP{s_}"] + pl_(1024 if s_ != KVS else 0) + [f"P1_NP{s_}:"])
        rl_ = [f"s_xor_b32 s{T0}, s{S_ID}, 1", f"s_lshl_b32 s{T0}, s{T0}, 7", f"v_mov_b32 v0, s{T0}", f"global_load_dwordx2 v[16:17], v0, s[{SFLAG}:{SFLAG+1}] offset:{64} sc1"]
        rl_[1:2] = [f"s_lshl_b32 s{T0}, s{T0}, 7", f"s_add_u32 s{T0}, s{T0}, {F_P}"]
        if s_ == 3 and not grp:
            fill.append([f"s_cmp_lg_u32 s{S_WAVE}, 0", "s_cbranch_scc1 P1_NW", f"v_lshlrev_b32 v0, 11, v{VL}", "s_mov_b64 exec, 0xff",
                         "ds_write_b32 v0, v19", "s_mov_b64 exec, -1", "P1_NW:"])
            fill[-1][2] = f"v_lshlrev_b32 v0, 11, v{VL}"
            fill[-1].insert(3, f"v_add_u32 v0, {RLDS}, v0")
        if s_ == 4:
            a(f"s_add_u32 s{T0}, s{S_MX}, {RLDS}")
            a(f"v_mov_b32 v0, s{T0}")
            a("ds_read_b32 v0, v0")
            a("s_waitcnt lgkmcnt(0)")
            a(f"v_readfirstlane_b32 s{T0}, v0")
            a("s_nop 0")
            a(f"s_cmp_lg_u32 s{T0}, 0")
            a("s_cbranch_scc1 KM_REDO")
        if s_ == 2:
            if not grp:
                fill.append([f"s_cmp_lg_u32 s{S_WAVE}, 0", "s_cbranch_scc1 P1_NF", f"v_mov_b32 v16, s{NONCE}", f"v_mov_b32 v17, s{NONCE+1}", f"v_mov_b32 v18, s{S_CNT}",
                             "s_mov_b64 exec, 1", f"global_store_dwordx2 v18, v[16:17], s[{SFLAG}:{SFLAG+1}] sc1", "s_mov_b64 exec, -1"] + rl_ + ["P1_NF:"])
                markr = len(vm.q)
        if s_ == 0:
            for i, g in enumerate(p1_dma_x(0, 1) + p1_dma_x(1, 1) + p1_dma_w(2)):
                fill.append([f"s_cmp_lg_u32 s{S_KH}, 0", f"s_cbranch_scc1 P1_S{G}{i}"] + g + [f"P1_S{G}{i}:"])
            fill += p1_dma_w(3); vm.add(2, 2)
            fill += p1_dma_x(0, 2); vm.add(3, 2)
        if s_ + 4 == NS:
            fill.append([f"s_mov_b64 exec, s[{QMASK}:{QMASK+1}]", f"v_mov_b32 v{VWA}, v{VWP}", f"v_mov_b32 v{VWA+1}, v{VWP+1}",
                         f"v_mov_b32 v{VWS}, 512", f"v_lshl_add_u64 {v(VWB,2)}, {v(VWS,2)}, 0, {v(VWA,2)}", f"v_mov_b32 v{VWS}, 2048", "s_mov_b64 exec, -1"])
        if tau < 16:
            fill += p1_dma_x(h, tau); vm.add(2 * tau - 1, 2)
        if s_ + 4 < 32:
            fill += p1_dma_w(s_ + 4); vm.add(s_ + 3, 2)
        if WST and s_ % WST == WOFF and WPF + s_ // WST * (WST // 4) < 8:
            for _ in range(WST // 4):
                fill.append([f"s_add_u32 s{S_TW}, s{S_TW}, {128*7168}", f"s_addc_u32 s{S_TA}, s{S_TA}, 0", "s_mov_b64 exec, 0x7f",
                             f"global_load_dword v{VL}, v0, s[{S_TW}:{S_TA}]", "s_mov_b64 exec, -1"])
                vm.add(min(s_ + 4, 27), 1)
        if s_ == 27:
            fill.append([f"v_mbcnt_lo_u32_b32 v{VL}, -1, 0", f"v_mbcnt_hi_u32_b32 v{VL}, -1, v{VL}"])
            fill.append([f"v_lshlrev_b32 v{VKVD}, 4, v{VL}", f"s_lshr_b32 s{T0}, s2, 3", f"s_lshl_b32 s{T0}, s{T0}, 13", f"s_lshr_b32 s{T1}, s{S_MX}, 1", f"s_add_u32 s{T0}, s{T0}, s{T1}",
                         f"s_add_u32 s{T0}, s{T0}, 8192", f"buffer_load_dword v16, v{VKVD}, s[{SKV}:{SKV+3}], s{T0} offen"])
            vm.add(30, 1)
        if s_ == 29:
            fill.append([f"s_lshr_b32 s{T0}, s{S_MX}, 1", f"s_add_u32 m0, s{T0}, {STL}", "s_nop 0",
                         f"buffer_load_dwordx4 v{VKVD}, s[{SPART}:{SPART+3}], s{S_AO} offen lds"])
            vm.add(31, 1)
        if s_ == 30:
            fill.append([f"s_xor_b32 m0, s{S_MKV}, 0x4000", f"s_add_u32 s{T0}, s{S_KVO}, 8192",
                         f"buffer_load_dwordx4 v{VKVD}, s[{SKV}:{SKV+3}], s{T0} offen lds"])
            fill.append([f"buffer_load_dwordx4 v{VKVD}, s[{SKV}:{SKV+3}], s{T0} offen offset:1024 lds"])
            vm.add(99, 2)
        m = p1_mfma(p, s_ == 0)
        if s_ == 30:
            fill.append([f"v_lshlrev_b32 v{VKVD}, 4, v{VL}", f"v_lshrrev_b32 v{VQQ}, 4, v{VL}", f"v_and_b32 v{VT}, 15, v{VL}",
                         f"v_add_u32 v{VKVR}, {KVL}, v{VKVD}"])
            fill.append([f"v_lshlrev_b32 v0, 3, v{VT}", f"s_lshr_b32 s{T0}, s{S_MX}, 1", f"v_add_u32 v0, s{T0}, v0", f"v_add_u32 v{VWP}, s{S_MX}, v{VKVD}",
                         f"s_lshl_b32 s{T0}, s{S_WN}, 11", f"v_add_u32 v{VWP+1}, s{T0}, v{VKVD}"])
            if CSV:
                fill.append([f"s_lshl_b32 s{T0}, s{S_WAVE}, 7", f"v_lshlrev_b32 v28, 2, v{VT}", f"v_add_u32 v28, s{T0}, v28",
                             f"s_lshl_b32 s{T0}, s{S_WN}, 7", f"v_lshlrev_b32 v{VWP+1}, 4, v{VQQ}", f"v_add_u32 v{VWP+1}, s{T0}, v{VWP+1}"])
        if s_ < 31:
            fill += [[x] for x in p1_reads(s_ + 1)]
            if grp: fill = [[] for _ in range(P1SHIFT if len(fill) <= 26 else 0)] + fill
            m, fill = add_cs(m, fill, p, grp)
        elif CSV:
            vv = cs_valu(p, grp)
            fill = [vv[2*i:2*i+2] for i in range(16)]
            fill += [[f"v_add_f32 v{CS}, v{CS}, v{CS+1}", f"v_add_f32 v{CS+2}, v{CS+2}, v{CS+3}"]]
            for sw in ("v_permlane16_swap_b32", "v_permlane32_swap_b32"):
                fill += [[f"v_mov_b32 v{CS+1}, v{CS}", f"v_mov_b32 v{CS+3}, v{CS+2}"], ["s_nop 0", f"{sw} v{CS}, v{CS+1}", f"{sw} v{CS+2}, v{CS+3}"],
                         [f"v_add_f32 v{CS}, v{CS}, v{CS+1}", f"v_add_f32 v{CS+2}, v{CS+2}, v{CS+3}"]]
            fill += [[f"ds_write_b32 v28, v{CS} offset:{CSL}", f"ds_write_b32 v28, v{CS+2} offset:{CSL+64}"]]
            ex = [[f"s_mov_b32 m0, s{S_MKV}", "s_nop 0", f"buffer_load_dwordx4 v{VKVD}, s[{SKV}:{SKV+3}], s{S_KVO} offen lds"],
                  [f"buffer_load_dwordx4 v{VKVD}, s[{SKV}:{SKV+3}], s{S_KVO} offen offset:1024 lds", f"s_add_u32 s{S_KVO}, s{S_KVO}, 16384"]]
            ex += [[f"ds_read_b64 {v(XF+2*j,2)}, v0 offset:{STL + j*128}"] for j in range(8)]
            for i, e in enumerate(ex): fill[i] = fill[i] + list(e)
        else:
            m = [cs_mfma(p, 0, grp), cs_mfma(p, 1, grp)] + m
            fill = [[f"s_mov_b32 m0, s{S_MKV}", "s_nop 0", f"buffer_load_dwordx4 v{VKVD}, s[{SKV}:{SKV+3}], s{S_KVO} offen lds"],
                    [f"buffer_load_dwordx4 v{VKVD}, s[{SKV}:{SKV+3}], s{S_KVO} offen offset:1024 lds", f"s_add_u32 s{S_KVO}, s{S_KVO}, 16384"]]
            fill += [[f"ds_read_b64 {v(XF+2*j,2)}, v0 offset:{STL + j*128}"] for j in range(8)] + [[], []]
            fill += [[f"ds_write_b128 v{VWP}, {v(CS+4*st,4)} offset:{CSL + st*1024}"] for st in range(2)]
        weave(a, m, fill)
        if s_ < 31:
            a(f"s_waitcnt vmcnt({vm.wait(s_ + 1)}) lgkmcnt(0)")
        else:
            a("s_waitcnt lgkmcnt(0)")
        if s_ == 2 and not grp:
            a(f"s_cmp_lg_u32 s{S_WAVE}, 0")
            a("s_cbranch_scc1 P1_NQ")
            a(f"s_waitcnt vmcnt({len(vm.q) - markr})")
            a(f"s_or_b32 s{T2}, s{NONCE}, 1")
            a(f"s_mov_b32 s{T3}, s{NONCE+1}")
            spin(a, ["v_or_b32 v18, 1, v16", "v_mov_b32 v19, v17", f"v_cmp_eq_u64 vcc, s[{T2}:{T3}], v[18:19]"], rl_, sleep=4)
            a(f"v_readfirstlane_b32 s{T0}, v16")
            a("s_nop 0")
            a(f"s_xor_b32 s{T0}, s{T0}, s{NONCE}")
            a(f"s_xor_b32 s{T0}, s{T0}, s{S_KH}")
            a(f"s_xor_b32 s{T1}, s{S_ID}, s2")
            a(f"s_andn2_b32 s{T0}, s{T1}, s{T0}")
            a(f"s_and_b32 s{T0}, s{T0}, 1")
            a(f"v_mov_b32 v19, s{T0}")
            a.label("P1_NQ")
        if s_ in (NS - 5, KVS + 1) and not grp:
            n = f"s[{NONCE}:{NONCE+1}]"
            a(f"s_cmp_lg_u32 s{S_WAVE}, 0")
            a(f"s_cbranch_scc1 P1_NC{s_}")
            a(f"s_waitcnt vmcnt({len(vm.q) - mark})")
            spin(a, [f"v_cmp_eq_u64 vcc, {n}, v[16:17]", f"v_cmp_eq_u64 s[{T2}:{T3}], {n}, v[18:19]", f"s_and_b64 vcc, vcc, s[{T2}:{T3}]"],
                 pl_(1024 if s_ != KVS + 1 else 0), sleep=8)
            a.label(f"P1_NC{s_}")
        a("s_barrier")
def kv_dma():
    return [[f"s_mov_b32 m0, s{S_MKV}", f"s_xor_b32 s{S_MKV}, s{S_MKV}, 0x4000",
             f"buffer_load_dwordx4 v{VKVD}, s[{SKV}:{SKV+3}], s{S_KVO} offen lds"],
            [f"buffer_load_dwordx4 v{VKVD}, s[{SKV}:{SKV+3}], s{S_KVO} offen offset:1024 lds",
             f"s_add_u32 s{S_KVO}, s{S_KVO}, 8192"]]

QF, KB, VB, PB, SEL, RS, SB, OA, NM = 32, 40, 56, 72, 88, 92, 96, 128, 144
def mf32(d, x, y, c): return f"v_mfma_f32_32x32x16_bf16 {v(d,16)}, {v(x,4)}, {v(y,4)}, {c}"
def mfrs(p): return f"v_mfma_f32_16x16x32_bf16 {v(RS,4)}, {v(SEL,4)}, {v(p,4)}, {v(RS,4)}"
LAG = int(os.environ.get('X_LAG', 1))
CUTS = eval(os.environ.get('X_CUTS', '[0, 4, 9, 13, 16, 21]'))
def att_slot(a, n, qk=True, pv=True, rd=True, pre=()):
    b = n & 1
    S = SB + 16 * b; S1 = SB + 16 * (b ^ 1)
    P = PB + 8 * b; P1 = PB + 8 * (b ^ 1)
    K1 = KB + 8 * (b ^ 1); V1 = VB + 8 * (b ^ 1)
    m = []
    if qk:
        m.append(mf32(S1, K1, QF, v(NM, 16)))
        m.append(mf32(S1, K1 + 4, QF + 4, v(S1, 16)))
    if pv:
        m += [mf32(OA, V1, P1, v(OA, 16)), mfrs(P1), mf32(OA, V1 + 4, P1 + 4, v(OA, 16)), mfrs(P1 + 4)]
    val = []
    for i in range(16):
        val.append(f"v_exp_f32 v{S+i}, v{S+i}")
        k = i - LAG
        if k >= 1 and k % 2 == 1:
            val.append(f"v_cvt_pk_bf16_f32 v{P+k//2}, v{S+k-1}, v{S+k}")
    if LAG == 1: val.append("s_nop 0")
    for k in range(16 - LAG, 16):
        if k % 2 == 1: val.append(f"v_cvt_pk_bf16_f32 v{P+k//2}, v{S+k-1}, v{S+k}")
    rds = []
    if rd:
        pos = (n & 3) * 2048
        rds = [f"ds_read_b128 {v(KB+8*b,4)}, v{VKVR} offset:{pos}",
               f"ds_read_b128 {v(KB+8*b+4,4)}, v{VKVR} offset:{pos+1024}",
               f"ds_read_b128 {v(VB+8*b,4)}, v{VKVR} offset:{8192+pos}",
               f"ds_read_b128 {v(VB+8*b+4,4)}, v{VKVR} offset:{8192+pos+1024}"]
    other = [list(g) for g in pre] + [[x] for x in rds]
    cuts = CUTS[:len(m)]
    k = 0; oi = 0
    for i, x in enumerate(val):
        if k < len(m) and i == cuts[k]:
            a(m[k]); k += 1
            if oi < len(other):
                emit(a, [other[oi]]); oi += 1
        a(x)
        if i in (2, 6, 11) and oi < len(other) and len(other) > len(m):
            emit(a, [other[oi]]); oi += 1
    emit(a, other[oi:])
def prefill_dma():
    return [[f"s_add_u32 m0, s{S_RING}, s{T3}", "s_nop 0",
             f"buffer_load_dwordx4 v{VPA}, s[{SACT}:{SACT+3}], s{S_AO} offen lds",
             f"s_add_u32 s{S_AO}, s{S_AO}, 8192"],
            [f"s_add_u32 m0, m0, 8192", f"s_add_u32 s{S_RING}, s{S_RING}, 16384",
             f"buffer_load_dwordx4 v{VPW}, s[{SWD}:{SWD+3}], s{S_WDO} offen lds",
             f"s_add_u32 s{S_WDO}, s{S_WDO}, 65536"]]
def touch_w(n0):
    return [[f"s_add_u32 s{T0}, s{S_WAVE}, {n0}", f"s_lshl_b32 s{T0}, s{T0}, 17", f"s_add_u32 s{T0}, s{T0}, s{S_TW}",
             f"buffer_load_dword v{VDUM}, v{VTCH}, s[{SWD}:{SWD+3}], s{T0} offen"]]
def touch_a(m0):
    return [[f"s_add_u32 s{T0}, s{S_WAVE}, {m0}", f"s_lshl_b32 s{T0}, s{T0}, 15", f"s_add_u32 s{T0}, s{T0}, s{S_TA}",
             f"buffer_load_dword v{VDUM}, v{VTCH}, s[{SACT}:{SACT+3}], s{T0} offen"]]
def touch_wo():
    return [[f"s_lshl_b32 s{T0}, s2, 13", f"s_add_u32 s{T0}, s{T0}, s{T3}",
             f"buffer_load_dword v{VDUM}, v{VKVD}, s[{SWO}:{SWO+3}], s{T0} offen"]]
STASH = int(os.environ.get("X_STASH", 0)); WRG = 160; STH0 = 12
def wo_stash(i0, n):
    if not STASH: return []
    g = [f"s_cmp_eq_u32 s{S_WM}, 0", f"s_cbranch_scc1 WS{i0}"]
    for i in range(i0, i0 + n):
        g += [f"s_mov_b32 s{T0}, {(STH0 + i)*65536}", f"buffer_load_dwordx4 {v(WRG+4*i,4)}, v12, s[{SWO}:{SWO+3}], s{T0} offen"]
    return [g + [f"WS{i0}:"]]
def h_store(j):
    off = (j >> 1) * 2048 + (j & 1) * 256
    tail = f"v{VHO + (off>>12)}, s[{SACT}:{SACT+3}], s{S_HO} offen offset:{off & 4095} sc1"
    return [[f"s_cmp_eq_u32 s{S_WN}, 3", f"s_cbranch_scc1 HS{j}A", f"buffer_store_dwordx4 {v(HS+4*j,4)}, {tail}",
             f"s_branch HS{j}B", f"HS{j}A:", f"buffer_store_dwordx2 {v(HS+4*j,2)}, {tail}", f"HS{j}B:"]]
def att_epoch(a, E, first=False, last=False, prefill=0, wait=0, post=None, pre_bar=None, x1=(), x2=(), x3=()):
    nstamp(a, f"e{E}a")
    a(f"s_waitcnt vmcnt({wait}) lgkmcnt(0)")
    if pre_bar: pre_bar()
    a("s_barrier")
    nstamp(a, f"e{E}c")
    if not first: a(f"v_xor_b32 v{VKVR}, 0x4000, v{VKVR}")
    if post: post()
    for i in range(4):
        pre = []
        if i == 0 and not last: pre += kv_dma()
        if i in (1, 2)[:prefill]: pre += prefill_dma()
        if i == 1: pre += list(x1)
        if i == 2: pre += list(x2)
        if i == 3: pre += list(x3)
        if i: a("s_waitcnt lgkmcnt(0)")
        att_slot(a, 4 * E + i, qk=not (last and i == 3), pv=not (first and i == 0), pre=pre)

def wave_sum(a, r, t):
    for mod in ("quad_perm:[1,0,3,2]", "quad_perm:[2,3,0,1]", "row_half_mirror", "row_mirror"):
        a("s_nop 1")
        a(f"v_add_f32_dpp v{r}, v{r}, v{r} {mod} row_mask:0xf bank_mask:0xf")
    for sw in ("v_permlane16_swap_b32", "v_permlane32_swap_b32"):
        a(f"v_mov_b32 v{t}, v{r}")
        a("s_nop 1")
        a(f"{sw} v{r}, v{t}")
        a(f"v_add_f32 v{r}, v{r}, v{t}")

def gen_p0(a, vm):
    VTR, VTW, VFR, VTA, VTB, VTX, VQS, VEX, VKS, VQD = 0, 20, 30, 22, 24, 26, 27, 28, 29, 30
    A0, A1, A2, A3, A4, A5, A6, A7, TID = 100, 101, 102, 103, 104, 105, 106, 107, 31
    a(f"s_load_dwordx2 s[{P_X}:{P_X+1}], s[0:1], {K_X}")
    a(f"s_load_dwordx8 s[36:43], s[0:1], {K_WG}")
    a(f"s_load_dwordx8 s[92:99], s[0:1], {K_WQ}")
    a(f"s_load_dwordx2 s[{P_WS}:{P_WS+1}], s[0:1], {K_WS}")
    a(f"s_getpc_b64 s[{T2}:{T3}]")
    a.label("PF_BASE")
    a(f"s_lshr_b32 s{T0}, s2, 3")
    a(f"s_lshl_b32 s{T0}, s{T0}, 12")
    a(f"v_lshrrev_b32 v{A1}, 3, v0")
    a(f"v_lshlrev_b32 v{A1}, 6, v{A1}")
    a(f"v_add_u32 v{A1}, s{T0}, v{A1}")
    a(f"v_min_u32 v{A1}, KM_END - PF_BASE, v{A1}")
    a(f"global_load_dword v18, v{A1}, s[{T2}:{T3}]")
    a(f"v_lshrrev_b32 v{A0}, 6, v0")
    a(f"v_and_b32 v{VL}, 63, v0")
    a(f"v_mov_b32 v{TID}, v0")
    a(f"v_readfirstlane_b32 s{S_WAVE}, v{A0}")
    a(f"v_lshlrev_b32 v{VKVD}, 4, v{VL}")
    a(f"v_lshrrev_b32 v{VQQ}, 4, v{VL}")
    a(f"v_and_b32 v{VT}, 15, v{VL}")
    a(f"s_lshr_b32 s{S_PB}, s2, 1")
    a(f"s_lshl_b32 s{S_MX}, s{S_WAVE}, 11")
    a(f"s_and_b32 s{S_KH}, s2, 1")
    a("s_cbranch_scc0 P0_EVEN")
    def tile_ids():
        a(f"s_lshl_b32 s{S_RP}, s{S_KH}, 2")
        a(f"s_bfe_u32 s{T1}, s2, 0x20003")
        a(f"s_add_u32 s{S_RP}, s{S_RP}, s{T1}")
        a(f"s_bfe_u32 s{S_CT}, s2, 0x20001")
        a(f"s_lshl_b32 s{S_G}, s{S_CT}, 2")
        a(f"s_lshl_b32 s{S_CT}, s{S_CT}, 3")
        a(f"s_lshr_b32 s{S_C2}, s2, 5")
        a(f"s_add_u32 s{S_CT}, s{S_CT}, s{S_C2}")
        a(f"s_add_u32 s{S_G}, s{S_G}, s{T1}")
        a(f"s_lshr_b32 s{S_WM}, s{S_WAVE}, 2")
        a(f"s_and_b32 s{S_P}, s{S_WAVE}, 1")
        a(f"s_bfe_u32 s{S_BB}, s{S_WAVE}, 0x10001")
        a(f"s_and_b32 s{S_WN}, s{S_WAVE}, 3")
    def panel_srd():
        a(f"s_lshl_b32 s{T0}, s{S_RP}, 19")
        srd(a, SX, P_X, P_X + 1, 512 << 10, add_lo=f"s{T0}")
    def common(tag):
        a(f"s_add_u32 s{SFLAG}, s{P_WS}, {WS_FLAG}")
        a(f"s_addc_u32 s{SFLAG+1}, s{P_WS+1}, 0")
        a(f"s_load_dwordx2 s[{NONCE}:{NONCE+1}], s[{SFLAG}:{SFLAG+1}], {F_NONCE}")
        a(f"s_mov_b32 s{P_OUT}, s42")
        a(f"s_mov_b32 s{P_OUT+1}, s43")
        a(f"s_mov_b32 s{P_WO}, s98")
        a(f"s_mov_b32 s{P_WO+1}, s99")
        srd(a, SWD, 40, 41, 3584 * 2048)
    def pick():
        a(f"s_cmp_lt_u32 s{S_WAVE}, 4")
        a(f"s_cselect_b32 s{S_TW}, s36, s38")
        a(f"s_cselect_b32 s{S_TA}, s37, s39")
    def addr_x():
        a(f"v_lshrrev_b32 v{A0}, 3, v{VL}")
        a(f"s_lshl_b32 s{T0}, s{S_WAVE}, 4")
        a(f"v_add_u32 v{A0}, s{T0}, v{A0}")
        a(f"v_lshlrev_b32 v{A0}, 11, v{A0}")
        a(f"v_and_b32 v{A1}, 7, v{VL}")
        a(f"v_xor_b32 v{A1}, v{A1}, v{VQQ}")
        a(f"v_lshl_add_u32 v{VXD}, v{A1}, 4, v{A0}")
        a(f"v_xor_b32 v{VXD+1}, 64, v{VXD}")
        a(f"v_add_u32 v{VXD+1}, {8*2048 - 1024}, v{VXD+1}")
    def addr_w():
        a(f"s_lshl_b32 s{S_MW}, s{S_BB}, 2")
        a(f"s_add_u32 s{S_MW}, s{S_MW}, s{S_P}")
        a(f"s_lshl_b32 s{S_MW}, s{S_MW}, 10")
        a(f"s_lshl_b32 s{T0}, s{S_WM}, 13")
        a(f"s_add_u32 s{S_MW}, s{S_MW}, s{T0}")
        a(f"s_add_u32 s{S_MW}, s{S_MW}, {WLDS}")
        a(f"s_lshl_b32 s{T0}, s{S_P}, 3")
        a(f"s_lshl_b32 s{T1}, s{S_BB}, 2")
        a(f"s_add_u32 s{T0}, s{T0}, s{T1}")
        a(f"v_add_u32 v{A0}, s{T0}, v{VQQ}")
        a(f"s_lshl_b32 s{T0}, s{S_P}, 2")
        a(f"v_add_u32 v{A1}, s{T0}, v{VQQ}")
        a(f"v_lshlrev_b32 v{A1}, 1, v{A1}")
        a(f"v_xor_b32 v{A1}, v{A1}, v{VT}")
        a(f"v_lshlrev_b32 v{A2}, 4, v{A1}")
        a(f"v_subrev_u32 v{A3}, 192, v{A2}")
        a(f"v_add_u32 v{A4}, 32, v{A2}")
        a(f"v_cmp_le_u32 vcc, 12, v{A1}")
        a(f"v_cmp_le_u32 s[{QMASK}:{QMASK+1}], 14, v{A1}")
        a(f"s_and_b32 s{T0}, s{S_CT}, 1")
        a(f"s_cmp_eq_u32 s{T0}, 1")
        a(f"v_cndmask_b32 v{A3}, v{A4}, v{A3}, vcc")
        a(f"s_cselect_b64 s[{T2}:{T3}], -1, 0")
        a(f"v_cndmask_b32 v{A3}, v{A2}, v{A3}, s[{T2}:{T3}]")
        a(f"s_mul_i32 s{T0}, s{S_CT}, 224")
        if os.environ.get("X_ALIGN"):
            a(f"s_min_u32 s{T0}, s{S_CT}, 27"); a(f"s_lshl_b32 s{T0}, s{T0}, 8"); a(f"v_mov_b32 v{A3}, v{A2}")
        a(f"v_add_u32 v{A3}, s{T0}, v{A3}")
        a(f"v_mov_b32 v{A5}, 7168")
        a(f"v_mad_u32_u24 v{A3}, v{A0}, v{A5}, v{A3}")
        a(f"s_lshl_b32 s{T0}, s{S_CT}, 6")
        a(f"s_lshl_b32 s{T1}, s{S_WM}, 5")
        a(f"s_add_u32 s{T0}, s{T0}, s{T1}")
        a(f"v_and_b32 v{A2}, 16, v{A2}")
        a(f"v_add_u32 v{A4}, s{T0}, v{A2}")
        a(f"v_lshl_add_u32 v{A4}, v{A0}, 11, v{A4}")
        a(f"v_mov_b32 v{A0}, 2048")
        a(f"v_cndmask_b32 v{A3}, v{A3}, v{A4}, s[{QMASK}:{QMASK+1}]")
        a(f"v_cndmask_b32 v{A5}, v{A5}, v{A0}, s[{QMASK}:{QMASK+1}]")
        a(f"v_mov_b32 v{A0}, s92")
        a(f"v_mov_b32 v{A1}, s93")
        a(f"v_mov_b32 v{A6}, s{S_TW}")
        a(f"v_mov_b32 v{A7}, s{S_TA}")
        a(f"v_cndmask_b32 v{A6}, v{A6}, v{A0}, s[{QMASK}:{QMASK+1}]")
        a(f"v_cndmask_b32 v{A7}, v{A7}, v{A1}, s[{QMASK}:{QMASK+1}]")
        a(f"v_lshlrev_b32 v{VWS}, 5, v{A5}")
        a(f"v_mov_b32 v{VWS+1}, 0")
        a(f"v_add_co_u32 v{VWA}, vcc, v{A3}, v{A6}")
        a(f"v_lshlrev_b32 v{A4}, 4, v{A5}")
        a(f"v_mov_b32 v{A5}, 0")
        a(f"v_addc_co_u32 v{VWA+1}, vcc, 0, v{A7}, vcc")
        a(f"v_lshl_add_u64 {v(VWB,2)}, {v(A4,2)}, 0, {v(VWA,2)}")
    def addr_rest():
        a(f"s_lshl_b32 s{T0}, s{S_CT}, 16")
        a(f"s_lshl_b32 s{T1}, s{S_WM}, 10")
        a(f"s_add_u32 s{T0}, s{T0}, s{T1}")
        a(f"s_lshl_b32 s{T1}, s{S_P}, 8")
        a(f"s_add_u32 s{T0}, s{T0}, s{T1}")
        a(f"s_lshl_b32 s{T1}, s{S_BB}, 7")
        a(f"s_add_u32 s{T0}, s{T0}, s{T1}")
        a(f"s_add_u32 s{T0}, s{T0}, {WS_WQP + NS*2048}")
        a(f"s_add_u32 s{T0}, s{T0}, s{P_WS}")
        a(f"s_addc_u32 s{T1}, s{P_WS+1}, 0")
        a(f"v_lshl_add_u32 v{A4}, v{VQQ}, 5, v{A2}")
        a(f"v_lshl_add_u64 {v(VWP,2)}, {v(A4,2)}, 0, s[{T0}:{T1}]")
        srd(a, SWO, P_WO, P_WO + 1, 1024 * 2048)
        a(f"v_lshrrev_b32 v{A0}, 1, v{VT}")
        a(f"v_xor_b32 v{A0}, v{A0}, v{VQQ}")
        a(f"v_lshlrev_b32 v{A0}, 4, v{A0}")
        a(f"v_lshl_add_u32 v{A0}, v{VT}, 7, v{A0}")
        a(f"s_mul_i32 s{T0}, s{S_WM}, 49152")
        a(f"v_add_u32 v{VXR}, s{T0}, v{A0}")
        a(f"v_xor_b32 v{VXR+1}, 64, v{VXR}")
        a(f"v_lshrrev_b32 v{A3}, 2, v{VT}")
        a(f"v_lshl_add_u32 v{A0}, v{VQQ}, 2, v{A3}")
        a(f"v_and_b32 v{A1}, 7, v{A0}")
        a(f"s_lshl_b32 s{T0}, s{S_WN}, 1")
        a(f"v_xor_b32 v{A1}, s{T0}, v{A1}")
        a(f"v_lshlrev_b32 v{A1}, 5, v{A1}")
        a(f"v_lshl_add_u32 v{A1}, v{A0}, 8, v{A1}")
        a(f"v_and_b32 v{A2}, 3, v{VL}")
        a(f"v_lshl_add_u32 v{A1}, v{A2}, 3, v{A1}")
        a(f"v_add_u32 v{VWR}, {WLDS}, v{A1}")
        a(f"v_xor_b32 v{VWR+1}, 32, v{VWR}")
        a(f"s_lshl_b32 s{S_KVO}, s{S_WN}, 11")
        a(f"s_cmp_eq_u32 s{S_WM}, 0")
        a(f"s_movk_i32 s{T0}, 4096")
        a(f"s_cselect_b32 s{T0}, s{T0}, 0x20000")
        a(f"s_add_u32 s{S_KVO}, s{S_KVO}, s{T0}")
        a(f"s_add_u32 s{S_MKV}, s{S_MX}, {KVL + 0x4000}")
    def final_srd():
        srd(a, SACT, P_WS, P_WS + 1, 16 * ACT_NU * 8192, add_lo=WS_ACT)
        srd(a, SKV, P_WS, P_WS + 1, (256 << 10) + 32768, add_lo=WS_KV - 8192)
    def nonce():
        a(f"s_add_u32 s{NONCE}, s{NONCE}, 0x9e3779b9")
        a(f"s_add_u32 s{NONCE+1}, s{NONCE+1}, 0x85ebca6b")
        def f():
            a(f"s_lshl_b32 s{T0}, s{S_ID}, 7")
            a(f"s_add_u32 s{T0}, s{T0}, {F_P + 64}")
            a(f"s_xor_b32 s{T1}, s{NONCE}, s{S_KH}")
            a(f"v_mov_b32 v58, s{T0}")
            a(f"v_mov_b32 v60, s{T1}")
            a(f"v_mov_b32 v61, s{NONCE+1}")
            a("s_mov_b64 exec, 1")
            a(f"global_store_dwordx2 v58, v[60:61], s[{SFLAG}:{SFLAG+1}] sc1")
            a("s_mov_b64 exec, -1")
        wave0(a, f)
    first = lambda: emit(a, p1_dma_x(0, 0) + p1_dma_x(1, 0) + p1_dma_w(0) + p1_dma_w(1))
    second = lambda: emit(a, p1_dma_x(0, 1) + p1_dma_x(1, 1) + p1_dma_w(2))
    tile_ids()
    addr_x()
    a("s_waitcnt lgkmcnt(0)")
    if STOP == "p0": a("s_branch KM_FIN")
    panel_srd()
    nstamp(a, "o1")
    emit(a, p1_dma_x(0, 0) + p1_dma_x(1, 0))
    pick()
    addr_w()
    nstamp(a, "o2")
    emit(a, p1_dma_w(0) + p1_dma_w(1))
    common("O")
    srd(a, SACT, 92, 93, 2 << 20)
    srd(a, SPART, P_WS, P_WS + 1, 8 << 20)
    a(f"v_bfe_u32 v{A0}, v{VL}, 1, 2")
    a(f"v_and_b32 v{A1}, 1, v{VL}")
    a(f"v_lshrrev_b32 v{A3}, 3, v{TID}")
    a(f"v_lshlrev_b32 v{VQS}, 11, v{A0}")
    a(f"v_lshl_add_u32 v{VQS}, v{A3}, 5, v{VQS}")
    a(f"v_lshl_add_u32 v{VQS}, v{A1}, 4, v{VQS}")
    a(f"s_lshl_b32 s{T2}, s{S_PB}, 14")
    a(f"s_add_u32 s{T3}, s{T2}, 8192")
    a(f"buffer_load_dwordx4 v[48:51], v{VQS}, s[{SACT}:{SACT+3}], s{T2} offen")
    a(f"buffer_load_dwordx4 v[52:55], v{VQS}, s[{SACT}:{SACT+3}], s{T3} offen")
    second()
    a(f"v_lshrrev_b32 v{A4}, 1, v{A3}")
    a(f"v_lshlrev_b32 v{VQD}, 16, v{A4}")
    a(f"v_and_b32 v{A4}, 1, v{A3}")
    a(f"v_lshl_add_u32 v{VQD}, v{A4}, 10, v{VQD}")
    a(f"v_lshl_add_u32 v{VQD}, v{A0}, 5, v{VQD}")
    a(f"v_lshl_add_u32 v{VQD}, v{A1}, 4, v{VQD}")
    addr_rest()
    final_srd()
    a(f"s_lshr_b32 s{S_CNT}, s{S_PB}, 2")
    a(f"s_lshl_b32 s{S_CNT}, s{S_CNT}, 11")
    a(f"s_and_b32 s{T0}, s{S_PB}, 3")
    a(f"s_lshl_b32 s{T0}, s{T0}, 8")
    a(f"s_add_u32 s{S_CNT}, s{S_CNT}, s{T0}")
    a(f"s_add_u32 s{S_CNT}, s{S_CNT}, {WS_WQP}")
    a("s_waitcnt lgkmcnt(0)")
    nonce()
    nstamp(a, "o3")
    a("s_waitcnt vmcnt(10)")
    nstamp(a, "o4")
    a("s_barrier")
    for x in p1_reads(0): a(x)
    a("s_waitcnt vmcnt(6)")
    a(f"buffer_store_dwordx4 v[48:51], v{VQD}, s[{SPART}:{SPART+3}], s{S_CNT} offen sc1")
    a(f"buffer_store_dwordx4 v[52:55], v{VQD}, s[{SPART}:{SPART+3}], s{S_CNT} offen offset:128 sc1")
    a("s_branch P0_JOIN")
    a.label("P0_EVEN")
    a(f"s_lshl_b32 s{T0}, s{S_PB}, 4")
    a(f"s_add_u32 s{S_AO}, s{T0}, s{S_WAVE}")
    a(f"s_lshl_b32 s{T0}, s{S_AO}, 11")
    a(f"s_add_u32 s{T1}, s{T0}, {8*2048}")
    a(f"v_and_b32 v{A0}, 32, v{VL}")
    a(f"v_xor_b32 v{A0}, v{A0}, v{VKVD}")
    a(f"s_lshl_b32 s{S_RING}, s{S_WAVE}, 13")
    a(f"s_lshl_b32 s{S_CNT}, s{S_WAVE}, 14")
    a("s_waitcnt lgkmcnt(0)")
    if STOP == "p0": a("s_branch KM_FIN")
    srd(a, SX, P_X, P_X + 1, 4 << 20)
    a(f"buffer_load_dwordx4 v[32:35], v{VKVD}, s[{SX}:{SX+3}], s{T0} offen")
    a(f"buffer_load_dwordx4 v[36:39], v{VKVD}, s[{SX}:{SX+3}], s{T0} offen offset:1024")
    a(f"buffer_load_dwordx4 v[40:43], v{VKVD}, s[{SX}:{SX+3}], s{T1} offen")
    a(f"buffer_load_dwordx4 v[44:47], v{VKVD}, s[{SX}:{SX+3}], s{T1} offen offset:1024")
    common("E")
    pick()
    srd(a, SACT, 94, 95, 65536)
    srd(a, SKV, 96, 97, 65536)
    for q in range(4):
        a(f"s_add_u32 m0, s{S_CNT}, {32768 + q*4096}")
        a(f"s_add_u32 s{T0}, s{S_RING}, {(q&1)*4096}")
        r = (SACT, SKV)[q >> 1]
        for i in range(4):
            a(f"buffer_load_dwordx4 v{A0}, s[{r}:{r+3}], s{T0} offen offset:{i*1024} lds")
    srd(a, SPART, P_WS, P_WS + 1, 8 << 20)
    tile_ids()
    panel_srd()
    a(f"s_lshl_b32 s{T0}, s{S_WAVE}, 4")
    a(f"v_lshlrev_b32 v{VTW}, 8, v{VL}")
    a(f"v_add_u32 v{VTW}, s{T0}, v{VTW}")
    addr_x()
    addr_w()
    a(f"v_mov_b32 v{VKS}, v{A2}")
    a(f"s_and_b32 s{T0}, s{S_RP}, 3")
    a(f"v_mul_lo_u32 v{A4}, v{VWS}, s{T0}")
    a(f"v_lshl_add_u64 {v(VTA,2)}, {v(A4,2)}, 0, {v(VWA,2)}")
    a(f"v_lshl_add_u64 {v(VTB,2)}, {v(A4,2)}, 0, {v(VWB,2)}")
    a(f"v_lshrrev_b32 v{VTX}, 4, v{TID}")
    a(f"v_lshlrev_b32 v{VTX}, 11, v{VTX}")
    a(f"v_lshl_add_u32 v{VTX}, v{VT}, 7, v{VTX}")
    a(f"s_lshl_b32 s{T0}, s{S_C2}, 16")
    a(f"v_add_u32 v{VTX}, s{T0}, v{VTX}")
    a(f"s_lshl_b32 s{S_AO}, s{S_AO}, 3")
    a("s_waitcnt lgkmcnt(0)")
    nonce()
    a(f"s_mov_b32 s{T3}, 0xffff0000")
    a("s_waitcnt vmcnt(16)")
    nstamp(a, "xl")
    def ln(r):
        o = []
        I = 32 + 8 * r; X = 64 + 32 * r; C = X + 16; A_ = 52 + 6 * r
        M = A_ + 4
        def wsum(x, t):
            for mod in ("quad_perm:[1,0,3,2]", "quad_perm:[2,3,0,1]", "row_half_mirror", "row_mirror"):
                o.append("NOP2"); o.append(f"v_add_f32_dpp v{x}, v{x}, v{x} {mod} row_mask:0xf bank_mask:0xf")
            for sw in ("v_permlane16_swap_b32", "v_permlane32_swap_b32"):
                o.append(f"v_mov_b32 v{t}, v{x}"); o.append("NOP2"); o.append(f"{sw} v{x}, v{t}"); o.append(f"v_add_f32 v{x}, v{x}, v{t}")
        def rbf(x):
            o.append(f"v_cvt_pk_bf16_f32 v{x}, v{x}, v{x}"); o.append(f"v_and_b32 v{x}, s{T3}, v{x}")
        for k in range(8):
            o.append(f"v_lshlrev_b32 v{X+2*k}, 16, v{I+k}"); o.append(f"v_and_b32 v{X+2*k+1}, s{T3}, v{I+k}")
        o.append(f"v_pk_add_f32 {v(A_,2)}, {v(X,2)}, {v(X+2,2)}"); o.append(f"v_pk_add_f32 {v(A_+2,2)}, {v(X+4,2)}, {v(X+6,2)}")
        for k in (4, 6):
            o.append(f"v_pk_add_f32 {v(A_,2)}, {v(A_,2)}, {v(X+2*k,2)}"); o.append(f"v_pk_add_f32 {v(A_+2,2)}, {v(A_+2,2)}, {v(X+2*k+2,2)}")
        o.append(f"v_pk_add_f32 {v(A_,2)}, {v(A_,2)}, {v(A_+2,2)}"); o.append(f"v_add_f32 v{A_}, v{A_}, v{A_+1}")
        wsum(A_, A_ + 1)
        o.append(f"v_mul_f32 v{M}, 0xba800000, v{A_}")
        for k in range(8): o.append(f"v_pk_add_f32 {v(C+2*k,2)}, {v(X+2*k,2)}, {v(M,2)} op_sel_hi:[1,0]")
        o.append(f"v_pk_mul_f32 {v(A_,2)}, {v(C,2)}, {v(C,2)}"); o.append(f"v_pk_mul_f32 {v(A_+2,2)}, {v(C+2,2)}, {v(C+2,2)}")
        for k in range(2, 8):
            q = A_ + 2 * (k % 2); o.append(f"v_pk_fma_f32 {v(q,2)}, {v(C+2*k,2)}, {v(C+2*k,2)}, {v(q,2)}")
        o.append(f"v_pk_add_f32 {v(A_,2)}, {v(A_,2)}, {v(A_+2,2)}"); o.append(f"v_add_f32 v{A_}, v{A_}, v{A_+1}")
        rbf(M)
        wsum(A_, A_ + 1)
        for k in range(8): o.append(f"v_pk_add_f32 {v(C+2*k,2)}, {v(X+2*k,2)}, {v(M,2)} op_sel_hi:[1,0]")
        o.append(f"v_mul_f32 v{A_}, 0x3a800000, v{A_}"); rbf(A_)
        o.append(f"v_add_f32 v{A_}, 0x3727c5ac, v{A_}"); rbf(A_)
        o.append(f"v_sqrt_f32 v{A_}, v{A_}"); o.append("NOP1"); rbf(A_)
        o.append(f"v_rcp_f32 v{M+1}, v{A_}"); o.append("NOP1")
        for k in range(8): o.append(f"v_pk_mul_f32 {v(C+2*k,2)}, {v(C+2*k,2)}, {v(M,2)} op_sel:[0,1] op_sel_hi:[1,1]")
        for k in range(8): o.append(f"v_cvt_pk_bf16_f32 v{I+k}, v{C+2*k}, v{C+2*k+1}")
        return o
    for x0, x1 in zip(ln(0), ln(1)):
        if x0 == "NOP2": a("s_nop 0")
        elif x0 == "NOP1": pass
        else:
            a(x0); a(x1)
    for r in range(2):
        a(f"ds_write_b128 v{VTW}, {v(32+8*r,4)} offset:{r*128}")
        a(f"ds_write_b128 v{VTW}, {v(36+8*r,4)} offset:{16384 + r*128}")
    a("s_mov_b64 exec, 1")
    a(f"buffer_store_dwordx2 v[56:57], v{VKVD}, s[{SPART}:{SPART+3}], s{S_AO} offen sc1")
    a(f"buffer_store_dwordx2 v[62:63], v{VKVD}, s[{SPART}:{SPART+3}], s{S_AO} offen offset:64 sc1")
    mk_ = ((1 << XL) - 1) * 0x10001
    a(f"s_mov_b32 exec_lo, {mk_}")
    a(f"s_mov_b32 exec_hi, {mk_}")
    a(f"buffer_load_dword v18, v{VTX}, s[{SX}:{SX+3}], 0 offen")
    a("s_mov_b64 exec, -1")
    a(f"global_load_dword v18, {v(VTA,2)}, off")
    a(f"global_load_dword v18, {v(VTB,2)}, off")
    a(f"v_mov_b32 v{A2}, v{VKS}")
    a(f"v_mov_b32 v{A5}, 0")
    addr_rest()
    a(f"s_lshl_b32 s{T0}, s{S_WM}, 14")
    a(f"v_add_u32 v{VFR}, s{T0}, v{VKVD}")
    a(f"s_lshl_b32 s{T1}, s{S_BB}, 13")
    a(f"s_lshl_b32 s{T2}, s{S_P}, 5")
    a(f"s_add_u32 s{T1}, s{T1}, s{T2}")
    a(f"s_lshl_b32 s{T0}, s{S_WM}, 16")
    a(f"s_add_u32 s{T0}, s{T0}, s{T1}")
    a(f"s_add_u32 s{T0}, s{T0}, 32768")
    a(f"v_lshl_add_u32 v{VTR}, v{VQQ}, 3, v{A3}")
    a(f"v_lshlrev_b32 v{VTR}, 6, v{VTR}")
    a(f"v_lshl_add_u32 v{VTR}, v{A2}, 3, v{VTR}")
    a(f"v_add_u32 v{VTR}, s{T0}, v{VTR}")
    a(f"v_and_b32 v{A0}, 16, v{VL}")
    a(f"v_lshlrev_b32 v{A1}, 1, v{A0}")
    a(f"v_xor_b32 v{VTR}, v{VTR}, v{A1}")
    a(f"v_lshrrev_b32 v{VEX}, 1, v{VL}")
    a(f"v_lshlrev_b32 v{VEX}, 6, v{VEX}")
    a(f"v_and_b32 v{A0}, 1, v{VL}")
    a(f"v_lshl_add_u32 v{VEX}, v{A0}, 4, v{VEX}")
    a(f"s_add_u32 s{T1}, s{T1}, {32768 + 7*16384}")
    a(f"v_add_u32 v{VEX}, s{T1}, v{VEX}")
    a(f"v_xor_b32 v{VEX}, v{VEX}, v{A1}")
    a(f"s_lshr_b32 s{S_WDO}, s{S_PB}, 1")
    a(f"s_lshl_b32 s{S_WDO}, s{S_WDO}, 11")
    a(f"s_and_b32 s{T0}, s{S_PB}, 1")
    a(f"s_lshl_b32 s{T1}, s{T0}, 8")
    a(f"s_lshl_b32 s{T2}, s{S_P}, 3")
    a(f"s_add_u32 s{T1}, s{T1}, s{T2}")
    a(f"s_lshl_b32 s{T0}, s{T0}, 10")
    a(f"s_lshl_b32 s{T2}, s{S_P}, 8")
    a(f"s_add_u32 s{T0}, s{T0}, s{T2}")
    a(f"s_add_u32 s{T0}, s{T0}, 0x20000")
    a(f"s_cmp_eq_u32 s{S_BB}, 0")
    a(f"s_cselect_b32 s{T0}, s{T1}, s{T0}")
    a(f"s_cselect_b64 vcc, -1, 0")
    a(f"s_add_u32 s{S_WDO}, s{S_WDO}, s{T0}")
    a(f"s_add_u32 s{S_WDO}, s{S_WDO}, 8192")
    a(f"v_lshlrev_b32 v{A0}, 9, v{VQQ}")
    a(f"v_and_b32 v{A1}, 512, v{A0}")
    a(f"v_lshrrev_b32 v{A2}, 1, v{VQQ}")
    a(f"v_lshl_add_u32 v{A1}, v{A2}, 3, v{A1}")
    a(f"v_cndmask_b32 v{A0}, v{A1}, v{A0}, vcc")
    a(f"v_lshl_add_u32 v{VKS}, v{VT}, 4, v{A0}")
    final_srd()
    a("s_waitcnt vmcnt(5) lgkmcnt(0)")
    a("s_barrier")
    nstamp(a, "b1")
    def rd(u):
        a(f"ds_read_b128 {v(32+4*(u%8),4)}, v{VFR} offset:{u*1024}")
        for h in range(2):
            a(f"ds_read_b64_tr_b16 {v(64+4*u+2*h,2)}, v{VTR} offset:{(u>>2)*16384 + (u&3)*2048 + h*256}")
    for u in range(5): rd(u)
    a(f"s_cmp_lg_u32 s{S_BB}, 0")
    a("s_cbranch_scc1 P0_V")
    for isv in range(2):
        if isv: a.label("P0_V")
        for u in range(16):
            a(f"s_waitcnt lgkmcnt({min(12, 3*(15-u))})")
            x = 32 + 4 * (u % 8); w = 64 + 4 * u; d = (20, 24)[u & 1]
            c = "0" if u < 2 else v(d, 4)
            ab = (x, w) if isv else (w, x)
            a(f"v_mfma_f32_16x16x32_bf16 {v(d,4)}, {v(ab[0],4)}, {v(ab[1],4)}, {c}")
            if u + 5 < 16: rd(u + 5)
        if not isv: a("s_branch P0_MD")
    a.label("P0_MD")
    a("s_nop 7")
    a("v_pk_add_f32 v[20:21], v[20:21], v[24:25]")
    a("v_pk_add_f32 v[22:23], v[22:23], v[26:27]")
    a(f"s_cmp_eq_u32 s{S_WM}, 0")
    a("s_cbranch_scc1 P0_W0")
    a(f"ds_write_b128 v{VEX}, v[20:23]")
    a("s_waitcnt lgkmcnt(0)")
    a.label("P0_W0")
    a("s_barrier")
    nstamp(a, "b2")
    first()
    a(f"s_cmp_lg_u32 s{S_WM}, 0")
    a("s_cbranch_scc1 P0_KVD")
    a(f"ds_read_b128 v[24:27], v{VEX}")
    a("s_waitcnt lgkmcnt(0)")
    a("v_pk_add_f32 v[20:21], v[20:21], v[24:25]")
    a("v_pk_add_f32 v[22:23], v[22:23], v[26:27]")
    a("v_cvt_pk_bf16_f32 v20, v20, v21")
    a("v_cvt_pk_bf16_f32 v21, v22, v23")
    a(f"buffer_store_dwordx2 v[20:21], v{VKS}, s[{SKV}:{SKV+3}], s{S_WDO} offen sc1")
    a.label("P0_KVD")
    a("s_waitcnt vmcnt(2)")
    a("s_barrier")
    for x in p1_reads(0): a(x)
    a("s_waitcnt vmcnt(0)")
    a.label("P0_JOIN")
    srd(a, SPART, P_WS, P_WS + 1, 16384, add_lo=WS_ST)
    vm.add(1, 6)

def gen(a):
    kernel_head(a, NAME)
    a("s_cmp_ge_u32 s2, 256")
    a("s_cbranch_scc1 KM_END")
    stamp(a, 0)
    a(f"s_mov_b32 s{S_ID}, s2")
    a("s_getreg_b32 s3, hwreg(HW_REG_XCC_ID)")
    a("s_and_b32 s3, s3, 1")
    a("s_andn2_b32 s2, s2, 1")
    a("s_or_b32 s2, s2, s3")
    a.label("KM_AGAIN")
    vm = VM()
    gen_p0(a, vm)
    nstamp(a, "fl")
    stamp(a, 1)
    a(f"s_lshl_b32 s{S_CNT}, s{S_KH}, 7")
    a(f"s_add_u32 s{S_CNT}, s{S_CNT}, s{S_PB}")
    a(f"s_lshl_b32 s{S_CNT}, s{S_CNT}, 3")
    a(f"s_add_u32 s{S_CNT}, s{S_CNT}, {F_KV}")
    a(f"s_lshl_b32 s{S_AO}, s{S_RP}, 1")
    a(f"s_add_u32 s{S_AO}, s{S_AO}, s{S_WM}")
    a(f"s_lshl_b32 s{S_AO}, s{S_AO}, 10")
    for i in range(4): a(f"v_mov_b32 v{ONES+i}, 0x3f803f80")
    for i in range(8): a(f"v_mov_b32 v{CS+i}, 0")
    a("s_waitcnt lgkmcnt(0)")
    a("s_barrier")
    nstamp(a, "p1s")
    a(f"s_cmp_lg_u32 s{S_WM}, 0")
    a("s_cbranch_scc1 P1_B")
    if PR1 < 0: a(f"s_setprio {-PR1}")
    gen_p1(a, 0, vm)
    a("s_branch P1_END")
    a.label("P1_B")
    if PR1 > 0: a(f"s_setprio {PR1}")
    gen_p1(a, 1, vm)
    a.label("P1_END")
    if PR1: a("s_setprio 0")
    stamp(a, 2)
    nstamp(a, "p1e")
    if STOP == "p1": a("s_branch KM_FIN")
    for _ in range(int(os.environ.get("X_SHE", 0))): a("s_nop 0")
    CSR = XF + 16
    for t in range(2):
        for st in range(2):
            a(f"ds_read_b128 {v(CSR+(st*2+t)*4,4)}, v{VWP+1} offset:{CSL + (t*512 + st*64 if CSV else t*8192 + st*1024)}")
    a(f"v_lshlrev_b32 v{VHO}, 9, v{VQQ}")
    a(f"v_lshl_add_u32 v{VHO}, v{VT}, 4, v{VHO}")
    a(f"v_add_u32 v{VHO+1}, 0x1000, v{VHO}")
    a(f"s_lshr_b32 s{T0}, s{S_CT}, 1")
    a(f"s_mul_i32 s{T0}, s{T0}, 7")
    a(f"s_and_b32 s{T1}, s{S_CT}, 1")
    a(f"s_lshl_b32 s{T2}, s{T1}, 2")
    a(f"s_add_u32 s{T2}, s{T2}, s{S_WN}")
    a(f"s_cmp_eq_u32 s{S_WN}, 3")
    a(f"s_cselect_b32 s{T2}, 3, s{T2}")
    a(f"s_add_u32 s{T0}, s{T0}, s{T2}")
    a(f"s_lshl_b32 s{T2}, s{S_RP}, 1")
    a(f"s_add_u32 s{T2}, s{T2}, s{S_WM}")
    a(f"s_mul_i32 s{T3}, s{T2}, {ACT_NU}")
    a(f"s_add_u32 s{T0}, s{T0}, s{T3}")
    a(f"s_lshl_b32 s{S_HO}, s{T0}, 13")
    a(f"s_lshl_b32 s{S_XO}, s{S_RP}, 8")
    a(f"s_lshl_b32 s{T3}, s{S_CT}, 3")
    a(f"s_add_u32 s{S_XO}, s{S_XO}, s{T3}")
    a(f"s_add_u32 s{S_XO}, s{S_XO}, {F_H}")
    a("s_waitcnt lgkmcnt(0)")
    for j in range(8): a(f"v_mul_f32 v{XF+32+j}, v{XF+2*j+1}, v{XF+2*j+1}")
    a(f"s_cmp_eq_u32 s{S_WN}, 3")
    a("s_cbranch_scc1 P1_EP3")
    def center(st, t, j):
        g = acc(st, t, j); c = CSR + (st * 2 + t) * 4
        for i in (0, 2): a(f"v_pk_fma_f32 {v(g+i,2)}, {v(c+i,2)}, {v(XF+2*j,2)}, {v(g+i,2)} op_sel_hi:[1,0,1]")
    def hpair(t, j):
        g = acc(0, t, j); u = acc(1, t, j); dst = HS + 4 * j + 2 * t
        r2 = XF + 32 + (j & ~1); sel = "op_sel:[0,1] op_sel_hi:[1,1]" if j & 1 else "op_sel_hi:[1,0]"
        center(0, t, j); center(1, t, j)
        for i in range(4): a(f"v_max_f32 v{g+i}, 0, v{g+i}")
        for i in (0, 2): a(f"v_pk_mul_f32 {v(u+i,2)}, {v(u+i,2)}, {v(r2,2)} {sel}")
        for i in (0, 2): a(f"v_pk_mul_f32 {v(g+i,2)}, {v(g+i,2)}, {v(u+i,2)}")
        for i in (2, 0): a(f"v_cvt_pk_bf16_f32 v{dst+i//2}, v{g+i}, v{g+i+1}")
    def hst(j, n):
        off = (j >> 1) * 2048 + (j & 1) * 256
        a(f"buffer_store_dwordx{n} {v(HS+4*j,n)}, v{VHO + (off>>12)}, s[{SACT}:{SACT+3}], s{S_HO} offen offset:{off & 4095} sc1")
    for j in range(8):
        hpair(1, j); hpair(0, j)
        if j % HSTEP == 0 and j // HSTEP < NE: hst(j // HSTEP, 4)
    a("s_branch P1_EPD")
    a.label("P1_EP3")
    a(f"s_lshl_b32 s{S_CNT}, s{S_WM}, 13")
    a(f"v_add_u32 v24, s{S_CNT}, v{VHO}")
    for j in range(8): a(f"v_mul_f32 v{XF+2*j+1}, {QSCALE}, v{XF+2*j+1}")
    for j in range(8):
        tmp = XF + 40 + 4 * (j & 3)
        for st in range(2):
            g = acc(st, 1, j)
            center(st, 1, j)
            for i in (0, 2): a(f"v_pk_mul_f32 {v(g+i,2)}, {v(g+i,2)}, {v(XF+2*j,2)} op_sel:[0,1] op_sel_hi:[1,1]")
            for i in (0, 2): a(f"v_cvt_pk_bf16_f32 v{tmp+2*st+i//2}, v{g+i}, v{g+i+1}")
        a(f"ds_write_b128 v24, {v(tmp,4)} offset:{QLDS + (j>>1)*2048 + (j&1)*256}")
    a(f"s_lshl_b32 s{T1}, s{T1}, 3")
    a(f"s_add_u32 s{S_HO}, s{S_HO}, s{T1}")
    for j in range(8):
        hpair(0, j)
        if j % HSTEP == 0 and j // HSTEP < NE: hst(j // HSTEP, 2)
    a.label("P1_EPD")
    srd(a, SPART, P_WS, P_WS + 1, 8 << 20, add_lo=WS_PART)
    a(f"s_lshl_b32 s{T3}, s{S_WAVE}, 10")
    a(f"v_add_u32 v{VPA}, s{T3}, v{VKVD}")
    a(f"v_lshlrev_b32 v3, 1, v{VQQ}")
    a(f"v_xor_b32 v3, v3, v{VT}")
    a("v_lshlrev_b32 v3, 4, v3")
    a(f"v_lshl_add_u32 v3, v{VQQ}, 11, v3")
    a(f"s_lshl_b32 s{T0}, s{S_WAVE}, 13")
    a(f"s_lshl_b32 s{T1}, s{S_C2}, 8")
    a(f"s_add_u32 s{T0}, s{T0}, s{T1}")
    a(f"s_lshl_b32 s{T1}, s{S_P}, 7")
    a(f"v_xor_b32 v{VPW}, s{T1}, v3")
    a(f"v_add_u32 v{VPW}, s{T0}, v{VPW}")
    a(f"s_mul_i32 s{T0}, s{S_G}, {ACT_NU}")
    a(f"s_mul_i32 s{T1}, s{S_KH}, 56")
    a(f"s_add_u32 s{T0}, s{T0}, s{T1}")
    a(f"s_lshl_b32 s{S_AO}, s{T0}, 13")
    a(f"s_lshl_b32 s{S_WDO}, s{T1}, 16")
    a(f"s_mov_b32 s{S_RING}, 0")
    a(f"v_lshlrev_b32 v{VTCH}, 6, v{VL}")
    a(f"s_lshr_b32 s{T0}, s2, 3")
    a(f"s_lshl_b32 s{T0}, s{T0}, 12")
    a(f"s_add_u32 s{S_TW}, s{S_WDO}, s{T0}")
    a(f"s_lshl_b32 s{T0}, s{S_C2}, 12")
    a(f"s_add_u32 s{S_TA}, s{S_AO}, s{T0}")
    a(f"v_lshlrev_b32 v26, 11, v{VT}")
    a(f"v_and_b32 v27, 1, v{VQQ}")
    a("v_lshl_add_u32 v26, v27, 5, v26")
    a(f"v_lshrrev_b32 v27, 1, v{VQQ}")
    a(f"v_lshl_add_u32 v{VXA}, v27, 4, v26")
    for j in range(1, 4): a(f"v_add_u32 v{VXA+j}, {j*32768}, v{VXA}")
    a(f"s_lshl_b32 s{S_ISV}, s{S_G}, 18")
    a(f"s_lshl_b32 s{T0}, s{S_BB}, 17")
    a(f"s_add_u32 s{S_ISV}, s{S_ISV}, s{T0}")
    a(f"s_lshl_b32 s{T0}, s{S_C2}, 8")
    a(f"s_add_u32 s{S_ISV}, s{S_ISV}, s{T0}")
    a(f"s_lshl_b32 s{T0}, s{S_KH}, 7")
    a(f"s_add_u32 s{S_ISV}, s{S_ISV}, s{T0}")
    a(f"s_lshl_b32 s{T0}, s{S_P}, 6")
    a(f"s_add_u32 s{S_ISV}, s{S_ISV}, s{T0}")
    srd(a, SX, P_X, P_X + 1, 4 << 20)
    if STASH:
        a(f"v_lshrrev_b32 v22, 3, v{VL}")
        a("v_lshlrev_b32 v22, 11, v22")
        a(f"v_lshlrev_b32 v23, 1, v{VQQ}")
        a(f"v_and_b32 v25, 7, v{VL}")
        a("v_xor_b32 v23, v23, v25")
        a("v_lshl_add_u32 v22, v23, 4, v22")
        a(f"s_lshl_b32 s{T0}, s{S_WN}, 14")
        a(f"s_lshl_b32 s{T1}, s{S_C2}, 8")
        a(f"s_add_u32 s{T0}, s{T0}, s{T1}")
        a(f"s_lshl_b32 s{T1}, s{S_KH}, 7")
        a(f"s_add_u32 s{T0}, s{T0}, s{T1}")
        a(f"v_add_u32 v12, s{T0}, v22")
    a(f"v_lshrrev_b32 v25, 2, v{VL}")
    a(f"v_xor_b32 v25, v25, v{VQQ}")
    a("v_and_b32 v25, 1, v25")
    a(f"v_and_b32 v26, 3, v{VL}")
    a("v_or_b32 v25, v25, v26")
    a("v_cmp_eq_u32 vcc, 0, v25")
    a("v_mov_b32 v26, 0x3f803f80")
    a("v_mov_b32 v27, 0")
    a(f"s_waitcnt vmcnt({NE}) lgkmcnt(0)")
    a("s_barrier")
    a(f"ds_read_b128 {v(QF,4)}, v{VWP} offset:{QLDS}")
    a(f"ds_read_b128 {v(QF+4,4)}, v{VWP} offset:{QLDS+1024}")
    for b in range(2):
        for s_ in range(2):
            a(f"ds_read_b128 {v(KB+8*b+4*s_,4)}, v{VKVR} offset:{0x4000 + (2+b)*2048 + s_*1024}")
    for i in range(4): a(f"v_cndmask_b32 v{SEL+i}, v27, v26, vcc")
    for i in range(4): a(f"v_mov_b32 v{RS+i}, 0")
    for i in range(16): a(f"v_mov_b32 v{OA+i}, 0")
    a("s_waitcnt lgkmcnt(0)")
    a(mf32(SB, KB, QF, "0"))
    a(mf32(SB, KB + 4, QF + 4, v(SB, 16)))
    a("s_nop 11")
    a(f"v_max3_f32 v26, v{SB}, v{SB+1}, v{SB+2}")
    for i in range(3, 15, 2): a(f"v_max3_f32 v26, v26, v{SB+i}, v{SB+i+1}")
    a(f"v_max_f32 v26, v26, v{SB+15}")
    a("v_mov_b32 v27, v26")
    a("s_nop 1")
    a("v_permlane32_swap_b32 v26, v27")
    a("s_nop 0")
    a("v_max_f32 v26, v26, v27")
    for i in range(16): a(f"v_sub_f32 v{NM+i}, 0, v26")
    for i in range(16): a(f"v_sub_f32 v{SB+i}, v{SB+i}, v26")
    stamp(a, 3)
    if PR2:
        a(f"s_cmp_{'lg' if PR2 > 0 else 'eq'}_u32 s{S_WM}, 0")
        a("s_cbranch_scc0 P2_NP")
        a(f"s_setprio {abs(PR2)}")
        a.label("P2_NP")
    def pollH():
        a(f"s_lshr_b32 s{T0}, s{S_G}, 1")
        a(f"s_lshl_b32 s{T0}, s{T0}, 8")
        a(f"s_lshl_b32 s{T1}, s{S_KH}, 7")
        a(f"s_add_u32 s{T0}, s{T0}, s{T1}")
        a(f"s_add_u32 s{T0}, s{T0}, {F_H}")
        poll_issue(a, T0, 16)
    for _ in range(int(os.environ.get("X_SH2", 0))): a("s_nop 0")
    rest = list(range(NE, 8)); prev = NE
    for E in range(4):
        mine, rest = rest[:2], rest[2:]
        att_epoch(a, E, first=(E == 0), wait=prev, x1=wo_stash(5 * (E - 2), 5) if E >= 2 else (), x2=h_store(mine[0]) if mine else (), x3=h_store(mine[1]) if len(mine) > 1 else ())
        prev = len(mine)
    att_epoch(a, 4, wait=prev, x1=wo_stash(10, 5))
    att_epoch(a, 5, post=lambda: wave0(a, lambda: flag_set(a, S_XO)), x1=touch_wo() if FART else ())
    att_epoch(a, 6, wait=int(FART > 0), x1=touch_w(20) if FART else ())
    xl = [f"s_cmp_lg_u32 s{S_WM}, 0", "s_cbranch_scc1 P2_NX"] + [f"buffer_load_dwordx4 {v(XR+4*j,4)}, v{VXA+j}, s[{SX}:{SX+3}], s{S_ISV} offen" for j in range(4)] + ["P2_NX:"]
    if HL == 0:
        att_epoch(a, 7, wait=int(FART > 0), post=lambda: wave0(a, pollH), x1=touch_w(12))
        att_epoch(a, 8, wait=1, post=lambda: wave0(a, lambda: poll_check(a)), x1=touch_w(4))
        att_epoch(a, 9, prefill=2, wait=1, x3=touch_a(6))
        att_epoch(a, 10, prefill=2, wait=5)
        att_epoch(a, 11, prefill=2, wait=4)
        att_epoch(a, 12, prefill=2, wait=4, x3=touch_a(0))
        att_epoch(a, 13, wait=5)
        att_epoch(a, 14, x1=[xl])
    else:
        att_epoch(a, 7, wait=int(FART > 0), x1=touch_w(12))
        att_epoch(a, 8, wait=1, x1=[xl] + wo_stash(15, 5))
        att_epoch(a, 9, post=lambda: wave0(a, pollH), x1=touch_w(4))
        att_epoch(a, 10, wait=1, post=lambda: wave0(a, lambda: poll_check(a)))
        att_epoch(a, 11, prefill=2, x3=touch_a(6))
        att_epoch(a, 12, prefill=2, wait=5, x3=touch_a(0))
        att_epoch(a, 13, prefill=2, wait=5)
        att_epoch(a, 14, prefill=2, wait=4)
    att_epoch(a, 15, last=True)
    a("s_waitcnt lgkmcnt(0)")
    a(mf32(OA, VB + 8, PB + 8, v(OA, 16)))
    a(mfrs(PB + 8))
    a(mf32(OA, VB + 12, PB + 12, v(OA, 16)))
    a(mfrs(PB + 12))
    a(f"s_add_u32 s{S_XO}, s{S_XO}, {F_O - F_H}")
    a(f"s_lshl_b32 s{T0}, s{S_RP}, 1")
    a(f"s_add_u32 s{T0}, s{T0}, s{S_WM}")
    a(f"s_mul_i32 s{T0}, s{T0}, {ACT_NU}")
    a(f"s_add_u32 s{T0}, s{T0}, s{S_CT}")
    a(f"s_add_u32 s{T0}, s{T0}, 112")
    a(f"s_lshl_b32 s{T0}, s{T0}, 13")
    a(f"s_lshl_b32 s{T1}, s{S_WN}, 11")
    a(f"s_add_u32 s{S_CNT}, s{T0}, s{T1}")
    a("s_nop 4")
    a(f"v_mul_f32 v26, 0, v{RS}")
    for i in range(16): a(f"v_fma_f32 v26, v{OA+i}, 0, v26")
    a("v_cmp_u_f32 vcc, v26, v26")
    a("s_cmp_lg_u64 vcc, 0")
    a("s_cbranch_scc1 P2_SLOW")
    a.label("P2_FIN")
    a(f"v_rcp_f32 v26, v{RS}")
    a("s_nop 0")
    for i in range(16): a(f"v_mul_f32 v{OA+i}, v{OA+i}, v26")
    for k, base in enumerate((0, 8, 4, 12)):
        a(f"v_cvt_pk_bf16_f32 v{PB+2*k}, v{OA+base}, v{OA+base+1}")
        a(f"v_cvt_pk_bf16_f32 v{PB+2*k+1}, v{OA+base+2}, v{OA+base+3}")
    a(f"buffer_store_dwordx4 {v(PB,4)}, v{VKVD}, s[{SACT}:{SACT+3}], s{S_CNT} offen sc1")
    a(f"buffer_store_dwordx4 {v(PB+4,4)}, v{VKVD}, s[{SACT}:{SACT+3}], s{S_CNT} offen offset:1024 sc1")
    stamp(a, 4)
    if PR2: a("s_setprio 0")
    import mk3
    mk3.gen_p3(a)
    a.label("P2_SLOW")
    a(f"s_mov_b32 s{T0}, 8192")
    a(f"v_mov_b32 v27, 0xff800000")
    a(f"v_mov_b32 v{RS}, 0")
    for i in range(16): a(f"v_mov_b32 v{OA+i}, 0")
    a.label("P2_SL")
    a(f"s_add_u32 s{T1}, s{T0}, 0x20000")
    a(f"buffer_load_dwordx4 {v(KB,4)}, v{VKVD}, s[{SKV}:{SKV+3}], s{T0} offen sc1")
    a(f"buffer_load_dwordx4 {v(KB+4,4)}, v{VKVD}, s[{SKV}:{SKV+3}], s{T0} offen offset:1024 sc1")
    a(f"buffer_load_dwordx4 {v(VB,4)}, v{VKVD}, s[{SKV}:{SKV+3}], s{T1} offen sc1")
    a(f"buffer_load_dwordx4 {v(VB+4,4)}, v{VKVD}, s[{SKV}:{SKV+3}], s{T1} offen offset:1024 sc1")
    a("s_waitcnt vmcnt(0)")
    a(mf32(SB, KB, QF, "0"))
    a(mf32(SB, KB + 4, QF + 4, v(SB, 16)))
    a("s_nop 15")
    a(f"v_max3_f32 v26, v27, v{SB}, v{SB+1}")
    for i in range(2, 16, 2): a(f"v_max3_f32 v26, v26, v{SB+i}, v{SB+i+1}")
    a("v_mov_b32 v28, v26")
    a("s_nop 1")
    a("v_permlane32_swap_b32 v26, v28")
    a("s_nop 0")
    a("v_max_f32 v26, v26, v28")
    a("v_sub_f32 v28, v27, v26")
    a("v_exp_f32 v28, v28")
    a("v_mov_b32 v27, v26")
    for i in range(16): a(f"v_sub_f32 v{SB+i}, v{SB+i}, v26")
    for i in range(16): a(f"v_exp_f32 v{SB+i}, v{SB+i}")
    for i in range(16): a(f"v_mul_f32 v{OA+i}, v{OA+i}, v28")
    a(f"v_mul_f32 v{RS}, v{RS}, v28")
    for i in range(8): a(f"v_cvt_pk_bf16_f32 v{PB+i}, v{SB+2*i}, v{SB+2*i+1}")
    a("s_nop 1")
    a(mf32(OA, VB, PB, v(OA, 16)))
    a(mfrs(PB))
    a(mf32(OA, VB + 4, PB + 4, v(OA, 16)))
    a(mfrs(PB + 4))
    a("s_nop 15")
    a(f"s_add_u32 s{T0}, s{T0}, 2048")
    a(f"s_cmp_lt_u32 s{T0}, {8192 + 64*2048}")
    a("s_cbranch_scc1 P2_SL")
    a("s_branch P2_FIN")
    a.label("KM_REDO")
    a("s_waitcnt vmcnt(0) lgkmcnt(0)")
    a("s_barrier")
    a(f"s_mov_b32 s2, s{S_ID}")
    a("v_mbcnt_lo_u32_b32 v0, -1, 0")
    a("v_mbcnt_hi_u32_b32 v0, -1, v0")
    a(f"v_lshl_add_u32 v0, s{S_WAVE}, 6, v0")
    a("s_branch KM_AGAIN")
    a.label("KM_FIN")
    if STAMPS: a("s_waitcnt vmcnt(0)")
    stamp(a, 7)
    stamp_flush(a, 0, 8, P_WS, S_WAVE)
    a.label("KM_END")
    a("s_endpgm")
    return dict(name=NAME, grid=256, block=512, lds=int(os.environ.get('X_LDS', 163840)), vgpr=256, sgpr=102)
```
